```python
import torch

def _softmax(x, axis=-1):
    return torch.softmax(x, dim=axis)
def _gelu(x):
    return torch.nn.functional.gelu(x, approximate="tanh")
def _silu(x):
    return torch.nn.functional.silu(x)
def _sigmoid(x):
    return torch.sigmoid(x)
def _layernorm(x, axis=-1, eps=1e-5):
    m = x.mean(dim=axis, keepdim=True)
    v = x.var(dim=axis, keepdim=True, unbiased=False)
    return (x - m) / torch.sqrt(v + eps)
def _scatter_add(tgt, idx, src, axis=0):
    return tgt.clone().index_add_(axis, idx, src)
def _segment_sum(src, seg, n):
    out = torch.zeros((n,) + src.shape[1:], dtype=src.dtype)
    return out.index_add_(0, seg, src)
def _pad(x, pw):
    flat = tuple(v for pair in reversed(pw) for v in pair)
    return torch.nn.functional.pad(x, flat)

kernel_name = 'concat_heads__mha_block_cached__gqa_block_cached__near_ridge'

def setup_inputs():

    _w = (lambda a: (lambda t: t.to(torch.bfloat16) if t.is_floating_point() else t)(torch.as_tensor(a)))
    def _A_setup():
        B, Sq, D = 8, 112, 1024
        H, Sk, Dh = 32, 512, 128
        return {
            "x": _w((lambda *s: torch.randn(*s, dtype=torch.bfloat16) * 0.8)(B, Sq, D)),
            "k_cache": _w((lambda *s: torch.randn(*s, dtype=torch.bfloat16) * 0.8)(B, H, Sk, Dh)),
            "v_cache": _w((lambda *s: torch.randn(*s, dtype=torch.bfloat16) * 0.05)(B, H, Sk, Dh)),
            "wq": _w((lambda *s: torch.randn(*s, dtype=torch.bfloat16) * 0.8)(D, H * Dh) * (D ** -0.5)),
            "wo": _w((lambda *s: torch.randn(*s, dtype=torch.bfloat16) * 0.05)(H * Dh, D) * ((H * Dh) ** -0.5)),
        }
    _A_in = _A_setup()

    def _B_setup():
        B, Sq, D = 8, 112, 1024
        Hq, Hkv, Sk, Dh = 32, 32, 512, 128
        assert Hq % Hkv == 0, (Hq, Hkv)
        return {
            "x": _w((lambda *s: torch.randn(*s, dtype=torch.bfloat16) * 0.8)(B, Sq, D)),
            "k_cache": _w((lambda *s: torch.randn(*s, dtype=torch.bfloat16) * 0.8)(B, Hkv, Sk, Dh)),
            "v_cache": _w((lambda *s: torch.randn(*s, dtype=torch.bfloat16) * 0.05)(B, Hkv, Sk, Dh)),
            "wq": _w((lambda *s: torch.randn(*s, dtype=torch.bfloat16) * 0.8)(D, Hq * Dh) * (D ** -0.5)),
            "wo": _w((lambda *s: torch.randn(*s, dtype=torch.bfloat16) * 0.05)(Hq * Dh, D) * ((Hq * Dh) ** -0.5)),
        }
    _B_in = _B_setup()

    return {
        "A_x": _A_in["x"],
        "A_k_cache": _A_in["k_cache"],
        "A_v_cache": _A_in["v_cache"],
        "A_wq": _A_in["wq"],
        "A_wo": _A_in["wo"],
        "B_x": _B_in["x"],
        "B_k_cache": _B_in["k_cache"],
        "B_v_cache": _B_in["v_cache"],
        "B_wq": _B_in["wq"],
        "B_wo": _B_in["wo"],
    }

def reference(A_x, A_k_cache, A_v_cache, A_wq, A_wo, B_x, B_k_cache, B_v_cache, B_wq, B_wo):
    def _A_ref(x, k_cache, v_cache, wq, wo):
        B, Sq, D = x.shape
        H, Dh = 32, 128
        q = (lambda x, *d: x.permute(*d))((x @ wq).reshape(B, Sq, H, Dh), 0, 2, 1, 3)
        scores = torch.einsum("bhqd,bhkd->bhqk", q, k_cache) * (Dh ** -0.5)
        p = _softmax(scores, axis=-1)
        o = torch.einsum("bhqk,bhkd->bhqd", p, v_cache)
        return (lambda x, *d: x.permute(*d))(o, 0, 2, 1, 3).reshape(B, Sq, H * Dh) @ wo

    def _B_ref(x, k_cache, v_cache, wq, wo):
        B, Sq, D = x.shape
        Hq, Dh = 32, 128
        Hkv = k_cache.shape[1]
        rep = Hq // Hkv
        q = (lambda x, *d: x.permute(*d))((x @ wq).reshape(B, Sq, Hq, Dh), 0, 2, 1, 3)
        k = (lambda x, n, axis: torch.repeat_interleave(x, n, dim=axis))(k_cache, rep, axis=1)
        v = (lambda x, n, axis: torch.repeat_interleave(x, n, dim=axis))(v_cache, rep, axis=1)
        scores = torch.einsum("bhqd,bhkd->bhqk", q, k) * (Dh ** -0.5)
        p = _softmax(scores, axis=-1)
        o = torch.einsum("bhqk,bhkd->bhqd", p, v)
        return (lambda x, *d: x.permute(*d))(o, 0, 2, 1, 3).reshape(B, Sq, Hq * Dh) @ wo

    a = _A_ref(A_x, A_k_cache, A_v_cache, A_wq, A_wo)
    b = _B_ref(B_x, B_k_cache, B_v_cache, B_wq, B_wo)
    return torch.concatenate([a, b], axis=-1)
```

```python
NAME = "concat_heads__mha_block_cached__gqa_block_cached__near_ridge"
STAMP_OFF = 255 << 20

class A:
    def __init__(self):
        self.l = []
        self.uid = 0
    def __call__(self, s):
        for line in s.split("\n"):
            line = line.strip()
            if line: self.l.append(("" if line.endswith(":") else "    ") + line)
    def label(self, base):
        self.uid += 1
        return f"L_{base}_{self.uid}"
    def text(self):
        return "\n".join(self.l) + "\n"

def vr(b, n=1, p="v"):
    return f"{p}{b}" if n == 1 else f"{p}[{b}:{b+n-1}]"
def sr(b, n=1):
    return vr(b, n, "s")
def ar(b, n=1):
    return vr(b, n, "a")

def kernel_head(name):
    return f""".text
.globl {name}
.p2align 8
.type {name},@function
{name}:
"""

def kernel_desc(name, vgpr, accum, sgpr=102):
    return f""".section .rodata,"a"
.p2align 6
.amdhsa_kernel {name}
  .amdhsa_next_free_vgpr {vgpr}
  .amdhsa_next_free_sgpr {sgpr}
  .amdhsa_accum_offset {accum}
  .amdhsa_group_segment_fixed_size 0
  .amdhsa_kernarg_size 104
  .amdhsa_user_sgpr_count 2
  .amdhsa_user_sgpr_kernarg_segment_ptr 1
  .amdhsa_system_sgpr_workgroup_id_x 1
  .amdhsa_float_denorm_mode_32 3
.end_amdhsa_kernel
"""

def srd(a, d, base_lo, base_hi, nbytes):
    a(f"s_mov_b32 s{d}, {base_lo}")
    a(f"s_and_b32 s{d+1}, {base_hi}, 0xffff")
    a(f"s_mov_b32 s{d+2}, {nbytes}")
    a(f"s_mov_b32 s{d+3}, 0x00020000")
```

```python
import sys, math
from asmlib import *

class Cfg:
    stamps = False
    kv_pol = "nt"
    w_pol = ""
    touch = True

def pol(p): return (" " + p) if p else ""

def stamp(a, cfg, i):
    if cfg.stamps:
        a(f"s_memrealtime s[{64+2*i}:{65+2*i}]\ns_memtime s[{80+2*i}:{81+2*i}]")

def stamp_store(a, cfg, wsS, wgoff):
    if not cfg.stamps: return
    a(f"s_waitcnt lgkmcnt(0)\ns_add_u32 s3, s2, {wgoff}\ns_lshl_b32 s3, s3, 7\ns_add_u32 s3, s3, {STAMP_OFF}\nv_mov_b32 v1, s3")
    for q in range(8):
        for j in range(4): a(f"v_mov_b32 v{4+j}, s{64+4*q+j}")
        a(f"buffer_store_dwordx4 v[4:7], v1, s[{wsS}:{wsS+3}], 0 offen offset:{16*q}\ns_nop 2")
    a("s_waitcnt vmcnt(0)")

def load_args(a):
    a("""
    s_load_dwordx16 s[4:19], s[0:1], 0
    s_load_dwordx8 s[20:27], s[0:1], 64
    s_load_dwordx2 s[28:29], s[0:1], 96
    """)

def srd_off(a, d, lo, hi, off_reg, nbytes):
    a(f"s_add_u32 s{d}, {lo}, {off_reg}\ns_addc_u32 s{d+1}, {hi}, 0\ns_and_b32 s{d+1}, s{d+1}, 0xffff")
    a(f"s_mov_b32 s{d+2}, {nbytes}\ns_mov_b32 s{d+3}, 0x00020000")

X0, WQ0 = 0, 28672
KT, VT = 8448, 8704
HSTEP = KT + VT
SLOT = [94208, 128512, 0, 34304]
SX, SW, SK, SV, SO, SWS = 36, 40, 44, 48, 52, 56

def k1(cfg):
    a = A()
    a("s_cmp_ge_u32 s2, 256\ns_cbranch_scc1 K1_end")
    stamp(a, cfg, 0)
    load_args(a)
    a("""
    v_lshrrev_b32 v1, 6, v0
    v_and_b32 v0, 63, v0
    v_readfirstlane_b32 s3, v1
    s_and_b32 s30, s2, 7
    s_lshr_b32 s31, s2, 3
    s_lshr_b32 s32, s30, 2          ; branch
    s_and_b32 s33, s30, 3
    s_lshl_b32 s33, s33, 2
    s_and_b32 s34, s31, 3
    s_add_u32 s33, s33, s34
    s_lshr_b32 s34, s31, 2          ; batch
    s_waitcnt lgkmcnt(0)
    s_cmp_eq_u32 s32, 0
    s_cselect_b64 s[4:5], s[4:5], s[14:15]
    s_cselect_b64 s[6:7], s[6:7], s[16:17]
    s_cselect_b64 s[8:9], s[8:9], s[18:19]
    s_cselect_b64 s[10:11], s[10:11], s[20:21]
    s_mul_i32 s35, s34, 229376
    """)
    srd_off(a, SX, "s4", "s5", "s35", 229376)
    a("s_lshl_b32 s35, s33, 9\ns_sub_u32 s60, 0x800000, s35")
    srd_off(a, SW, "s10", "s11", "s35", "s60")
    a("s_lshl_b32 s35, s34, 22\ns_lshl_b32 s60, s33, 18\ns_add_u32 s35, s35, s60")
    srd_off(a, SK, "s6", "s7", "s35", 262144)
    srd_off(a, SV, "s8", "s9", "s35", 262144)
    a("""
    s_lshl_b32 s35, s32, 3
    s_add_u32 s35, s35, s34
    s_lshl_b32 s35, s35, 5
    s_lshl_b32 s60, s33, 1
    s_add_u32 s35, s35, s60
    s_lshr_b32 s60, s3, 2
    s_add_u32 s35, s35, s60
    s_mul_i32 s35, s35, 28672
    """)
    srd_off(a, SO, "s28", "s29", "s35", 28672)
    if cfg.stamps: srd(a, SWS, "s28", "s29", 0x10000000)
    a("""
    v_lshrrev_b32 v4, 4, v0
    v_and_b32 v5, 15, v0
    v_lshlrev_b32 v6, 11, v4
    v_lshl_add_u32 v3, v5, 4, v6
    v_and_b32 v7, 1, v4
    v_xor_b32 v7, v7, v5
    v_lshl_add_u32 v2, v7, 4, v6
    s_and_b32 s61, s3, 3
    s_cmp_ge_u32 s3, 4
    s_cbranch_scc1 K1_loader
    """)
    ACC = 16; FB = 128
    if cfg.touch:
        a("""
        v_lshrrev_b32 v4, 5, v0
        v_lshlrev_b32 v4, 6, v4
        v_bfe_u32 v5, v0, 2, 3
        v_add_u32 v4, v4, v5
        s_lshl_b32 s35, s34, 3
        v_add_u32 v4, s35, v4
        v_lshlrev_b32 v4, 13, v4
        v_and_b32 v5, 3, v0
        v_lshl_add_u32 v4, v5, 7, v4
        v_lshrrev_b32 v5, 1, v0
        s_and_b32 s35, s33, 3
        s_mul_i32 s35, s35, 28
        v_add_u32 v5, s35, v5
        v_lshlrev_b32 v5, 11, v5
        v_and_b32 v6, 1, v0
        v_lshl_add_u32 v5, v6, 7, v5
        v_mov_b32 v6, 0x7fffffff
        v_cmp_gt_u32 vcc, 56, v0
        s_lshl_b32 s35, s61, 20
        s_lshl_b32 s60, s61, 8
        v_cndmask_b32 v5, v6, v5, vcc
        """)
        for n in range(2):
            a(f"buffer_load_dword v8, v4, s[{SW}:{SW+3}], s35 offen{pol(cfg.w_pol)}")
            a(f"buffer_load_dword v8, v5, s[{SX}:{SX+3}], s60 offen{pol(cfg.w_pol)}")
            if n == 0: a("s_add_u32 s35, s35, 0x400000\ns_add_u32 s60, s60, 1024")
    a("s_mul_i32 s62, s61, 1056\ns_mul_i32 s63, s61, 1088\ns_lshl_b32 s60, s61, 8")
    for st in range(2):
        for hd in range(2):
            for n in range(2):
                g = hd * 131072 + st * 8192 + n * 1024
                a(f"s_add_u32 m0, s62, {SLOT[st] + hd*HSTEP + n*4*1056}\ns_add_u32 s35, s60, {g}")
                a(f"buffer_load_dwordx4 v2, s[{SK}:{SK+3}], s35 offen{pol(cfg.kv_pol)} lds")
                a(f"s_add_u32 m0, s63, {SLOT[st] + hd*HSTEP + KT + n*4*1088}\ns_nop 0")
                a(f"buffer_load_dwordx4 v3, s[{SV}:{SV+3}], s35 offen{pol(cfg.kv_pol)} lds")
    a(f"""
    v_lshrrev_b32 v4, 4, v0         ; g4
    v_bfe_u32 v5, v0, 2, 2          ; r
    v_and_b32 v6, 3, v0             ; c
    v_lshl_add_u32 v7, v4, 3, v5
    v_lshlrev_b32 v7, 9, v7         ; (8*g4+r)*512
    v_lshrrev_b32 v9, 1, v6
    v_lshl_add_u32 v7, v9, 4, v7
    v_and_b32 v9, 1, v6
    v_lshl_add_u32 v7, v9, 3, v7
    s_lshr_b32 s35, s61, 1
    s_lshl_b32 s35, s35, 8
    s_add_u32 s35, s35, {WQ0}
    v_add_u32 v7, s35, v7
    v_and_b32 v9, 1, v4
    v_lshl_or_b32 v9, v9, 2, v5     ; f
    s_and_b32 s35, s61, 1
    s_lshl_b32 s35, s35, 2
    v_xor_b32 v9, s35, v9
    """)
    for t in range(4):
        a(f"v_xor_b32 v1, {t}, v9\nv_lshl_add_u32 v{10+t}, v1, 5, v7")
    a("""
    v_and_b32 v5, 15, v0
    v_lshrrev_b32 v6, 1, v5
    v_xor_b32 v6, v6, v4
    v_lshlrev_b32 v5, 7, v5
    v_lshl_add_u32 v14, v6, 4, v5
    v_xor_b32 v15, 64, v14
    """)
    for i in range(112): a(f"v_mov_b32 v{ACC+i}, 0")
    def reads(u):
        fb = FB + 44 * (u & 1); r = []
        for t in range(4):
            for j in range(2):
                r.append(f"ds_read_b64_tr_b16 {vr(fb+4*t+2*j,2)}, v{10+t} offset:{(u%4)*16384 + j*2048}")
        xs = [f"ds_read_b128 {vr(fb+16+4*qt,4)}, v{14+(u&1)} offset:{((u>>1)&1)*14336 + qt*2048}" for qt in range(7)]
        return r[:2] + xs[:1] + r[2:] + xs[1:]
    a("s_barrier")
    stamp(a, cfg, 1)
    for r in reads(0): a(r)
    a("s_mov_b32 s35, 0\nK1_gloop:")
    for u in range(4):
        fb = FB + 44 * (u & 1)
        a("s_waitcnt lgkmcnt(0)\ns_barrier")
        rd = reads(u + 1)
        for qt in range(7):
            for t in range(4):
                acc = ACC + 4 * (t * 7 + qt)
                a(f"v_mfma_f32_16x16x32_bf16 {vr(acc,4)}, {vr(fb+4*t,4)}, {vr(fb+16+4*qt,4)}, {vr(acc,4)}")
                if rd: a(rd.pop(0))
    a("s_add_u32 s35, s35, 1\ns_cmp_lt_u32 s35, 8\ns_cbranch_scc1 K1_gloop")
    stamp(a, cfg, 2)
    c = (128 ** -0.5) * math.log2(math.e)
    import struct
    cbits = struct.unpack("<I", struct.pack("<f", c))[0]
    a(f"""
    s_mov_b32 s35, {cbits:#x}
    v_and_b32 v5, 15, v0
    v_lshlrev_b32 v5, 4, v5
    v_lshrrev_b32 v6, 5, v0
    v_lshl_add_u32 v5, v6, 9, v5
    v_bfe_u32 v6, v0, 4, 1
    v_lshl_add_u32 v5, v6, 3, v5
    s_lshr_b32 s60, s61, 1
    s_lshl_b32 s60, s60, 15
    s_and_b32 s62, s61, 1
    s_lshl_b32 s62, s62, 12
    s_add_u32 s60, s60, s62
    v_add_u32 v5, s60, v5
    """)
    for qt in range(7):
        for t in range(4):
            acc = ACC + 4 * (t * 7 + qt)
            for i in range(4): a(f"v_mul_f32 v{acc+i}, s35, v{acc+i}")
            a(f"v_cvt_pk_bf16_f32 v{acc}, v{acc}, v{acc+1}\nv_cvt_pk_bf16_f32 v{acc+1}, v{acc+2}, v{acc+3}")
    a("s_waitcnt vmcnt(0) lgkmcnt(0)\ns_barrier")
    for qt in range(7):
        for t in range(4):
            acc = ACC + 4 * (t * 7 + qt)
            a(f"ds_write_b64 v5, {vr(acc,2)} offset:{(qt>>1)*8192 + t*1024 + (qt&1)*256}")
    a("s_branch K1_join")
    a("K1_loader:")
    a("""
    v_lshrrev_b32 v4, 5, v0
    v_and_b32 v5, 31, v0
    s_and_b32 s35, s61, 1           ; a
    s_lshr_b32 s60, s61, 1          ; b
    s_lshl_b32 s62, s35, 1
    s_lshl_b32 s63, s60, 2
    s_add_u32 s62, s62, s63
    v_add_u32 v6, s62, v4           ; f = (2a+rr) | b<<2
    v_lshlrev_b32 v6, 1, v6
    v_xor_b32 v5, v5, v6
    s_lshl_b32 s63, s60, 3
    s_lshl_b32 s62, s35, 1
    s_add_u32 s62, s62, s63
    v_add_u32 v4, s62, v4
    v_lshlrev_b32 v4, 13, v4
    v_lshl_add_u32 v10, v5, 4, v4
    s_lshl_b32 s62, s62, 9          ; piece (a+4b)*1024
    """)
    a(f"s_add_u32 s62, s62, {WQ0}")
    a("""
    v_lshrrev_b32 v4, 3, v0
    v_and_b32 v5, 7, v0
    v_lshrrev_b32 v6, 1, v4
    s_lshl_b32 s63, s35, 2
    v_add_u32 v6, s63, v6
    v_xor_b32 v5, v5, v6
    s_lshl_b32 s63, s61, 3
    v_add_u32 v4, s63, v4
    v_lshlrev_b32 v4, 11, v4
    v_lshl_add_u32 v11, v5, 4, v4
    s_lshl_b32 s63, s61, 10
    s_mov_b32 s30, 0
    s_mov_b32 s31, 0
    """)
    def issue_w(slot):
        for pc in (0, 2, 8, 10):
            a(f"s_add_u32 m0, s62, {slot*16384 + pc*1024}\ns_add_u32 s35, s30, {pc*16384}")
            a(f"buffer_load_dwordx4 v10, s[{SW}:{SW+3}], s35 offen{pol(cfg.w_pol)} lds")
        a("s_add_u32 s30, s30, 0x40000")
    def issue_x(slot):
        lab = a.label("xs")
        for n in range(4):
            if n == 3: a(f"s_cmp_ge_u32 s61, 2\ns_cbranch_scc1 {lab}")
            a(f"s_add_u32 m0, s63, {slot*14336 + n*4096}\ns_add_u32 s35, s31, {n*65536}")
            a(f"buffer_load_dwordx4 v11, s[{SX}:{SX+3}], s35 offen{pol(cfg.w_pol)} lds")
        a(f"{lab}:\ns_add_u32 s31, s31, 128\ns_cmp_ge_u32 s31, 2048\ns_cselect_b32 s31, 0x40000000, s31")
    issue_x(0); issue_w(0); issue_w(1); issue_x(1); issue_w(2); issue_w(3)
    a("s_waitcnt vmcnt(15)\ns_barrier\ns_mov_b32 s60, 0\nK1_lloop:")
    for u in range(4):
        a(f"s_waitcnt vmcnt({8 if u & 1 else 11})\ns_barrier")
        if u & 1: issue_x((u >> 1) & 1)
        issue_w(u)
    a("s_add_u32 s60, s60, 1\ns_cmp_lt_u32 s60, 8\ns_cbranch_scc1 K1_lloop")
    a("s_waitcnt vmcnt(0)\ns_barrier")
    QF, OA, SS, NM, KF, VF, PP = 16, 48, 112, 128, 144, 176, 208
    L_, MX, T0, T1 = 216, 217, 218, 219
    a("K1_join:")
    a(f"""
    s_lshr_b32 s60, s3, 2
    s_lshl_b32 s35, s60, 17
    s_add_u32 s{SK}, s{SK}, s35
    s_addc_u32 s{SK+1}, s{SK+1}, 0
    s_mov_b32 s{SK+2}, 131072
    s_add_u32 s{SV}, s{SV}, s35
    s_addc_u32 s{SV+1}, s{SV+1}, 0
    s_mov_b32 s{SV+2}, 131072
    s_mul_i32 s30, s60, {HSTEP}
    s_mul_i32 s62, s61, 1056
    s_add_u32 s62, s62, s30
    s_mul_i32 s63, s61, 1088
    s_add_u32 s63, s63, s30
    s_add_u32 s63, s63, {KT}
    s_lshl_b32 s31, s61, 8
    s_add_u32 s31, s31, 16384
    v_and_b32 v4, 31, v0            ; q32 / key32
    v_lshrrev_b32 v6, 5, v0         ; hh
    s_cmp_eq_u32 s61, 3
    s_cselect_b32 s35, 15, 31
    v_and_b32 v7, s35, v4
    v_lshl_add_u32 v7, v6, 5, v7
    v_lshlrev_b32 v7, 4, v7
    s_lshl_b32 s35, s3, 13
    v_add_u32 v9, s35, v7
    v_and_b32 v7, 7, v4
    v_mul_u32_u24 v7, 1056, v7
    v_lshrrev_b32 v8, 3, v4
    v_lshl_add_u32 v7, v8, 8, v7
    v_and_b32 v8, 1, v8
    v_xor_b32 v8, v8, v6
    v_lshl_add_u32 v7, v8, 4, v7
    v_add_u32 v10, s30, v7
    v_add_u32 v11, {SLOT[0]}, v10
    v_bfe_u32 v7, v0, 2, 2
    v_lshl_add_u32 v7, v6, 2, v7
    v_mul_u32_u24 v7, 1088, v7
    v_bfe_u32 v8, v0, 4, 1
    v_lshl_add_u32 v7, v8, 5, v7
    v_and_b32 v8, 3, v0
    v_lshl_add_u32 v7, v8, 3, v7
    s_add_u32 s35, s30, {KT}
    v_add_u32 v12, s35, v7
    v_add_u32 v13, {SLOT[0]}, v12
    s_waitcnt lgkmcnt(0)
    s_barrier
    """)
    for s in range(8): a(f"ds_read_b128 {vr(QF+4*s,4)}, v9 offset:{s*1024}")
    for i in range(64): a(f"v_mov_b32 v{OA+i}, 0")
    for i in range(16): a(f"v_mov_b32 v{NM+i}, 0")
    a(f"v_mov_b32 v{L_}, 0\ns_mov_b32 s96, 0xff800000\ns_mov_b32 s97, 0xff800000")
    a("s_waitcnt lgkmcnt(0)\ns_barrier")
    stamp(a, cfg, 3)
    def issue_kv(slot):
        for n in range(2):
            a(f"s_add_u32 m0, s62, {SLOT[slot] + n*4*1056}\ns_add_u32 s35, s31, {n*1024}")
            a(f"buffer_load_dwordx4 v2, s[{SK}:{SK+3}], s35 offen{pol(cfg.kv_pol)} lds")
            a(f"s_add_u32 m0, s63, {SLOT[slot] + n*4*1088}\ns_nop 0")
            a(f"buffer_load_dwordx4 v3, s[{SV}:{SV+3}], s35 offen{pol(cfg.kv_pol)} lds")
        a("s_add_u32 s31, s31, 8192")
    issue_kv(2)
    a("s_mov_b32 s60, 0\nK1_aloop:")
    stubs = []
    for st in range(4):
        hi = st < 2; off = (st & 1) * 34304
        ka, va = ("v11", "v13") if hi else ("v10", "v12")
        a("s_waitcnt vmcnt(8)\ns_barrier")
        for s in range(8): a(f"ds_read_b128 {vr(KF+4*s,4)}, {ka} offset:{off + 32*s}")
        issue_kv((st + 3) % 4)
        vrd = [f"ds_read_b64_tr_b16 {vr(VF+4*(4*u+t)+2*j,2)}, {va} offset:{off + (2*u+j)*256 + 64*t}" for u in range(2) for t in range(4) for j in range(2)]
        for s in range(8):
            a(f"s_waitcnt lgkmcnt({7 - s + min(2*s, 8)})")
            a(f"v_mfma_f32_32x32x16_bf16 {vr(SS,16)}, {vr(KF+4*s,4)}, {vr(QF+4*s,4)}, {vr(NM if s == 0 else SS,16)}")
            if s < 4: a(vrd.pop(0)); a(vrd.pop(0))
        for _ in range(8): a(vrd.pop(0))
        a("s_nop 3")
        a(f"v_max3_f32 v{MX}, v{SS}, v{SS+1}, v{SS+2}")
        for i in range(3, 15, 2): a(f"v_max3_f32 v{MX}, v{MX}, v{SS+i}, v{SS+i+1}")
        a(f"v_max_f32 v{MX}, v{MX}, v{SS+15}")
        stub, back = a.label("stub"), a.label("back")
        stubs.append((stub, back))
        a(f"v_cmp_lt_f32 vcc, s96, v{MX}\ns_cbranch_vccnz {stub}\n{back}:")
        for u in range(2):
            for i in range(8): a(f"v_exp_f32 v{SS+8*u+i}, v{SS+8*u+i}")
            for i in range(4): a(f"v_cvt_pk_bf16_f32 v{PP+4*u+i}, v{SS+8*u+2*i}, v{SS+8*u+2*i+1}")
            if u == 0: a("s_waitcnt lgkmcnt(8)")
            else: a("s_waitcnt lgkmcnt(0)")
            a(f"v_add_f32 v{L_}, v{L_}, v{SS+8*u}")
            for t in range(4):
                a(f"v_mfma_f32_32x32x16_bf16 {vr(OA+16*t,16)}, {vr(VF+4*(4*u+t),4)}, {vr(PP+4*u,4)}, {vr(OA+16*t,16)}")
                for i in (1 + 2*t, 2 + 2*t):
                    if i < 8: a(f"v_add_f32 v{L_}, v{L_}, v{SS+8*u+i}")
    a("s_add_u32 s60, s60, 1\ns_cmp_lt_u32 s60, 4\ns_cbranch_scc1 K1_aloop")
    stamp(a, cfg, 4)
    a(f"""
    v_mov_b32 v{T0}, v{L_}
    v_and_b32 v4, 31, v0
    v_lshrrev_b32 v5, 4, v4
    v_permlane32_swap_b32 v{T0}, v{L_}
    v_lshlrev_b32 v5, 10, v5
    v_and_b32 v7, 15, v4
    v_add_f32 v{L_}, v{L_}, v{T0}
    v_lshl_add_u32 v5, v7, 4, v5
    v_rcp_f32 v{L_}, v{L_}
    v_lshrrev_b32 v7, 5, v0
    v_lshl_add_u32 v5, v7, 8, v5
    s_lshl_b32 s35, s61, 11
    v_add_u32 v5, s35, v5
    s_cmp_eq_u32 s61, 3
    s_cselect_b32 s35, 16, 32
    v_mov_b32 v7, 0x7fffffff
    v_cmp_gt_u32 vcc, s35, v4
    s_nop 1
    v_cndmask_b32 v5, v7, v5, vcc
    """)
    for t in range(4):
        if t: a(f"s_mov_b32 s35, {t*7168}")
        for jj in range(2):
            b = OA + 16*t + 8*jj
            for i in range(8): a(f"v_mul_f32 v{b+i}, v{b+i}, v{L_}")
            for i in range(4): a(f"v_cvt_pk_bf16_f32 v{b+i}, v{b+2*i}, v{b+2*i+1}")
            a(f"buffer_store_dwordx4 {vr(b,4)}, v5, s[{SO}:{SO+3}], {'s35' if t else '0'} offen offset:{jj*512}")
    a("s_waitcnt vmcnt(0)")
    stamp(a, cfg, 5)
    if cfg.stamps:
        a("s_cmp_lg_u32 s3, 0\ns_cbranch_scc1 K1_end")
        stamp_store(a, cfg, SWS, 0)
    a("K1_end:\ns_endpgm")
    for stub, back in stubs:
        a(f"{stub}:\ns_call_b64 s[98:99], K1_rare\ns_branch {back}")
    a(f"""
    K1_rare:
    v_mov_b32 v{T0}, v{MX}
    s_nop 1
    v_permlane32_swap_b32 v{T0}, v{MX}
    s_nop 1
    v_max3_f32 v{MX}, v{MX}, v{T0}, s97
    v_max_f32 v{T0}, 0, v{MX}
    v_exp_f32 v{T0}, -v{T0}
    s_mov_b32 s96, 0x41000000
    s_mov_b32 s97, 0
    """)
    for i in range(16): a(f"v_sub_f32 v{SS+i}, v{SS+i}, v{MX}")
    for i in range(16): a(f"v_sub_f32 v{NM+i}, v{NM+i}, v{MX}")
    a(f"v_mul_f32 v{L_}, v{L_}, v{T0}")
    for i in range(64): a(f"v_mul_f32 v{OA+i}, v{OA+i}, v{T0}")
    a("s_setpc_b64 s[98:99]")
    return a.text()

def k2(cfg):
    a = A()
    SOO, SWO, SOUT = 36, 40, 44
    a("s_cmp_ge_u32 s2, 256\ns_cbranch_scc1 K2_end")
    stamp(a, cfg, 0)
    load_args(a)
    a("""
    v_lshrrev_b32 v1, 6, v0
    v_and_b32 v0, 63, v0
    v_readfirstlane_b32 s3, v1
    s_and_b32 s30, s2, 7
    s_lshr_b32 s31, s2, 3
    s_lshr_b32 s32, s30, 2          ; branch
    s_bfe_u32 s33, s30, 0x10001
    s_lshl_b32 s33, s33, 2
    s_and_b32 s34, s31, 3
    s_add_u32 s33, s33, s34         ; batch
    s_and_b32 s34, s30, 1
    s_lshl_b32 s34, s34, 3
    s_lshr_b32 s35, s31, 2
    s_add_u32 s34, s34, s35
    s_waitcnt lgkmcnt(0)
    s_cmp_eq_u32 s32, 0
    s_cselect_b64 s[12:13], s[12:13], s[22:23]
    s_lshl_b32 s35, s32, 3
    s_add_u32 s35, s35, s33
    s_mul_i32 s35, s35, 917504
    """)
    srd_off(a, SOO, "s28", "s29", "s35", 917504)
    a("s_lshl_b32 s35, s34, 7\ns_sub_u32 s60, 0x800000, s35")
    srd_off(a, SWO, "s12", "s13", "s35", "s60")
    a("""
    s_mul_i32 s60, s33, 458752
    s_add_u32 s35, s35, s60
    s_lshl_b32 s60, s32, 11
    s_add_u32 s35, s35, s60
    s_sub_u32 s60, 3670016, s35
    """)
    srd_off(a, SOUT, "s24", "s25", "s35", "s60")
    if cfg.stamps: srd(a, SWS, "s28", "s29", 0x10000000)
    a("s_cmp_ge_u32 s3, 4\ns_cbranch_scc1 K2_pref")
    ACC, OF, WF = 16, 128, 184
    a("""
    v_lshlrev_b32 v2, 4, v0
    v_lshrrev_b32 v4, 3, v0
    v_and_b32 v5, 7, v0
    v_and_b32 v6, 6, v4
    v_xor_b32 v5, v5, v6
    v_lshlrev_b32 v4, 11, v4
    v_lshl_add_u32 v3, v5, 4, v4
    s_mul_i32 s30, s3, 7168
    s_lshl_b32 s31, s3, 16
    s_lshl_b32 s62, s3, 14
    """)
    def issue_w(slot):
        for u in range(4):
            a(f"s_add_u32 m0, s62, {slot*4096 + u*1024}\ns_add_u32 s35, s31, {u*16384}")
            a(f"buffer_load_dwordx4 v3, s[{SWO}:{SWO+3}], s35 offen{pol(cfg.w_pol)} lds")
        a("s_add_u32 s31, s31, 0x40000")
    def load_o(buf, qt):
        so = "s30" if qt < 4 else "s61"
        return f"buffer_load_dwordx4 {vr(OF+28*buf+4*qt,4)}, v2, s[{SOO}:{SOO+3}], {so} offen offset:{(qt&3)*1024}"
    adv_o = "s_add_u32 s30, s30, 28672\ns_add_u32 s61, s61, 28672"
    a("s_add_u32 s61, s30, 4096")
    issue_w(0); issue_w(1); issue_w(2)
    for qt in range(7): a(load_o(0, qt))
    a(adv_o)
    issue_w(3)
    for qt in range(7): a(load_o(1, qt))
    a(adv_o)
    a("""
    v_lshrrev_b32 v4, 4, v0         ; g4
    v_bfe_u32 v5, v0, 2, 2          ; r
    v_and_b32 v6, 3, v0             ; c
    v_lshrrev_b32 v7, 1, v4
    v_lshlrev_b32 v7, 4, v7
    v_and_b32 v8, 1, v4
    v_lshl_add_u32 v7, v8, 2, v7
    v_add_u32 v7, v7, v5            ; row
    v_bfe_u32 v8, v7, 1, 2
    v_lshlrev_b32 v7, 7, v7
    v_lshrrev_b32 v9, 1, v6
    v_lshl_add_u32 v7, v9, 4, v7
    v_and_b32 v9, 1, v6
    v_lshl_add_u32 v7, v9, 3, v7
    v_add_u32 v7, s62, v7
    """)
    for t in range(4):
        a(f"v_xor_b32 v9, {t}, v8\nv_lshl_add_u32 v{10+t}, v9, 5, v7")
    for i in range(112): a(f"v_mov_b32 v{ACC+i}, 0")
    def wreads(h):
        return [f"ds_read_b64_tr_b16 {vr(WF+16*(h&1)+4*t+2*j,2)}, v{10+t} offset:{(h%4)*4096 + j*1024}" for t in range(4) for j in range(2)]
    a("s_waitcnt vmcnt(26)")
    stamp(a, cfg, 1)
    for r in wreads(0): a(r)
    a("s_mov_b32 s60, 0\nK2_loop:")
    for h in range(4):
        a("s_waitcnt lgkmcnt(0)")
        issue_w(h)
        rd = wreads(h + 1)
        for qt in range(7):
            a("s_waitcnt vmcnt(21)")
            for t in range(4):
                acc = ACC + 4 * (t * 7 + qt)
                a(f"v_mfma_f32_16x16x32_bf16 {vr(acc,4)}, {vr(WF+16*(h&1)+4*t,4)}, {vr(OF+28*(h&1)+4*qt,4)}, {vr(acc,4)}")
                if rd: a(rd.pop(0))
            a(load_o(h & 1, qt))
        a(adv_o)
    a("s_add_u32 s60, s60, 1\ns_cmp_lt_u32 s60, 8\ns_cbranch_scc1 K2_loop")
    stamp(a, cfg, 2)
    a("""
    s_mul_i32 s35, s3, 7168
    v_add_u32 v4, s35, v2
    v_add_u32 v5, 57344, v4
    s_mul_i32 s35, s3, 28672
    v_add_u32 v6, s35, v2
    v_and_b32 v7, 15, v0
    v_lshlrev_b32 v7, 12, v7
    v_lshrrev_b32 v8, 4, v0
    v_lshl_add_u32 v7, v8, 3, v7
    s_lshl_b32 s35, s3, 5
    v_add_u32 v7, s35, v7
    s_waitcnt vmcnt(0) lgkmcnt(0)
    s_barrier
    """)
    for t in range(4):
        for qt in range(7):
            a(f"ds_write_b128 v{4 + (t>>1)}, {vr(ACC+4*(t*7+qt),4)} offset:{(t&1)*28672 + qt*1024}")
    a("s_waitcnt lgkmcnt(0)\ns_barrier")
    for qt in range(7):
        for g in range(4):
            a(f"ds_read_b128 {vr(ACC+16*qt+4*g,4)}, v6 offset:{g*7168 + qt*1024}")
        if qt >= 2:
            pass
    for qt in range(7):
        b = ACC + 16 * qt
        a(f"s_waitcnt lgkmcnt({min(15, 4*(6-qt))})")
        for i in range(4): a(f"v_add_f32 v{b+i}, v{b+i}, v{b+4+i}\nv_add_f32 v{b+8+i}, v{b+8+i}, v{b+12+i}")
        for i in range(4): a(f"v_add_f32 v{b+i}, v{b+i}, v{b+8+i}")
        a(f"v_cvt_pk_bf16_f32 v{b}, v{b}, v{b+1}\nv_cvt_pk_bf16_f32 v{b+1}, v{b+2}, v{b+3}")
        a(f"s_mov_b32 s35, {qt*65536}\nbuffer_store_dwordx2 {vr(b,2)}, v7, s[{SOUT}:{SOUT+3}], s35 offen")
    a("s_waitcnt vmcnt(0)")
    stamp(a, cfg, 3)
    if cfg.stamps:
        a("s_cmp_lg_u32 s3, 0\ns_cbranch_scc1 K2_end")
        stamp_store(a, cfg, SWS, 256)
    a("s_branch K2_end\nK2_pref:")
    if cfg.touch:
        a("""
        v_cmp_le_u32 vcc, 28, v0
        v_subrev_u32 v4, 28, v0
        s_and_b32 s35, s34, 7
        v_cndmask_b32 v4, v0, v4, vcc
        v_mov_b32 v5, 0
        v_mov_b32 v6, 28672
        s_mul_i32 s35, s35, 28
        v_cndmask_b32 v5, v5, v6, vcc
        v_add_u32 v4, s35, v4
        v_lshl_add_u32 v4, v4, 7, v5
        v_mov_b32 v6, 0x7fffffff
        v_cmp_gt_u32 vcc, 56, v0
        v_and_b32 v7, 31, v0
        s_and_b32 s35, s33, 3
        v_cndmask_b32 v4, v6, v4, vcc
        s_lshl_b32 s35, s35, 5
        v_add_u32 v7, s35, v7
        v_lshrrev_b32 v8, 5, v0
        v_lshl_add_u32 v7, v8, 7, v7
        v_lshlrev_b32 v7, 11, v7
        s_mov_b32 s30, 57344
        s_mov_b32 s31, 0x80000
        s_mov_b32 s60, 1
        K2_ploop:
        """)
        a(f"buffer_load_dword v8, v4, s[{SOO}:{SOO+3}], s30 offen")
        a(f"buffer_load_dword v8, v7, s[{SWO}:{SWO+3}], s31 offen{pol(cfg.w_pol)}")
        a("""
        s_add_u32 s30, s30, 57344
        s_add_u32 s31, s31, 0x80000
        s_waitcnt vmcnt(6)
        s_add_u32 s60, s60, 1
        s_cmp_lt_u32 s60, 16
        s_cbranch_scc1 K2_ploop
        s_waitcnt vmcnt(0)
        """)
    a("K2_end:\ns_endpgm")
    return a.text()

def build(cfg):
    hdr = "; @launch kernel=qattn_kernel grid=(256,1,1) block=(512,1,1) lds=163840\n"
    hdr += "; @launch kernel=oproj_kernel grid=(256,1,1) block=(320,1,1) lds=114688\n"
    hdr += '.amdgcn_target "amdgcn-amd-amdhsa--gfx950"\n'
    return (hdr + kernel_head("qattn_kernel") + k1(cfg) + kernel_head("oproj_kernel") + k2(cfg)
            + kernel_desc("qattn_kernel", 224, 224) + kernel_desc("oproj_kernel", 216, 216))

if __name__ == "__main__":
    out = sys.argv[1]
    cfg = Cfg()
    for kv in sys.argv[2:]:
        k, v = kv.split("=")
        setattr(cfg, k, {"True": True, "False": False}.get(v, v))
    open(out, "w").write(build(cfg))
```

```python
import sys, math
from asmlib import *

class Cfg:
    stamps = False
    kv_pol = "nt"
    w_pol = ""
    touch = True
    dbgtime = False
    pre_empty = 0
    post_empty = 0

def pol(p): return (" " + p) if p else ""

def stamp(a, cfg, i):
    if cfg.stamps:
        a(f"s_memrealtime s[{64+2*i}:{65+2*i}]\ns_memtime s[{80+2*i}:{81+2*i}]")

def stamp_store(a, cfg, wsS, wgoff):
    if not cfg.stamps: return
    a(f"s_waitcnt lgkmcnt(0)\ns_add_u32 s3, s2, {wgoff}\ns_lshl_b32 s3, s3, 7\ns_add_u32 s3, s3, {STAMP_OFF}\nv_mov_b32 v1, s3")
    for q in range(8):
        for j in range(4): a(f"v_mov_b32 v{4+j}, s{64+4*q+j}")
        a(f"buffer_store_dwordx4 v[4:7], v1, s[{wsS}:{wsS+3}], 0 offen offset:{16*q}\ns_nop 2")
    a("s_waitcnt vmcnt(0)")

def load_args(a):
    a("""
    s_load_dwordx16 s[4:19], s[0:1], 0
    s_load_dwordx8 s[20:27], s[0:1], 64
    s_load_dwordx2 s[28:29], s[0:1], 96
    """)

def srd_off(a, d, lo, hi, off_reg, nbytes):
    a(f"s_add_u32 s{d}, {lo}, {off_reg}\ns_addc_u32 s{d+1}, {hi}, 0\ns_and_b32 s{d+1}, s{d+1}, 0xffff")
    a(f"s_mov_b32 s{d+2}, {nbytes}\ns_mov_b32 s{d+3}, 0x00020000")

X0, WQ0 = 0, 28672
KT, VT = 8448, 8704
HSTEP = KT + VT
SLOT = [94208, 128512, 0, 34304]
SX, SW, SK, SV, SO, SWS = 36, 40, 44, 48, 52, 56

def k1(cfg):
    a = A()
    a("s_cmp_ge_u32 s2, 256\ns_cbranch_scc1 K1_end")
    stamp(a, cfg, 0)
    if cfg.dbgtime: a("s_memrealtime s[100:101]")
    load_args(a)
    a("""
    v_lshrrev_b32 v1, 6, v0
    v_and_b32 v0, 63, v0
    v_readfirstlane_b32 s3, v1
    s_and_b32 s30, s2, 7
    s_lshr_b32 s31, s2, 3
    s_lshr_b32 s32, s30, 2          ; branch
    s_and_b32 s33, s30, 3
    s_lshl_b32 s33, s33, 2
    s_and_b32 s34, s31, 3
    s_add_u32 s33, s33, s34
    s_lshr_b32 s34, s31, 2          ; batch
    s_waitcnt lgkmcnt(0)
    s_cmp_eq_u32 s32, 0
    s_cselect_b64 s[4:5], s[4:5], s[14:15]
    s_cselect_b64 s[6:7], s[6:7], s[16:17]
    s_cselect_b64 s[8:9], s[8:9], s[18:19]
    s_cselect_b64 s[10:11], s[10:11], s[20:21]
    s_mul_i32 s35, s34, 229376
    """)
    srd_off(a, SX, "s4", "s5", "s35", 229376)
    a("s_lshl_b32 s35, s33, 9\ns_sub_u32 s60, 0x800000, s35")
    srd_off(a, SW, "s10", "s11", "s35", "s60")
    a("s_lshl_b32 s35, s34, 22\ns_lshl_b32 s60, s33, 18\ns_add_u32 s35, s35, s60")
    srd_off(a, SK, "s6", "s7", "s35", 262144)
    srd_off(a, SV, "s8", "s9", "s35", 262144)
    a("""
    s_lshl_b32 s35, s32, 3
    s_add_u32 s35, s35, s34
    s_lshl_b32 s35, s35, 5
    s_lshl_b32 s60, s33, 1
    s_add_u32 s35, s35, s60
    s_lshr_b32 s60, s3, 2
    s_add_u32 s35, s35, s60
    s_mul_i32 s35, s35, 28672
    """)
    srd_off(a, SO, "s28", "s29", "s35", 28672)
    if cfg.stamps: srd(a, SWS, "s28", "s29", 0x10000000)
    a("""
    v_lshrrev_b32 v4, 4, v0
    v_and_b32 v5, 15, v0
    v_lshlrev_b32 v6, 11, v4
    v_lshl_add_u32 v3, v5, 4, v6
    v_and_b32 v7, 1, v4
    v_xor_b32 v7, v7, v5
    v_lshl_add_u32 v2, v7, 4, v6
    s_and_b32 s61, s3, 3
    s_cmp_ge_u32 s3, 4
    s_cbranch_scc1 K1_loader
    """)
    ACC = 16; FB = 128
    if cfg.touch:
        a("""
        v_lshrrev_b32 v4, 5, v0
        v_lshlrev_b32 v4, 6, v4
        v_bfe_u32 v5, v0, 2, 3
        v_add_u32 v4, v4, v5
        s_lshl_b32 s35, s34, 3
        v_add_u32 v4, s35, v4
        v_lshlrev_b32 v4, 13, v4
        v_and_b32 v5, 3, v0
        v_lshl_add_u32 v4, v5, 7, v4
        v_lshrrev_b32 v5, 1, v0
        s_and_b32 s35, s33, 3
        s_mul_i32 s35, s35, 28
        v_add_u32 v5, s35, v5
        v_lshlrev_b32 v5, 11, v5
        v_and_b32 v6, 1, v0
        v_lshl_add_u32 v5, v6, 7, v5
        v_mov_b32 v6, 0x7fffffff
        v_cmp_gt_u32 vcc, 56, v0
        s_lshl_b32 s35, s61, 20
        s_lshl_b32 s60, s61, 8
        v_cndmask_b32 v5, v6, v5, vcc
        """)
        for n in range(2):
            a(f"buffer_load_dword v8, v4, s[{SW}:{SW+3}], s35 offen{pol(cfg.w_pol)}")
            a(f"buffer_load_dword v8, v5, s[{SX}:{SX+3}], s60 offen{pol(cfg.w_pol)}")
            if n == 0: a("s_add_u32 s35, s35, 0x400000\ns_add_u32 s60, s60, 1024")
    a("s_mul_i32 s62, s61, 1056\ns_mul_i32 s63, s61, 1088\ns_lshl_b32 s60, s61, 8")
    for st in range(2):
        for hd in range(2):
            for n in range(2):
                g = hd * 131072 + st * 8192 + n * 1024
                a(f"s_add_u32 m0, s62, {SLOT[st] + hd*HSTEP + n*4*1056}\ns_add_u32 s35, s60, {g}")
                a(f"buffer_load_dwordx4 v2, s[{SK}:{SK+3}], s35 offen{pol(cfg.kv_pol)} lds")
                a(f"s_add_u32 m0, s63, {SLOT[st] + hd*HSTEP + KT + n*4*1088}\ns_nop 0")
                a(f"buffer_load_dwordx4 v3, s[{SV}:{SV+3}], s35 offen{pol(cfg.kv_pol)} lds")
    a(f"""
    v_lshrrev_b32 v4, 4, v0         ; g4
    v_bfe_u32 v5, v0, 2, 2          ; r
    v_and_b32 v6, 3, v0             ; c
    v_lshl_add_u32 v7, v4, 3, v5
    v_lshlrev_b32 v7, 9, v7         ; (8*g4+r)*512
    v_lshrrev_b32 v9, 1, v6
    v_lshl_add_u32 v7, v9, 4, v7
    v_and_b32 v9, 1, v6
    v_lshl_add_u32 v7, v9, 3, v7
    s_lshr_b32 s35, s61, 1
    s_lshl_b32 s35, s35, 8
    s_add_u32 s35, s35, {WQ0}
    v_add_u32 v7, s35, v7
    v_and_b32 v9, 1, v4
    v_lshl_or_b32 v9, v9, 2, v5     ; f
    s_and_b32 s35, s61, 1
    s_lshl_b32 s35, s35, 2
    v_xor_b32 v9, s35, v9
    """)
    for t in range(4):
        a(f"v_xor_b32 v1, {t}, v9\nv_lshl_add_u32 v{10+t}, v1, 5, v7")
    a("""
    v_and_b32 v5, 15, v0
    v_lshrrev_b32 v6, 1, v5
    v_xor_b32 v6, v6, v4
    v_lshlrev_b32 v5, 7, v5
    v_lshl_add_u32 v14, v6, 4, v5
    v_xor_b32 v15, 64, v14
    """)
    for i in range(112): a(f"v_mov_b32 v{ACC+i}, 0")
    def reads(u):
        fb = FB + 44 * (u & 1); r = []
        for t in range(4):
            for j in range(2):
                r.append(f"ds_read_b64_tr_b16 {vr(fb+4*t+2*j,2)}, v{10+t} offset:{(u%4)*16384 + j*2048}")
        xs = [f"ds_read_b128 {vr(fb+16+4*qt,4)}, v{14+(u&1)} offset:{((u>>1)&1)*14336 + qt*2048}" for qt in range(7)]
        return r[:2] + xs[:1] + r[2:] + xs[1:]
    a("s_barrier")
    stamp(a, cfg, 1)
    for r in reads(0): a(r)
    a("s_mov_b32 s35, 0\nK1_gloop:")
    for u in range(4):
        fb = FB + 44 * (u & 1)
        a("s_waitcnt lgkmcnt(0)\ns_barrier")
        rd = reads(u + 1)
        for qt in range(7):
            for t in range(4):
                acc = ACC + 4 * (t * 7 + qt)
                a(f"v_mfma_f32_16x16x32_bf16 {vr(acc,4)}, {vr(fb+4*t,4)}, {vr(fb+16+4*qt,4)}, {vr(acc,4)}")
                if rd: a(rd.pop(0))
    a("s_add_u32 s35, s35, 1\ns_cmp_lt_u32 s35, 8\ns_cbranch_scc1 K1_gloop")
    stamp(a, cfg, 2)
    c = (128 ** -0.5) * math.log2(math.e)
    import struct
    cbits = struct.unpack("<I", struct.pack("<f", c))[0]
    a(f"""
    s_mov_b32 s35, {cbits:#x}
    v_and_b32 v5, 15, v0
    v_lshlrev_b32 v5, 4, v5
    v_lshrrev_b32 v6, 5, v0
    v_lshl_add_u32 v5, v6, 9, v5
    v_bfe_u32 v6, v0, 4, 1
    v_lshl_add_u32 v5, v6, 3, v5
    s_lshr_b32 s60, s61, 1
    s_lshl_b32 s60, s60, 15
    s_and_b32 s62, s61, 1
    s_lshl_b32 s62, s62, 12
    s_add_u32 s60, s60, s62
    v_add_u32 v5, s60, v5
    """)
    for qt in range(7):
        for t in range(4):
            acc = ACC + 4 * (t * 7 + qt)
            for i in range(4): a(f"v_mul_f32 v{acc+i}, s35, v{acc+i}")
            a(f"v_cvt_pk_bf16_f32 v{acc}, v{acc}, v{acc+1}\nv_cvt_pk_bf16_f32 v{acc+1}, v{acc+2}, v{acc+3}")
    a("s_waitcnt vmcnt(0) lgkmcnt(0)\ns_barrier")
    for qt in range(7):
        for t in range(4):
            acc = ACC + 4 * (t * 7 + qt)
            a(f"ds_write_b64 v5, {vr(acc,2)} offset:{(qt>>1)*8192 + t*1024 + (qt&1)*256}")
    a("s_branch K1_join")
    a("K1_loader:")
    a("""
    v_lshrrev_b32 v4, 5, v0
    v_and_b32 v5, 31, v0
    s_and_b32 s35, s61, 1           ; a
    s_lshr_b32 s60, s61, 1          ; b
    s_lshl_b32 s62, s35, 1
    s_lshl_b32 s63, s60, 2
    s_add_u32 s62, s62, s63
    v_add_u32 v6, s62, v4           ; f = (2a+rr) | b<<2
    v_lshlrev_b32 v6, 1, v6
    v_xor_b32 v5, v5, v6
    s_lshl_b32 s63, s60, 3
    s_lshl_b32 s62, s35, 1
    s_add_u32 s62, s62, s63
    v_add_u32 v4, s62, v4
    v_lshlrev_b32 v4, 13, v4
    v_lshl_add_u32 v10, v5, 4, v4
    s_lshl_b32 s62, s62, 9          ; piece (a+4b)*1024
    """)
    a(f"s_add_u32 s62, s62, {WQ0}")
    a("""
    v_lshrrev_b32 v4, 3, v0
    v_and_b32 v5, 7, v0
    v_lshrrev_b32 v6, 1, v4
    s_lshl_b32 s63, s35, 2
    v_add_u32 v6, s63, v6
    v_xor_b32 v5, v5, v6
    s_lshl_b32 s63, s61, 3
    v_add_u32 v4, s63, v4
    v_lshlrev_b32 v4, 11, v4
    v_lshl_add_u32 v11, v5, 4, v4
    s_lshl_b32 s63, s61, 10
    s_mov_b32 s30, 0
    s_mov_b32 s31, 0
    """)
    def issue_w(slot):
        for pc in (0, 2, 8, 10):
            a(f"s_add_u32 m0, s62, {slot*16384 + pc*1024}\ns_add_u32 s35, s30, {pc*16384}")
            a(f"buffer_load_dwordx4 v10, s[{SW}:{SW+3}], s35 offen{pol(cfg.w_pol)} lds")
        a("s_add_u32 s30, s30, 0x40000")
    def issue_x(slot):
        lab = a.label("xs")
        for n in range(4):
            if n == 3: a(f"s_cmp_ge_u32 s61, 2\ns_cbranch_scc1 {lab}")
            a(f"s_add_u32 m0, s63, {slot*14336 + n*4096}\ns_add_u32 s35, s31, {n*65536}")
            a(f"buffer_load_dwordx4 v11, s[{SX}:{SX+3}], s35 offen{pol(cfg.w_pol)} lds")
        a(f"{lab}:\ns_add_u32 s31, s31, 128\ns_cmp_ge_u32 s31, 2048\ns_cselect_b32 s31, 0x40000000, s31")
    issue_x(0); issue_w(0); issue_w(1); issue_x(1); issue_w(2); issue_w(3)
    a("s_waitcnt vmcnt(15)\ns_barrier\ns_mov_b32 s60, 0\nK1_lloop:")
    for u in range(4):
        a(f"s_waitcnt vmcnt({8 if u & 1 else 11})\ns_barrier")
        if u & 1: issue_x((u >> 1) & 1)
        issue_w(u)
    a("s_add_u32 s60, s60, 1\ns_cmp_lt_u32 s60, 8\ns_cbranch_scc1 K1_lloop")
    a("s_waitcnt vmcnt(0)\ns_barrier")
    QF, OA, SS, NM, KF, VF, PP = 16, 48, 112, 128, 144, 176, 208
    L_, MX, T0, T1 = 216, 217, 218, 219
    a("K1_join:")
    a(f"""
    s_lshr_b32 s60, s3, 2
    s_lshl_b32 s35, s60, 17
    s_add_u32 s{SK}, s{SK}, s35
    s_addc_u32 s{SK+1}, s{SK+1}, 0
    s_mov_b32 s{SK+2}, 131072
    s_add_u32 s{SV}, s{SV}, s35
    s_addc_u32 s{SV+1}, s{SV+1}, 0
    s_mov_b32 s{SV+2}, 131072
    s_mul_i32 s30, s60, {HSTEP}
    s_mul_i32 s62, s61, 1056
    s_add_u32 s62, s62, s30
    s_mul_i32 s63, s61, 1088
    s_add_u32 s63, s63, s30
    s_add_u32 s63, s63, {KT}
    s_lshl_b32 s31, s61, 8
    s_add_u32 s31, s31, 16384
    v_and_b32 v4, 31, v0            ; q32 / key32
    v_lshrrev_b32 v6, 5, v0         ; hh
    s_cmp_eq_u32 s61, 3
    s_cselect_b32 s35, 15, 31
    v_and_b32 v7, s35, v4
    v_lshl_add_u32 v7, v6, 5, v7
    v_lshlrev_b32 v7, 4, v7
    s_lshl_b32 s35, s3, 13
    v_add_u32 v9, s35, v7
    v_and_b32 v7, 7, v4
    v_mul_u32_u24 v7, 1056, v7
    v_lshrrev_b32 v8, 3, v4
    v_lshl_add_u32 v7, v8, 8, v7
    v_and_b32 v8, 1, v8
    v_xor_b32 v8, v8, v6
    v_lshl_add_u32 v7, v8, 4, v7
    v_add_u32 v10, s30, v7
    v_add_u32 v11, {SLOT[0]}, v10
    v_bfe_u32 v7, v0, 2, 2
    v_lshl_add_u32 v7, v6, 2, v7
    v_mul_u32_u24 v7, 1088, v7
    v_bfe_u32 v8, v0, 4, 1
    v_lshl_add_u32 v7, v8, 5, v7
    v_and_b32 v8, 3, v0
    v_lshl_add_u32 v7, v8, 3, v7
    s_add_u32 s35, s30, {KT}
    v_add_u32 v12, s35, v7
    v_add_u32 v13, {SLOT[0]}, v12
    s_waitcnt lgkmcnt(0)
    s_barrier
    """)
    for s in range(8): a(f"ds_read_b128 {vr(QF+4*s,4)}, v9 offset:{s*1024}")
    for i in range(64): a(f"v_mov_b32 v{OA+i}, 0")
    for i in range(16): a(f"v_mov_b32 v{NM+i}, 0")
    a(f"v_mov_b32 v{L_}, 0\ns_mov_b32 s96, 0xff800000\ns_mov_b32 s97, 0xff800000")
    a("s_waitcnt lgkmcnt(0)\ns_barrier")
    stamp(a, cfg, 3)
    def issue_kv(slot):
        for n in range(2):
            a(f"s_add_u32 m0, s62, {SLOT[slot] + n*4*1056}\ns_add_u32 s35, s31, {n*1024}")
            a(f"buffer_load_dwordx4 v2, s[{SK}:{SK+3}], s35 offen{pol(cfg.kv_pol)} lds")
            a(f"s_add_u32 m0, s63, {SLOT[slot] + n*4*1088}\ns_nop 0")
            a(f"buffer_load_dwordx4 v3, s[{SV}:{SV+3}], s35 offen{pol(cfg.kv_pol)} lds")
        a("s_add_u32 s31, s31, 8192")
    issue_kv(2)
    a("s_mov_b32 s60, 0\nK1_aloop:")
    stubs = []
    for st in range(4):
        hi = st < 2; off = (st & 1) * 34304
        ka, va = ("v11", "v13") if hi else ("v10", "v12")
        a("s_waitcnt vmcnt(8)\ns_barrier")
        for s in range(8): a(f"ds_read_b128 {vr(KF+4*s,4)}, {ka} offset:{off + 32*s}")
        issue_kv((st + 3) % 4)
        vrd = [f"ds_read_b64_tr_b16 {vr(VF+4*(4*u+t)+2*j,2)}, {va} offset:{off + (2*u+j)*256 + 64*t}" for u in range(2) for t in range(4) for j in range(2)]
        for s in range(8):
            a(f"s_waitcnt lgkmcnt({7 - s + min(2*s, 8)})")
            a(f"v_mfma_f32_32x32x16_bf16 {vr(SS,16)}, {vr(KF+4*s,4)}, {vr(QF+4*s,4)}, {vr(NM if s == 0 else SS,16)}")
            if s < 4: a(vrd.pop(0)); a(vrd.pop(0))
        for _ in range(8): a(vrd.pop(0))
        a("s_nop 3")
        a(f"v_max3_f32 v{MX}, v{SS}, v{SS+1}, v{SS+2}")
        for i in range(3, 15, 2): a(f"v_max3_f32 v{MX}, v{MX}, v{SS+i}, v{SS+i+1}")
        a(f"v_max_f32 v{MX}, v{MX}, v{SS+15}")
        stub, back = a.label("stub"), a.label("back")
        stubs.append((stub, back))
        a(f"v_cmp_lt_f32 vcc, s96, v{MX}\ns_cbranch_vccnz {stub}\n{back}:")
        for u in range(2):
            for i in range(8): a(f"v_exp_f32 v{SS+8*u+i}, v{SS+8*u+i}")
            for i in range(4): a(f"v_cvt_pk_bf16_f32 v{PP+4*u+i}, v{SS+8*u+2*i}, v{SS+8*u+2*i+1}")
            if u == 0: a("s_waitcnt lgkmcnt(8)")
            else: a("s_waitcnt lgkmcnt(0)")
            a(f"v_add_f32 v{L_}, v{L_}, v{SS+8*u}")
            for t in range(4):
                a(f"v_mfma_f32_32x32x16_bf16 {vr(OA+16*t,16)}, {vr(VF+4*(4*u+t),4)}, {vr(PP+4*u,4)}, {vr(OA+16*t,16)}")
                for i in (1 + 2*t, 2 + 2*t):
                    if i < 8: a(f"v_add_f32 v{L_}, v{L_}, v{SS+8*u+i}")
    a("s_add_u32 s60, s60, 1\ns_cmp_lt_u32 s60, 4\ns_cbranch_scc1 K1_aloop")
    stamp(a, cfg, 4)
    a(f"""
    v_mov_b32 v{T0}, v{L_}
    v_and_b32 v4, 31, v0
    v_lshrrev_b32 v5, 4, v4
    v_permlane32_swap_b32 v{T0}, v{L_}
    v_lshlrev_b32 v5, 10, v5
    v_and_b32 v7, 15, v4
    v_add_f32 v{L_}, v{L_}, v{T0}
    v_lshl_add_u32 v5, v7, 4, v5
    v_rcp_f32 v{L_}, v{L_}
    v_lshrrev_b32 v7, 5, v0
    v_lshl_add_u32 v5, v7, 8, v5
    s_lshl_b32 s35, s61, 11
    v_add_u32 v5, s35, v5
    s_cmp_eq_u32 s61, 3
    s_cselect_b32 s35, 16, 32
    v_mov_b32 v7, 0x7fffffff
    v_cmp_gt_u32 vcc, s35, v4
    s_nop 1
    v_cndmask_b32 v5, v7, v5, vcc
    """)
    for t in range(4):
        if t: a(f"s_mov_b32 s35, {t*7168}")
        for jj in range(2):
            b = OA + 16*t + 8*jj
            for i in range(8): a(f"v_mul_f32 v{b+i}, v{b+i}, v{L_}")
            for i in range(4): a(f"v_cvt_pk_bf16_f32 v{b+i}, v{b+2*i}, v{b+2*i+1}")
            a(f"buffer_store_dwordx4 {vr(b,4)}, v5, s[{SO}:{SO+3}], {'s35' if t else '0'} offen offset:{jj*512}")
    a("s_waitcnt vmcnt(0)")
    stamp(a, cfg, 5)
    if cfg.stamps:
        a("s_cmp_lg_u32 s3, 0\ns_cbranch_scc1 K1_end")
        stamp_store(a, cfg, SWS, 0)
    if cfg.dbgtime:
        a("s_memrealtime s[98:99]\ns_waitcnt lgkmcnt(0)")
        srd(a, SWS, "s26", "s27", 256)
        a(f"""s_not_b32 s100, s100
        v_mov_b32 v1, 0
        v_mov_b32 v4, s100
        v_mov_b32 v5, s98
        s_mov_b64 exec, 1
        buffer_atomic_umax v4, v1, s[{SWS}:{SWS+3}], 0 offen
        buffer_atomic_umax v5, v1, s[{SWS}:{SWS+3}], 0 offen offset:4
        s_waitcnt vmcnt(0)""")
    a("K1_end:\ns_endpgm")
    for stub, back in stubs:
        a(f"{stub}:\ns_call_b64 s[98:99], K1_rare\ns_branch {back}")
    a(f"""
    K1_rare:
    v_mov_b32 v{T0}, v{MX}
    s_nop 1
    v_permlane32_swap_b32 v{T0}, v{MX}
    s_nop 1
    v_max3_f32 v{MX}, v{MX}, v{T0}, s97
    v_max_f32 v{T0}, 0, v{MX}
    v_exp_f32 v{T0}, -v{T0}
    s_mov_b32 s96, 0x41000000
    s_mov_b32 s97, 0
    """)
    for i in range(16): a(f"v_sub_f32 v{SS+i}, v{SS+i}, v{MX}")
    for i in range(16): a(f"v_sub_f32 v{NM+i}, v{NM+i}, v{MX}")
    a(f"v_mul_f32 v{L_}, v{L_}, v{T0}")
    for i in range(64): a(f"v_mul_f32 v{OA+i}, v{OA+i}, v{T0}")
    a("s_setpc_b64 s[98:99]")
    return a.text()

def k2(cfg):
    a = A()
    SOO, SWO, SOUT = 36, 40, 44
    a("s_cmp_ge_u32 s2, 256\ns_cbranch_scc1 K2_end")
    stamp(a, cfg, 0)
    load_args(a)
    a("""
    v_lshrrev_b32 v1, 6, v0
    v_and_b32 v0, 63, v0
    v_readfirstlane_b32 s3, v1
    s_and_b32 s30, s2, 7
    s_lshr_b32 s31, s2, 3
    s_lshr_b32 s32, s30, 2          ; branch
    s_bfe_u32 s33, s30, 0x10001
    s_lshl_b32 s33, s33, 2
    s_and_b32 s34, s31, 3
    s_add_u32 s33, s33, s34         ; batch
    s_and_b32 s34, s30, 1
    s_lshl_b32 s34, s34, 3
    s_lshr_b32 s35, s31, 2
    s_add_u32 s34, s34, s35
    s_waitcnt lgkmcnt(0)
    s_cmp_eq_u32 s32, 0
    s_cselect_b64 s[12:13], s[12:13], s[22:23]
    s_lshl_b32 s35, s32, 3
    s_add_u32 s35, s35, s33
    s_mul_i32 s35, s35, 917504
    """)
    srd_off(a, SOO, "s28", "s29", "s35", 917504)
    a("s_lshl_b32 s35, s34, 7\ns_sub_u32 s60, 0x800000, s35")
    srd_off(a, SWO, "s12", "s13", "s35", "s60")
    a("""
    s_mul_i32 s60, s33, 458752
    s_add_u32 s35, s35, s60
    s_lshl_b32 s60, s32, 11
    s_add_u32 s35, s35, s60
    s_sub_u32 s60, 3670016, s35
    """)
    srd_off(a, SOUT, "s24", "s25", "s35", "s60")
    if cfg.stamps: srd(a, SWS, "s28", "s29", 0x10000000)
    a("s_cmp_ge_u32 s3, 4\ns_cbranch_scc1 K2_pref")
    ACC, OF, WF = 16, 128, 184
    a("""
    v_lshlrev_b32 v2, 4, v0
    v_lshrrev_b32 v4, 3, v0
    v_and_b32 v5, 7, v0
    v_and_b32 v6, 6, v4
    v_xor_b32 v5, v5, v6
    v_lshlrev_b32 v4, 11, v4
    v_lshl_add_u32 v3, v5, 4, v4
    s_mul_i32 s30, s3, 7168
    s_lshl_b32 s31, s3, 16
    s_lshl_b32 s62, s3, 14
    """)
    def issue_w(slot):
        for u in range(4):
            a(f"s_add_u32 m0, s62, {slot*4096 + u*1024}\ns_add_u32 s35, s31, {u*16384}")
            a(f"buffer_load_dwordx4 v3, s[{SWO}:{SWO+3}], s35 offen{pol(cfg.w_pol)} lds")
        a("s_add_u32 s31, s31, 0x40000")
    def load_o(buf, qt):
        so = "s30" if qt < 4 else "s61"
        return f"buffer_load_dwordx4 {vr(OF+28*buf+4*qt,4)}, v2, s[{SOO}:{SOO+3}], {so} offen offset:{(qt&3)*1024}"
    adv_o = "s_add_u32 s30, s30, 28672\ns_add_u32 s61, s61, 28672"
    a("s_add_u32 s61, s30, 4096")
    issue_w(0); issue_w(1); issue_w(2)
    for qt in range(7): a(load_o(0, qt))
    a(adv_o)
    issue_w(3)
    for qt in range(7): a(load_o(1, qt))
    a(adv_o)
    a("""
    v_lshrrev_b32 v4, 4, v0         ; g4
    v_bfe_u32 v5, v0, 2, 2          ; r
    v_and_b32 v6, 3, v0             ; c
    v_lshrrev_b32 v7, 1, v4
    v_lshlrev_b32 v7, 4, v7
    v_and_b32 v8, 1, v4
    v_lshl_add_u32 v7, v8, 2, v7
    v_add_u32 v7, v7, v5            ; row
    v_bfe_u32 v8, v7, 1, 2
    v_lshlrev_b32 v7, 7, v7
    v_lshrrev_b32 v9, 1, v6
    v_lshl_add_u32 v7, v9, 4, v7
    v_and_b32 v9, 1, v6
    v_lshl_add_u32 v7, v9, 3, v7
    v_add_u32 v7, s62, v7
    """)
    for t in range(4):
        a(f"v_xor_b32 v9, {t}, v8\nv_lshl_add_u32 v{10+t}, v9, 5, v7")
    for i in range(112): a(f"v_mov_b32 v{ACC+i}, 0")
    def wreads(h):
        return [f"ds_read_b64_tr_b16 {vr(WF+16*(h&1)+4*t+2*j,2)}, v{10+t} offset:{(h%4)*4096 + j*1024}" for t in range(4) for j in range(2)]
    a("s_waitcnt vmcnt(26)")
    stamp(a, cfg, 1)
    for r in wreads(0): a(r)
    a("s_mov_b32 s60, 0\nK2_loop:")
    for h in range(4):
        a("s_waitcnt lgkmcnt(0)")
        issue_w(h)
        rd = wreads(h + 1)
        for qt in range(7):
            a("s_waitcnt vmcnt(21)")
            for t in range(4):
                acc = ACC + 4 * (t * 7 + qt)
                a(f"v_mfma_f32_16x16x32_bf16 {vr(acc,4)}, {vr(WF+16*(h&1)+4*t,4)}, {vr(OF+28*(h&1)+4*qt,4)}, {vr(acc,4)}")
                if rd: a(rd.pop(0))
            a(load_o(h & 1, qt))
        a(adv_o)
    a("s_add_u32 s60, s60, 1\ns_cmp_lt_u32 s60, 8\ns_cbranch_scc1 K2_loop")
    stamp(a, cfg, 2)
    a("""
    s_mul_i32 s35, s3, 7168
    v_add_u32 v4, s35, v2
    v_add_u32 v5, 57344, v4
    s_mul_i32 s35, s3, 28672
    v_add_u32 v6, s35, v2
    v_and_b32 v7, 15, v0
    v_lshlrev_b32 v7, 12, v7
    v_lshrrev_b32 v8, 4, v0
    v_lshl_add_u32 v7, v8, 3, v7
    s_lshl_b32 s35, s3, 5
    v_add_u32 v7, s35, v7
    s_waitcnt vmcnt(0) lgkmcnt(0)
    s_barrier
    """)
    for t in range(4):
        for qt in range(7):
            a(f"ds_write_b128 v{4 + (t>>1)}, {vr(ACC+4*(t*7+qt),4)} offset:{(t&1)*28672 + qt*1024}")
    a("s_waitcnt lgkmcnt(0)\ns_barrier")
    for qt in range(7):
        for g in range(4):
            a(f"ds_read_b128 {vr(ACC+16*qt+4*g,4)}, v6 offset:{g*7168 + qt*1024}")
        if qt >= 2:
            pass
    for qt in range(7):
        b = ACC + 16 * qt
        a(f"s_waitcnt lgkmcnt({min(15, 4*(6-qt))})")
        for i in range(4): a(f"v_add_f32 v{b+i}, v{b+i}, v{b+4+i}\nv_add_f32 v{b+8+i}, v{b+8+i}, v{b+12+i}")
        for i in range(4): a(f"v_add_f32 v{b+i}, v{b+i}, v{b+8+i}")
        a(f"v_cvt_pk_bf16_f32 v{b}, v{b}, v{b+1}\nv_cvt_pk_bf16_f32 v{b+1}, v{b+2}, v{b+3}")
        a(f"s_mov_b32 s35, {qt*65536}\nbuffer_store_dwordx2 {vr(b,2)}, v7, s[{SOUT}:{SOUT+3}], s35 offen")
    a("s_waitcnt vmcnt(0)")
    stamp(a, cfg, 3)
    if cfg.stamps:
        a("s_cmp_lg_u32 s3, 0\ns_cbranch_scc1 K2_end")
        stamp_store(a, cfg, SWS, 256)
    a("s_branch K2_end\nK2_pref:")
    if cfg.touch:
        a("""
        v_cmp_le_u32 vcc, 28, v0
        v_subrev_u32 v4, 28, v0
        s_and_b32 s35, s34, 7
        v_cndmask_b32 v4, v0, v4, vcc
        v_mov_b32 v5, 0
        v_mov_b32 v6, 28672
        s_mul_i32 s35, s35, 28
        v_cndmask_b32 v5, v5, v6, vcc
        v_add_u32 v4, s35, v4
        v_lshl_add_u32 v4, v4, 7, v5
        v_mov_b32 v6, 0x7fffffff
        v_cmp_gt_u32 vcc, 56, v0
        v_and_b32 v7, 31, v0
        s_and_b32 s35, s33, 3
        v_cndmask_b32 v4, v6, v4, vcc
        s_lshl_b32 s35, s35, 5
        v_add_u32 v7, s35, v7
        v_lshrrev_b32 v8, 5, v0
        v_lshl_add_u32 v7, v8, 7, v7
        v_lshlrev_b32 v7, 11, v7
        s_mov_b32 s30, 57344
        s_mov_b32 s31, 0x80000
        s_mov_b32 s60, 1
        K2_ploop:
        """)
        a(f"buffer_load_dword v8, v4, s[{SOO}:{SOO+3}], s30 offen")
        a(f"buffer_load_dword v8, v7, s[{SWO}:{SWO+3}], s31 offen{pol(cfg.w_pol)}")
        a("""
        s_add_u32 s30, s30, 57344
        s_add_u32 s31, s31, 0x80000
        s_waitcnt vmcnt(6)
        s_add_u32 s60, s60, 1
        s_cmp_lt_u32 s60, 16
        s_cbranch_scc1 K2_ploop
        s_waitcnt vmcnt(0)
        """)
    a("K2_end:\ns_endpgm")
    return a.text()

def build(cfg):
    e = "; @launch kernel=empty_kernel grid=(256,1,1) block=(64,1,1) lds=0\n"
    hdr = e * int(cfg.pre_empty)
    hdr += "; @launch kernel=qattn_kernel grid=(256,1,1) block=(512,1,1) lds=163840\n"
    hdr += "; @launch kernel=oproj_kernel grid=(256,1,1) block=(320,1,1) lds=114688\n"
    hdr += e * int(cfg.post_empty)
    hdr += '.amdgcn_target "amdgcn-amd-amdhsa--gfx950"\n'
    return (hdr + kernel_head("empty_kernel") + "s_endpgm\n" + kernel_desc("empty_kernel", 8, 8) + kernel_head("qattn_kernel") + k1(cfg) + kernel_head("oproj_kernel") + k2(cfg)
            + kernel_desc("qattn_kernel", 224, 224) + kernel_desc("oproj_kernel", 216, 216))

if __name__ == "__main__":
    out = sys.argv[1]
    cfg = Cfg()
    for kv in sys.argv[2:]:
        k, v = kv.split("=")
        setattr(cfg, k, {"True": True, "False": False}.get(v, v))
    open(out, "w").write(build(cfg))
```

```python
import sys, math
from asmlib import *

class Cfg:
    stamps = False
    kv_pol = "nt"
    w_pol = ""
    touch = True
    dbgtime = False
    pre_empty = 0
    post_empty = 0

def pol(p): return (" " + p) if p else ""

def stamp(a, cfg, i):
    if cfg.stamps:
        a(f"s_memrealtime s[{64+2*i}:{65+2*i}]\ns_memtime s[{80+2*i}:{81+2*i}]")

def stamp_store(a, cfg, wsS, wgoff):
    if not cfg.stamps: return
    a(f"s_waitcnt lgkmcnt(0)\ns_add_u32 s3, s2, {wgoff}\ns_lshl_b32 s3, s3, 7\ns_add_u32 s3, s3, {STAMP_OFF}\nv_mov_b32 v1, s3")
    for q in range(8):
        for j in range(4): a(f"v_mov_b32 v{4+j}, s{64+4*q+j}")
        a(f"buffer_store_dwordx4 v[4:7], v1, s[{wsS}:{wsS+3}], 0 offen offset:{16*q}\ns_nop 2")
    a("s_waitcnt vmcnt(0)")

def load_args(a):
    a("""
    s_load_dwordx16 s[4:19], s[0:1], 0
    s_load_dwordx8 s[20:27], s[0:1], 64
    s_load_dwordx2 s[28:29], s[0:1], 96
    """)

def srd_off(a, d, lo, hi, off_reg, nbytes):
    a(f"s_add_u32 s{d}, {lo}, {off_reg}\ns_addc_u32 s{d+1}, {hi}, 0\ns_and_b32 s{d+1}, s{d+1}, 0xffff")
    a(f"s_mov_b32 s{d+2}, {nbytes}\ns_mov_b32 s{d+3}, 0x00020000")

X0, WQ0 = 0, 28672
KT, VT = 8448, 8704
HSTEP = KT + VT
SLOT = [94208, 128512, 0, 34304]
SX, SW, SK, SV, SO, SWS = 36, 40, 44, 48, 52, 56

def k1(cfg):
    a = A()
    a("s_cmp_ge_u32 s2, 256\ns_cbranch_scc1 K1_end")
    stamp(a, cfg, 0)
    if cfg.dbgtime is True: a("s_memrealtime s[100:101]")
    load_args(a)
    a("""
    v_lshrrev_b32 v1, 6, v0
    v_and_b32 v0, 63, v0
    v_readfirstlane_b32 s3, v1
    s_and_b32 s30, s2, 7
    s_lshr_b32 s31, s2, 3
    s_lshr_b32 s32, s30, 2          ; branch
    s_and_b32 s33, s30, 3
    s_lshl_b32 s33, s33, 2
    s_and_b32 s34, s31, 3
    s_add_u32 s33, s33, s34
    s_lshr_b32 s34, s31, 2          ; batch
    s_waitcnt lgkmcnt(0)
    s_cmp_eq_u32 s32, 0
    s_cselect_b64 s[4:5], s[4:5], s[14:15]
    s_cselect_b64 s[6:7], s[6:7], s[16:17]
    s_cselect_b64 s[8:9], s[8:9], s[18:19]
    s_cselect_b64 s[10:11], s[10:11], s[20:21]
    s_mul_i32 s35, s34, 229376
    """)
    srd_off(a, SX, "s4", "s5", "s35", 229376)
    a("s_lshl_b32 s35, s33, 9\ns_sub_u32 s60, 0x800000, s35")
    srd_off(a, SW, "s10", "s11", "s35", "s60")
    a("s_lshl_b32 s35, s34, 22\ns_lshl_b32 s60, s33, 18\ns_add_u32 s35, s35, s60")
    srd_off(a, SK, "s6", "s7", "s35", 262144)
    srd_off(a, SV, "s8", "s9", "s35", 262144)
    a("""
    s_lshl_b32 s35, s32, 3
    s_add_u32 s35, s35, s34
    s_lshl_b32 s35, s35, 5
    s_lshl_b32 s60, s33, 1
    s_add_u32 s35, s35, s60
    s_lshr_b32 s60, s3, 2
    s_add_u32 s35, s35, s60
    s_mul_i32 s35, s35, 28672
    """)
    srd_off(a, SO, "s28", "s29", "s35", 28672)
    if cfg.stamps: srd(a, SWS, "s28", "s29", 0x10000000)
    a("""
    v_lshrrev_b32 v4, 4, v0
    v_and_b32 v5, 15, v0
    v_lshlrev_b32 v6, 11, v4
    v_lshl_add_u32 v3, v5, 4, v6
    v_and_b32 v7, 1, v4
    v_xor_b32 v7, v7, v5
    v_lshl_add_u32 v2, v7, 4, v6
    s_and_b32 s61, s3, 3
    s_cmp_ge_u32 s3, 4
    s_cbranch_scc1 K1_loader
    """)
    ACC = 16; FB = 128
    if cfg.touch:
        a("""
        v_lshrrev_b32 v4, 5, v0
        v_lshlrev_b32 v4, 6, v4
        v_bfe_u32 v5, v0, 2, 3
        v_add_u32 v4, v4, v5
        s_lshl_b32 s35, s34, 3
        v_add_u32 v4, s35, v4
        v_lshlrev_b32 v4, 13, v4
        v_and_b32 v5, 3, v0
        v_lshl_add_u32 v4, v5, 7, v4
        v_lshrrev_b32 v5, 1, v0
        s_and_b32 s35, s33, 3
        s_mul_i32 s35, s35, 28
        v_add_u32 v5, s35, v5
        v_lshlrev_b32 v5, 11, v5
        v_and_b32 v6, 1, v0
        v_lshl_add_u32 v5, v6, 7, v5
        v_mov_b32 v6, 0x7fffffff
        v_cmp_gt_u32 vcc, 56, v0
        s_lshl_b32 s35, s61, 20
        s_lshl_b32 s60, s61, 8
        v_cndmask_b32 v5, v6, v5, vcc
        """)
        for n in range(2):
            a(f"buffer_load_dword v8, v4, s[{SW}:{SW+3}], s35 offen{pol(cfg.w_pol)}")
            a(f"buffer_load_dword v8, v5, s[{SX}:{SX+3}], s60 offen{pol(cfg.w_pol)}")
            if n == 0: a("s_add_u32 s35, s35, 0x400000\ns_add_u32 s60, s60, 1024")
    a("s_mul_i32 s62, s61, 1056\ns_mul_i32 s63, s61, 1088\ns_lshl_b32 s60, s61, 8")
    for st in range(2):
        for hd in range(2):
            for n in range(2):
                g = hd * 131072 + st * 8192 + n * 1024
                a(f"s_add_u32 m0, s62, {SLOT[st] + hd*HSTEP + n*4*1056}\ns_add_u32 s35, s60, {g}")
                a(f"buffer_load_dwordx4 v2, s[{SK}:{SK+3}], s35 offen{pol(cfg.kv_pol)} lds")
                a(f"s_add_u32 m0, s63, {SLOT[st] + hd*HSTEP + KT + n*4*1088}\ns_nop 0")
                a(f"buffer_load_dwordx4 v3, s[{SV}:{SV+3}], s35 offen{pol(cfg.kv_pol)} lds")
    a(f"""
    v_lshrrev_b32 v4, 4, v0         ; g4
    v_bfe_u32 v5, v0, 2, 2          ; r
    v_and_b32 v6, 3, v0             ; c
    v_lshl_add_u32 v7, v4, 3, v5
    v_lshlrev_b32 v7, 9, v7         ; (8*g4+r)*512
    v_lshrrev_b32 v9, 1, v6
    v_lshl_add_u32 v7, v9, 4, v7
    v_and_b32 v9, 1, v6
    v_lshl_add_u32 v7, v9, 3, v7
    s_lshr_b32 s35, s61, 1
    s_lshl_b32 s35, s35, 8
    s_add_u32 s35, s35, {WQ0}
    v_add_u32 v7, s35, v7
    v_and_b32 v9, 1, v4
    v_lshl_or_b32 v9, v9, 2, v5     ; f
    s_and_b32 s35, s61, 1
    s_lshl_b32 s35, s35, 2
    v_xor_b32 v9, s35, v9
    """)
    for t in range(4):
        a(f"v_xor_b32 v1, {t}, v9\nv_lshl_add_u32 v{10+t}, v1, 5, v7")
    a("""
    v_and_b32 v5, 15, v0
    v_lshrrev_b32 v6, 1, v5
    v_xor_b32 v6, v6, v4
    v_lshlrev_b32 v5, 7, v5
    v_lshl_add_u32 v14, v6, 4, v5
    v_xor_b32 v15, 64, v14
    """)
    for i in range(112): a(f"v_mov_b32 v{ACC+i}, 0")
    def reads(u):
        fb = FB + 44 * (u & 1); r = []
        for t in range(4):
            for j in range(2):
                r.append(f"ds_read_b64_tr_b16 {vr(fb+4*t+2*j,2)}, v{10+t} offset:{(u%4)*16384 + j*2048}")
        xs = [f"ds_read_b128 {vr(fb+16+4*qt,4)}, v{14+(u&1)} offset:{((u>>1)&1)*14336 + qt*2048}" for qt in range(7)]
        return r[:2] + xs[:1] + r[2:] + xs[1:]
    a("s_barrier")
    stamp(a, cfg, 1)
    for r in reads(0): a(r)
    a("s_mov_b32 s35, 0\nK1_gloop:")
    for u in range(4):
        fb = FB + 44 * (u & 1)
        a("s_waitcnt lgkmcnt(0)\ns_barrier")
        rd = reads(u + 1)
        for qt in range(7):
            for t in range(4):
                acc = ACC + 4 * (t * 7 + qt)
                a(f"v_mfma_f32_16x16x32_bf16 {vr(acc,4)}, {vr(fb+4*t,4)}, {vr(fb+16+4*qt,4)}, {vr(acc,4)}")
                if rd: a(rd.pop(0))
    a("s_add_u32 s35, s35, 1\ns_cmp_lt_u32 s35, 8\ns_cbranch_scc1 K1_gloop")
    stamp(a, cfg, 2)
    c = (128 ** -0.5) * math.log2(math.e)
    import struct
    cbits = struct.unpack("<I", struct.pack("<f", c))[0]
    a(f"""
    s_mov_b32 s35, {cbits:#x}
    v_and_b32 v5, 15, v0
    v_lshlrev_b32 v5, 4, v5
    v_lshrrev_b32 v6, 5, v0
    v_lshl_add_u32 v5, v6, 9, v5
    v_bfe_u32 v6, v0, 4, 1
    v_lshl_add_u32 v5, v6, 3, v5
    s_lshr_b32 s60, s61, 1
    s_lshl_b32 s60, s60, 15
    s_and_b32 s62, s61, 1
    s_lshl_b32 s62, s62, 12
    s_add_u32 s60, s60, s62
    v_add_u32 v5, s60, v5
    """)
    for qt in range(7):
        for t in range(4):
            acc = ACC + 4 * (t * 7 + qt)
            for i in range(4): a(f"v_mul_f32 v{acc+i}, s35, v{acc+i}")
            a(f"v_cvt_pk_bf16_f32 v{acc}, v{acc}, v{acc+1}\nv_cvt_pk_bf16_f32 v{acc+1}, v{acc+2}, v{acc+3}")
    a("s_waitcnt vmcnt(0) lgkmcnt(0)\ns_barrier")
    for qt in range(7):
        for t in range(4):
            acc = ACC + 4 * (t * 7 + qt)
            a(f"ds_write_b64 v5, {vr(acc,2)} offset:{(qt>>1)*8192 + t*1024 + (qt&1)*256}")
    a("s_branch K1_join")
    a("K1_loader:")
    a("""
    v_lshrrev_b32 v4, 5, v0
    v_and_b32 v5, 31, v0
    s_and_b32 s35, s61, 1           ; a
    s_lshr_b32 s60, s61, 1          ; b
    s_lshl_b32 s62, s35, 1
    s_lshl_b32 s63, s60, 2
    s_add_u32 s62, s62, s63
    v_add_u32 v6, s62, v4           ; f = (2a+rr) | b<<2
    v_lshlrev_b32 v6, 1, v6
    v_xor_b32 v5, v5, v6
    s_lshl_b32 s63, s60, 3
    s_lshl_b32 s62, s35, 1
    s_add_u32 s62, s62, s63
    v_add_u32 v4, s62, v4
    v_lshlrev_b32 v4, 13, v4
    v_lshl_add_u32 v10, v5, 4, v4
    s_lshl_b32 s62, s62, 9          ; piece (a+4b)*1024
    """)
    a(f"s_add_u32 s62, s62, {WQ0}")
    a("""
    v_lshrrev_b32 v4, 3, v0
    v_and_b32 v5, 7, v0
    v_lshrrev_b32 v6, 1, v4
    s_lshl_b32 s63, s35, 2
    v_add_u32 v6, s63, v6
    v_xor_b32 v5, v5, v6
    s_lshl_b32 s63, s61, 3
    v_add_u32 v4, s63, v4
    v_lshlrev_b32 v4, 11, v4
    v_lshl_add_u32 v11, v5, 4, v4
    s_lshl_b32 s63, s61, 10
    s_mov_b32 s30, 0
    s_mov_b32 s31, 0
    """)
    def issue_w(slot):
        for pc in (0, 2, 8, 10):
            a(f"s_add_u32 m0, s62, {slot*16384 + pc*1024}\ns_add_u32 s35, s30, {pc*16384}")
            a(f"buffer_load_dwordx4 v10, s[{SW}:{SW+3}], s35 offen{pol(cfg.w_pol)} lds")
        a("s_add_u32 s30, s30, 0x40000")
    def issue_x(slot):
        lab = a.label("xs")
        for n in range(4):
            if n == 3: a(f"s_cmp_ge_u32 s61, 2\ns_cbranch_scc1 {lab}")
            a(f"s_add_u32 m0, s63, {slot*14336 + n*4096}\ns_add_u32 s35, s31, {n*65536}")
            a(f"buffer_load_dwordx4 v11, s[{SX}:{SX+3}], s35 offen{pol(cfg.w_pol)} lds")
        a(f"{lab}:\ns_add_u32 s31, s31, 128\ns_cmp_ge_u32 s31, 2048\ns_cselect_b32 s31, 0x40000000, s31")
    issue_x(0); issue_w(0); issue_w(1); issue_x(1); issue_w(2); issue_w(3)
    a("s_waitcnt vmcnt(15)\ns_barrier\ns_mov_b32 s60, 0\nK1_lloop:")
    for u in range(4):
        a(f"s_waitcnt vmcnt({8 if u & 1 else 11})\ns_barrier")
        if u & 1: issue_x((u >> 1) & 1)
        issue_w(u)
    a("s_add_u32 s60, s60, 1\ns_cmp_lt_u32 s60, 8\ns_cbranch_scc1 K1_lloop")
    a("s_waitcnt vmcnt(0)\ns_barrier")
    QF, OA, SS, NM, KF, VF, PP = 16, 48, 112, 128, 144, 176, 208
    L_, MX, T0, T1 = 216, 217, 218, 219
    a("K1_join:")
    a(f"""
    s_lshr_b32 s60, s3, 2
    s_lshl_b32 s35, s60, 17
    s_add_u32 s{SK}, s{SK}, s35
    s_addc_u32 s{SK+1}, s{SK+1}, 0
    s_mov_b32 s{SK+2}, 131072
    s_add_u32 s{SV}, s{SV}, s35
    s_addc_u32 s{SV+1}, s{SV+1}, 0
    s_mov_b32 s{SV+2}, 131072
    s_mul_i32 s30, s60, {HSTEP}
    s_mul_i32 s62, s61, 1056
    s_add_u32 s62, s62, s30
    s_mul_i32 s63, s61, 1088
    s_add_u32 s63, s63, s30
    s_add_u32 s63, s63, {KT}
    s_lshl_b32 s31, s61, 8
    s_add_u32 s31, s31, 16384
    v_and_b32 v4, 31, v0            ; q32 / key32
    v_lshrrev_b32 v6, 5, v0         ; hh
    s_cmp_eq_u32 s61, 3
    s_cselect_b32 s35, 15, 31
    v_and_b32 v7, s35, v4
    v_lshl_add_u32 v7, v6, 5, v7
    v_lshlrev_b32 v7, 4, v7
    s_lshl_b32 s35, s3, 13
    v_add_u32 v9, s35, v7
    v_and_b32 v7, 7, v4
    v_mul_u32_u24 v7, 1056, v7
    v_lshrrev_b32 v8, 3, v4
    v_lshl_add_u32 v7, v8, 8, v7
    v_and_b32 v8, 1, v8
    v_xor_b32 v8, v8, v6
    v_lshl_add_u32 v7, v8, 4, v7
    v_add_u32 v10, s30, v7
    v_add_u32 v11, {SLOT[0]}, v10
    v_bfe_u32 v7, v0, 2, 2
    v_lshl_add_u32 v7, v6, 2, v7
    v_mul_u32_u24 v7, 1088, v7
    v_bfe_u32 v8, v0, 4, 1
    v_lshl_add_u32 v7, v8, 5, v7
    v_and_b32 v8, 3, v0
    v_lshl_add_u32 v7, v8, 3, v7
    s_add_u32 s35, s30, {KT}
    v_add_u32 v12, s35, v7
    v_add_u32 v13, {SLOT[0]}, v12
    s_waitcnt lgkmcnt(0)
    s_barrier
    """)
    for s in range(8): a(f"ds_read_b128 {vr(QF+4*s,4)}, v9 offset:{s*1024}")
    for i in range(64): a(f"v_mov_b32 v{OA+i}, 0")
    for i in range(16): a(f"v_mov_b32 v{NM+i}, 0")
    a(f"v_mov_b32 v{L_}, 0\ns_mov_b32 s96, 0xff800000\ns_mov_b32 s97, 0xff800000")
    a("s_waitcnt lgkmcnt(0)\ns_barrier")
    stamp(a, cfg, 3)
    def issue_kv(slot):
        for n in range(2):
            a(f"s_add_u32 m0, s62, {SLOT[slot] + n*4*1056}\ns_add_u32 s35, s31, {n*1024}")
            a(f"buffer_load_dwordx4 v2, s[{SK}:{SK+3}], s35 offen{pol(cfg.kv_pol)} lds")
            a(f"s_add_u32 m0, s63, {SLOT[slot] + n*4*1088}\ns_nop 0")
            a(f"buffer_load_dwordx4 v3, s[{SV}:{SV+3}], s35 offen{pol(cfg.kv_pol)} lds")
        a("s_add_u32 s31, s31, 8192")
    issue_kv(2)
    a("s_mov_b32 s60, 0\nK1_aloop:")
    stubs = []
    for st in range(4):
        hi = st < 2; off = (st & 1) * 34304
        ka, va = ("v11", "v13") if hi else ("v10", "v12")
        a("s_waitcnt vmcnt(8)\ns_barrier")
        for s in range(8): a(f"ds_read_b128 {vr(KF+4*s,4)}, {ka} offset:{off + 32*s}")
        issue_kv((st + 3) % 4)
        vrd = [f"ds_read_b64_tr_b16 {vr(VF+4*(4*u+t)+2*j,2)}, {va} offset:{off + (2*u+j)*256 + 64*t}" for u in range(2) for t in range(4) for j in range(2)]
        for s in range(8):
            a(f"s_waitcnt lgkmcnt({7 - s + min(2*s, 8)})")
            a(f"v_mfma_f32_32x32x16_bf16 {vr(SS,16)}, {vr(KF+4*s,4)}, {vr(QF+4*s,4)}, {vr(NM if s == 0 else SS,16)}")
            if s < 4: a(vrd.pop(0)); a(vrd.pop(0))
        for _ in range(8): a(vrd.pop(0))
        a("s_nop 3")
        a(f"v_max3_f32 v{MX}, v{SS}, v{SS+1}, v{SS+2}")
        for i in range(3, 15, 2): a(f"v_max3_f32 v{MX}, v{MX}, v{SS+i}, v{SS+i+1}")
        a(f"v_max_f32 v{MX}, v{MX}, v{SS+15}")
        stub, back = a.label("stub"), a.label("back")
        stubs.append((stub, back))
        a(f"v_cmp_lt_f32 vcc, s96, v{MX}\ns_cbranch_vccnz {stub}\n{back}:")
        for u in range(2):
            for i in range(8): a(f"v_exp_f32 v{SS+8*u+i}, v{SS+8*u+i}")
            for i in range(4): a(f"v_cvt_pk_bf16_f32 v{PP+4*u+i}, v{SS+8*u+2*i}, v{SS+8*u+2*i+1}")
            if u == 0: a("s_waitcnt lgkmcnt(8)")
            else: a("s_waitcnt lgkmcnt(0)")
            a(f"v_add_f32 v{L_}, v{L_}, v{SS+8*u}")
            for t in range(4):
                a(f"v_mfma_f32_32x32x16_bf16 {vr(OA+16*t,16)}, {vr(VF+4*(4*u+t),4)}, {vr(PP+4*u,4)}, {vr(OA+16*t,16)}")
                for i in (1 + 2*t, 2 + 2*t):
                    if i < 8: a(f"v_add_f32 v{L_}, v{L_}, v{SS+8*u+i}")
    a("s_add_u32 s60, s60, 1\ns_cmp_lt_u32 s60, 4\ns_cbranch_scc1 K1_aloop")
    stamp(a, cfg, 4)
    a(f"""
    v_mov_b32 v{T0}, v{L_}
    v_and_b32 v4, 31, v0
    v_lshrrev_b32 v5, 4, v4
    v_permlane32_swap_b32 v{T0}, v{L_}
    v_lshlrev_b32 v5, 10, v5
    v_and_b32 v7, 15, v4
    v_add_f32 v{L_}, v{L_}, v{T0}
    v_lshl_add_u32 v5, v7, 4, v5
    v_rcp_f32 v{L_}, v{L_}
    v_lshrrev_b32 v7, 5, v0
    v_lshl_add_u32 v5, v7, 8, v5
    s_lshl_b32 s35, s61, 11
    v_add_u32 v5, s35, v5
    s_cmp_eq_u32 s61, 3
    s_cselect_b32 s35, 16, 32
    v_mov_b32 v7, 0x7fffffff
    v_cmp_gt_u32 vcc, s35, v4
    s_nop 1
    v_cndmask_b32 v5, v7, v5, vcc
    """)
    for t in range(4):
        if t: a(f"s_mov_b32 s35, {t*7168}")
        for jj in range(2):
            b = OA + 16*t + 8*jj
            for i in range(8): a(f"v_mul_f32 v{b+i}, v{b+i}, v{L_}")
            for i in range(4): a(f"v_cvt_pk_bf16_f32 v{b+i}, v{b+2*i}, v{b+2*i+1}")
            a(f"buffer_store_dwordx4 {vr(b,4)}, v5, s[{SO}:{SO+3}], {'s35' if t else '0'} offen offset:{jj*512}")
    a("s_waitcnt vmcnt(0)")
    stamp(a, cfg, 5)
    if cfg.stamps:
        a("s_cmp_lg_u32 s3, 0\ns_cbranch_scc1 K1_end")
        stamp_store(a, cfg, SWS, 0)
    if cfg.dbgtime is True:
        a("s_memrealtime s[98:99]\ns_waitcnt lgkmcnt(0)")
        srd(a, SWS, "s26", "s27", 256)
        a(f"""s_not_b32 s100, s100
        v_mov_b32 v1, 0
        v_mov_b32 v4, s100
        v_mov_b32 v5, s98
        s_mov_b64 exec, 1
        buffer_atomic_umax v4, v1, s[{SWS}:{SWS+3}], 0 offen
        buffer_atomic_umax v5, v1, s[{SWS}:{SWS+3}], 0 offen offset:4
        s_waitcnt vmcnt(0)""")
    a("K1_end:\ns_endpgm")
    for stub, back in stubs:
        a(f"{stub}:\ns_call_b64 s[98:99], K1_rare\ns_branch {back}")
    a(f"""
    K1_rare:
    v_mov_b32 v{T0}, v{MX}
    s_nop 1
    v_permlane32_swap_b32 v{T0}, v{MX}
    s_nop 1
    v_max3_f32 v{MX}, v{MX}, v{T0}, s97
    v_max_f32 v{T0}, 0, v{MX}
    v_exp_f32 v{T0}, -v{T0}
    s_mov_b32 s96, 0x41000000
    s_mov_b32 s97, 0
    """)
    for i in range(16): a(f"v_sub_f32 v{SS+i}, v{SS+i}, v{MX}")
    for i in range(16): a(f"v_sub_f32 v{NM+i}, v{NM+i}, v{MX}")
    a(f"v_mul_f32 v{L_}, v{L_}, v{T0}")
    for i in range(64): a(f"v_mul_f32 v{OA+i}, v{OA+i}, v{T0}")
    a("s_setpc_b64 s[98:99]")
    return a.text()

def k2(cfg):
    a = A()
    SOO, SWO, SOUT = 36, 40, 44
    a("s_cmp_ge_u32 s2, 256\ns_cbranch_scc1 K2_end")
    stamp(a, cfg, 0)
    load_args(a)
    a("""
    v_lshrrev_b32 v1, 6, v0
    v_and_b32 v0, 63, v0
    v_readfirstlane_b32 s3, v1
    s_and_b32 s30, s2, 7
    s_lshr_b32 s31, s2, 3
    s_lshr_b32 s32, s30, 2          ; branch
    s_bfe_u32 s33, s30, 0x10001
    s_lshl_b32 s33, s33, 2
    s_and_b32 s34, s31, 3
    s_add_u32 s33, s33, s34         ; batch
    s_and_b32 s34, s30, 1
    s_lshl_b32 s34, s34, 3
    s_lshr_b32 s35, s31, 2
    s_add_u32 s34, s34, s35
    s_waitcnt lgkmcnt(0)
    s_cmp_eq_u32 s32, 0
    s_cselect_b64 s[12:13], s[12:13], s[22:23]
    s_lshl_b32 s35, s32, 3
    s_add_u32 s35, s35, s33
    s_mul_i32 s35, s35, 917504
    """)
    srd_off(a, SOO, "s28", "s29", "s35", 917504)
    a("s_lshl_b32 s35, s34, 7\ns_sub_u32 s60, 0x800000, s35")
    srd_off(a, SWO, "s12", "s13", "s35", "s60")
    a("""
    s_mul_i32 s60, s33, 458752
    s_add_u32 s35, s35, s60
    s_lshl_b32 s60, s32, 11
    s_add_u32 s35, s35, s60
    s_sub_u32 s60, 3670016, s35
    """)
    srd_off(a, SOUT, "s24", "s25", "s35", "s60")
    if cfg.stamps: srd(a, SWS, "s28", "s29", 0x10000000)
    a("s_cmp_ge_u32 s3, 4\ns_cbranch_scc1 K2_pref")
    ACC, OF, WF = 16, 128, 184
    a("""
    v_lshlrev_b32 v2, 4, v0
    v_lshrrev_b32 v4, 3, v0
    v_and_b32 v5, 7, v0
    v_and_b32 v6, 6, v4
    v_xor_b32 v5, v5, v6
    v_lshlrev_b32 v4, 11, v4
    v_lshl_add_u32 v3, v5, 4, v4
    s_mul_i32 s30, s3, 7168
    s_lshl_b32 s31, s3, 16
    s_lshl_b32 s62, s3, 14
    """)
    def issue_w(slot):
        for u in range(4):
            a(f"s_add_u32 m0, s62, {slot*4096 + u*1024}\ns_add_u32 s35, s31, {u*16384}")
            a(f"buffer_load_dwordx4 v3, s[{SWO}:{SWO+3}], s35 offen{pol(cfg.w_pol)} lds")
        a("s_add_u32 s31, s31, 0x40000")
    def load_o(buf, qt):
        so = "s30" if qt < 4 else "s61"
        return f"buffer_load_dwordx4 {vr(OF+28*buf+4*qt,4)}, v2, s[{SOO}:{SOO+3}], {so} offen offset:{(qt&3)*1024}"
    adv_o = "s_add_u32 s30, s30, 28672\ns_add_u32 s61, s61, 28672"
    a("s_add_u32 s61, s30, 4096")
    issue_w(0); issue_w(1); issue_w(2)
    for qt in range(7): a(load_o(0, qt))
    a(adv_o)
    issue_w(3)
    for qt in range(7): a(load_o(1, qt))
    a(adv_o)
    a("""
    v_lshrrev_b32 v4, 4, v0         ; g4
    v_bfe_u32 v5, v0, 2, 2          ; r
    v_and_b32 v6, 3, v0             ; c
    v_lshrrev_b32 v7, 1, v4
    v_lshlrev_b32 v7, 4, v7
    v_and_b32 v8, 1, v4
    v_lshl_add_u32 v7, v8, 2, v7
    v_add_u32 v7, v7, v5            ; row
    v_bfe_u32 v8, v7, 1, 2
    v_lshlrev_b32 v7, 7, v7
    v_lshrrev_b32 v9, 1, v6
    v_lshl_add_u32 v7, v9, 4, v7
    v_and_b32 v9, 1, v6
    v_lshl_add_u32 v7, v9, 3, v7
    v_add_u32 v7, s62, v7
    """)
    for t in range(4):
        a(f"v_xor_b32 v9, {t}, v8\nv_lshl_add_u32 v{10+t}, v9, 5, v7")
    for i in range(112): a(f"v_mov_b32 v{ACC+i}, 0")
    def wreads(h):
        return [f"ds_read_b64_tr_b16 {vr(WF+16*(h&1)+4*t+2*j,2)}, v{10+t} offset:{(h%4)*4096 + j*1024}" for t in range(4) for j in range(2)]
    a("s_waitcnt vmcnt(26)")
    stamp(a, cfg, 1)
    for r in wreads(0): a(r)
    a("s_mov_b32 s60, 0\nK2_loop:")
    for h in range(4):
        a("s_waitcnt lgkmcnt(0)")
        issue_w(h)
        rd = wreads(h + 1)
        for qt in range(7):
            a("s_waitcnt vmcnt(21)")
            for t in range(4):
                acc = ACC + 4 * (t * 7 + qt)
                a(f"v_mfma_f32_16x16x32_bf16 {vr(acc,4)}, {vr(WF+16*(h&1)+4*t,4)}, {vr(OF+28*(h&1)+4*qt,4)}, {vr(acc,4)}")
                if rd: a(rd.pop(0))
            a(load_o(h & 1, qt))
        a(adv_o)
    a("s_add_u32 s60, s60, 1\ns_cmp_lt_u32 s60, 8\ns_cbranch_scc1 K2_loop")
    stamp(a, cfg, 2)
    a("""
    s_mul_i32 s35, s3, 7168
    v_add_u32 v4, s35, v2
    v_add_u32 v5, 57344, v4
    s_mul_i32 s35, s3, 28672
    v_add_u32 v6, s35, v2
    v_and_b32 v7, 15, v0
    v_lshlrev_b32 v7, 12, v7
    v_lshrrev_b32 v8, 4, v0
    v_lshl_add_u32 v7, v8, 3, v7
    s_lshl_b32 s35, s3, 5
    v_add_u32 v7, s35, v7
    s_waitcnt vmcnt(0) lgkmcnt(0)
    s_barrier
    """)
    for t in range(4):
        for qt in range(7):
            a(f"ds_write_b128 v{4 + (t>>1)}, {vr(ACC+4*(t*7+qt),4)} offset:{(t&1)*28672 + qt*1024}")
    a("s_waitcnt lgkmcnt(0)\ns_barrier")
    for qt in range(7):
        for g in range(4):
            a(f"ds_read_b128 {vr(ACC+16*qt+4*g,4)}, v6 offset:{g*7168 + qt*1024}")
        if qt >= 2:
            pass
    for qt in range(7):
        b = ACC + 16 * qt
        a(f"s_waitcnt lgkmcnt({min(15, 4*(6-qt))})")
        for i in range(4): a(f"v_add_f32 v{b+i}, v{b+i}, v{b+4+i}\nv_add_f32 v{b+8+i}, v{b+8+i}, v{b+12+i}")
        for i in range(4): a(f"v_add_f32 v{b+i}, v{b+i}, v{b+8+i}")
        a(f"v_cvt_pk_bf16_f32 v{b}, v{b}, v{b+1}\nv_cvt_pk_bf16_f32 v{b+1}, v{b+2}, v{b+3}")
        a(f"s_mov_b32 s35, {qt*65536}\nbuffer_store_dwordx2 {vr(b,2)}, v7, s[{SOUT}:{SOUT+3}], s35 offen")
    a("s_waitcnt vmcnt(0)")
    stamp(a, cfg, 3)
    if cfg.stamps:
        a("s_cmp_lg_u32 s3, 0\ns_cbranch_scc1 K2_end")
        stamp_store(a, cfg, SWS, 256)
        if cfg.dbgtime == "2":
            a(f"""s_cmp_lg_u32 s2, 0
            s_cbranch_scc1 K2_end
            v_and_b32 v1, 7, v0
            v_lshlrev_b32 v1, 3, v1
            v_lshrrev_b32 v2, 3, v0
            v_lshl_add_u32 v1, v2, 15, v1
            v_add_u32 v1, {STAMP_OFF}, v1
            v_mov_b32 v2, {STAMP_OFF}
            buffer_load_dword v3, v1, s[{SWS}:{SWS+3}], 0 offen sc0 sc1
            buffer_load_dword v4, v2, s[{SWS}:{SWS+3}], 0 offen sc0 sc1
            s_waitcnt vmcnt(0)
            v_sub_u32 v3, v3, v4
            v_lshlrev_b32 v1, 2, v0""")
            srd(a, SWS, "s26", "s27", 64)
            a(f"buffer_store_dword v3, v1, s[{SWS}:{SWS+3}], 0 offen\ns_waitcnt vmcnt(0)")
    a("s_branch K2_end\nK2_pref:")
    if cfg.touch:
        a("""
        v_cmp_le_u32 vcc, 28, v0
        v_subrev_u32 v4, 28, v0
        s_and_b32 s35, s34, 7
        v_cndmask_b32 v4, v0, v4, vcc
        v_mov_b32 v5, 0
        v_mov_b32 v6, 28672
        s_mul_i32 s35, s35, 28
        v_cndmask_b32 v5, v5, v6, vcc
        v_add_u32 v4, s35, v4
        v_lshl_add_u32 v4, v4, 7, v5
        v_mov_b32 v6, 0x7fffffff
        v_cmp_gt_u32 vcc, 56, v0
        v_and_b32 v7, 31, v0
        s_and_b32 s35, s33, 3
        v_cndmask_b32 v4, v6, v4, vcc
        s_lshl_b32 s35, s35, 5
        v_add_u32 v7, s35, v7
        v_lshrrev_b32 v8, 5, v0
        v_lshl_add_u32 v7, v8, 7, v7
        v_lshlrev_b32 v7, 11, v7
        s_mov_b32 s30, 57344
        s_mov_b32 s31, 0x80000
        s_mov_b32 s60, 1
        K2_ploop:
        """)
        a(f"buffer_load_dword v8, v4, s[{SOO}:{SOO+3}], s30 offen")
        a(f"buffer_load_dword v8, v7, s[{SWO}:{SWO+3}], s31 offen{pol(cfg.w_pol)}")
        a("""
        s_add_u32 s30, s30, 57344
        s_add_u32 s31, s31, 0x80000
        s_waitcnt vmcnt(6)
        s_add_u32 s60, s60, 1
        s_cmp_lt_u32 s60, 16
        s_cbranch_scc1 K2_ploop
        s_waitcnt vmcnt(0)
        """)
    a("K2_end:\ns_endpgm")
    return a.text()

def build(cfg):
    e = "; @launch kernel=empty_kernel grid=(256,1,1) block=(64,1,1) lds=0\n"
    hdr = e * int(cfg.pre_empty)
    hdr += "; @launch kernel=qattn_kernel grid=(256,1,1) block=(512,1,1) lds=163840\n"
    hdr += "; @launch kernel=oproj_kernel grid=(256,1,1) block=(320,1,1) lds=114688\n"
    hdr += e * int(cfg.post_empty)
    hdr += '.amdgcn_target "amdgcn-amd-amdhsa--gfx950"\n'
    return (hdr + kernel_head("empty_kernel") + "s_endpgm\n" + kernel_desc("empty_kernel", 8, 8) + kernel_head("qattn_kernel") + k1(cfg) + kernel_head("oproj_kernel") + k2(cfg)
            + kernel_desc("qattn_kernel", 224, 224) + kernel_desc("oproj_kernel", 216, 216))

if __name__ == "__main__":
    out = sys.argv[1]
    cfg = Cfg()
    for kv in sys.argv[2:]:
        k, v = kv.split("=")
        setattr(cfg, k, {"True": True, "False": False}.get(v, v))
    open(out, "w").write(build(cfg))
```

```python
import sys, math
from asmlib import *

class Cfg:
    stamps = False
    kv_pol = "nt"
    w_pol = ""
    touch = True
    dbgtime = False
    echo = ""
    pre_empty = 0
    post_empty = 0

def pol(p): return (" " + p) if p else ""

def stamp(a, cfg, i):
    if cfg.stamps:
        a(f"s_memrealtime s[{64+2*i}:{65+2*i}]\ns_memtime s[{80+2*i}:{81+2*i}]")

def stamp_store(a, cfg, wsS, wgoff):
    if not cfg.stamps: return
    a(f"s_waitcnt lgkmcnt(0)\ns_add_u32 s3, s2, {wgoff}\ns_lshl_b32 s3, s3, 7\ns_add_u32 s3, s3, {STAMP_OFF}\nv_mov_b32 v1, s3")
    for q in range(8):
        for j in range(4): a(f"v_mov_b32 v{4+j}, s{64+4*q+j}")
        a(f"buffer_store_dwordx4 v[4:7], v1, s[{wsS}:{wsS+3}], 0 offen offset:{16*q}\ns_nop 2")
    a("s_waitcnt vmcnt(0)")

def load_args(a):
    a("""
    s_load_dwordx16 s[4:19], s[0:1], 0
    s_load_dwordx8 s[20:27], s[0:1], 64
    s_load_dwordx2 s[28:29], s[0:1], 96
    """)

def srd_off(a, d, lo, hi, off_reg, nbytes):
    a(f"s_add_u32 s{d}, {lo}, {off_reg}\ns_addc_u32 s{d+1}, {hi}, 0\ns_and_b32 s{d+1}, s{d+1}, 0xffff")
    a(f"s_mov_b32 s{d+2}, {nbytes}\ns_mov_b32 s{d+3}, 0x00020000")

X0, WQ0 = 0, 28672
KT, VT = 8448, 8704
HSTEP = KT + VT
SLOT = [94208, 128512, 0, 34304]
SX, SW, SK, SV, SO, SWS = 36, 40, 44, 48, 52, 56

def k1(cfg):
    a = A()
    a("s_cmp_ge_u32 s2, 256\ns_cbranch_scc1 K1_end")
    stamp(a, cfg, 0)
    if cfg.dbgtime is True: a("s_memrealtime s[100:101]")
    load_args(a)
    a("""
    v_lshrrev_b32 v1, 6, v0
    v_and_b32 v0, 63, v0
    v_readfirstlane_b32 s3, v1
    s_and_b32 s30, s2, 7
    s_lshr_b32 s31, s2, 3
    s_lshr_b32 s32, s30, 2          ; branch
    s_and_b32 s33, s30, 3
    s_lshl_b32 s33, s33, 2
    s_and_b32 s34, s31, 3
    s_add_u32 s33, s33, s34
    s_lshr_b32 s34, s31, 2          ; batch
    s_waitcnt lgkmcnt(0)
    s_cmp_eq_u32 s32, 0
    s_cselect_b64 s[4:5], s[4:5], s[14:15]
    s_cselect_b64 s[6:7], s[6:7], s[16:17]
    s_cselect_b64 s[8:9], s[8:9], s[18:19]
    s_cselect_b64 s[10:11], s[10:11], s[20:21]
    s_mul_i32 s35, s34, 229376
    """)
    srd_off(a, SX, "s4", "s5", "s35", 229376)
    a("s_lshl_b32 s35, s33, 9\ns_sub_u32 s60, 0x800000, s35")
    srd_off(a, SW, "s10", "s11", "s35", "s60")
    a("s_lshl_b32 s35, s34, 22\ns_lshl_b32 s60, s33, 18\ns_add_u32 s35, s35, s60")
    srd_off(a, SK, "s6", "s7", "s35", 262144)
    srd_off(a, SV, "s8", "s9", "s35", 262144)
    a("""
    s_lshl_b32 s35, s32, 3
    s_add_u32 s35, s35, s34
    s_lshl_b32 s35, s35, 5
    s_lshl_b32 s60, s33, 1
    s_add_u32 s35, s35, s60
    s_lshr_b32 s60, s3, 2
    s_add_u32 s35, s35, s60
    s_mul_i32 s35, s35, 28672
    """)
    srd_off(a, SO, "s28", "s29", "s35", 28672)
    if cfg.stamps: srd(a, SWS, "s28", "s29", 0x10000000)
    a("""
    v_lshrrev_b32 v4, 4, v0
    v_and_b32 v5, 15, v0
    v_lshlrev_b32 v6, 11, v4
    v_lshl_add_u32 v3, v5, 4, v6
    v_and_b32 v7, 1, v4
    v_xor_b32 v7, v7, v5
    v_lshl_add_u32 v2, v7, 4, v6
    s_and_b32 s61, s3, 3
    s_cmp_ge_u32 s3, 4
    s_cbranch_scc1 K1_loader
    """)
    ACC = 16; FB = 128
    if cfg.touch:
        a("""
        v_lshrrev_b32 v4, 5, v0
        v_lshlrev_b32 v4, 6, v4
        v_bfe_u32 v5, v0, 2, 3
        v_add_u32 v4, v4, v5
        s_lshl_b32 s35, s34, 3
        v_add_u32 v4, s35, v4
        v_lshlrev_b32 v4, 13, v4
        v_and_b32 v5, 3, v0
        v_lshl_add_u32 v4, v5, 7, v4
        v_lshrrev_b32 v5, 1, v0
        s_and_b32 s35, s33, 3
        s_mul_i32 s35, s35, 28
        v_add_u32 v5, s35, v5
        v_lshlrev_b32 v5, 11, v5
        v_and_b32 v6, 1, v0
        v_lshl_add_u32 v5, v6, 7, v5
        v_mov_b32 v6, 0x7fffffff
        v_cmp_gt_u32 vcc, 56, v0
        s_lshl_b32 s35, s61, 20
        s_lshl_b32 s60, s61, 8
        v_cndmask_b32 v5, v6, v5, vcc
        """)
        for n in range(2):
            a(f"buffer_load_dword v8, v4, s[{SW}:{SW+3}], s35 offen{pol(cfg.w_pol)}")
            a(f"buffer_load_dword v8, v5, s[{SX}:{SX+3}], s60 offen{pol(cfg.w_pol)}")
            if n == 0: a("s_add_u32 s35, s35, 0x400000\ns_add_u32 s60, s60, 1024")
    a("s_mul_i32 s62, s61, 1056\ns_mul_i32 s63, s61, 1088\ns_lshl_b32 s60, s61, 8")
    for st in range(2):
        for hd in range(2):
            for n in range(2):
                g = hd * 131072 + st * 8192 + n * 1024
                a(f"s_add_u32 m0, s62, {SLOT[st] + hd*HSTEP + n*4*1056}\ns_add_u32 s35, s60, {g}")
                a(f"buffer_load_dwordx4 v2, s[{SK}:{SK+3}], s35 offen{pol(cfg.kv_pol)} lds")
                a(f"s_add_u32 m0, s63, {SLOT[st] + hd*HSTEP + KT + n*4*1088}\ns_nop 0")
                a(f"buffer_load_dwordx4 v3, s[{SV}:{SV+3}], s35 offen{pol(cfg.kv_pol)} lds")
    a(f"""
    v_lshrrev_b32 v4, 4, v0         ; g4
    v_bfe_u32 v5, v0, 2, 2          ; r
    v_and_b32 v6, 3, v0             ; c
    v_lshl_add_u32 v7, v4, 3, v5
    v_lshlrev_b32 v7, 9, v7         ; (8*g4+r)*512
    v_lshrrev_b32 v9, 1, v6
    v_lshl_add_u32 v7, v9, 4, v7
    v_and_b32 v9, 1, v6
    v_lshl_add_u32 v7, v9, 3, v7
    s_lshr_b32 s35, s61, 1
    s_lshl_b32 s35, s35, 8
    s_add_u32 s35, s35, {WQ0}
    v_add_u32 v7, s35, v7
    v_and_b32 v9, 1, v4
    v_lshl_or_b32 v9, v9, 2, v5     ; f
    s_and_b32 s35, s61, 1
    s_lshl_b32 s35, s35, 2
    v_xor_b32 v9, s35, v9
    """)
    for t in range(4):
        a(f"v_xor_b32 v1, {t}, v9\nv_lshl_add_u32 v{10+t}, v1, 5, v7")
    a("""
    v_and_b32 v5, 15, v0
    v_lshrrev_b32 v6, 1, v5
    v_xor_b32 v6, v6, v4
    v_lshlrev_b32 v5, 7, v5
    v_lshl_add_u32 v14, v6, 4, v5
    v_xor_b32 v15, 64, v14
    """)
    for i in range(112): a(f"v_mov_b32 v{ACC+i}, 0")
    def reads(u):
        fb = FB + 44 * (u & 1); r = []
        for t in range(4):
            for j in range(2):
                r.append(f"ds_read_b64_tr_b16 {vr(fb+4*t+2*j,2)}, v{10+t} offset:{(u%4)*16384 + j*2048}")
        xs = [f"ds_read_b128 {vr(fb+16+4*qt,4)}, v{14+(u&1)} offset:{((u>>1)&1)*14336 + qt*2048}" for qt in range(7)]
        return r[:2] + xs[:1] + r[2:] + xs[1:]
    a("s_barrier")
    stamp(a, cfg, 1)
    for r in reads(0): a(r)
    a("s_mov_b32 s35, 0\nK1_gloop:")
    for u in range(4):
        fb = FB + 44 * (u & 1)
        a("s_waitcnt lgkmcnt(0)\ns_barrier")
        rd = reads(u + 1)
        for qt in range(7):
            for t in range(4):
                acc = ACC + 4 * (t * 7 + qt)
                a(f"v_mfma_f32_16x16x32_bf16 {vr(acc,4)}, {vr(fb+4*t,4)}, {vr(fb+16+4*qt,4)}, {vr(acc,4)}")
                if rd: a(rd.pop(0))
    a("s_add_u32 s35, s35, 1\ns_cmp_lt_u32 s35, 8\ns_cbranch_scc1 K1_gloop")
    stamp(a, cfg, 2)
    c = (128 ** -0.5) * math.log2(math.e)
    import struct
    cbits = struct.unpack("<I", struct.pack("<f", c))[0]
    a(f"""
    s_mov_b32 s35, {cbits:#x}
    v_and_b32 v5, 15, v0
    v_lshlrev_b32 v5, 4, v5
    v_lshrrev_b32 v6, 5, v0
    v_lshl_add_u32 v5, v6, 9, v5
    v_bfe_u32 v6, v0, 4, 1
    v_lshl_add_u32 v5, v6, 3, v5
    s_lshr_b32 s60, s61, 1
    s_lshl_b32 s60, s60, 15
    s_and_b32 s62, s61, 1
    s_lshl_b32 s62, s62, 12
    s_add_u32 s60, s60, s62
    v_add_u32 v5, s60, v5
    """)
    for qt in range(7):
        for t in range(4):
            acc = ACC + 4 * (t * 7 + qt)
            for i in range(4): a(f"v_mul_f32 v{acc+i}, s35, v{acc+i}")
            a(f"v_cvt_pk_bf16_f32 v{acc}, v{acc}, v{acc+1}\nv_cvt_pk_bf16_f32 v{acc+1}, v{acc+2}, v{acc+3}")
    a("s_waitcnt vmcnt(0) lgkmcnt(0)\ns_barrier")
    for qt in range(7):
        for t in range(4):
            acc = ACC + 4 * (t * 7 + qt)
            a(f"ds_write_b64 v5, {vr(acc,2)} offset:{(qt>>1)*8192 + t*1024 + (qt&1)*256}")
    a("s_branch K1_join")
    a("K1_loader:")
    a("""
    v_lshrrev_b32 v4, 5, v0
    v_and_b32 v5, 31, v0
    s_and_b32 s35, s61, 1           ; a
    s_lshr_b32 s60, s61, 1          ; b
    s_lshl_b32 s62, s35, 1
    s_lshl_b32 s63, s60, 2
    s_add_u32 s62, s62, s63
    v_add_u32 v6, s62, v4           ; f = (2a+rr) | b<<2
    v_lshlrev_b32 v6, 1, v6
    v_xor_b32 v5, v5, v6
    s_lshl_b32 s63, s60, 3
    s_lshl_b32 s62, s35, 1
    s_add_u32 s62, s62, s63
    v_add_u32 v4, s62, v4
    v_lshlrev_b32 v4, 13, v4
    v_lshl_add_u32 v10, v5, 4, v4
    s_lshl_b32 s62, s62, 9          ; piece (a+4b)*1024
    """)
    a(f"s_add_u32 s62, s62, {WQ0}")
    a("""
    v_lshrrev_b32 v4, 3, v0
    v_and_b32 v5, 7, v0
    v_lshrrev_b32 v6, 1, v4
    s_lshl_b32 s63, s35, 2
    v_add_u32 v6, s63, v6
    v_xor_b32 v5, v5, v6
    s_lshl_b32 s63, s61, 3
    v_add_u32 v4, s63, v4
    v_lshlrev_b32 v4, 11, v4
    v_lshl_add_u32 v11, v5, 4, v4
    s_lshl_b32 s63, s61, 10
    s_mov_b32 s30, 0
    s_mov_b32 s31, 0
    """)
    def issue_w(slot):
        for pc in (0, 2, 8, 10):
            a(f"s_add_u32 m0, s62, {slot*16384 + pc*1024}\ns_add_u32 s35, s30, {pc*16384}")
            a(f"buffer_load_dwordx4 v10, s[{SW}:{SW+3}], s35 offen{pol(cfg.w_pol)} lds")
        a("s_add_u32 s30, s30, 0x40000")
    def issue_x(slot):
        lab = a.label("xs")
        for n in range(4):
            if n == 3: a(f"s_cmp_ge_u32 s61, 2\ns_cbranch_scc1 {lab}")
            a(f"s_add_u32 m0, s63, {slot*14336 + n*4096}\ns_add_u32 s35, s31, {n*65536}")
            a(f"buffer_load_dwordx4 v11, s[{SX}:{SX+3}], s35 offen{pol(cfg.w_pol)} lds")
        a(f"{lab}:\ns_add_u32 s31, s31, 128\ns_cmp_ge_u32 s31, 2048\ns_cselect_b32 s31, 0x40000000, s31")
    issue_x(0); issue_w(0); issue_w(1); issue_x(1); issue_w(2); issue_w(3)
    a("s_waitcnt vmcnt(15)\ns_barrier\ns_mov_b32 s60, 0\nK1_lloop:")
    for u in range(4):
        a(f"s_waitcnt vmcnt({8 if u & 1 else 11})\ns_barrier")
        if u & 1: issue_x((u >> 1) & 1)
        issue_w(u)
    a("s_add_u32 s60, s60, 1\ns_cmp_lt_u32 s60, 8\ns_cbranch_scc1 K1_lloop")
    a("s_waitcnt vmcnt(0)\ns_barrier")
    QF, OA, SS, NM, KF, VF, PP = 16, 48, 112, 128, 144, 176, 208
    L_, MX, T0, T1 = 216, 217, 218, 219
    a("K1_join:")
    a(f"""
    s_lshr_b32 s60, s3, 2
    s_lshl_b32 s35, s60, 17
    s_add_u32 s{SK}, s{SK}, s35
    s_addc_u32 s{SK+1}, s{SK+1}, 0
    s_mov_b32 s{SK+2}, 131072
    s_add_u32 s{SV}, s{SV}, s35
    s_addc_u32 s{SV+1}, s{SV+1}, 0
    s_mov_b32 s{SV+2}, 131072
    s_mul_i32 s30, s60, {HSTEP}
    s_mul_i32 s62, s61, 1056
    s_add_u32 s62, s62, s30
    s_mul_i32 s63, s61, 1088
    s_add_u32 s63, s63, s30
    s_add_u32 s63, s63, {KT}
    s_lshl_b32 s31, s61, 8
    s_add_u32 s31, s31, 16384
    v_and_b32 v4, 31, v0            ; q32 / key32
    v_lshrrev_b32 v6, 5, v0         ; hh
    s_cmp_eq_u32 s61, 3
    s_cselect_b32 s35, 15, 31
    v_and_b32 v7, s35, v4
    v_lshl_add_u32 v7, v6, 5, v7
    v_lshlrev_b32 v7, 4, v7
    s_lshl_b32 s35, s3, 13
    v_add_u32 v9, s35, v7
    v_and_b32 v7, 7, v4
    v_mul_u32_u24 v7, 1056, v7
    v_lshrrev_b32 v8, 3, v4
    v_lshl_add_u32 v7, v8, 8, v7
    v_and_b32 v8, 1, v8
    v_xor_b32 v8, v8, v6
    v_lshl_add_u32 v7, v8, 4, v7
    v_add_u32 v10, s30, v7
    v_add_u32 v11, {SLOT[0]}, v10
    v_bfe_u32 v7, v0, 2, 2
    v_lshl_add_u32 v7, v6, 2, v7
    v_mul_u32_u24 v7, 1088, v7
    v_bfe_u32 v8, v0, 4, 1
    v_lshl_add_u32 v7, v8, 5, v7
    v_and_b32 v8, 3, v0
    v_lshl_add_u32 v7, v8, 3, v7
    s_add_u32 s35, s30, {KT}
    v_add_u32 v12, s35, v7
    v_add_u32 v13, {SLOT[0]}, v12
    s_waitcnt lgkmcnt(0)
    s_barrier
    """)
    for s in range(8): a(f"ds_read_b128 {vr(QF+4*s,4)}, v9 offset:{s*1024}")
    for i in range(64): a(f"v_mov_b32 v{OA+i}, 0")
    for i in range(16): a(f"v_mov_b32 v{NM+i}, 0")
    a(f"v_mov_b32 v{L_}, 0\ns_mov_b32 s96, 0xff800000\ns_mov_b32 s97, 0xff800000")
    a("s_waitcnt lgkmcnt(0)\ns_barrier")
    stamp(a, cfg, 3)
    def issue_kv(slot):
        for n in range(2):
            a(f"s_add_u32 m0, s62, {SLOT[slot] + n*4*1056}\ns_add_u32 s35, s31, {n*1024}")
            a(f"buffer_load_dwordx4 v2, s[{SK}:{SK+3}], s35 offen{pol(cfg.kv_pol)} lds")
            a(f"s_add_u32 m0, s63, {SLOT[slot] + n*4*1088}\ns_nop 0")
            a(f"buffer_load_dwordx4 v3, s[{SV}:{SV+3}], s35 offen{pol(cfg.kv_pol)} lds")
        a("s_add_u32 s31, s31, 8192")
    issue_kv(2)
    a("s_mov_b32 s60, 0\nK1_aloop:")
    stubs = []
    for st in range(4):
        hi = st < 2; off = (st & 1) * 34304
        ka, va = ("v11", "v13") if hi else ("v10", "v12")
        a("s_waitcnt vmcnt(8)\ns_barrier")
        for s in range(8): a(f"ds_read_b128 {vr(KF+4*s,4)}, {ka} offset:{off + 32*s}")
        issue_kv((st + 3) % 4)
        vrd = [f"ds_read_b64_tr_b16 {vr(VF+4*(4*u+t)+2*j,2)}, {va} offset:{off + (2*u+j)*256 + 64*t}" for u in range(2) for t in range(4) for j in range(2)]
        for s in range(8):
            a(f"s_waitcnt lgkmcnt({7 - s + min(2*s, 8)})")
            a(f"v_mfma_f32_32x32x16_bf16 {vr(SS,16)}, {vr(KF+4*s,4)}, {vr(QF+4*s,4)}, {vr(NM if s == 0 else SS,16)}")
            if s < 4: a(vrd.pop(0)); a(vrd.pop(0))
        for _ in range(8): a(vrd.pop(0))
        a("s_nop 3")
        a(f"v_max3_f32 v{MX}, v{SS}, v{SS+1}, v{SS+2}")
        for i in range(3, 15, 2): a(f"v_max3_f32 v{MX}, v{MX}, v{SS+i}, v{SS+i+1}")
        a(f"v_max_f32 v{MX}, v{MX}, v{SS+15}")
        stub, back = a.label("stub"), a.label("back")
        stubs.append((stub, back))
        a(f"v_cmp_lt_f32 vcc, s96, v{MX}\ns_cbranch_vccnz {stub}\n{back}:")
        for u in range(2):
            for i in range(8): a(f"v_exp_f32 v{SS+8*u+i}, v{SS+8*u+i}")
            for i in range(4): a(f"v_cvt_pk_bf16_f32 v{PP+4*u+i}, v{SS+8*u+2*i}, v{SS+8*u+2*i+1}")
            if u == 0: a("s_waitcnt lgkmcnt(8)")
            else: a("s_waitcnt lgkmcnt(0)")
            a(f"v_add_f32 v{L_}, v{L_}, v{SS+8*u}")
            for t in range(4):
                a(f"v_mfma_f32_32x32x16_bf16 {vr(OA+16*t,16)}, {vr(VF+4*(4*u+t),4)}, {vr(PP+4*u,4)}, {vr(OA+16*t,16)}")
                for i in (1 + 2*t, 2 + 2*t):
                    if i < 8: a(f"v_add_f32 v{L_}, v{L_}, v{SS+8*u+i}")
    a("s_add_u32 s60, s60, 1\ns_cmp_lt_u32 s60, 4\ns_cbranch_scc1 K1_aloop")
    stamp(a, cfg, 4)
    a(f"""
    v_mov_b32 v{T0}, v{L_}
    v_and_b32 v4, 31, v0
    v_lshrrev_b32 v5, 4, v4
    v_permlane32_swap_b32 v{T0}, v{L_}
    v_lshlrev_b32 v5, 10, v5
    v_and_b32 v7, 15, v4
    v_add_f32 v{L_}, v{L_}, v{T0}
    v_lshl_add_u32 v5, v7, 4, v5
    v_rcp_f32 v{L_}, v{L_}
    v_lshrrev_b32 v7, 5, v0
    v_lshl_add_u32 v5, v7, 8, v5
    s_lshl_b32 s35, s61, 11
    v_add_u32 v5, s35, v5
    s_cmp_eq_u32 s61, 3
    s_cselect_b32 s35, 16, 32
    v_mov_b32 v7, 0x7fffffff
    v_cmp_gt_u32 vcc, s35, v4
    s_nop 1
    v_cndmask_b32 v5, v7, v5, vcc
    """)
    for t in range(4):
        if t: a(f"s_mov_b32 s35, {t*7168}")
        for jj in range(2):
            b = OA + 16*t + 8*jj
            for i in range(8): a(f"v_mul_f32 v{b+i}, v{b+i}, v{L_}")
            for i in range(4): a(f"v_cvt_pk_bf16_f32 v{b+i}, v{b+2*i}, v{b+2*i+1}")
            a(f"buffer_store_dwordx4 {vr(b,4)}, v5, s[{SO}:{SO+3}], {'s35' if t else '0'} offen offset:{jj*512}")
    a("s_waitcnt vmcnt(0)")
    stamp(a, cfg, 5)
    if cfg.stamps:
        a("s_cmp_lg_u32 s3, 0\ns_cbranch_scc1 K1_end")
        stamp_store(a, cfg, SWS, 0)
    if cfg.dbgtime is True:
        a("s_memrealtime s[98:99]\ns_waitcnt lgkmcnt(0)")
        srd(a, SWS, "s26", "s27", 256)
        a(f"""s_not_b32 s100, s100
        v_mov_b32 v1, 0
        v_mov_b32 v4, s100
        v_mov_b32 v5, s98
        s_mov_b64 exec, 1
        buffer_atomic_umax v4, v1, s[{SWS}:{SWS+3}], 0 offen
        buffer_atomic_umax v5, v1, s[{SWS}:{SWS+3}], 0 offen offset:4
        s_waitcnt vmcnt(0)""")
    a("K1_end:\ns_endpgm")
    for stub, back in stubs:
        a(f"{stub}:\ns_call_b64 s[98:99], K1_rare\ns_branch {back}")
    a(f"""
    K1_rare:
    v_mov_b32 v{T0}, v{MX}
    s_nop 1
    v_permlane32_swap_b32 v{T0}, v{MX}
    s_nop 1
    v_max3_f32 v{MX}, v{MX}, v{T0}, s97
    v_max_f32 v{T0}, 0, v{MX}
    v_exp_f32 v{T0}, -v{T0}
    s_mov_b32 s96, 0x41000000
    s_mov_b32 s97, 0
    """)
    for i in range(16): a(f"v_sub_f32 v{SS+i}, v{SS+i}, v{MX}")
    for i in range(16): a(f"v_sub_f32 v{NM+i}, v{NM+i}, v{MX}")
    a(f"v_mul_f32 v{L_}, v{L_}, v{T0}")
    for i in range(64): a(f"v_mul_f32 v{OA+i}, v{OA+i}, v{T0}")
    a("s_setpc_b64 s[98:99]")
    return a.text()

def k2(cfg):
    a = A()
    SOO, SWO, SOUT = 36, 40, 44
    a("s_cmp_ge_u32 s2, 256\ns_cbranch_scc1 K2_end")
    stamp(a, cfg, 0)
    load_args(a)
    a("""
    v_lshrrev_b32 v1, 6, v0
    v_and_b32 v0, 63, v0
    v_readfirstlane_b32 s3, v1
    s_and_b32 s30, s2, 7
    s_lshr_b32 s31, s2, 3
    s_lshr_b32 s32, s30, 2          ; branch
    s_bfe_u32 s33, s30, 0x10001
    s_lshl_b32 s33, s33, 2
    s_and_b32 s34, s31, 3
    s_add_u32 s33, s33, s34         ; batch
    s_and_b32 s34, s30, 1
    s_lshl_b32 s34, s34, 3
    s_lshr_b32 s35, s31, 2
    s_add_u32 s34, s34, s35
    s_waitcnt lgkmcnt(0)
    s_cmp_eq_u32 s32, 0
    s_cselect_b64 s[12:13], s[12:13], s[22:23]
    s_lshl_b32 s35, s32, 3
    s_add_u32 s35, s35, s33
    s_mul_i32 s35, s35, 917504
    """)
    srd_off(a, SOO, "s28", "s29", "s35", 917504)
    a("s_lshl_b32 s35, s34, 7\ns_sub_u32 s60, 0x800000, s35")
    srd_off(a, SWO, "s12", "s13", "s35", "s60")
    a("""
    s_mul_i32 s60, s33, 458752
    s_add_u32 s35, s35, s60
    s_lshl_b32 s60, s32, 11
    s_add_u32 s35, s35, s60
    s_sub_u32 s60, 3670016, s35
    """)
    srd_off(a, SOUT, "s24", "s25", "s35", "s60")
    if cfg.stamps: srd(a, SWS, "s28", "s29", 0x10000000)
    a("s_cmp_ge_u32 s3, 4\ns_cbranch_scc1 K2_pref")
    ACC, OF, WF = 16, 128, 184
    a("""
    v_lshlrev_b32 v2, 4, v0
    v_lshrrev_b32 v4, 3, v0
    v_and_b32 v5, 7, v0
    v_and_b32 v6, 6, v4
    v_xor_b32 v5, v5, v6
    v_lshlrev_b32 v4, 11, v4
    v_lshl_add_u32 v3, v5, 4, v4
    s_mul_i32 s30, s3, 7168
    s_lshl_b32 s31, s3, 16
    s_lshl_b32 s62, s3, 14
    """)
    def issue_w(slot):
        for u in range(4):
            a(f"s_add_u32 m0, s62, {slot*4096 + u*1024}\ns_add_u32 s35, s31, {u*16384}")
            a(f"buffer_load_dwordx4 v3, s[{SWO}:{SWO+3}], s35 offen{pol(cfg.w_pol)} lds")
        a("s_add_u32 s31, s31, 0x40000")
    def load_o(buf, qt):
        so = "s30" if qt < 4 else "s61"
        return f"buffer_load_dwordx4 {vr(OF+28*buf+4*qt,4)}, v2, s[{SOO}:{SOO+3}], {so} offen offset:{(qt&3)*1024}"
    adv_o = "s_add_u32 s30, s30, 28672\ns_add_u32 s61, s61, 28672"
    a("s_add_u32 s61, s30, 4096")
    issue_w(0); issue_w(1); issue_w(2)
    for qt in range(7): a(load_o(0, qt))
    a(adv_o)
    issue_w(3)
    for qt in range(7): a(load_o(1, qt))
    a(adv_o)
    a("""
    v_lshrrev_b32 v4, 4, v0         ; g4
    v_bfe_u32 v5, v0, 2, 2          ; r
    v_and_b32 v6, 3, v0             ; c
    v_lshrrev_b32 v7, 1, v4
    v_lshlrev_b32 v7, 4, v7
    v_and_b32 v8, 1, v4
    v_lshl_add_u32 v7, v8, 2, v7
    v_add_u32 v7, v7, v5            ; row
    v_bfe_u32 v8, v7, 1, 2
    v_lshlrev_b32 v7, 7, v7
    v_lshrrev_b32 v9, 1, v6
    v_lshl_add_u32 v7, v9, 4, v7
    v_and_b32 v9, 1, v6
    v_lshl_add_u32 v7, v9, 3, v7
    v_add_u32 v7, s62, v7
    """)
    for t in range(4):
        a(f"v_xor_b32 v9, {t}, v8\nv_lshl_add_u32 v{10+t}, v9, 5, v7")
    for i in range(112): a(f"v_mov_b32 v{ACC+i}, 0")
    def wreads(h):
        return [f"ds_read_b64_tr_b16 {vr(WF+16*(h&1)+4*t+2*j,2)}, v{10+t} offset:{(h%4)*4096 + j*1024}" for t in range(4) for j in range(2)]
    a("s_waitcnt vmcnt(26)")
    stamp(a, cfg, 1)
    for r in wreads(0): a(r)
    a("s_mov_b32 s60, 0\nK2_loop:")
    for h in range(4):
        a("s_waitcnt lgkmcnt(0)")
        issue_w(h)
        rd = wreads(h + 1)
        for qt in range(7):
            a("s_waitcnt vmcnt(21)")
            for t in range(4):
                acc = ACC + 4 * (t * 7 + qt)
                a(f"v_mfma_f32_16x16x32_bf16 {vr(acc,4)}, {vr(WF+16*(h&1)+4*t,4)}, {vr(OF+28*(h&1)+4*qt,4)}, {vr(acc,4)}")
                if rd: a(rd.pop(0))
            a(load_o(h & 1, qt))
        a(adv_o)
    a("s_add_u32 s60, s60, 1\ns_cmp_lt_u32 s60, 8\ns_cbranch_scc1 K2_loop")
    stamp(a, cfg, 2)
    a("""
    s_mul_i32 s35, s3, 7168
    v_add_u32 v4, s35, v2
    v_add_u32 v5, 57344, v4
    s_mul_i32 s35, s3, 28672
    v_add_u32 v6, s35, v2
    v_and_b32 v7, 15, v0
    v_lshlrev_b32 v7, 12, v7
    v_lshrrev_b32 v8, 4, v0
    v_lshl_add_u32 v7, v8, 3, v7
    s_lshl_b32 s35, s3, 5
    v_add_u32 v7, s35, v7
    s_waitcnt vmcnt(0) lgkmcnt(0)
    s_barrier
    """)
    for t in range(4):
        for qt in range(7):
            a(f"ds_write_b128 v{4 + (t>>1)}, {vr(ACC+4*(t*7+qt),4)} offset:{(t&1)*28672 + qt*1024}")
    a("s_waitcnt lgkmcnt(0)\ns_barrier")
    for qt in range(7):
        for g in range(4):
            a(f"ds_read_b128 {vr(ACC+16*qt+4*g,4)}, v6 offset:{g*7168 + qt*1024}")
        if qt >= 2:
            pass
    for qt in range(7):
        b = ACC + 16 * qt
        a(f"s_waitcnt lgkmcnt({min(15, 4*(6-qt))})")
        for i in range(4): a(f"v_add_f32 v{b+i}, v{b+i}, v{b+4+i}\nv_add_f32 v{b+8+i}, v{b+8+i}, v{b+12+i}")
        for i in range(4): a(f"v_add_f32 v{b+i}, v{b+i}, v{b+8+i}")
        a(f"v_cvt_pk_bf16_f32 v{b}, v{b}, v{b+1}\nv_cvt_pk_bf16_f32 v{b+1}, v{b+2}, v{b+3}")
        a(f"s_mov_b32 s35, {qt*65536}\nbuffer_store_dwordx2 {vr(b,2)}, v7, s[{SOUT}:{SOUT+3}], s35 offen")
    a("s_waitcnt vmcnt(0)")
    stamp(a, cfg, 3)
    if cfg.stamps:
        a("s_cmp_lg_u32 s3, 0\ns_cbranch_scc1 K2_end")
        stamp_store(a, cfg, SWS, 256)
        if cfg.dbgtime == "2":
            a(f"""s_cmp_lg_u32 s2, 0
            s_cbranch_scc1 K2_end
            v_and_b32 v1, 7, v0
            v_lshlrev_b32 v1, 3, v1
            v_lshrrev_b32 v2, 3, v0
            v_lshl_add_u32 v1, v2, 15, v1
            v_add_u32 v1, {STAMP_OFF}, v1
            v_mov_b32 v2, {STAMP_OFF}
            buffer_load_dword v3, v1, s[{SWS}:{SWS+3}], 0 offen sc0 sc1
            buffer_load_dword v4, v2, s[{SWS}:{SWS+3}], 0 offen sc0 sc1
            s_waitcnt vmcnt(0)
            v_sub_u32 v3, v3, v4
            v_lshlrev_b32 v1, 2, v0""")
            srd(a, SWS, "s26", "s27", 64)
            a(f"buffer_store_dword v3, v1, s[{SWS}:{SWS+3}], 0 offen\ns_waitcnt vmcnt(0)")
    a("s_branch K2_end\nK2_pref:")
    if cfg.touch:
        a("""
        v_cmp_le_u32 vcc, 28, v0
        v_subrev_u32 v4, 28, v0
        s_and_b32 s35, s34, 7
        v_cndmask_b32 v4, v0, v4, vcc
        v_mov_b32 v5, 0
        v_mov_b32 v6, 28672
        s_mul_i32 s35, s35, 28
        v_cndmask_b32 v5, v5, v6, vcc
        v_add_u32 v4, s35, v4
        v_lshl_add_u32 v4, v4, 7, v5
        v_mov_b32 v6, 0x7fffffff
        v_cmp_gt_u32 vcc, 56, v0
        v_and_b32 v7, 31, v0
        s_and_b32 s35, s33, 3
        v_cndmask_b32 v4, v6, v4, vcc
        s_lshl_b32 s35, s35, 5
        v_add_u32 v7, s35, v7
        v_lshrrev_b32 v8, 5, v0
        v_lshl_add_u32 v7, v8, 7, v7
        v_lshlrev_b32 v7, 11, v7
        s_mov_b32 s30, 57344
        s_mov_b32 s31, 0x80000
        s_mov_b32 s60, 1
        K2_ploop:
        """)
        a(f"buffer_load_dword v8, v4, s[{SOO}:{SOO+3}], s30 offen")
        a(f"buffer_load_dword v8, v7, s[{SWO}:{SWO+3}], s31 offen{pol(cfg.w_pol)}")
        a("""
        s_add_u32 s30, s30, 57344
        s_add_u32 s31, s31, 0x80000
        s_waitcnt vmcnt(6)
        s_add_u32 s60, s60, 1
        s_cmp_lt_u32 s60, 16
        s_cbranch_scc1 K2_ploop
        s_waitcnt vmcnt(0)
        """)
    a("K2_end:\ns_endpgm")
    return a.text()

def echo_kernel(cfg):
    ka, ia, kb, ib = [int(x) for x in cfg.echo.split(",")]
    a = A()
    a(f"""
    s_cmp_ge_u32 s2, 1
    s_cbranch_scc1 E_end
    s_load_dwordx2 s[4:5], s[0:1], 96
    s_memrealtime s[8:9]
    s_waitcnt lgkmcnt(0)
    s_add_u32 s4, s4, {STAMP_OFF}
    s_addc_u32 s5, s5, 0
    s_load_dword s10, s[4:5], {ka*32768 + ia*8}
    s_load_dword s11, s[4:5], {kb*32768 + ib*8}
    s_waitcnt lgkmcnt(0)
    s_sub_u32 s10, s11, s10
    s_mul_i32 s10, s10, 10
    s_min_u32 s10, s10, 200000
    E_spin:
    s_memrealtime s[12:13]
    s_waitcnt lgkmcnt(0)
    s_sub_u32 s12, s12, s8
    s_cmp_lt_u32 s12, s10
    s_cbranch_scc1 E_spin
    E_end:
    s_endpgm
    """)
    return a.text()

def build(cfg):
    e = "; @launch kernel=empty_kernel grid=(256,1,1) block=(64,1,1) lds=0\n"
    hdr = e * int(cfg.pre_empty)
    hdr += "; @launch kernel=qattn_kernel grid=(256,1,1) block=(512,1,1) lds=163840\n"
    hdr += "; @launch kernel=oproj_kernel grid=(256,1,1) block=(320,1,1) lds=114688\n"
    hdr += e * int(cfg.post_empty)
    if cfg.echo: hdr += "; @launch kernel=echo_kernel grid=(1,1,1) block=(64,1,1) lds=0\n"
    hdr += '.amdgcn_target "amdgcn-amd-amdhsa--gfx950"\n'
    return (hdr + kernel_head("empty_kernel") + "s_endpgm\n" + kernel_desc("empty_kernel", 8, 8) + ((kernel_head("echo_kernel") + echo_kernel(cfg) + kernel_desc("echo_kernel", 8, 8)) if cfg.echo else "") + kernel_head("qattn_kernel") + k1(cfg) + kernel_head("oproj_kernel") + k2(cfg)
            + kernel_desc("qattn_kernel", 224, 224) + kernel_desc("oproj_kernel", 216, 216))

if __name__ == "__main__":
    out = sys.argv[1]
    cfg = Cfg()
    for kv in sys.argv[2:]:
        k, v = kv.split("=")
        setattr(cfg, k, {"True": True, "False": False}.get(v, v))
    open(out, "w").write(build(cfg))
```

```python
import sys, math, struct
from asmlib import *

class Cfg:
    stamps = False
    kv_pol = ""
    d1 = 3
    abl = ""
    echo = ""
    sc = "sc1"
    rot = False
    spin = 400000

def pol(p): return (" " + p) if p else ""

X0, WQ0 = 0, 28672
KT, VT = 8448, 8704
HSTEP = KT + VT
SLOT = [94208, 128512, 0, 34304]
WO0 = 94208
RED, FLAGS = 16 << 20, 48 << 20
SX, SW, SK, SV, SO, SWO, SWS = 36, 40, 44, 48, 52, 56, 60
SOUT, SDBG = SX, SW
sBR, sHG, sCQ, sB, sWI, sIT, sA, sBb, sT, sU = ("s%d" % i for i in range(14, 24))
def S(d): return f"s[{d}:{d+3}]"

def stamp(a, cfg, i):
    if cfg.stamps: a(f"s_memrealtime s[{64+2*i}:{65+2*i}]\ns_memtime s[{80+2*i}:{81+2*i}]")

def stamp_store(a, cfg, wave, wgoff, end):
    if not cfg.stamps: return
    a(f"s_cmp_lg_u32 s3, {wave}\ns_cbranch_scc1 {end}")
    a(f"s_waitcnt lgkmcnt(0)\ns_add_u32 s3, s2, {wgoff}\ns_lshl_b32 s3, s3, 7\ns_add_u32 s3, s3, {STAMP_OFF}\nv_mov_b32 v1, s3")
    for q in range(8):
        for j in range(4): a(f"v_mov_b32 v{4+j}, s{64+4*q+j}")
        a(f"buffer_store_dwordx4 v[4:7], v1, {S(SWS)}, 0 offen offset:{16*q}\ns_nop 2")
    a("s_waitcnt vmcnt(0)")

def srd_off(a, d, lo, hi, off_reg, nbytes):
    a(f"s_add_u32 s{d}, {lo}, {off_reg}\ns_addc_u32 s{d+1}, {hi}, 0\ns_and_b32 s{d+1}, s{d+1}, 0xffff")
    a(f"s_mov_b32 s{d+2}, {nbytes}\ns_mov_b32 s{d+3}, 0x00020000")

ACC, FB = 16, 128
def gemm_step(a, u, rd, ex, pre=""):
    fb = FB + 44 * (u & 1)
    a(f"s_waitcnt lgkmcnt(0){pre}\ns_barrier")
    n = 0
    for qt in range(7):
        for t in range(4):
            acc = ACC + 4 * (t * 7 + qt)
            a(f"v_mfma_f32_16x16x32_bf16 {vr(acc,4)}, {vr(fb+4*t,4)}, {vr(fb+16+4*qt,4)}, {vr(acc,4)}")
            if rd: a(rd.pop(0))
            elif ex and n % 2 == 0: a(ex.pop(0))
            n += 1

def kernel(cfg):
    a = A()
    kvp = pol(cfg.kv_pol)
    a("s_cmp_ge_u32 s2, 256\ns_cbranch_scc1 L_end")
    stamp(a, cfg, 0)
    a(f"""
    s_load_dwordx16 s[4:19], s[0:1], 0
    s_load_dwordx8 s[20:27], s[0:1], 64
    s_load_dwordx2 s[28:29], s[0:1], 96
    v_lshrrev_b32 v1, 6, v0
    v_and_b32 v0, 63, v0
    v_readfirstlane_b32 s3, v1
    v_lshrrev_b32 v4, 4, v0
    v_and_b32 v5, 15, v0
    v_lshlrev_b32 v6, 11, v4
    v_lshl_add_u32 v3, v5, 4, v6
    v_and_b32 v7, 1, v4
    v_xor_b32 v7, v7, v5
    v_lshl_add_u32 v2, v7, 4, v6
    s_bitcmp0_b32 s2, 2
    s_waitcnt lgkmcnt(0)
    s_cselect_b64 s[4:5], s[4:5], s[14:15]
    s_cselect_b64 s[6:7], s[6:7], s[16:17]
    s_cselect_b64 s[8:9], s[8:9], s[18:19]
    s_cselect_b64 s[10:11], s[10:11], s[20:21]
    s_cselect_b64 s[12:13], s[12:13], s[22:23]
    s_bfe_u32 {sBR}, s2, 0x10002
    s_and_b32 {sHG}, s2, 3
    s_bfe_u32 {sCQ}, s2, 0x20003
    s_lshr_b32 {sB}, s2, 5
    s_and_b32 {sWI}, s3, 3
    s_mul_i32 s35, {sB}, 229376
    """)
    srd_off(a, SX, "s4", "s5", "s35", 229376)
    a(f"s_lshl_b32 s33, {sHG}, 2\ns_add_u32 s33, s33, {sCQ}\ns_lshl_b32 s35, s33, 9\ns_sub_u32 s34, 0x800000, s35")
    srd_off(a, SW, "s10", "s11", "s35", "s34")
    if cfg.rot: a(f"s_lshr_b32 s101, s2, 3\ns_lshr_b32 s35, s2, 7\ns_add_u32 s101, s101, s35\ns_lshl_b32 s35, s2, 1\ns_add_u32 s101, s101, s35\ns_and_b32 s101, s101, 15\ns_lshl_b32 s101, s101, 13")
    else: a("s_mov_b32 s101, 0")
    a("s_cmp_ge_u32 s3, 4\ns_cbranch_scc1 L_qload")

    def other_srds():
        a(f"s_lshl_b32 s35, {sB}, 22\ns_lshl_b32 s34, s33, 18\ns_add_u32 s35, s35, s34")
        srd_off(a, SK, "s6", "s7", "s35", 262144)
        srd_off(a, SV, "s8", "s9", "s35", 262144)
        a(f"s_lshl_b32 s35, {sBR}, 3\ns_add_u32 s35, s35, {sB}\ns_lshl_b32 s35, s35, 2\ns_add_u32 s35, s35, {sHG}\ns_mul_i32 s35, s35, 229376")
        srd_off(a, SO, "s28", "s29", "s35", 229376)
        a(f"s_lshl_b32 s35, {sHG}, 21\ns_lshl_b32 s34, {sCQ}, 9\ns_add_u32 s35, s35, s34\ns_sub_u32 s34, 0x200000, s34")
        srd_off(a, SWO, "s12", "s13", "s35", "s34")
        srd(a, SWS, "s28", "s29", 0x10000000)

    a(f"""
    s_lshl_b32 s35, {sWI}, 4
    v_add_u32 v8, s35, v0
    v_lshrrev_b32 v4, 5, v8
    v_lshlrev_b32 v4, 6, v4
    v_bfe_u32 v5, v8, 2, 3
    v_add_u32 v4, v4, v5
    s_lshl_b32 s35, {sB}, 3
    v_add_u32 v4, s35, v4
    v_lshlrev_b32 v4, 13, v4
    v_and_b32 v5, 3, v8
    v_lshl_add_u32 v4, v5, 7, v4
    v_mov_b32 v6, 0x7fffffff
    v_cmp_gt_u32 vcc, 16, v0
    s_mul_i32 s35, {sWI}, 14
    v_add_u32 v8, s35, v0
    v_cndmask_b32 v216, v6, v4, vcc
    v_lshrrev_b32 v5, 1, v8
    s_mul_i32 s35, {sCQ}, 28
    v_add_u32 v5, s35, v5
    v_lshlrev_b32 v5, 11, v5
    v_and_b32 v7, 1, v8
    v_lshl_add_u32 v5, v7, 7, v5
    v_cmp_gt_u32 vcc, 14, v0
    s_mov_b32 s30, 0x100000
    s_mov_b32 s31, 256
    v_cndmask_b32 v217, v6, v5, vcc
    """)
    def touch():
        return [f"buffer_load_dword v218, v216, {S(SW)}, s30 offen",
                f"buffer_load_dword v218, v217, {S(SX)}, s31 offen",
                "s_add_u32 s30, s30, 0x100000\ns_add_u32 s31, s31, 256\ns_cmp_ge_u32 s31, 2048\ns_cselect_b32 s31, 0x40000000, s31"]
    for n in range(int(cfg.d1) - 1):
        for t in touch(): a(t)
    other_srds()
    a(f"""
    s_cmp_lg_u32 s3, 0
    s_cbranch_scc1 L_noclear
    s_lshl_b32 s35, s2, 7
    s_add_u32 s35, s35, {FLAGS}
    v_lshlrev_b32 v4, 2, v0
    v_mov_b32 v5, 0
    s_mov_b64 exec, 0xff
    buffer_store_dword v5, v4, {S(SWS)}, s35 offen sc0 sc1
    s_mov_b64 exec, -1
    L_noclear:
    s_mul_i32 {sA}, {sWI}, 1056
    s_add_u32 {sA}, {sA}, {SLOT[0]}
    s_mul_i32 {sBb}, {sWI}, 1088
    s_add_u32 {sBb}, {sBb}, {SLOT[0]+KT}
    s_lshl_b32 s32, {sWI}, 8
    """)
    def kvpre():
        return [f"""s_and_b32 s96, {sIT}, 1
        s_bfe_u32 s97, {sIT}, 0x10001
        s_lshr_b32 s98, {sIT}, 2
        s_mul_i32 s99, s97, {HSTEP}
        s_mul_i32 s100, s98, {SLOT[1]-SLOT[0]}
        s_add_u32 s99, s99, s100""",
        f"""s_lshl_b32 s97, s97, 17
        s_lshl_b32 s98, s98, 13
        s_add_u32 s98, s98, s101
        s_and_b32 s98, s98, 0x1ffff
        s_add_u32 s97, s97, s98
        s_lshl_b32 s98, s96, 10
        s_add_u32 s97, s97, s98
        s_add_u32 s97, s97, s32""",
        f"""s_mul_i32 s98, s96, 4224
        s_add_u32 s98, s98, s99
        s_add_u32 m0, s98, {sA}
        s_mul_i32 s98, s96, 4352
        buffer_load_dwordx4 v2, {S(SK)}, s97 offen{kvp} lds""",
        f"""s_add_u32 s98, s98, s99
        s_add_u32 m0, s98, {sBb}
        s_nop 0
        buffer_load_dwordx4 v3, {S(SV)}, s97 offen{kvp} lds"""]
    a(f"""
    v_lshrrev_b32 v4, 4, v0         ; g4
    v_bfe_u32 v5, v0, 2, 2          ; r
    v_and_b32 v6, 3, v0             ; c
    v_lshl_add_u32 v7, v4, 3, v5
    v_lshlrev_b32 v7, 9, v7
    v_lshrrev_b32 v9, 1, v6
    v_lshl_add_u32 v7, v9, 4, v7
    v_and_b32 v9, 1, v6
    v_lshl_add_u32 v7, v9, 3, v7
    s_lshr_b32 s35, {sWI}, 1
    s_lshl_b32 s35, s35, 8
    s_add_u32 s35, s35, {WQ0}
    v_add_u32 v7, s35, v7
    v_and_b32 v9, 1, v4
    v_lshl_or_b32 v9, v9, 2, v5
    s_and_b32 s35, {sWI}, 1
    s_lshl_b32 s35, s35, 2
    v_xor_b32 v9, s35, v9
    """)
    for t in range(4): a(f"v_xor_b32 v1, {t}, v9\nv_lshl_add_u32 v{10+t}, v1, 5, v7")
    a("""
    v_and_b32 v5, 15, v0
    v_lshrrev_b32 v6, 1, v5
    v_xor_b32 v6, v6, v4
    v_lshlrev_b32 v5, 7, v5
    v_lshl_add_u32 v14, v6, 4, v5
    v_xor_b32 v15, 64, v14
    """)
    for i in range(112): a(f"v_mov_b32 v{ACC+i}, 0")
    def qreads(u):
        fb = FB + 44 * (u & 1)
        r = [f"ds_read_b64_tr_b16 {vr(fb+4*t+2*j,2)}, v{10+t} offset:{(u%4)*16384 + j*2048}" for t in range(4) for j in range(2)]
        xs = [f"ds_read_b128 {vr(fb+16+4*qt,4)}, v{14+(u&1)} offset:{((u>>1)&1)*14336 + qt*2048}" for qt in range(7)]
        return r[:2] + xs[:1] + r[2:] + xs[1:]
    a("s_barrier")
    stamp(a, cfg, 1)
    for r in qreads(0): a(r)
    a(f"s_mov_b32 {sIT}, 0\nL_qloop:")
    for u in range(4):
        gemm_step(a, u, qreads(u + 1), touch() if u == 0 else (kvpre() if u == 2 else []))
    a(f"s_add_u32 {sIT}, {sIT}, 1\ns_cmp_lt_u32 {sIT}, 8\ns_cbranch_scc1 L_qloop")
    stamp(a, cfg, 2)
    cbits = struct.unpack("<I", struct.pack("<f", (128 ** -0.5) * math.log2(math.e)))[0]
    a(f"""
    s_mov_b32 s30, {cbits:#x}
    s_mov_b32 s31, {cbits:#x}
    v_and_b32 v5, 15, v0
    v_lshlrev_b32 v5, 4, v5
    v_lshrrev_b32 v6, 5, v0
    v_lshl_add_u32 v5, v6, 9, v5
    v_bfe_u32 v6, v0, 4, 1
    v_lshl_add_u32 v5, v6, 3, v5
    s_lshr_b32 s34, {sWI}, 1
    s_lshl_b32 s34, s34, 15
    s_and_b32 s35, {sWI}, 1
    s_lshl_b32 s35, s35, 12
    s_add_u32 s34, s34, s35
    v_add_u32 v5, s34, v5
    s_waitcnt lgkmcnt(0)
    """)
    for qt in range(7):
        for t in range(4):
            acc = ACC + 4 * (t * 7 + qt); pk = 128 + 2 * (qt * 4 + t)
            a(f"v_pk_mul_f32 {vr(acc,2)}, {vr(acc,2)}, s[30:31]\nv_pk_mul_f32 {vr(acc+2,2)}, {vr(acc+2,2)}, s[30:31]")
            a(f"v_cvt_pk_bf16_f32 v{pk}, v{acc}, v{acc+1}\nv_cvt_pk_bf16_f32 v{pk+1}, v{acc+2}, v{acc+3}")
    a("s_waitcnt vmcnt(0)\ns_barrier")
    z = list(range(48, 112))
    for qt in range(7):
        for t in range(4):
            a(f"ds_write_b64 v5, {vr(128 + 2*(qt*4+t),2)} offset:{(qt>>1)*8192 + t*1024 + (qt&1)*256}")
            for _ in range(3):
                if z: a(f"v_mov_b32 v{z.pop(0)}, 0")
    srd(a, SDBG, "s26", "s27", 256)
    a(f"""
    s_cmp_lg_u32 s3, 0
    s_cbranch_scc1 L_join
    v_mov_b32 v4, 0
    v_mov_b32 v6, 1
    s_mov_b64 exec, 1
    buffer_atomic_add v6, v4, {S(SDBG)}, 0 offen
    s_mov_b64 exec, -1
    s_branch L_join
    """)
    a(f"""
    L_qload:
    v_lshrrev_b32 v4, 5, v0
    v_and_b32 v5, 31, v0
    s_and_b32 s35, {sWI}, 1
    s_lshr_b32 s34, {sWI}, 1
    s_lshl_b32 {sA}, s35, 1
    s_lshl_b32 {sBb}, s34, 2
    s_add_u32 {sA}, {sA}, {sBb}
    v_add_u32 v6, {sA}, v4
    v_lshlrev_b32 v6, 1, v6
    v_xor_b32 v5, v5, v6
    s_lshl_b32 {sBb}, s34, 3
    s_lshl_b32 {sA}, s35, 1
    s_add_u32 {sA}, {sA}, {sBb}
    v_add_u32 v4, {sA}, v4
    v_lshlrev_b32 v4, 13, v4
    v_lshl_add_u32 v10, v5, 4, v4
    s_lshl_b32 {sA}, {sA}, 9
    s_add_u32 {sA}, {sA}, {WQ0}
    v_lshrrev_b32 v4, 3, v0
    v_and_b32 v5, 7, v0
    v_lshrrev_b32 v6, 1, v4
    s_lshl_b32 {sBb}, s35, 2
    v_add_u32 v6, {sBb}, v6
    v_xor_b32 v5, v5, v6
    s_lshl_b32 {sBb}, {sWI}, 3
    v_add_u32 v4, {sBb}, v4
    v_lshlrev_b32 v4, 11, v4
    v_lshl_add_u32 v11, v5, 4, v4
    s_lshl_b32 {sBb}, {sWI}, 10
    s_mov_b32 s30, 0
    s_mov_b32 s31, 0
    """)
    def issue_wq(slot):
        for pc in (0, 2, 8, 10):
            a(f"s_add_u32 m0, {sA}, {slot*16384 + pc*1024}\ns_add_u32 s35, s30, {pc*16384}")
            a(f"buffer_load_dwordx4 v10, {S(SW)}, s35 offen lds")
        a("s_add_u32 s30, s30, 0x40000")
    def issue_x(slot):
        lab = a.label("xs")
        for n in range(4):
            if n == 3: a(f"s_cmp_ge_u32 {sWI}, 2\ns_cbranch_scc1 {lab}")
            a(f"s_add_u32 m0, {sBb}, {slot*14336 + n*4096}\ns_add_u32 s35, s31, {n*65536}")
            a(f"buffer_load_dwordx4 v11, {S(SX)}, s35 offen lds")
        a(f"{lab}:\ns_add_u32 s31, s31, 128\ns_cmp_ge_u32 s31, 2048\ns_cselect_b32 s31, 0x40000000, s31")
    issue_x(0); issue_wq(0); issue_wq(1); issue_x(1); issue_wq(2); issue_wq(3)
    other_srds()
    a(f"s_waitcnt vmcnt(15)\ns_barrier\ns_mov_b32 {sIT}, 0\nL_qlloop:")
    for u in range(4):
        a(f"s_waitcnt vmcnt({8 if u & 1 else 11})\ns_barrier")
        if u & 1: issue_x((u >> 1) & 1)
        issue_wq(u)
    a(f"s_add_u32 {sIT}, {sIT}, 1\ns_cmp_lt_u32 {sIT}, 8\ns_cbranch_scc1 L_qlloop")
    for i in range(48, 112): a(f"v_mov_b32 v{i}, 0")
    a("s_waitcnt vmcnt(0)\ns_barrier")
    srd(a, SDBG, "s26", "s27", 256)

    QF, OA, SS, NM, KF, VF, PP = 16, 48, 112, 128, 144, 176, 208
    L_, MX, T0 = 216, 217, 218
    a(f"""
    L_join:
    s_lshr_b32 s34, s3, 2
    s_lshl_b32 s35, s34, 17
    s_add_u32 s{SK}, s{SK}, s35
    s_addc_u32 s{SK+1}, s{SK+1}, 0
    s_mov_b32 s{SK+2}, 131072
    s_add_u32 s{SV}, s{SV}, s35
    s_addc_u32 s{SV+1}, s{SV+1}, 0
    s_mov_b32 s{SV+2}, 131072
    s_mul_i32 s30, s34, {HSTEP}
    s_mul_i32 {sA}, {sWI}, 1056
    s_add_u32 {sA}, {sA}, s30
    s_mul_i32 {sBb}, {sWI}, 1088
    s_add_u32 {sBb}, {sBb}, s30
    s_add_u32 {sBb}, {sBb}, {KT}
    s_lshl_b32 s31, {sWI}, 8
    s_add_u32 s31, s31, 16384
    s_add_u32 s31, s31, s101
    s_and_b32 s31, s31, 0x1ffff
    v_and_b32 v4, 31, v0
    v_lshrrev_b32 v6, 5, v0         ; half
    s_cmp_eq_u32 {sWI}, 3
    s_cselect_b32 s35, 15, 31
    v_and_b32 v7, s35, v4
    v_lshl_add_u32 v7, v6, 5, v7
    v_lshlrev_b32 v7, 4, v7
    s_lshl_b32 s35, s3, 13
    v_add_u32 v9, s35, v7
    v_and_b32 v7, 7, v4
    v_mul_u32_u24 v7, 1056, v7
    v_lshrrev_b32 v8, 3, v4
    v_lshl_add_u32 v7, v8, 8, v7
    v_and_b32 v8, 1, v8
    v_xor_b32 v8, v8, v6
    v_lshl_add_u32 v7, v8, 4, v7
    v_add_u32 v10, s30, v7
    v_add_u32 v11, {SLOT[0]}, v10
    v_bfe_u32 v7, v0, 2, 2
    v_lshl_add_u32 v7, v6, 2, v7
    v_mul_u32_u24 v7, 1088, v7
    v_bfe_u32 v8, v0, 4, 1
    v_lshl_add_u32 v7, v8, 5, v7
    v_and_b32 v8, 3, v0
    v_lshl_add_u32 v7, v8, 3, v7
    s_add_u32 s35, s30, {KT}
    v_add_u32 v12, s35, v7
    v_add_u32 v13, {SLOT[0]}, v12
    s_waitcnt lgkmcnt(0)
    s_barrier
    """)
    for s in range(8): a(f"ds_read_b128 {vr(QF+4*s,4)}, v9 offset:{s*1024}")
    for i in range(16): a(f"v_mov_b32 v{NM+i}, 0")
    a(f"""
    v_mov_b32 v{L_}, 0
    s_mov_b32 s96, 0xff800000
    s_mov_b32 s97, 0xff800000
    v_lshrrev_b32 v4, 5, v0
    s_lshl_b32 s35, {sWI}, 1
    v_add_u32 v4, s35, v4
    v_and_b32 v5, 31, v0
    v_lshlrev_b32 v6, 1, v4
    v_xor_b32 v5, v5, v6
    v_lshlrev_b32 v4, 11, v4
    v_lshl_add_u32 v14, v5, 4, v4
    v_lshrrev_b32 v4, 4, v0
    v_lshlrev_b32 v4, 5, v4
    v_bfe_u32 v5, v0, 2, 2
    v_add_u32 v4, v4, v5
    s_lshl_b32 s35, {sB}, 2
    v_add_u32 v4, s35, v4
    v_lshlrev_b32 v4, 11, v4
    v_and_b32 v5, 3, v0
    v_lshl_add_u32 v15, v5, 7, v4
    s_waitcnt lgkmcnt(0)
    s_barrier
    """)
    stamp(a, cfg, 3)
    def issue_kv(slot):
        for n in range(2):
            a(f"s_add_u32 m0, {sA}, {SLOT[slot] + n*4*1056}\ns_add_u32 s35, s31, {n*1024}")
            a(f"buffer_load_dwordx4 v2, {S(SK)}, s35 offen{kvp} lds")
            a(f"s_add_u32 m0, {sBb}, {SLOT[slot] + n*4*1088}\ns_nop 0")
            a(f"buffer_load_dwordx4 v3, {S(SV)}, s35 offen{kvp} lds")
        a("s_add_u32 s31, s31, 8192\ns_and_b32 s31, s31, 0x1ffff")
    def issue_wo(mbase, moff, soff):
        for n in range(4):
            a(f"s_add_u32 m0, {mbase}, {moff + n*4096}\ns_add_u32 s35, {soff}, {n*16384}")
            a(f"buffer_load_dwordx4 v14, {S(SWO)}, s35 offen lds")
    stubs = []
    def attn_step(st, issue):
        hi = st < 2; off = (st & 1) * 34304
        ka, va = ("v11", "v13") if hi else ("v10", "v12")
        a("s_waitcnt vmcnt(8)\ns_barrier")
        for s in range(8): a(f"ds_read_b128 {vr(KF+4*s,4)}, {ka} offset:{off + 32*s}")
        issue()
        vrd = [f"ds_read_b64_tr_b16 {vr(VF+4*(4*u+t)+2*j,2)}, {va} offset:{off + (2*u+j)*256 + 64*t}" for u in range(2) for t in range(4) for j in range(2)]
        for s in range(8):
            a(f"s_waitcnt lgkmcnt({7 - s + min(2*s, 8)})")
            a(f"v_mfma_f32_32x32x16_bf16 {vr(SS,16)}, {vr(KF+4*s,4)}, {vr(QF+4*s,4)}, {vr(NM if s == 0 else SS,16)}")
            if s < 4: a(vrd.pop(0)); a(vrd.pop(0))
        for _ in range(8): a(vrd.pop(0))
        a("s_nop 3")
        a(f"v_max3_f32 v{MX}, v{SS}, v{SS+1}, v{SS+2}")
        for i in range(3, 15, 2): a(f"v_max3_f32 v{MX}, v{MX}, v{SS+i}, v{SS+i+1}")
        a(f"v_max_f32 v{MX}, v{MX}, v{SS+15}")
        stub, back = a.label("stub"), a.label("back")
        stubs.append((stub, back))
        a(f"v_cmp_lt_f32 vcc, s96, v{MX}\ns_cbranch_vccnz {stub}\n{back}:")
        for u in range(2):
            for i in range(8): a(f"v_exp_f32 v{SS+8*u+i}, v{SS+8*u+i}")
            for i in range(4): a(f"v_cvt_pk_bf16_f32 v{PP+4*u+i}, v{SS+8*u+2*i}, v{SS+8*u+2*i+1}")
            a(f"s_waitcnt lgkmcnt({0 if u else 8})")
            a(f"v_add_f32 v{L_}, v{L_}, v{SS+8*u}")
            for t in range(4):
                a(f"v_mfma_f32_32x32x16_bf16 {vr(OA+16*t,16)}, {vr(VF+4*(4*u+t),4)}, {vr(PP+4*u,4)}, {vr(OA+16*t,16)}")
                for i in (1 + 2*t, 2 + 2*t):
                    if i < 8: a(f"v_add_f32 v{L_}, v{L_}, v{SS+8*u+i}")
    issue_kv(2)
    a(f"s_mov_b32 {sIT}, 0\nL_aloop:")
    for st in range(4): attn_step(st, lambda: issue_kv((st + 3) % 4))
    a(f"s_add_u32 {sIT}, {sIT}, 1\ns_cmp_lt_u32 {sIT}, 3\ns_cbranch_scc1 L_aloop")
    attn_step(0, lambda: issue_kv(3))
    a(f"""
    s_lshr_b32 s34, s3, 2
    s_lshl_b32 s30, {sCQ}, 19
    s_lshl_b32 s35, s34, 16
    s_add_u32 s31, s30, s35
    s_lshl_b32 {sA}, {sWI}, 10
    s_add_u32 {sA}, {sA}, {WO0}
    s_lshl_b32 s35, s34, 14
    s_add_u32 {sBb}, {sA}, s35
    """)
    attn_step(1, lambda: issue_wo(sBb, 0, "s31"))
    a("s_add_u32 s31, s31, 0x20000")
    attn_step(2, lambda: issue_wo(sBb, 32768, "s31"))
    a(f"s_lshl_b32 s35, s3, 18\ns_add_u32 s31, s30, s35\ns_and_b32 s31, s31, 0x1fffff")
    attn_step(3, lambda: a(f"buffer_load_dword v219, v15, {S(SWO)}, s31 offen"))
    stamp(a, cfg, 4)
    a(f"""
    v_mov_b32 v{T0}, v{L_}
    v_and_b32 v4, 31, v0
    v_lshrrev_b32 v5, 4, v4
    v_permlane32_swap_b32 v{T0}, v{L_}
    v_lshlrev_b32 v5, 10, v5
    v_and_b32 v7, 15, v4
    v_add_f32 v{L_}, v{L_}, v{T0}
    v_lshl_add_u32 v5, v7, 4, v5
    v_rcp_f32 v{L_}, v{L_}
    v_lshrrev_b32 v7, 5, v0
    v_lshl_add_u32 v5, v7, 8, v5
    s_lshl_b32 s35, {sWI}, 11
    v_add_u32 v5, s35, v5
    s_lshr_b32 s34, s3, 2
    s_mul_i32 s35, s34, 28672
    v_add_u32 v6, s35, v5
    s_mul_i32 s34, {sCQ}, 57344
    s_add_u32 s34, s34, s35
    """)
    for t in range(4):
        for jj in range(2):
            b = OA + 16*t + 8*jj
            for i in range(8): a(f"v_mul_f32 v{b+i}, v{b+i}, v{L_}")
            for i in range(4): a(f"v_cvt_pk_bf16_f32 v{b+i}, v{b+2*i}, v{b+2*i+1}")
    a(f"""
    s_cmp_eq_u32 {sWI}, 3
    s_cselect_b32 s32, 0xffff, -1
    s_mov_b32 s33, s32
    s_barrier
    s_mov_b64 exec, s[32:33]
    """)
    for t in range(4):
        for jj in range(2):
            a(f"ds_write_b128 v6, {vr(OA+16*t+8*jj,4)} offset:{t*7168 + jj*512}")
    for t in range(4):
        if t: a("s_add_u32 s34, s34, 7168")
        for jj in range(2):
            a(f"buffer_store_dwordx4 {vr(OA+16*t+8*jj,4)}, v5, {S(SO)}, s34 offen offset:{jj*512} sc0 sc1")
    a("s_mov_b64 exec, -1\ns_cmp_ge_u32 s3, 4\ns_cbranch_scc1 L_omm")

    def poll(lab, srdn, vaddr, want):
        a(f"""
        s_mov_b32 {sU}, 0
        {lab}:
        buffer_load_dword v20, {vaddr}, {S(srdn)}, 0 offen sc0 sc1
        s_add_u32 {sU}, {sU}, 1
        s_waitcnt vmcnt(0)
        v_cmp_ne_u32 vcc, {want}, v20
        s_cmp_ge_u32 {sU}, {cfg.spin}
        s_cbranch_scc1 {lab}_out
        s_cbranch_vccnz {lab}
        {lab}_out:
        """)
    a(f"""
    v_lshlrev_b32 v16, 4, v0
    s_lshl_b32 {sBb}, {sWI}, 10
    v_add_u32 v16, {sBb}, v16
    s_add_u32 s30, s30, 0x40000
    s_and_b32 s30, s30, 0x1fffff
    s_add_u32 s31, {sCQ}, 1
    s_and_b32 s31, s31, 3
    s_lshl_b32 s35, s2, 7
    s_add_u32 s35, s35, {FLAGS}
    v_mov_b32 v17, s35
    v_mov_b32 v18, 1
    v_mov_b32 v19, 0
    s_movk_i32 s32, 256
    s_waitcnt vmcnt(13) lgkmcnt(0)
    s_barrier
    """)
    def wo_next(u):
        issue_wo(sA, (u % 4) * 16384, "s30")
        a("s_add_u32 s30, s30, 0x10000\ns_and_b32 s30, s30, 0x1fffff")
    for u, w in enumerate((None, 13, None, 8, 8)):
        if w is not None: a(f"s_waitcnt vmcnt({w})")
        a("s_barrier")
        if u == 4:
            a(f"""
            s_cmp_lg_u32 s3, 0
            s_cbranch_scc1 L_noflag
            s_mov_b64 exec, 1
            buffer_store_dword v18, v17, {S(SWS)}, 0 offen sc0 sc1
            s_mov_b64 exec, -1
            L_noflag:
            """)
        wo_next(u)
    poll("L_pollcnt", SDBG, "v19", "s32")
    a(f"s_mov_b32 {sIT}, 0\nL_olloop:")
    for u in range(5, 13):
        if u == 5:
            a(f"""
            s_andn2_b32 s35, s2, 0x18
            s_lshl_b32 s34, s31, 3
            s_or_b32 s35, s35, s34
            s_lshl_b32 s35, s35, 7
            s_add_u32 s35, s35, {FLAGS}
            v_mov_b32 v17, s35
            s_mul_i32 s33, s31, 57344
            s_add_u32 s31, s31, 1
            s_and_b32 s31, s31, 3
            """)
            poll("L_pollo", SWS, "v17", "1")
            a("s_barrier")
        else:
            a("s_waitcnt vmcnt(9)\ns_barrier")
        lab = a.label("os")
        sl = (u + 3) % 8
        a(f"s_add_u32 m0, {sBb}, {sl*7168}\ns_add_u32 s35, s33, 4096")
        a(f"buffer_load_dwordx4 v16, {S(SO)}, s33 offen sc0 sc1 lds")
        a(f"s_cmp_eq_u32 {sWI}, 3\ns_cbranch_scc1 {lab}\ns_add_u32 m0, {sBb}, {sl*7168 + 4096}\ns_nop 0")
        a(f"buffer_load_dwordx4 v16, {S(SO)}, s35 offen sc0 sc1 lds\n{lab}:\ns_add_u32 s33, s33, 7168")
        wo_next(u)
    a(f"s_add_u32 {sIT}, {sIT}, 1\ns_cmp_lt_u32 {sIT}, 3\ns_cbranch_scc1 L_olloop")
    a("s_waitcnt vmcnt(9)\ns_barrier\ns_waitcnt vmcnt(4)\ns_barrier\ns_barrier")
    stamp(a, cfg, 5)
    stamp_store(a, cfg, 0, 0, "L_end")
    a("s_branch L_end")

    a(f"""
    L_omm:
    v_lshrrev_b32 v4, 4, v0         ; g4
    v_bfe_u32 v5, v0, 2, 2          ; r
    v_and_b32 v6, 3, v0             ; c
    v_and_b32 v7, 1, v4
    v_lshl_add_u32 v9, v7, 2, v5    ; k & 7
    v_lshrrev_b32 v7, 1, v4
    v_lshl_add_u32 v7, v7, 4, v9
    v_lshlrev_b32 v7, 9, v7
    v_lshrrev_b32 v8, 1, v6
    v_lshl_add_u32 v7, v8, 4, v7
    v_and_b32 v8, 1, v6
    v_lshl_add_u32 v7, v8, 3, v7
    v_add_u32 v7, {WO0}, v7
    v_xor_b32 v9, {sWI}, v9
    v_lshlrev_b32 v14, 4, v0
    """)
    for tau in range(4):
        a(f"""
        s_add_u32 s35, {sHG}, {tau}
        s_and_b32 s34, s35, 1
        s_lshl_b32 s34, s34, 2
        s_bfe_u32 s35, s35, 0x10001
        s_lshl_b32 s35, s35, 8
        v_xor_b32 v1, s34, v9
        v_lshl_add_u32 v1, v1, 5, v7
        v_add_u32 v{10+tau}, s35, v1
        """)
    keep = [r for t in range(4) for jj in range(2) for r in range(OA + 16*t + 8*jj, OA + 16*t + 8*jj + 4)]
    for i in range(112):
        if ACC + i not in keep: a(f"v_mov_b32 v{ACC+i}, 0")
    for r in keep: a(f"v_mov_b32 v{r}, 0")
    def oreads(u):
        fb = FB + 44 * (u & 1)
        r = [f"ds_read_b64_tr_b16 {vr(fb+4*t+2*j,2)}, v{10+t} offset:{(u%4)*16384 + j*4096}" for t in range(4) for j in range(2)]
        xs = [f"ds_read_b128 {vr(fb+16+4*qt,4)}, v14 offset:{(u%8)*7168 + qt*1024}" for qt in range(7)]
        return r[:2] + xs[:1] + r[2:] + xs[1:]
    a("s_waitcnt vmcnt(13) lgkmcnt(0)\ns_barrier")
    stamp(a, cfg, 5)
    for r in oreads(0): a(r)
    a(f"s_mov_b32 {sIT}, 0\nL_oloop:")
    for u in range(8):
        gemm_step(a, u, oreads(u + 1), [], {2: " vmcnt(9)", 4: " vmcnt(0)"}.get(u, ""))
    a(f"s_add_u32 {sIT}, {sIT}, 1\ns_cmp_lt_u32 {sIT}, 4\ns_cbranch_scc1 L_oloop")
    stamp(a, cfg, 6)
    a(f"""
    s_lshl_b32 s30, {sBR}, 3
    s_add_u32 s30, s30, {sB}
    s_lshl_b32 s30, s30, 2
    s_add_u32 s30, s30, {sCQ}
    s_mul_i32 s30, s30, {12*28672}
    s_mul_i32 s35, {sWI}, 7168
    s_add_u32 s30, s30, s35
    s_add_u32 s30, s30, {RED}
    """)
    for tau in range(1, 4):
        a(f"""
        s_add_u32 s35, {sHG}, {tau}
        s_and_b32 s35, s35, 3
        s_mul_i32 s35, s35, {3*28672}
        s_add_u32 s35, s35, s30
        s_add_u32 s35, s35, {(tau-1)*28672}
        s_add_u32 s34, s35, 4096
        """)
        for qt in range(7):
            a(f"buffer_store_dwordx4 {vr(ACC+4*(tau*7+qt),4)}, v14, {S(SWS)}, {'s35' if qt < 4 else 's34'} offen offset:{(qt&3)*1024} sc0 sc1")
    a(f"""
    s_lshl_b32 s35, s2, 7
    s_lshl_b32 s34, {sWI}, 2
    s_add_u32 s34, s34, {FLAGS + 16}
    s_add_u32 s35, s35, s34
    v_mov_b32 v4, s35
    v_mov_b32 v5, 1
    v_min_u32 v6, 2, v0
    v_sub_u32 v6, {sHG}, v6
    v_add_u32 v6, -1, v6
    v_and_b32 v6, 3, v6
    s_andn2_b32 s35, s2, 3
    v_or_b32 v6, s35, v6
    v_lshlrev_b32 v6, 7, v6
    v_add_u32 v6, s34, v6
    s_mul_i32 s35, {sB}, 458752
    s_lshl_b32 s34, {sBR}, 11
    s_add_u32 s35, s35, s34
    s_lshl_b32 s34, {sCQ}, 9
    s_add_u32 s35, s35, s34
    s_lshl_b32 s34, {sHG}, 7
    s_add_u32 s35, s35, s34
    s_sub_u32 s34, 3670016, s35
    """)
    srd_off(a, SOUT, "s24", "s25", "s35", "s34")
    a(f"""
    v_and_b32 v7, 15, v0
    v_lshlrev_b32 v7, 12, v7
    v_lshrrev_b32 v8, 4, v0
    v_lshl_add_u32 v7, v8, 3, v7
    s_lshl_b32 s35, {sWI}, 5
    v_add_u32 v7, s35, v7
    s_mul_i32 s35, {sHG}, {3*28672}
    s_add_u32 s30, s30, s35
    s_waitcnt vmcnt(0) lgkmcnt(0)
    s_mov_b64 exec, 1
    buffer_store_dword v5, v4, {S(SWS)}, 0 offen sc0 sc1
    s_mov_b64 exec, -1
    """)
    a(f"""
    s_mov_b32 {sU}, 0
    L_pollr:
    buffer_load_dword v9, v6, {S(SWS)}, 0 offen sc0 sc1
    s_add_u32 {sU}, {sU}, 1
    s_waitcnt vmcnt(0)
    v_cmp_ne_u32 vcc, 1, v9
    s_cmp_ge_u32 {sU}, {cfg.spin}
    s_cbranch_scc1 L_pollr_out
    s_cbranch_vccnz L_pollr
    L_pollr_out:
    """)
    for qt in range(7):
        a(f"s_add_u32 s33, s30, {qt*1024}\ns_add_u32 s34, s33, 28672\ns_add_u32 s35, s34, 28672")
        for s in range(3):
            a(f"buffer_load_dwordx4 {vr(FB+12*qt+4*s,4)}, v14, {S(SWS)}, s{33+s} offen sc0 sc1")
    for qt in range(7):
        b, r = ACC + 4 * qt, FB + 12 * qt
        a(f"s_waitcnt vmcnt({3*(6-qt) + qt})")
        for i in range(4): a(f"v_add_f32 v{b+i}, v{b+i}, v{r+i}\nv_add_f32 v{r+4+i}, v{r+4+i}, v{r+8+i}")
        for i in range(4): a(f"v_add_f32 v{b+i}, v{b+i}, v{r+4+i}")
        a(f"v_cvt_pk_bf16_f32 v{b}, v{b}, v{b+1}\nv_cvt_pk_bf16_f32 v{b+1}, v{b+2}, v{b+3}")
        a(f"s_mov_b32 s35, {qt*65536}\nbuffer_store_dwordx2 {vr(b,2)}, v7, {S(SOUT)}, s35 offen")
    if cfg.stamps: a("s_waitcnt vmcnt(0)")
    stamp(a, cfg, 7)
    stamp_store(a, cfg, 4, 256, "L_end")
    a("L_end:\ns_endpgm")
    for stub, back in stubs:
        a(f"{stub}:\ns_call_b64 s[98:99], L_rare\ns_branch {back}")
    a(f"""
    L_rare:
    v_mov_b32 v{T0}, v{MX}
    s_nop 1
    v_permlane32_swap_b32 v{T0}, v{MX}
    s_nop 1
    v_max3_f32 v{MX}, v{MX}, v{T0}, s97
    v_max_f32 v{T0}, 0, v{MX}
    v_exp_f32 v{T0}, -v{T0}
    s_mov_b32 s96, 0x41000000
    s_mov_b32 s97, 0
    """)
    for i in range(16): a(f"v_sub_f32 v{SS+i}, v{SS+i}, v{MX}")
    for i in range(16): a(f"v_sub_f32 v{NM+i}, v{NM+i}, v{MX}")
    a(f"v_mul_f32 v{L_}, v{L_}, v{T0}")
    for i in range(64): a(f"v_mul_f32 v{OA+i}, v{OA+i}, v{T0}")
    a("s_setpc_b64 s[98:99]")
    return a.text()

def build(cfg):
    K = NAME + "_kernel"
    hdr = "; @launch grid=(256,1,1) block=(512,1,1) lds=163840\n"
    hdr += '.amdgcn_target "amdgcn-amd-amdhsa--gfx950"\n'
    return hdr + kernel_head(K) + kernel(cfg).replace("sc0 sc1", cfg.sc.replace("+", " ")) + kernel_desc(K, 224, 224)

if __name__ == "__main__":
    cfg = Cfg()
    for kv in sys.argv[2:]:
        k, v = kv.split("=")
        setattr(cfg, k, {"True": True, "False": False}.get(v, v))
    open(sys.argv[1], "w").write(build(cfg))
```

```python
import sys, math, struct
from asmlib import *

class Cfg:
    stamps = False
    kv_pol = ""
    d1 = 3
    abl = ""
    echo = ""
    sc = "sc1"
    rot = False
    spin = 400000

def pol(p): return (" " + p) if p else ""

X0, WQ0 = 0, 28672
KT, VT = 8448, 8704
HSTEP = KT + VT
SLOT = [94208, 128512, 0, 34304]
WO0 = 94208
RED, FLAGS = 16 << 20, 48 << 20
SX, SW, SK, SV, SO, SWO, SWS = 36, 40, 44, 48, 52, 56, 60
SOUT, SDBG = SX, SW
sBR, sHG, sCQ, sB, sWI, sIT, sA, sBb, sT, sU = ("s%d" % i for i in range(14, 24))
def S(d): return f"s[{d}:{d+3}]"

def stamp(a, cfg, i):
    if cfg.stamps: a(f"s_memrealtime s[{64+2*i}:{65+2*i}]\ns_memtime s[{80+2*i}:{81+2*i}]")

def stamp_store(a, cfg, wave, wgoff, end):
    if not cfg.stamps: return
    a(f"s_cmp_lg_u32 s3, {wave}\ns_cbranch_scc1 {end}")
    a(f"s_waitcnt lgkmcnt(0)\ns_add_u32 s3, s2, {wgoff}\ns_lshl_b32 s3, s3, 7\ns_add_u32 s3, s3, {STAMP_OFF}\nv_mov_b32 v1, s3")
    for q in range(8):
        for j in range(4): a(f"v_mov_b32 v{4+j}, s{64+4*q+j}")
        a(f"buffer_store_dwordx4 v[4:7], v1, {S(SWS)}, 0 offen offset:{16*q}\ns_nop 2")
    a("s_waitcnt vmcnt(0)")

def srd_off(a, d, lo, hi, off_reg, nbytes):
    a(f"s_add_u32 s{d}, {lo}, {off_reg}\ns_addc_u32 s{d+1}, {hi}, 0\ns_and_b32 s{d+1}, s{d+1}, 0xffff")
    a(f"s_mov_b32 s{d+2}, {nbytes}\ns_mov_b32 s{d+3}, 0x00020000")

ACC, FB = 16, 128
def gemm_step(a, u, rd, ex, pre=""):
    fb = FB + 44 * (u & 1)
    a(f"s_waitcnt lgkmcnt(0){pre}\ns_barrier")
    n = 0
    for qt in range(7):
        for t in range(4):
            acc = ACC + 4 * (t * 7 + qt)
            a(f"v_mfma_f32_16x16x32_bf16 {vr(acc,4)}, {vr(fb+4*t,4)}, {vr(fb+16+4*qt,4)}, {vr(acc,4)}")
            if rd: a(rd.pop(0))
            elif ex and n % 2 == 0: a(ex.pop(0))
            n += 1

def kernel(cfg):
    a = A()
    kvp = pol(cfg.kv_pol)
    a("s_cmp_ge_u32 s2, 256\ns_cbranch_scc1 L_end")
    stamp(a, cfg, 0)
    a(f"""
    s_load_dwordx16 s[4:19], s[0:1], 0
    s_load_dwordx8 s[20:27], s[0:1], 64
    s_load_dwordx2 s[28:29], s[0:1], 96
    v_lshrrev_b32 v1, 6, v0
    v_and_b32 v0, 63, v0
    v_readfirstlane_b32 s3, v1
    v_lshrrev_b32 v4, 4, v0
    v_and_b32 v5, 15, v0
    v_lshlrev_b32 v6, 11, v4
    v_lshl_add_u32 v3, v5, 4, v6
    v_and_b32 v7, 1, v4
    v_xor_b32 v7, v7, v5
    v_lshl_add_u32 v2, v7, 4, v6
    s_bitcmp0_b32 s2, 2
    s_waitcnt lgkmcnt(0)
    s_cselect_b64 s[4:5], s[4:5], s[14:15]
    s_cselect_b64 s[6:7], s[6:7], s[16:17]
    s_cselect_b64 s[8:9], s[8:9], s[18:19]
    s_cselect_b64 s[10:11], s[10:11], s[20:21]
    s_cselect_b64 s[12:13], s[12:13], s[22:23]
    s_bfe_u32 {sBR}, s2, 0x10002
    s_and_b32 {sHG}, s2, 3
    s_bfe_u32 {sCQ}, s2, 0x20003
    s_lshr_b32 {sB}, s2, 5
    s_and_b32 {sWI}, s3, 3
    s_mul_i32 s35, {sB}, 229376
    """)
    srd_off(a, SX, "s4", "s5", "s35", 229376)
    a(f"s_lshl_b32 s33, {sHG}, 2\ns_add_u32 s33, s33, {sCQ}\ns_lshl_b32 s35, s33, 9\ns_sub_u32 s34, 0x800000, s35")
    srd_off(a, SW, "s10", "s11", "s35", "s34")
    if cfg.rot: a(f"s_lshr_b32 s101, s2, 3\ns_lshr_b32 s35, s2, 7\ns_add_u32 s101, s101, s35\ns_lshl_b32 s35, s2, 1\ns_add_u32 s101, s101, s35\ns_and_b32 s101, s101, 15\ns_lshl_b32 s101, s101, 13")
    else: a("s_mov_b32 s101, 0")
    a("s_cmp_ge_u32 s3, 4\ns_cbranch_scc1 L_qload")

    def other_srds():
        a(f"s_lshl_b32 s35, {sB}, 22\ns_lshl_b32 s34, s33, 18\ns_add_u32 s35, s35, s34")
        srd_off(a, SK, "s6", "s7", "s35", 262144)
        srd_off(a, SV, "s8", "s9", "s35", 262144)
        a(f"s_lshl_b32 s35, {sBR}, 3\ns_add_u32 s35, s35, {sB}\ns_lshl_b32 s35, s35, 2\ns_add_u32 s35, s35, {sHG}\ns_mul_i32 s35, s35, 229376")
        srd_off(a, SO, "s28", "s29", "s35", 229376)
        a(f"s_lshl_b32 s35, {sHG}, 21\ns_lshl_b32 s34, {sCQ}, 9\ns_add_u32 s35, s35, s34\ns_sub_u32 s34, 0x200000, s34")
        srd_off(a, SWO, "s12", "s13", "s35", "s34")
        srd(a, SWS, "s28", "s29", 0x10000000)

    a(f"""
    s_lshl_b32 s35, {sWI}, 4
    v_add_u32 v8, s35, v0
    v_lshrrev_b32 v4, 5, v8
    v_lshlrev_b32 v4, 6, v4
    v_bfe_u32 v5, v8, 2, 3
    v_add_u32 v4, v4, v5
    s_lshl_b32 s35, {sB}, 3
    v_add_u32 v4, s35, v4
    v_lshlrev_b32 v4, 13, v4
    v_and_b32 v5, 3, v8
    v_lshl_add_u32 v4, v5, 7, v4
    v_mov_b32 v6, 0x7fffffff
    v_cmp_gt_u32 vcc, 16, v0
    s_mul_i32 s35, {sWI}, 14
    v_add_u32 v8, s35, v0
    v_cndmask_b32 v216, v6, v4, vcc
    v_lshrrev_b32 v5, 1, v8
    s_mul_i32 s35, {sCQ}, 28
    v_add_u32 v5, s35, v5
    v_lshlrev_b32 v5, 11, v5
    v_and_b32 v7, 1, v8
    v_lshl_add_u32 v5, v7, 7, v5
    v_cmp_gt_u32 vcc, 14, v0
    s_mov_b32 s30, 0x100000
    s_mov_b32 s31, 256
    v_cndmask_b32 v217, v6, v5, vcc
    """)
    def touch():
        return [f"buffer_load_dword v218, v216, {S(SW)}, s30 offen",
                f"buffer_load_dword v218, v217, {S(SX)}, s31 offen",
                "s_add_u32 s30, s30, 0x100000\ns_add_u32 s31, s31, 256\ns_cmp_ge_u32 s31, 2048\ns_cselect_b32 s31, 0x40000000, s31"]
    for n in range(int(cfg.d1) - 1):
        for t in touch(): a(t)
    other_srds()
    a(f"""
    s_cmp_lg_u32 s3, 0
    s_cbranch_scc1 L_noclear
    s_lshl_b32 s35, s2, 7
    s_add_u32 s35, s35, {FLAGS}
    v_lshlrev_b32 v4, 2, v0
    v_mov_b32 v5, 0
    s_mov_b64 exec, 0xff
    buffer_store_dword v5, v4, {S(SWS)}, s35 offen sc0 sc1
    s_mov_b64 exec, -1
    L_noclear:
    s_mul_i32 {sA}, {sWI}, 1056
    s_add_u32 {sA}, {sA}, {SLOT[0]}
    s_mul_i32 {sBb}, {sWI}, 1088
    s_add_u32 {sBb}, {sBb}, {SLOT[0]+KT}
    s_lshl_b32 s32, {sWI}, 8
    """)
    def kvpre():
        return [f"""s_and_b32 s96, {sIT}, 1
        s_bfe_u32 s97, {sIT}, 0x10001
        s_lshr_b32 s98, {sIT}, 2
        s_mul_i32 s99, s97, {HSTEP}
        s_mul_i32 s100, s98, {SLOT[1]-SLOT[0]}
        s_add_u32 s99, s99, s100""",
        f"""s_lshl_b32 s97, s97, 17
        s_lshl_b32 s98, s98, 13
        s_add_u32 s98, s98, s101
        s_and_b32 s98, s98, 0x1ffff
        s_add_u32 s97, s97, s98
        s_lshl_b32 s98, s96, 10
        s_add_u32 s97, s97, s98
        s_add_u32 s97, s97, s32""",
        f"""s_mul_i32 s98, s96, 4224
        s_add_u32 s98, s98, s99
        s_add_u32 m0, s98, {sA}
        s_mul_i32 s98, s96, 4352
        buffer_load_dwordx4 v2, {S(SK)}, s97 offen{kvp} lds""",
        f"""s_add_u32 s98, s98, s99
        s_add_u32 m0, s98, {sBb}
        s_nop 0
        buffer_load_dwordx4 v3, {S(SV)}, s97 offen{kvp} lds"""]
    a(f"""
    v_lshrrev_b32 v4, 4, v0         ; g4
    v_bfe_u32 v5, v0, 2, 2          ; r
    v_and_b32 v6, 3, v0             ; c
    v_lshl_add_u32 v7, v4, 3, v5
    v_lshlrev_b32 v7, 9, v7
    v_lshrrev_b32 v9, 1, v6
    v_lshl_add_u32 v7, v9, 4, v7
    v_and_b32 v9, 1, v6
    v_lshl_add_u32 v7, v9, 3, v7
    s_lshr_b32 s35, {sWI}, 1
    s_lshl_b32 s35, s35, 8
    s_add_u32 s35, s35, {WQ0}
    v_add_u32 v7, s35, v7
    v_and_b32 v9, 1, v4
    v_lshl_or_b32 v9, v9, 2, v5
    s_and_b32 s35, {sWI}, 1
    s_lshl_b32 s35, s35, 2
    v_xor_b32 v9, s35, v9
    """)
    for t in range(4): a(f"v_xor_b32 v1, {t}, v9\nv_lshl_add_u32 v{10+t}, v1, 5, v7")
    a("""
    v_and_b32 v5, 15, v0
    v_lshrrev_b32 v6, 1, v5
    v_xor_b32 v6, v6, v4
    v_lshlrev_b32 v5, 7, v5
    v_lshl_add_u32 v14, v6, 4, v5
    v_xor_b32 v15, 64, v14
    """)
    for i in range(112): a(f"v_mov_b32 v{ACC+i}, 0")
    def qreads(u):
        fb = FB + 44 * (u & 1)
        r = [f"ds_read_b64_tr_b16 {vr(fb+4*t+2*j,2)}, v{10+t} offset:{(u%4)*16384 + j*2048}" for t in range(4) for j in range(2)]
        xs = [f"ds_read_b128 {vr(fb+16+4*qt,4)}, v{14+(u&1)} offset:{((u>>1)&1)*14336 + qt*2048}" for qt in range(7)]
        return r[:2] + xs[:1] + r[2:] + xs[1:]
    a("s_barrier")
    stamp(a, cfg, 1)
    for r in qreads(0): a(r)
    a(f"s_mov_b32 {sIT}, 0\nL_qloop:")
    for u in range(4):
        gemm_step(a, u, qreads(u + 1), touch() if u == 0 else (kvpre() if u == 2 else []))
    a(f"s_add_u32 {sIT}, {sIT}, 1\ns_cmp_lt_u32 {sIT}, 8\ns_cbranch_scc1 L_qloop")
    stamp(a, cfg, 2)
    cbits = struct.unpack("<I", struct.pack("<f", (128 ** -0.5) * math.log2(math.e)))[0]
    a(f"""
    s_mov_b32 s30, {cbits:#x}
    s_mov_b32 s31, {cbits:#x}
    v_and_b32 v5, 15, v0
    v_lshlrev_b32 v5, 4, v5
    v_lshrrev_b32 v6, 5, v0
    v_lshl_add_u32 v5, v6, 9, v5
    v_bfe_u32 v6, v0, 4, 1
    v_lshl_add_u32 v5, v6, 3, v5
    s_lshr_b32 s34, {sWI}, 1
    s_lshl_b32 s34, s34, 15
    s_and_b32 s35, {sWI}, 1
    s_lshl_b32 s35, s35, 12
    s_add_u32 s34, s34, s35
    v_add_u32 v5, s34, v5
    s_waitcnt lgkmcnt(0)
    """)
    for qt in range(7):
        for t in range(4):
            acc = ACC + 4 * (t * 7 + qt); pk = 128 + 2 * (qt * 4 + t)
            a(f"v_pk_mul_f32 {vr(acc,2)}, {vr(acc,2)}, s[30:31]\nv_pk_mul_f32 {vr(acc+2,2)}, {vr(acc+2,2)}, s[30:31]")
            a(f"v_cvt_pk_bf16_f32 v{pk}, v{acc}, v{acc+1}\nv_cvt_pk_bf16_f32 v{pk+1}, v{acc+2}, v{acc+3}")
    a("s_waitcnt vmcnt(0)\ns_barrier")
    z = list(range(48, 112))
    for qt in range(7):
        for t in range(4):
            a(f"ds_write_b64 v5, {vr(128 + 2*(qt*4+t),2)} offset:{(qt>>1)*8192 + t*1024 + (qt&1)*256}")
            for _ in range(3):
                if z: a(f"v_mov_b32 v{z.pop(0)}, 0")
    srd(a, SDBG, "s26", "s27", 256)
    a(f"""
    s_cmp_lg_u32 s3, 0
    s_cbranch_scc1 L_join
    v_mov_b32 v4, 0
    v_mov_b32 v6, 1
    s_mov_b64 exec, 1
    buffer_atomic_add v6, v4, {S(SDBG)}, 0 offen
    s_mov_b64 exec, -1
    s_branch L_join
    """)
    a(f"""
    L_qload:
    v_lshrrev_b32 v4, 5, v0
    v_and_b32 v5, 31, v0
    s_and_b32 s35, {sWI}, 1
    s_lshr_b32 s34, {sWI}, 1
    s_lshl_b32 {sA}, s35, 1
    s_lshl_b32 {sBb}, s34, 2
    s_add_u32 {sA}, {sA}, {sBb}
    v_add_u32 v6, {sA}, v4
    v_lshlrev_b32 v6, 1, v6
    v_xor_b32 v5, v5, v6
    s_lshl_b32 {sBb}, s34, 3
    s_lshl_b32 {sA}, s35, 1
    s_add_u32 {sA}, {sA}, {sBb}
    v_add_u32 v4, {sA}, v4
    v_lshlrev_b32 v4, 13, v4
    v_lshl_add_u32 v10, v5, 4, v4
    s_lshl_b32 {sA}, {sA}, 9
    s_add_u32 {sA}, {sA}, {WQ0}
    v_lshrrev_b32 v4, 3, v0
    v_and_b32 v5, 7, v0
    v_lshrrev_b32 v6, 1, v4
    s_lshl_b32 {sBb}, s35, 2
    v_add_u32 v6, {sBb}, v6
    v_xor_b32 v5, v5, v6
    s_lshl_b32 {sBb}, {sWI}, 3
    v_add_u32 v4, {sBb}, v4
    v_lshlrev_b32 v4, 11, v4
    v_lshl_add_u32 v11, v5, 4, v4
    s_lshl_b32 {sBb}, {sWI}, 10
    s_mov_b32 s30, 0
    s_mov_b32 s31, 0
    """)
    def issue_wq(slot):
        for pc in (0, 2, 8, 10):
            a(f"s_add_u32 m0, {sA}, {slot*16384 + pc*1024}\ns_add_u32 s35, s30, {pc*16384}")
            a(f"buffer_load_dwordx4 v10, {S(SW)}, s35 offen lds")
        a("s_add_u32 s30, s30, 0x40000")
    def issue_x(slot):
        lab = a.label("xs")
        for n in range(4):
            if n == 3: a(f"s_cmp_ge_u32 {sWI}, 2\ns_cbranch_scc1 {lab}")
            a(f"s_add_u32 m0, {sBb}, {slot*14336 + n*4096}\ns_add_u32 s35, s31, {n*65536}")
            a(f"buffer_load_dwordx4 v11, {S(SX)}, s35 offen lds")
        a(f"{lab}:\ns_add_u32 s31, s31, 128\ns_cmp_ge_u32 s31, 2048\ns_cselect_b32 s31, 0x40000000, s31")
    issue_x(0); issue_wq(0); issue_wq(1); issue_x(1); issue_wq(2); issue_wq(3)
    other_srds()
    a(f"s_waitcnt vmcnt(15)\ns_barrier\ns_mov_b32 {sIT}, 0\nL_qlloop:")
    for u in range(4):
        a(f"s_waitcnt vmcnt({8 if u & 1 else 11})\ns_barrier")
        if u & 1: issue_x((u >> 1) & 1)
        issue_wq(u)
    a(f"s_add_u32 {sIT}, {sIT}, 1\ns_cmp_lt_u32 {sIT}, 8\ns_cbranch_scc1 L_qlloop")
    for i in range(48, 112): a(f"v_mov_b32 v{i}, 0")
    a("s_waitcnt vmcnt(0)\ns_barrier")
    srd(a, SDBG, "s26", "s27", 256)

    QF, OA, SS, NM, KF, VF, PP = 16, 48, 112, 128, 144, 176, 208
    L_, MX, T0 = 216, 217, 218
    a(f"""
    L_join:
    s_lshr_b32 s34, s3, 2
    s_lshl_b32 s35, s34, 17
    s_add_u32 s{SK}, s{SK}, s35
    s_addc_u32 s{SK+1}, s{SK+1}, 0
    s_mov_b32 s{SK+2}, 131072
    s_add_u32 s{SV}, s{SV}, s35
    s_addc_u32 s{SV+1}, s{SV+1}, 0
    s_mov_b32 s{SV+2}, 131072
    s_mul_i32 s30, s34, {HSTEP}
    s_mul_i32 {sA}, {sWI}, 1056
    s_add_u32 {sA}, {sA}, s30
    s_mul_i32 {sBb}, {sWI}, 1088
    s_add_u32 {sBb}, {sBb}, s30
    s_add_u32 {sBb}, {sBb}, {KT}
    s_lshl_b32 s31, {sWI}, 8
    s_add_u32 s31, s31, 16384
    s_add_u32 s31, s31, s101
    s_and_b32 s31, s31, 0x1ffff
    v_and_b32 v4, 31, v0
    v_lshrrev_b32 v6, 5, v0         ; half
    s_cmp_eq_u32 {sWI}, 3
    s_cselect_b32 s35, 15, 31
    v_and_b32 v7, s35, v4
    v_lshl_add_u32 v7, v6, 5, v7
    v_lshlrev_b32 v7, 4, v7
    s_lshl_b32 s35, s3, 13
    v_add_u32 v9, s35, v7
    v_and_b32 v7, 7, v4
    v_mul_u32_u24 v7, 1056, v7
    v_lshrrev_b32 v8, 3, v4
    v_lshl_add_u32 v7, v8, 8, v7
    v_and_b32 v8, 1, v8
    v_xor_b32 v8, v8, v6
    v_lshl_add_u32 v7, v8, 4, v7
    v_add_u32 v10, s30, v7
    v_add_u32 v11, {SLOT[0]}, v10
    v_bfe_u32 v7, v0, 2, 2
    v_lshl_add_u32 v7, v6, 2, v7
    v_mul_u32_u24 v7, 1088, v7
    v_bfe_u32 v8, v0, 4, 1
    v_lshl_add_u32 v7, v8, 5, v7
    v_and_b32 v8, 3, v0
    v_lshl_add_u32 v7, v8, 3, v7
    s_add_u32 s35, s30, {KT}
    v_add_u32 v12, s35, v7
    v_add_u32 v13, {SLOT[0]}, v12
    s_waitcnt lgkmcnt(0)
    s_barrier
    """)
    for s in range(8): a(f"ds_read_b128 {vr(QF+4*s,4)}, v9 offset:{s*1024}")
    for i in range(16): a(f"v_mov_b32 v{NM+i}, 0")
    a(f"""
    v_mov_b32 v{L_}, 0
    s_mov_b32 s96, 0xff800000
    s_mov_b32 s97, 0xff800000
    v_lshrrev_b32 v4, 5, v0
    s_lshl_b32 s35, {sWI}, 1
    v_add_u32 v4, s35, v4
    v_and_b32 v5, 31, v0
    v_lshlrev_b32 v6, 1, v4
    v_xor_b32 v5, v5, v6
    v_lshlrev_b32 v4, 11, v4
    v_lshl_add_u32 v14, v5, 4, v4
    v_lshrrev_b32 v4, 4, v0
    v_lshlrev_b32 v4, 5, v4
    v_bfe_u32 v5, v0, 2, 2
    v_add_u32 v4, v4, v5
    s_lshl_b32 s35, {sB}, 2
    v_add_u32 v4, s35, v4
    v_lshlrev_b32 v4, 11, v4
    v_and_b32 v5, 3, v0
    v_lshl_add_u32 v15, v5, 7, v4
    s_waitcnt lgkmcnt(0)
    s_barrier
    """)
    stamp(a, cfg, 3)
    def issue_kv(slot):
        for n in range(2):
            a(f"s_add_u32 m0, {sA}, {SLOT[slot] + n*4*1056}\ns_add_u32 s35, s31, {n*1024}")
            a(f"buffer_load_dwordx4 v2, {S(SK)}, s35 offen{kvp} lds")
            a(f"s_add_u32 m0, {sBb}, {SLOT[slot] + n*4*1088}\ns_nop 0")
            a(f"buffer_load_dwordx4 v3, {S(SV)}, s35 offen{kvp} lds")
        a("s_add_u32 s31, s31, 8192\ns_and_b32 s31, s31, 0x1ffff")
    def issue_wo(mbase, moff, soff):
        for n in range(4):
            a(f"s_add_u32 m0, {mbase}, {moff + n*4096}\ns_add_u32 s35, {soff}, {n*16384}")
            a(f"buffer_load_dwordx4 v14, {S(SWO)}, s35 offen lds")
    stubs = []
    def attn_step(st, issue):
        hi = st < 2; off = (st & 1) * 34304
        ka, va = ("v11", "v13") if hi else ("v10", "v12")
        a("s_waitcnt vmcnt(8)\ns_barrier")
        for s in range(8): a(f"ds_read_b128 {vr(KF+4*s,4)}, {ka} offset:{off + 32*s}")
        issue()
        vrd = [f"ds_read_b64_tr_b16 {vr(VF+4*(4*u+t)+2*j,2)}, {va} offset:{off + (2*u+j)*256 + 64*t}" for u in range(2) for t in range(4) for j in range(2)]
        for s in range(8):
            a(f"s_waitcnt lgkmcnt({7 - s + min(2*s, 8)})")
            a(f"v_mfma_f32_32x32x16_bf16 {vr(SS,16)}, {vr(KF+4*s,4)}, {vr(QF+4*s,4)}, {vr(NM if s == 0 else SS,16)}")
            if s < 4: a(vrd.pop(0)); a(vrd.pop(0))
        for _ in range(8): a(vrd.pop(0))
        a("s_nop 3")
        a(f"v_max3_f32 v{MX}, v{SS}, v{SS+1}, v{SS+2}")
        for i in range(3, 15, 2): a(f"v_max3_f32 v{MX}, v{MX}, v{SS+i}, v{SS+i+1}")
        a(f"v_max_f32 v{MX}, v{MX}, v{SS+15}")
        stub, back = a.label("stub"), a.label("back")
        stubs.append((stub, back))
        a(f"v_cmp_lt_f32 vcc, s96, v{MX}\ns_cbranch_vccnz {stub}\n{back}:")
        for u in range(2):
            for i in range(8): a(f"v_exp_f32 v{SS+8*u+i}, v{SS+8*u+i}")
            for i in range(4): a(f"v_cvt_pk_bf16_f32 v{PP+4*u+i}, v{SS+8*u+2*i}, v{SS+8*u+2*i+1}")
            a(f"s_waitcnt lgkmcnt({0 if u else 8})")
            a(f"v_add_f32 v{L_}, v{L_}, v{SS+8*u}")
            for t in range(4):
                a(f"v_mfma_f32_32x32x16_bf16 {vr(OA+16*t,16)}, {vr(VF+4*(4*u+t),4)}, {vr(PP+4*u,4)}, {vr(OA+16*t,16)}")
                for i in (1 + 2*t, 2 + 2*t):
                    if i < 8: a(f"v_add_f32 v{L_}, v{L_}, v{SS+8*u+i}")
    issue_kv(2)
    a(f"s_mov_b32 {sIT}, 0\nL_aloop:")
    for st in range(4): attn_step(st, lambda: issue_kv((st + 3) % 4))
    a(f"s_add_u32 {sIT}, {sIT}, 1\ns_cmp_lt_u32 {sIT}, 3\ns_cbranch_scc1 L_aloop")
    attn_step(0, lambda: issue_kv(3))
    a(f"""
    s_lshr_b32 s34, s3, 2
    s_lshl_b32 s30, {sCQ}, 19
    s_lshl_b32 s35, s34, 16
    s_add_u32 s31, s30, s35
    s_lshl_b32 {sA}, {sWI}, 10
    s_add_u32 {sA}, {sA}, {WO0}
    s_lshl_b32 s35, s34, 14
    s_add_u32 {sBb}, {sA}, s35
    """)
    attn_step(1, lambda: issue_wo(sBb, 0, "s31"))
    a("s_add_u32 s31, s31, 0x20000")
    attn_step(2, lambda: issue_wo(sBb, 32768, "s31"))
    a(f"s_lshl_b32 s35, s3, 18\ns_add_u32 s31, s30, s35\ns_and_b32 s31, s31, 0x1fffff")
    attn_step(3, lambda: a(f"buffer_load_dword v219, v15, {S(SWO)}, s31 offen"))
    stamp(a, cfg, 4)
    a(f"""
    v_mov_b32 v{T0}, v{L_}
    v_and_b32 v4, 31, v0
    v_lshrrev_b32 v5, 4, v4
    v_permlane32_swap_b32 v{T0}, v{L_}
    v_lshlrev_b32 v5, 10, v5
    v_and_b32 v7, 15, v4
    v_add_f32 v{L_}, v{L_}, v{T0}
    v_lshl_add_u32 v5, v7, 4, v5
    v_rcp_f32 v{L_}, v{L_}
    v_lshrrev_b32 v7, 5, v0
    v_lshl_add_u32 v5, v7, 8, v5
    s_lshl_b32 s35, {sWI}, 11
    v_add_u32 v5, s35, v5
    s_lshr_b32 s34, s3, 2
    s_mul_i32 s35, s34, 28672
    v_add_u32 v6, s35, v5
    s_mul_i32 s34, {sCQ}, 57344
    s_add_u32 s34, s34, s35
    """)
    for t in range(4):
        for jj in range(2):
            b = OA + 16*t + 8*jj
            for i in range(8): a(f"v_mul_f32 v{b+i}, v{b+i}, v{L_}")
            for i in range(4): a(f"v_cvt_pk_bf16_f32 v{b+i}, v{b+2*i}, v{b+2*i+1}")
    a(f"""
    s_cmp_eq_u32 {sWI}, 3
    s_cselect_b32 s32, 0xffff, -1
    s_mov_b32 s33, s32
    s_barrier
    s_mov_b64 exec, s[32:33]
    """)
    for t in range(4):
        for jj in range(2):
            a(f"ds_write_b128 v6, {vr(OA+16*t+8*jj,4)} offset:{t*7168 + jj*512}")
    for t in range(4):
        if t: a("s_add_u32 s34, s34, 7168")
        for jj in range(2):
            a(f"buffer_store_dwordx4 {vr(OA+16*t+8*jj,4)}, v5, {S(SO)}, s34 offen offset:{jj*512} sc0 sc1")
    a("s_mov_b64 exec, -1\ns_cmp_ge_u32 s3, 4\ns_cbranch_scc1 L_omm")

    def poll(lab, srdn, vaddr, want):
        a(f"""
        s_mov_b32 {sU}, 0
        {lab}:
        buffer_load_dword v20, {vaddr}, {S(srdn)}, 0 offen sc0 sc1
        s_add_u32 {sU}, {sU}, 1
        s_waitcnt vmcnt(0)
        v_cmp_{"gt" if want == "s32" else "ne"}_u32 vcc, {want}, v20
        s_cmp_ge_u32 {sU}, {cfg.spin}
        s_cbranch_scc1 {lab}_out
        s_cbranch_vccnz {lab}
        {lab}_out:
        """)
    a(f"""
    v_lshlrev_b32 v16, 4, v0
    s_lshl_b32 {sBb}, {sWI}, 10
    v_add_u32 v16, {sBb}, v16
    s_add_u32 s30, s30, 0x40000
    s_and_b32 s30, s30, 0x1fffff
    s_add_u32 s31, {sCQ}, 1
    s_and_b32 s31, s31, 3
    s_lshl_b32 s35, s2, 7
    s_add_u32 s35, s35, {FLAGS}
    v_mov_b32 v17, s35
    v_mov_b32 v18, 1
    v_mov_b32 v19, 0
    s_movk_i32 s32, 256
    s_waitcnt vmcnt(13) lgkmcnt(0)
    s_barrier
    """)
    def wo_next(u):
        issue_wo(sA, (u % 4) * 16384, "s30")
        a("s_add_u32 s30, s30, 0x10000\ns_and_b32 s30, s30, 0x1fffff")
    for u, w in enumerate((None, 13, None, 8, 8)):
        if w is not None: a(f"s_waitcnt vmcnt({w})")
        a("s_barrier")
        if u == 4:
            a(f"""
            s_cmp_lg_u32 s3, 0
            s_cbranch_scc1 L_noflag
            s_mov_b64 exec, 1
            buffer_store_dword v18, v17, {S(SWS)}, 0 offen sc0 sc1
            s_mov_b64 exec, -1
            L_noflag:
            """)
        wo_next(u)
    poll("L_pollcnt", SDBG, "v19", "s32")
    a(f"s_mov_b32 {sIT}, 0\nL_olloop:")
    for u in range(5, 13):
        if u == 5:
            a(f"""
            s_andn2_b32 s35, s2, 0x18
            s_lshl_b32 s34, s31, 3
            s_or_b32 s35, s35, s34
            s_lshl_b32 s35, s35, 7
            s_add_u32 s35, s35, {FLAGS}
            v_mov_b32 v17, s35
            s_mul_i32 s33, s31, 57344
            s_add_u32 s31, s31, 1
            s_and_b32 s31, s31, 3
            """)
            poll("L_pollo", SWS, "v17", "1")
            a("s_barrier")
        else:
            a("s_waitcnt vmcnt(9)\ns_barrier")
        lab = a.label("os")
        sl = (u + 3) % 8
        a(f"s_add_u32 m0, {sBb}, {sl*7168}\ns_add_u32 s35, s33, 4096")
        a(f"buffer_load_dwordx4 v16, {S(SO)}, s33 offen sc0 sc1 lds")
        a(f"s_cmp_eq_u32 {sWI}, 3\ns_cbranch_scc1 {lab}\ns_add_u32 m0, {sBb}, {sl*7168 + 4096}\ns_nop 0")
        a(f"buffer_load_dwordx4 v16, {S(SO)}, s35 offen sc0 sc1 lds\n{lab}:\ns_add_u32 s33, s33, 7168")
        wo_next(u)
    a(f"s_add_u32 {sIT}, {sIT}, 1\ns_cmp_lt_u32 {sIT}, 3\ns_cbranch_scc1 L_olloop")
    a("s_waitcnt vmcnt(9)\ns_barrier\ns_waitcnt vmcnt(4)\ns_barrier\ns_barrier")
    stamp(a, cfg, 5)
    stamp_store(a, cfg, 0, 0, "L_end")
    a("s_branch L_end")

    a(f"""
    L_omm:
    v_lshrrev_b32 v4, 4, v0         ; g4
    v_bfe_u32 v5, v0, 2, 2          ; r
    v_and_b32 v6, 3, v0             ; c
    v_and_b32 v7, 1, v4
    v_lshl_add_u32 v9, v7, 2, v5    ; k & 7
    v_lshrrev_b32 v7, 1, v4
    v_lshl_add_u32 v7, v7, 4, v9
    v_lshlrev_b32 v7, 9, v7
    v_lshrrev_b32 v8, 1, v6
    v_lshl_add_u32 v7, v8, 4, v7
    v_and_b32 v8, 1, v6
    v_lshl_add_u32 v7, v8, 3, v7
    v_add_u32 v7, {WO0}, v7
    v_xor_b32 v9, {sWI}, v9
    v_lshlrev_b32 v14, 4, v0
    """)
    for tau in range(4):
        a(f"""
        s_add_u32 s35, {sHG}, {tau}
        s_and_b32 s34, s35, 1
        s_lshl_b32 s34, s34, 2
        s_bfe_u32 s35, s35, 0x10001
        s_lshl_b32 s35, s35, 8
        v_xor_b32 v1, s34, v9
        v_lshl_add_u32 v1, v1, 5, v7
        v_add_u32 v{10+tau}, s35, v1
        """)
    keep = [r for t in range(4) for jj in range(2) for r in range(OA + 16*t + 8*jj, OA + 16*t + 8*jj + 4)]
    for i in range(112):
        if ACC + i not in keep: a(f"v_mov_b32 v{ACC+i}, 0")
    for r in keep: a(f"v_mov_b32 v{r}, 0")
    def oreads(u):
        fb = FB + 44 * (u & 1)
        r = [f"ds_read_b64_tr_b16 {vr(fb+4*t+2*j,2)}, v{10+t} offset:{(u%4)*16384 + j*4096}" for t in range(4) for j in range(2)]
        xs = [f"ds_read_b128 {vr(fb+16+4*qt,4)}, v14 offset:{(u%8)*7168 + qt*1024}" for qt in range(7)]
        return r[:2] + xs[:1] + r[2:] + xs[1:]
    a("s_waitcnt vmcnt(13) lgkmcnt(0)\ns_barrier")
    stamp(a, cfg, 5)
    for r in oreads(0): a(r)
    a(f"s_mov_b32 {sIT}, 0\nL_oloop:")
    for u in range(8):
        gemm_step(a, u, oreads(u + 1), [], {2: " vmcnt(9)", 4: " vmcnt(0)"}.get(u, ""))
    a(f"s_add_u32 {sIT}, {sIT}, 1\ns_cmp_lt_u32 {sIT}, 4\ns_cbranch_scc1 L_oloop")
    stamp(a, cfg, 6)
    a(f"""
    s_lshl_b32 s30, {sBR}, 3
    s_add_u32 s30, s30, {sB}
    s_lshl_b32 s30, s30, 2
    s_add_u32 s30, s30, {sCQ}
    s_mul_i32 s30, s30, {12*28672}
    s_mul_i32 s35, {sWI}, 7168
    s_add_u32 s30, s30, s35
    s_add_u32 s30, s30, {RED}
    """)
    for tau in range(1, 4):
        a(f"""
        s_add_u32 s35, {sHG}, {tau}
        s_and_b32 s35, s35, 3
        s_mul_i32 s35, s35, {3*28672}
        s_add_u32 s35, s35, s30
        s_add_u32 s35, s35, {(tau-1)*28672}
        s_add_u32 s34, s35, 4096
        """)
        for qt in range(7):
            a(f"buffer_store_dwordx4 {vr(ACC+4*(tau*7+qt),4)}, v14, {S(SWS)}, {'s35' if qt < 4 else 's34'} offen offset:{(qt&3)*1024} sc0 sc1")
    a(f"""
    s_lshl_b32 s35, s2, 7
    s_lshl_b32 s34, {sWI}, 2
    s_add_u32 s34, s34, {FLAGS + 16}
    s_add_u32 s35, s35, s34
    v_mov_b32 v4, s35
    v_mov_b32 v5, 1
    v_min_u32 v6, 2, v0
    v_sub_u32 v6, {sHG}, v6
    v_add_u32 v6, -1, v6
    v_and_b32 v6, 3, v6
    s_andn2_b32 s35, s2, 3
    v_or_b32 v6, s35, v6
    v_lshlrev_b32 v6, 7, v6
    v_add_u32 v6, s34, v6
    s_mul_i32 s35, {sB}, 458752
    s_lshl_b32 s34, {sBR}, 11
    s_add_u32 s35, s35, s34
    s_lshl_b32 s34, {sCQ}, 9
    s_add_u32 s35, s35, s34
    s_lshl_b32 s34, {sHG}, 7
    s_add_u32 s35, s35, s34
    s_sub_u32 s34, 3670016, s35
    """)
    srd_off(a, SOUT, "s24", "s25", "s35", "s34")
    a(f"""
    v_and_b32 v7, 15, v0
    v_lshlrev_b32 v7, 12, v7
    v_lshrrev_b32 v8, 4, v0
    v_lshl_add_u32 v7, v8, 3, v7
    s_lshl_b32 s35, {sWI}, 5
    v_add_u32 v7, s35, v7
    s_mul_i32 s35, {sHG}, {3*28672}
    s_add_u32 s30, s30, s35
    s_waitcnt vmcnt(0) lgkmcnt(0)
    s_mov_b64 exec, 1
    buffer_store_dword v5, v4, {S(SWS)}, 0 offen sc0 sc1
    s_mov_b64 exec, -1
    """)
    a(f"""
    s_mov_b32 {sU}, 0
    L_pollr:
    buffer_load_dword v9, v6, {S(SWS)}, 0 offen sc0 sc1
    s_add_u32 {sU}, {sU}, 1
    s_waitcnt vmcnt(0)
    v_cmp_ne_u32 vcc, 1, v9
    s_cmp_ge_u32 {sU}, {cfg.spin}
    s_cbranch_scc1 L_pollr_out
    s_cbranch_vccnz L_pollr
    L_pollr_out:
    """)
    for qt in range(7):
        a(f"s_add_u32 s33, s30, {qt*1024}\ns_add_u32 s34, s33, 28672\ns_add_u32 s35, s34, 28672")
        for s in range(3):
            a(f"buffer_load_dwordx4 {vr(FB+12*qt+4*s,4)}, v14, {S(SWS)}, s{33+s} offen sc0 sc1")
    for qt in range(7):
        b, r = ACC + 4 * qt, FB + 12 * qt
        a(f"s_waitcnt vmcnt({3*(6-qt) + qt})")
        for i in range(4): a(f"v_add_f32 v{b+i}, v{b+i}, v{r+i}\nv_add_f32 v{r+4+i}, v{r+4+i}, v{r+8+i}")
        for i in range(4): a(f"v_add_f32 v{b+i}, v{b+i}, v{r+4+i}")
        a(f"v_cvt_pk_bf16_f32 v{b}, v{b}, v{b+1}\nv_cvt_pk_bf16_f32 v{b+1}, v{b+2}, v{b+3}")
        a(f"s_mov_b32 s35, {qt*65536}\nbuffer_store_dwordx2 {vr(b,2)}, v7, {S(SOUT)}, s35 offen")
    if cfg.stamps: a("s_waitcnt vmcnt(0)")
    stamp(a, cfg, 7)
    stamp_store(a, cfg, 4, 256, "L_end")
    a("L_end:\ns_endpgm")
    for stub, back in stubs:
        a(f"{stub}:\ns_call_b64 s[98:99], L_rare\ns_branch {back}")
    a(f"""
    L_rare:
    v_mov_b32 v{T0}, v{MX}
    s_nop 1
    v_permlane32_swap_b32 v{T0}, v{MX}
    s_nop 1
    v_max3_f32 v{MX}, v{MX}, v{T0}, s97
    v_max_f32 v{T0}, 0, v{MX}
    v_exp_f32 v{T0}, -v{T0}
    s_mov_b32 s96, 0x41000000
    s_mov_b32 s97, 0
    """)
    for i in range(16): a(f"v_sub_f32 v{SS+i}, v{SS+i}, v{MX}")
    for i in range(16): a(f"v_sub_f32 v{NM+i}, v{NM+i}, v{MX}")
    a(f"v_mul_f32 v{L_}, v{L_}, v{T0}")
    for i in range(64): a(f"v_mul_f32 v{OA+i}, v{OA+i}, v{T0}")
    a("s_setpc_b64 s[98:99]")
    return a.text()

def echo_kernel(cfg):
    ka, ia, kb, ib = [int(x) for x in cfg.echo.split(",")]
    a = A()
    a(f"""
    s_cmp_ge_u32 s2, 1
    s_cbranch_scc1 E_end
    s_load_dwordx2 s[4:5], s[0:1], 96
    s_memrealtime s[8:9]
    s_waitcnt lgkmcnt(0)
    s_add_u32 s4, s4, {STAMP_OFF}
    s_addc_u32 s5, s5, 0
    s_load_dword s10, s[4:5], {ka*32768 + ia*8}
    s_load_dword s11, s[4:5], {kb*32768 + ib*8}
    s_waitcnt lgkmcnt(0)
    s_sub_u32 s10, s11, s10
    s_mul_i32 s10, s10, 10
    s_min_u32 s10, s10, 200000
    E_spin:
    s_memrealtime s[12:13]
    s_waitcnt lgkmcnt(0)
    s_sub_u32 s12, s12, s8
    s_cmp_lt_u32 s12, s10
    s_cbranch_scc1 E_spin
    E_end:
    s_endpgm
    """)
    return a.text()

def build(cfg):
    K = NAME + "_kernel"
    hdr = "; @launch grid=(256,1,1) block=(512,1,1) lds=163840\n"
    if cfg.echo:
        hdr = f"; @launch kernel={K} grid=(256,1,1) block=(512,1,1) lds=163840\n; @launch kernel=echo_kernel grid=(1,1,1) block=(64,1,1) lds=0\n"
        hdr += '.amdgcn_target "amdgcn-amd-amdhsa--gfx950"\n' + kernel_head("echo_kernel") + echo_kernel(cfg) + kernel_desc("echo_kernel", 8, 8)
        return hdr + kernel_head(K) + kernel(cfg).replace("sc0 sc1", cfg.sc.replace("+", " ")) + kernel_desc(K, 224, 224)
    hdr += '.amdgcn_target "amdgcn-amd-amdhsa--gfx950"\n'
    return hdr + kernel_head(K) + kernel(cfg).replace("sc0 sc1", cfg.sc.replace("+", " ")) + kernel_desc(K, 224, 224)

if __name__ == "__main__":
    cfg = Cfg()
    for kv in sys.argv[2:]:
        k, v = kv.split("=")
        setattr(cfg, k, {"True": True, "False": False}.get(v, v))
    open(sys.argv[1], "w").write(build(cfg))
```

```python
import sys, math, struct
from asmlib import *

class Cfg:
    stamps = False
    kv_pol = ""
    spread = True
    kvpre = True
    tburst = 0
    t0 = 2
    tpre = 0
    d1 = 5
    abl = ""
    echo = ""
    sc = "sc1"
    sgrp = "main"
    rot = False
    spin = 400000

def pol(p): return (" " + p) if p else ""

X0, WQ0 = 0, 28672
KT, VT = 8448, 8704
HSTEP = KT + VT
SLOT = [94208, 128512, 0, 34304]
WO0 = 94208
RED, FLAGS = 16 << 20, 48 << 20
SX, SW, SK, SV, SO, SWO, SWS = 36, 40, 44, 48, 52, 56, 60
SOUT, SDBG = SX, SW
sBR, sHG, sCQ, sB, sWI, sIT, sA, sBb, sT, sU = ("s%d" % i for i in range(14, 24))
def S(d): return f"s[{d}:{d+3}]"

def stamp(a, cfg, i, grp="main"):
    if cfg.stamps and (grp == cfg.sgrp or i == 0): a(f"s_memrealtime s[{64+2*i}:{65+2*i}]\ns_memtime s[{80+2*i}:{81+2*i}]")

def stamp_store(a, cfg, wave, wgoff, end):
    if not cfg.stamps: return
    a(f"s_cmp_lg_u32 s3, {wave}\ns_cbranch_scc1 {end}")
    a(f"s_waitcnt lgkmcnt(0)\ns_add_u32 s3, s2, {wgoff}\ns_lshl_b32 s3, s3, 7\ns_add_u32 s3, s3, {STAMP_OFF}\nv_mov_b32 v1, s3")
    for q in range(8):
        for j in range(4): a(f"v_mov_b32 v{4+j}, s{64+4*q+j}")
        a(f"buffer_store_dwordx4 v[4:7], v1, {S(SWS)}, 0 offen offset:{16*q}\ns_nop 2")
    a("s_waitcnt vmcnt(0)")

def srd_off(a, d, lo, hi, off_reg, nbytes):
    a(f"s_add_u32 s{d}, {lo}, {off_reg}\ns_addc_u32 s{d+1}, {hi}, 0\ns_and_b32 s{d+1}, s{d+1}, 0xffff")
    a(f"s_mov_b32 s{d+2}, {nbytes}\ns_mov_b32 s{d+3}, 0x00020000")

ACC, FB = 16, 128
def gemm_step(a, u, rd, ex, pre=""):
    fb = FB + 44 * (u & 1)
    a(f"s_waitcnt lgkmcnt(0){pre}\ns_barrier")
    n = 0
    for qt in range(7):
        for t in range(4):
            acc = ACC + 4 * (t * 7 + qt)
            a(f"v_mfma_f32_16x16x32_bf16 {vr(acc,4)}, {vr(fb+4*t,4)}, {vr(fb+16+4*qt,4)}, {vr(acc,4)}")
            if rd: a(rd.pop(0))
            elif ex and n % 2 == 0: a(ex.pop(0))
            n += 1

def kernel(cfg):
    a = A()
    kvp = pol(cfg.kv_pol)
    a("s_cmp_ge_u32 s2, 256\ns_cbranch_scc1 L_end")
    stamp(a, cfg, 0)
    a(f"""
    s_load_dwordx16 s[4:19], s[0:1], 0
    s_load_dwordx8 s[20:27], s[0:1], 64
    s_load_dwordx2 s[28:29], s[0:1], 96
    v_lshrrev_b32 v1, 6, v0
    v_and_b32 v0, 63, v0
    v_readfirstlane_b32 s3, v1
    v_lshrrev_b32 v4, 4, v0
    v_and_b32 v5, 15, v0
    v_lshlrev_b32 v6, 11, v4
    v_lshl_add_u32 v3, v5, 4, v6
    v_and_b32 v7, 1, v4
    v_xor_b32 v7, v7, v5
    v_lshl_add_u32 v2, v7, 4, v6
    s_bitcmp0_b32 s2, 2
    s_waitcnt lgkmcnt(0)
    s_cselect_b64 s[4:5], s[4:5], s[14:15]
    s_cselect_b64 s[6:7], s[6:7], s[16:17]
    s_cselect_b64 s[8:9], s[8:9], s[18:19]
    s_cselect_b64 s[10:11], s[10:11], s[20:21]
    s_cselect_b64 s[12:13], s[12:13], s[22:23]
    s_bfe_u32 {sBR}, s2, 0x10002
    s_and_b32 {sHG}, s2, 3
    s_bfe_u32 {sCQ}, s2, 0x20003
    s_lshr_b32 {sB}, s2, 5
    s_and_b32 {sWI}, s3, 3
    s_mul_i32 s35, {sB}, 229376
    """)
    stamp(a, cfg, 1, "start")
    srd_off(a, SX, "s4", "s5", "s35", 229376)
    a(f"s_lshl_b32 s33, {sHG}, 2\ns_add_u32 s33, s33, {sCQ}\ns_lshl_b32 s35, s33, 9\ns_sub_u32 s34, 0x800000, s35")
    srd_off(a, SW, "s10", "s11", "s35", "s34")
    if cfg.rot: a(f"s_lshr_b32 s101, s2, 3\ns_lshr_b32 s35, s2, 7\ns_add_u32 s101, s101, s35\ns_lshl_b32 s35, s2, 1\ns_add_u32 s101, s101, s35\ns_and_b32 s101, s101, 15\ns_lshl_b32 s101, s101, 13")
    else: a("s_mov_b32 s101, 0")
    a("s_cmp_ge_u32 s3, 4\ns_cbranch_scc1 L_qload")

    def other_srds():
        a(f"s_lshl_b32 s35, {sB}, 22\ns_lshl_b32 s34, s33, 18\ns_add_u32 s35, s35, s34")
        srd_off(a, SK, "s6", "s7", "s35", 262144)
        srd_off(a, SV, "s8", "s9", "s35", 262144)
        a(f"s_lshl_b32 s35, {sBR}, 3\ns_add_u32 s35, s35, {sB}\ns_lshl_b32 s35, s35, 2\ns_add_u32 s35, s35, {sHG}\ns_mul_i32 s35, s35, 229376")
        srd_off(a, SO, "s28", "s29", "s35", 229376)
        a(f"s_lshl_b32 s35, {sHG}, 21\ns_lshl_b32 s34, {sCQ}, 9\ns_add_u32 s35, s35, s34\ns_sub_u32 s34, 0x200000, s34")
        srd_off(a, SWO, "s12", "s13", "s35", "s34")
        srd(a, SWS, "s28", "s29", 0x10000000)

    other_srds()
    a(f"""
    v_lshrrev_b32 v4, 4, v0         ; g4
    v_bfe_u32 v5, v0, 2, 2          ; r
    v_and_b32 v6, 3, v0             ; c
    v_lshl_add_u32 v7, v4, 3, v5
    v_lshlrev_b32 v7, 9, v7
    v_lshrrev_b32 v9, 1, v6
    v_lshl_add_u32 v7, v9, 4, v7
    v_and_b32 v9, 1, v6
    v_lshl_add_u32 v7, v9, 3, v7
    s_lshr_b32 s35, {sWI}, 1
    s_lshl_b32 s35, s35, 8
    s_add_u32 s35, s35, {WQ0}
    v_add_u32 v7, s35, v7
    v_and_b32 v9, 1, v4
    v_lshl_or_b32 v9, v9, 2, v5
    s_and_b32 s35, {sWI}, 1
    s_lshl_b32 s35, s35, 2
    v_xor_b32 v9, s35, v9
    """)
    for t in range(4): a(f"v_xor_b32 v1, {t}, v9\nv_lshl_add_u32 v{10+t}, v1, 5, v7")
    a("""
    v_and_b32 v5, 15, v0
    v_lshrrev_b32 v6, 1, v5
    v_xor_b32 v6, v6, v4
    v_lshlrev_b32 v5, 7, v5
    v_lshl_add_u32 v14, v6, 4, v5
    v_xor_b32 v15, 64, v14
    """)
    stamp(a, cfg, 2, "start")
    for i in range(112): a(f"v_mov_b32 v{ACC+i}, 0")
    stamp(a, cfg, 3, "start")
    def qreads(u):
        fb = FB + 44 * (u & 1)
        r = [f"ds_read_b64_tr_b16 {vr(fb+4*t+2*j,2)}, v{10+t} offset:{(u%4)*16384 + j*2048}" for t in range(4) for j in range(2)]
        xs = [f"ds_read_b128 {vr(fb+16+4*qt,4)}, v{14+(u&1)} offset:{((u>>1)&1)*14336 + qt*2048}" for qt in range(7)]
        return r[:2] + xs[:1] + r[2:] + xs[1:]
    a("s_barrier")
    stamp(a, cfg, 1)
    stamp(a, cfg, 4, "start")
    for r in qreads(0): a(r)
    a(f"s_mov_b32 {sIT}, 0\nL_qloop:")
    for u in range(4): gemm_step(a, u, qreads(u + 1), [])
    a(f"s_add_u32 {sIT}, {sIT}, 1\ns_cmp_lt_u32 {sIT}, 8\ns_cbranch_scc1 L_qloop")
    stamp(a, cfg, 2)
    cbits = struct.unpack("<I", struct.pack("<f", (128 ** -0.5) * math.log2(math.e)))[0]
    a(f"""
    s_mov_b32 s30, {cbits:#x}
    s_mov_b32 s31, {cbits:#x}
    v_and_b32 v5, 15, v0
    v_lshlrev_b32 v5, 4, v5
    v_lshrrev_b32 v6, 5, v0
    v_lshl_add_u32 v5, v6, 9, v5
    v_bfe_u32 v6, v0, 4, 1
    v_lshl_add_u32 v5, v6, 3, v5
    s_lshr_b32 s34, {sWI}, 1
    s_lshl_b32 s34, s34, 15
    s_and_b32 s35, {sWI}, 1
    s_lshl_b32 s35, s35, 12
    s_add_u32 s34, s34, s35
    v_add_u32 v5, s34, v5
    s_waitcnt lgkmcnt(0)
    """)
    for qt in range(7):
        for t in range(4):
            acc = ACC + 4 * (t * 7 + qt); pk = 128 + 2 * (qt * 4 + t)
            a(f"v_pk_mul_f32 {vr(acc,2)}, {vr(acc,2)}, s[30:31]\nv_pk_mul_f32 {vr(acc+2,2)}, {vr(acc+2,2)}, s[30:31]")
            a(f"v_cvt_pk_bf16_f32 v{pk}, v{acc}, v{acc+1}\nv_cvt_pk_bf16_f32 v{pk+1}, v{acc+2}, v{acc+3}")
    a("s_barrier")
    z = list(range(48, 112))
    for qt in range(7):
        for t in range(4):
            a(f"ds_write_b64 v5, {vr(128 + 2*(qt*4+t),2)} offset:{(qt>>1)*8192 + t*1024 + (qt&1)*256}")
            for _ in range(3):
                if z: a(f"v_mov_b32 v{z.pop(0)}, 0")
    a("s_branch L_join")
    a(f"""
    L_qload:
    s_cmp_ge_u32 s3, 6
    s_cbranch_scc1 L_qaux
    v_lshrrev_b32 v4, 5, v0
    v_and_b32 v5, 31, v0
    s_lshl_b32 s35, {sWI}, 1
    v_add_u32 v4, s35, v4
    v_lshlrev_b32 v6, 1, v4
    v_xor_b32 v5, v5, v6
    v_lshlrev_b32 v4, 13, v4
    v_lshl_add_u32 v10, v5, 4, v4
    v_xor_b32 v12, 0x80, v10
    v_add_u32 v12, 0x10000, v12     ; rows 8-15
    s_lshl_b32 {sBb}, {sWI}, 10
    s_add_u32 {sA}, {sBb}, {WQ0}
    v_lshrrev_b32 v4, 3, v0
    v_and_b32 v5, 7, v0
    v_lshrrev_b32 v6, 1, v4
    s_lshl_b32 s35, {sWI}, 2
    v_add_u32 v6, s35, v6
    v_xor_b32 v5, v5, v6
    s_lshl_b32 s35, {sWI}, 3
    v_add_u32 v4, s35, v4
    v_lshlrev_b32 v4, 11, v4
    v_lshl_add_u32 v11, v5, 4, v4
    s_mov_b32 s30, 0
    s_mov_b32 s31, 0
    """)
    def issue_wq(slot):
        for pc in (0, 2, 8, 10):
            a(f"s_add_u32 m0, {sA}, {slot*16384 + pc*1024}\ns_add_u32 s35, s30, {pc*16384}")
            a(f"buffer_load_dwordx4 v10, {S(SW)}, s35 offen lds")
            a(f"s_add_u32 m0, {sA}, {slot*16384 + (pc+4)*1024}\ns_nop 0")
            a(f"buffer_load_dwordx4 v12, {S(SW)}, s35 offen lds")
        a("s_add_u32 s30, s30, 0x40000")
    def issue_x(slot):
        for n in range(7):
            a(f"s_add_u32 m0, {sBb}, {slot*14336 + n*2048}\ns_add_u32 s35, s31, {n*32768}")
            a(f"buffer_load_dwordx4 v11, {S(SX)}, s35 offen lds")
        a(f"s_add_u32 s31, s31, 128\ns_cmp_ge_u32 s31, 2048\ns_cselect_b32 s31, 0x40000000, s31")
    stamp(a, cfg, 2, "start")
    issue_x(0); issue_wq(0); stamp(a, cfg, 3, "start"); issue_wq(1)
    stamp(a, cfg, 4, "start")
    other_srds()
    a("s_waitcnt vmcnt(8)")
    stamp(a, cfg, 5, "start")
    a("s_barrier")
    issue_x(1); issue_wq(2)
    a("s_waitcnt vmcnt(15)\ns_barrier")
    issue_wq(3); issue_wq(0)
    a(f"s_mov_b32 {sIT}, 0\ns_branch L_qlmid\nL_qlloop:")
    for u in range(4):
        a(f"s_waitcnt vmcnt({16 if u & 1 else 23})\ns_barrier")
        if u & 1: issue_x((u >> 1) & 1)
        issue_wq(u)
        if u == 0: a("L_qlmid:")
    a(f"s_add_u32 {sIT}, {sIT}, 1\ns_cmp_lt_u32 {sIT}, 8\ns_cbranch_scc1 L_qlloop\ns_branch L_qlend")
    a(f"""
    L_qaux:
    s_cmp_eq_u32 s3, 7
    s_cbranch_scc1 L_qkv
    v_lshrrev_b32 v4, 2, v0
    s_lshl_b32 s35, {sB}, 3
    v_add_u32 v4, s35, v4
    v_lshlrev_b32 v4, 13, v4
    v_and_b32 v5, 3, v0
    v_lshl_add_u32 v4, v5, 7, v4
    v_mov_b32 v6, 0x7fffffff
    v_cmp_gt_u32 vcc, 32, v0
    s_mul_i32 s35, {sCQ}, 28
    v_add_u32 v5, s35, v0
    v_cndmask_b32 v10, v6, v4, vcc
    v_lshlrev_b32 v5, 11, v5
    v_cmp_gt_u32 vcc, 28, v0
    s_mov_b32 s30, {int(cfg.t0) << 19}
    s_mov_b32 s31, {int(cfg.t0) << 7}
    v_cndmask_b32 v11, v6, v5, vcc  ; x lines
    """)
    def tw(): a(f"buffer_load_dword v12, v10, {S(SW)}, s30 offen\ns_add_u32 s30, s30, 0x80000")
    def tx(): a(f"buffer_load_dword v12, v11, {S(SX)}, s31 offen\ns_add_u32 s31, s31, 128\ns_cmp_ge_u32 s31, 2048\ns_cselect_b32 s31, 0x40000000, s31")
    for n in range(int(cfg.tpre)): tx(); tw()
    other_srds()
    a(f"""
    s_lshl_b32 s35, s2, 7
    s_add_u32 s35, s35, {FLAGS}
    v_lshlrev_b32 v4, 2, v0
    v_mov_b32 v5, 0
    s_mov_b64 exec, 0xff
    buffer_store_dword v5, v4, {S(SWS)}, s35 offen sc0 sc1
    s_mov_b64 exec, -1
    s_barrier
    """)
    for n in range(int(cfg.d1) - int(cfg.t0) - int(cfg.tpre)): tx(); tw()
    tb = int(cfg.tburst)
    a(f"s_mov_b32 {sIT}, 0\nL_qtloop:\ns_barrier")
    if tb == 0:
        tw(); a("s_barrier"); tx()
    else:
        for _ in range(tb): tx(); tw()
        for _ in range(2 * tb - 1): a("s_barrier")
    a(f"s_add_u32 {sIT}, {sIT}, 1\ns_cmp_lt_u32 {sIT}, {16 // max(tb, 1)}\ns_cbranch_scc1 L_qtloop")
    srd(a, SDBG, "s26", "s27", 256)
    a(f"""
    v_mov_b32 v4, 0
    v_mov_b32 v6, 1
    s_waitcnt vmcnt(0)
    s_mov_b64 exec, 1
    buffer_atomic_add v6, v4, {S(SDBG)}, 0 offen
    s_mov_b64 exec, -1
    s_branch L_qlend2
    L_qkv:
    """)
    other_srds()
    a(f"""
    s_barrier
    s_mov_b32 {sIT}, 0
    L_qkloop:
    s_and_b32 s96, {sIT}, 7
    s_bfe_u32 s97, {sIT}, 0x10003
    s_lshr_b32 s98, {sIT}, 4
    s_mul_i32 s99, s97, {HSTEP}
    s_mul_i32 s100, s98, {SLOT[1]-SLOT[0]}
    s_add_u32 s99, s99, s100
    s_add_u32 s99, s99, {SLOT[0]}
    s_lshl_b32 s97, s97, 17
    s_lshl_b32 s98, s98, 13
    s_add_u32 s98, s98, s101
    s_and_b32 s98, s98, 0x1ffff
    s_add_u32 s97, s97, s98
    s_lshl_b32 s98, s96, 8
    s_add_u32 s97, s97, s98
    s_mul_i32 s98, s96, 1056
    s_mul_i32 s96, s96, 1088
    s_add_u32 s96, s96, {KT}
    s_barrier
    s_add_u32 m0, s98, s99
    s_add_u32 {sIT}, {sIT}, 1
    """)
    if cfg.kvpre: a(f"buffer_load_dwordx4 v2, {S(SK)}, s97 offen{kvp} lds")
    a(f"s_add_u32 m0, s96, s99\ns_cmp_lt_u32 {sIT}, 32")
    if cfg.kvpre: a(f"buffer_load_dwordx4 v3, {S(SV)}, s97 offen{kvp} lds")
    a("s_cbranch_scc1 L_qkloop\ns_branch L_qlend2\nL_qlend:\ns_waitcnt vmcnt(0)\nL_qlend2:")
    for i in range(48, 112): a(f"v_mov_b32 v{i}, 0")
    a("s_barrier")

    QF, OA, SS, NM, KF, VF, PP = 16, 48, 112, 128, 144, 176, 208
    L_, MX, T0 = 216, 217, 218
    a(f"""
    L_join:
    s_mov_b32 s{SDBG}, s26
    s_and_b32 s{SDBG+1}, s27, 0xffff
    s_mov_b32 s{SDBG+2}, 256
    s_mov_b32 s{SDBG+3}, 0x00020000
    s_lshr_b32 s34, s3, 2
    s_lshl_b32 s35, s34, 17
    s_add_u32 s{SK}, s{SK}, s35
    s_addc_u32 s{SK+1}, s{SK+1}, 0
    s_mov_b32 s{SK+2}, 131072
    s_add_u32 s{SV}, s{SV}, s35
    s_addc_u32 s{SV+1}, s{SV+1}, 0
    s_mov_b32 s{SV+2}, 131072
    s_mul_i32 s30, s34, {HSTEP}
    s_mul_i32 {sA}, {sWI}, 1056
    s_add_u32 {sA}, {sA}, s30
    s_mul_i32 {sBb}, {sWI}, 1088
    s_add_u32 {sBb}, {sBb}, s30
    s_add_u32 {sBb}, {sBb}, {KT}
    s_lshl_b32 s31, {sWI}, 8
    s_add_u32 s31, s31, 16384
    s_add_u32 s31, s31, s101
    s_and_b32 s31, s31, 0x1ffff
    v_and_b32 v4, 31, v0
    v_lshrrev_b32 v6, 5, v0         ; half
    s_cmp_eq_u32 {sWI}, 3
    s_cselect_b32 s35, 15, 31
    v_and_b32 v7, s35, v4
    v_lshl_add_u32 v7, v6, 5, v7
    v_lshlrev_b32 v7, 4, v7
    s_lshl_b32 s35, s3, 13
    v_add_u32 v9, s35, v7
    v_and_b32 v7, 7, v4
    v_mul_u32_u24 v7, 1056, v7
    v_lshrrev_b32 v8, 3, v4
    v_lshl_add_u32 v7, v8, 8, v7
    v_and_b32 v8, 1, v8
    v_xor_b32 v8, v8, v6
    v_lshl_add_u32 v7, v8, 4, v7
    v_add_u32 v10, s30, v7
    v_add_u32 v11, {SLOT[0]}, v10
    v_bfe_u32 v7, v0, 2, 2
    v_lshl_add_u32 v7, v6, 2, v7
    v_mul_u32_u24 v7, 1088, v7
    v_bfe_u32 v8, v0, 4, 1
    v_lshl_add_u32 v7, v8, 5, v7
    v_and_b32 v8, 3, v0
    v_lshl_add_u32 v7, v8, 3, v7
    s_add_u32 s35, s30, {KT}
    v_add_u32 v12, s35, v7
    v_add_u32 v13, {SLOT[0]}, v12
    s_waitcnt lgkmcnt(0)
    s_barrier
    """)
    for s in range(8): a(f"ds_read_b128 {vr(QF+4*s,4)}, v9 offset:{s*1024}")
    for i in range(16): a(f"v_mov_b32 v{NM+i}, 0")
    a(f"""
    v_mov_b32 v{L_}, 0
    s_mov_b32 s96, 0xff800000
    s_mov_b32 s97, 0xff800000
    v_lshrrev_b32 v4, 5, v0
    s_lshl_b32 s35, {sWI}, 1
    v_add_u32 v4, s35, v4
    v_and_b32 v5, 31, v0
    v_lshlrev_b32 v6, 1, v4
    v_xor_b32 v5, v5, v6
    v_lshlrev_b32 v4, 11, v4
    v_lshl_add_u32 v14, v5, 4, v4
    v_lshrrev_b32 v4, 4, v0
    v_lshlrev_b32 v4, 5, v4
    v_bfe_u32 v5, v0, 2, 2
    v_add_u32 v4, v4, v5
    s_lshl_b32 s35, {sB}, 2
    v_add_u32 v4, s35, v4
    v_lshlrev_b32 v4, 11, v4
    v_and_b32 v5, 3, v0
    v_lshl_add_u32 v15, v5, 7, v4
    s_waitcnt lgkmcnt(0)
    s_barrier
    """)
    stamp(a, cfg, 3)
    def issue_kv(slot):
        for n in range(2):
            a(f"s_add_u32 m0, {sA}, {SLOT[slot] + n*4*1056}\ns_add_u32 s35, s31, {n*1024}")
            a(f"buffer_load_dwordx4 v2, {S(SK)}, s35 offen{kvp} lds")
            a(f"s_add_u32 m0, {sBb}, {SLOT[slot] + n*4*1088}\ns_nop 0")
            a(f"buffer_load_dwordx4 v3, {S(SV)}, s35 offen{kvp} lds")
        a("s_add_u32 s31, s31, 8192\ns_and_b32 s31, s31, 0x1ffff")
    def issue_wo(mbase, moff, soff):
        for n in range(4):
            a(f"s_add_u32 m0, {mbase}, {moff + n*4096}\ns_add_u32 s35, {soff}, {n*16384}")
            a(f"buffer_load_dwordx4 v14, {S(SWO)}, s35 offen lds")
    stubs = []
    def attn_step(st, issue):
        hi = st < 2; off = (st & 1) * 34304
        ka, va = ("v11", "v13") if hi else ("v10", "v12")
        a("s_waitcnt vmcnt(8)\ns_barrier")
        for s in range(8): a(f"ds_read_b128 {vr(KF+4*s,4)}, {ka} offset:{off + 32*s}")
        issue()
        vrd = [f"ds_read_b64_tr_b16 {vr(VF+4*(4*u+t)+2*j,2)}, {va} offset:{off + (2*u+j)*256 + 64*t}" for u in range(2) for t in range(4) for j in range(2)]
        for s in range(8):
            a(f"s_waitcnt lgkmcnt({7 - s + min(2*s, 8)})")
            a(f"v_mfma_f32_32x32x16_bf16 {vr(SS,16)}, {vr(KF+4*s,4)}, {vr(QF+4*s,4)}, {vr(NM if s == 0 else SS,16)}")
            if s < 4: a(vrd.pop(0)); a(vrd.pop(0))
        for _ in range(8): a(vrd.pop(0))
        a("s_nop 3")
        a(f"v_max3_f32 v{MX}, v{SS}, v{SS+1}, v{SS+2}")
        for i in range(3, 15, 2): a(f"v_max3_f32 v{MX}, v{MX}, v{SS+i}, v{SS+i+1}")
        a(f"v_max_f32 v{MX}, v{MX}, v{SS+15}")
        stub, back = a.label("stub"), a.label("back")
        stubs.append((stub, back))
        a(f"v_cmp_lt_f32 vcc, s96, v{MX}\ns_cbranch_vccnz {stub}\n{back}:")
        for u in range(2):
            for i in range(8): a(f"v_exp_f32 v{SS+8*u+i}, v{SS+8*u+i}")
            for i in range(4): a(f"v_cvt_pk_bf16_f32 v{PP+4*u+i}, v{SS+8*u+2*i}, v{SS+8*u+2*i+1}")
            a(f"s_waitcnt lgkmcnt({0 if u else 8})")
            a(f"v_add_f32 v{L_}, v{L_}, v{SS+8*u}")
            for t in range(4):
                a(f"v_mfma_f32_32x32x16_bf16 {vr(OA+16*t,16)}, {vr(VF+4*(4*u+t),4)}, {vr(PP+4*u,4)}, {vr(OA+16*t,16)}")
                for i in (1 + 2*t, 2 + 2*t):
                    if i < 8: a(f"v_add_f32 v{L_}, v{L_}, v{SS+8*u+i}")
    issue_kv(2)
    a(f"s_mov_b32 {sIT}, 0\nL_aloop:")
    for st in range(4): attn_step(st, lambda: issue_kv((st + 3) % 4))
    a(f"s_add_u32 {sIT}, {sIT}, 1\ns_cmp_lt_u32 {sIT}, 3\ns_cbranch_scc1 L_aloop")
    attn_step(0, lambda: issue_kv(3))
    a(f"""
    s_lshr_b32 s34, s3, 2
    s_lshl_b32 s30, {sCQ}, 19
    s_lshl_b32 s35, s34, 16
    s_add_u32 s31, s30, s35
    s_lshl_b32 {sA}, {sWI}, 10
    s_add_u32 {sA}, {sA}, {WO0}
    s_lshl_b32 s35, s34, 14
    s_add_u32 {sBb}, {sA}, s35
    """)
    attn_step(1, lambda: issue_wo(sBb, 0, "s31"))
    a("s_add_u32 s31, s31, 0x20000")
    attn_step(2, lambda: issue_wo(sBb, 32768, "s31"))
    a(f"s_lshl_b32 s35, s3, 18\ns_add_u32 s31, s30, s35\ns_and_b32 s31, s31, 0x1fffff")
    attn_step(3, lambda: a(f"buffer_load_dword v219, v15, {S(SWO)}, s31 offen"))
    stamp(a, cfg, 4)
    a(f"""
    v_mov_b32 v{T0}, v{L_}
    v_and_b32 v4, 31, v0
    v_lshrrev_b32 v5, 4, v4
    v_permlane32_swap_b32 v{T0}, v{L_}
    v_lshlrev_b32 v5, 10, v5
    v_and_b32 v7, 15, v4
    v_add_f32 v{L_}, v{L_}, v{T0}
    v_lshl_add_u32 v5, v7, 4, v5
    v_rcp_f32 v{L_}, v{L_}
    v_lshrrev_b32 v7, 5, v0
    v_lshl_add_u32 v5, v7, 8, v5
    s_lshl_b32 s35, {sWI}, 11
    v_add_u32 v5, s35, v5
    s_lshr_b32 s34, s3, 2
    s_mul_i32 s35, s34, 28672
    v_add_u32 v6, s35, v5
    s_mul_i32 s34, {sCQ}, 57344
    s_add_u32 s34, s34, s35
    """)
    for t in range(4):
        for jj in range(2):
            b = OA + 16*t + 8*jj
            for i in range(8): a(f"v_mul_f32 v{b+i}, v{b+i}, v{L_}")
            for i in range(4): a(f"v_cvt_pk_bf16_f32 v{b+i}, v{b+2*i}, v{b+2*i+1}")
    a(f"""
    s_cmp_eq_u32 {sWI}, 3
    s_cselect_b32 s32, 0xffff, -1
    s_mov_b32 s33, s32
    s_barrier
    s_mov_b64 exec, s[32:33]
    """)
    for t in range(4):
        for jj in range(2):
            a(f"ds_write_b128 v6, {vr(OA+16*t+8*jj,4)} offset:{t*7168 + jj*512}")
    for t in range(4):
        if t: a("s_add_u32 s34, s34, 7168")
        for jj in range(2):
            a(f"buffer_store_dwordx4 {vr(OA+16*t+8*jj,4)}, v5, {S(SO)}, s34 offen offset:{jj*512} sc0 sc1")
    a("s_mov_b64 exec, -1\ns_cmp_ge_u32 s3, 4\ns_cbranch_scc1 L_omm")

    def poll(lab, srdn, vaddr, want):
        a(f"""
        s_mov_b32 {sU}, 0
        {lab}:
        buffer_load_dword v20, {vaddr}, {S(srdn)}, 0 offen sc0 sc1
        s_add_u32 {sU}, {sU}, 1
        s_waitcnt vmcnt(0)
        v_cmp_{"gt" if want == "s32" else "ne"}_u32 vcc, {want}, v20
        s_cmp_ge_u32 {sU}, {cfg.spin}
        s_cbranch_scc1 {lab}_out
        s_cbranch_vccnz {lab}
        {lab}_out:
        """)
    a(f"""
    v_lshlrev_b32 v16, 4, v0
    s_lshl_b32 {sBb}, {sWI}, 10
    v_add_u32 v16, {sBb}, v16
    s_add_u32 s30, s30, 0x40000
    s_and_b32 s30, s30, 0x1fffff
    s_add_u32 s31, {sCQ}, 1
    s_and_b32 s31, s31, 3
    s_lshl_b32 s35, s2, 7
    s_add_u32 s35, s35, {FLAGS}
    v_mov_b32 v17, s35
    v_mov_b32 v18, 1
    v_mov_b32 v19, 0
    s_movk_i32 s32, 256
    s_waitcnt vmcnt(13) lgkmcnt(0)
    s_barrier
    """)
    def wo_next(u):
        issue_wo(sA, (u % 4) * 16384, "s30")
        a("s_add_u32 s30, s30, 0x10000\ns_and_b32 s30, s30, 0x1fffff")
    for u, w in enumerate((None, 13, None, 8, 8)):
        if w is not None: a(f"s_waitcnt vmcnt({w})")
        a("s_barrier")
        if u == 4:
            a(f"""
            s_cmp_lg_u32 s3, 0
            s_cbranch_scc1 L_noflag
            s_mov_b64 exec, 1
            buffer_store_dword v18, v17, {S(SWS)}, 0 offen sc0 sc1
            s_mov_b64 exec, -1
            L_noflag:
            """)
        wo_next(u)
    poll("L_pollcnt", SDBG, "v19", "s32")
    a(f"s_mov_b32 {sIT}, 0\nL_olloop:")
    for u in range(5, 13):
        if u == 5:
            a(f"""
            s_andn2_b32 s35, s2, 0x18
            s_lshl_b32 s34, s31, 3
            s_or_b32 s35, s35, s34
            s_lshl_b32 s35, s35, 7
            s_add_u32 s35, s35, {FLAGS}
            v_mov_b32 v17, s35
            s_mul_i32 s33, s31, 57344
            s_add_u32 s31, s31, 1
            s_and_b32 s31, s31, 3
            """)
            poll("L_pollo", SWS, "v17", "1")
            a("s_barrier")
        else:
            a("s_waitcnt vmcnt(9)\ns_barrier")
        lab = a.label("os")
        sl = (u + 3) % 8
        a(f"s_add_u32 m0, {sBb}, {sl*7168}\ns_add_u32 s35, s33, 4096")
        a(f"buffer_load_dwordx4 v16, {S(SO)}, s33 offen sc0 sc1 lds")
        a(f"s_cmp_eq_u32 {sWI}, 3\ns_cbranch_scc1 {lab}\ns_add_u32 m0, {sBb}, {sl*7168 + 4096}\ns_nop 0")
        a(f"buffer_load_dwordx4 v16, {S(SO)}, s35 offen sc0 sc1 lds\n{lab}:\ns_add_u32 s33, s33, 7168")
        wo_next(u)
    a(f"s_add_u32 {sIT}, {sIT}, 1\ns_cmp_lt_u32 {sIT}, 3\ns_cbranch_scc1 L_olloop")
    a("s_waitcnt vmcnt(9)\ns_barrier\ns_waitcnt vmcnt(4)\ns_barrier\ns_barrier")
    stamp(a, cfg, 5)
    stamp_store(a, cfg, 0, 0, "L_end")
    a("s_branch L_end")

    a(f"""
    L_omm:
    v_lshrrev_b32 v4, 4, v0         ; g4
    v_bfe_u32 v5, v0, 2, 2          ; r
    v_and_b32 v6, 3, v0             ; c
    v_and_b32 v7, 1, v4
    v_lshl_add_u32 v9, v7, 2, v5    ; k & 7
    v_lshrrev_b32 v7, 1, v4
    v_lshl_add_u32 v7, v7, 4, v9
    v_lshlrev_b32 v7, 9, v7
    v_lshrrev_b32 v8, 1, v6
    v_lshl_add_u32 v7, v8, 4, v7
    v_and_b32 v8, 1, v6
    v_lshl_add_u32 v7, v8, 3, v7
    v_add_u32 v7, {WO0}, v7
    v_xor_b32 v9, {sWI}, v9
    v_lshlrev_b32 v14, 4, v0
    """)
    for tau in range(4):
        a(f"""
        s_add_u32 s35, {sHG}, {tau}
        s_and_b32 s34, s35, 1
        s_lshl_b32 s34, s34, 2
        s_bfe_u32 s35, s35, 0x10001
        s_lshl_b32 s35, s35, 8
        v_xor_b32 v1, s34, v9
        v_lshl_add_u32 v1, v1, 5, v7
        v_add_u32 v{10+tau}, s35, v1
        """)
    keep = [r for t in range(4) for jj in range(2) for r in range(OA + 16*t + 8*jj, OA + 16*t + 8*jj + 4)]
    for i in range(112):
        if ACC + i not in keep: a(f"v_mov_b32 v{ACC+i}, 0")
    for r in keep: a(f"v_mov_b32 v{r}, 0")
    def oreads(u):
        fb = FB + 44 * (u & 1)
        r = [f"ds_read_b64_tr_b16 {vr(fb+4*t+2*j,2)}, v{10+t} offset:{(u%4)*16384 + j*4096}" for t in range(4) for j in range(2)]
        xs = [f"ds_read_b128 {vr(fb+16+4*qt,4)}, v14 offset:{(u%8)*7168 + qt*1024}" for qt in range(7)]
        return r[:2] + xs[:1] + r[2:] + xs[1:]
    a("s_waitcnt vmcnt(13) lgkmcnt(0)\ns_barrier")
    stamp(a, cfg, 5)
    for r in oreads(0): a(r)
    a(f"s_mov_b32 {sIT}, 0\nL_oloop:")
    for u in range(8):
        gemm_step(a, u, oreads(u + 1), [], {2: " vmcnt(9)", 4: " vmcnt(0)"}.get(u, ""))
    a(f"s_add_u32 {sIT}, {sIT}, 1\ns_cmp_lt_u32 {sIT}, 4\ns_cbranch_scc1 L_oloop")
    stamp(a, cfg, 6)
    a(f"""
    s_lshl_b32 s30, {sBR}, 3
    s_add_u32 s30, s30, {sB}
    s_lshl_b32 s30, s30, 2
    s_add_u32 s30, s30, {sCQ}
    s_mul_i32 s30, s30, {12*16384}
    s_lshl_b32 s35, {sWI}, 12
    s_add_u32 s30, s30, s35
    s_add_u32 s30, s30, {RED}
    v_lshlrev_b32 v15, 3, v0
    """)
    for tau in range(1, 4):
        a(f"""
        s_add_u32 s35, {sHG}, {tau}
        s_and_b32 s35, s35, 3
        s_mul_i32 s35, s35, {3*16384}
        s_add_u32 s35, s35, s30
        s_add_u32 s35, s35, {(tau-1)*16384}
        """)
        for pr in range(4):
            b = ACC + 4 * (tau * 7 + 2 * pr)
            for i in range(4 if pr < 3 else 2): a(f"v_cvt_pk_bf16_f32 v{b+i}, v{b+2*i}, v{b+2*i+1}")
            if pr < 3: a(f"buffer_store_dwordx4 {vr(b,4)}, v14, {S(SWS)}, s35 offen offset:{pr*1024} sc0 sc1")
            else: a(f"buffer_store_dwordx2 {vr(b,2)}, v15, {S(SWS)}, s35 offen offset:3072 sc0 sc1")
    a(f"""
    s_lshl_b32 s35, s2, 7
    s_lshl_b32 s34, {sWI}, 2
    s_add_u32 s34, s34, {FLAGS + 16}
    s_add_u32 s35, s35, s34
    v_mov_b32 v4, s35
    v_mov_b32 v5, 1
    v_min_u32 v6, 2, v0
    v_sub_u32 v6, {sHG}, v6
    v_add_u32 v6, -1, v6
    v_and_b32 v6, 3, v6
    s_andn2_b32 s35, s2, 3
    v_or_b32 v6, s35, v6
    v_lshlrev_b32 v6, 7, v6
    v_add_u32 v6, s34, v6
    s_mul_i32 s35, {sB}, 458752
    s_lshl_b32 s34, {sBR}, 11
    s_add_u32 s35, s35, s34
    s_lshl_b32 s34, {sCQ}, 9
    s_add_u32 s35, s35, s34
    s_lshl_b32 s34, {sHG}, 7
    s_add_u32 s35, s35, s34
    s_sub_u32 s34, 3670016, s35
    """)
    srd_off(a, SOUT, "s24", "s25", "s35", "s34")
    a(f"""
    v_and_b32 v7, 15, v0
    v_lshlrev_b32 v7, 12, v7
    v_lshrrev_b32 v8, 4, v0
    v_lshl_add_u32 v7, v8, 3, v7
    s_lshl_b32 s35, {sWI}, 5
    v_add_u32 v7, s35, v7
    s_mul_i32 s35, {sHG}, {3*16384}
    s_add_u32 s30, s30, s35
    s_waitcnt vmcnt(0) lgkmcnt(0)
    s_mov_b64 exec, 1
    buffer_store_dword v5, v4, {S(SWS)}, 0 offen sc0 sc1
    s_mov_b64 exec, -1
    """)
    stamp(a, cfg, 1)
    a(f"""
    s_mov_b32 {sU}, 0
    L_pollr:
    buffer_load_dword v9, v6, {S(SWS)}, 0 offen sc0 sc1
    s_add_u32 {sU}, {sU}, 1
    s_waitcnt vmcnt(0)
    v_cmp_ne_u32 vcc, 1, v9
    s_cmp_ge_u32 {sU}, {cfg.spin}
    s_cbranch_scc1 L_pollr_out
    s_cbranch_vccnz L_pollr
    L_pollr_out:
    """)
    stamp(a, cfg, 2)
    a("s_add_u32 s33, s30, 16384\ns_add_u32 s34, s30, 32768")
    for pr in range(4):
        for s_, so in enumerate(("s30", "s33", "s34")):
            r = FB + 12 * pr + 4 * s_
            if pr < 3: a(f"buffer_load_dwordx4 {vr(r,4)}, v14, {S(SWS)}, {so} offen offset:{pr*1024} sc0 sc1")
            else: a(f"buffer_load_dwordx2 {vr(r,2)}, v15, {S(SWS)}, {so} offen offset:3072 sc0 sc1")
    a("s_mov_b32 s33, 0xffff0000")
    nst = 0
    for pr in range(4):
        a(f"s_waitcnt vmcnt({3*(3-pr) + nst})")
        for h in range(2 if pr < 3 else 1):
            qt = 2 * pr + h; b = ACC + 4 * qt
            for s_ in range(3):
                r = FB + 12 * pr + 4 * s_ + 2 * h
                for d in range(2):
                    a(f"v_lshlrev_b32 v{200+2*d}, 16, v{r+d}\nv_and_b32 v{201+2*d}, s33, v{r+d}")
                for i in range(4): a(f"v_add_f32 v{b+i}, v{b+i}, v{200+i}")
            a(f"v_cvt_pk_bf16_f32 v{b}, v{b}, v{b+1}\nv_cvt_pk_bf16_f32 v{b+1}, v{b+2}, v{b+3}")
            a(f"s_mov_b32 s35, {qt*65536}\nbuffer_store_dwordx2 {vr(b,2)}, v7, {S(SOUT)}, s35 offen")
            nst += 1
    if cfg.stamps: a("s_waitcnt vmcnt(0)")
    stamp(a, cfg, 7)
    stamp_store(a, cfg, 4, 256, "L_end")
    a("L_end:\ns_endpgm")
    for stub, back in stubs:
        a(f"{stub}:\ns_call_b64 s[98:99], L_rare\ns_branch {back}")
    a(f"""
    L_rare:
    v_mov_b32 v{T0}, v{MX}
    s_nop 1
    v_permlane32_swap_b32 v{T0}, v{MX}
    s_nop 1
    v_max3_f32 v{MX}, v{MX}, v{T0}, s97
    v_max_f32 v{T0}, 0, v{MX}
    v_exp_f32 v{T0}, -v{T0}
    s_mov_b32 s96, 0x41000000
    s_mov_b32 s97, 0
    """)
    for i in range(16): a(f"v_sub_f32 v{SS+i}, v{SS+i}, v{MX}")
    for i in range(16): a(f"v_sub_f32 v{NM+i}, v{NM+i}, v{MX}")
    a(f"v_mul_f32 v{L_}, v{L_}, v{T0}")
    for i in range(64): a(f"v_mul_f32 v{OA+i}, v{OA+i}, v{T0}")
    a("s_setpc_b64 s[98:99]")
    t = a.text()
    ab = cfg.abl.split(",")
    if "wrap1" in ab:
        t = t.replace("s_add_u32 s30, s30, 0x40000\n    s_waitcnt", "s_add_u32 s30, s30, 0x40000\n    s_and_b32 s30, s30, 0x1fffff\n    s_waitcnt")
        t = t.replace("s_add_u32 s31, s31, 128\n    s_cmp_ge_u32 s31, 2048\n    s_cselect_b32 s31, 0x40000000, s31", "s_add_u32 s31, s31, 128\n    s_and_b32 s31, s31, 511")
    if "nokv" in ab: t = "\n".join(l for l in t.split("\n") if not ("buffer_load_dwordx4 v2," in l or "buffer_load_dwordx4 v3," in l))
    if "notouch" in ab: t = "\n".join(l for l in t.split("\n") if "buffer_load_dword v12" not in l)
    return t

def echo_kernel(cfg):
    ka, ia, kb, ib, wg = ([int(x) for x in cfg.echo.split(",")] + [0])[:5]
    a = A()
    a(f"""
    s_cmp_ge_u32 s2, 1
    s_cbranch_scc1 E_end
    s_load_dwordx2 s[4:5], s[0:1], 96
    s_memrealtime s[8:9]
    s_waitcnt lgkmcnt(0)
    s_add_u32 s4, s4, {STAMP_OFF}
    s_addc_u32 s5, s5, 0
    s_load_dword s10, s[4:5], {ka*32768 + wg*128 + ia*8}
    s_load_dword s11, s[4:5], {kb*32768 + wg*128 + ib*8}
    s_waitcnt lgkmcnt(0)
    s_sub_u32 s10, s11, s10
    s_mul_i32 s10, s10, 10
    s_min_u32 s10, s10, 200000
    E_spin:
    s_memrealtime s[12:13]
    s_waitcnt lgkmcnt(0)
    s_sub_u32 s12, s12, s8
    s_cmp_lt_u32 s12, s10
    s_cbranch_scc1 E_spin
    E_end:
    s_endpgm
    """)
    return a.text()

def build(cfg):
    K = NAME + "_kernel"
    hdr = "; @launch grid=(256,1,1) block=(512,1,1) lds=163840\n"
    if cfg.echo:
        hdr = f"; @launch kernel={K} grid=(256,1,1) block=(512,1,1) lds=163840\n; @launch kernel=echo_kernel grid=(1,1,1) block=(64,1,1) lds=0\n"
        hdr += '.amdgcn_target "amdgcn-amd-amdhsa--gfx950"\n' + kernel_head("echo_kernel") + echo_kernel(cfg) + kernel_desc("echo_kernel", 8, 8)
        return hdr + kernel_head(K) + kernel(cfg).replace("sc0 sc1", cfg.sc.replace("+", " ")) + kernel_desc(K, 224, 224)
    hdr += '.amdgcn_target "amdgcn-amd-amdhsa--gfx950"\n'
    return hdr + kernel_head(K) + kernel(cfg).replace("sc0 sc1", cfg.sc.replace("+", " ")) + kernel_desc(K, 224, 224)

if __name__ == "__main__":
    cfg = Cfg()
    for kv in sys.argv[2:]:
        k, v = kv.split("=")
        setattr(cfg, k, {"True": True, "False": False}.get(v, v))
    open(sys.argv[1], "w").write(build(cfg))
```

```python
import sys, math, struct
from asmlib import *

class Cfg:
    stamps = False
    sgrp = "main"
    t0 = 2
    d1 = 4
    prio_a = 1
    rot = True
    atouch = False
    tq = 4
    tw = 3
    echo = ""
    abl = ""
    spin = 400000

QSL = 30720
KV0, KVS, KT = 94208, 17152, 8448
WR0 = 28672
HO1 = 61440
RED, FLAGS, TAG = 16 << 20, 48 << 20, (48 << 20) + 65536
VTAG = "v236"
SX, SW, SK, SV, SO, SWO, SWS = 36, 40, 44, 48, 52, 56, 60
SOUT, SDBG = SX, SW
sBR, sHG, sCQ, sB, sWI, sIT, sA, sBb, sT, sU = ("s%d" % i for i in range(14, 24))
SC = "sc1"
def S(d): return f"s[{d}:{d+3}]"

def stamp(a, cfg, i, grp="main"):
    if cfg.stamps and (grp == cfg.sgrp or i == 0): a(f"s_memrealtime s[{64+2*i}:{65+2*i}]\ns_memtime s[{80+2*i}:{81+2*i}]")

def stamp_store(a, cfg, wave, wgoff, end):
    if not cfg.stamps: return
    a(f"s_cmp_lg_u32 s3, {wave}\ns_cbranch_scc1 {end}")
    a(f"s_waitcnt lgkmcnt(0)\ns_add_u32 s3, s2, {wgoff}\ns_lshl_b32 s3, s3, 7\ns_add_u32 s3, s3, {STAMP_OFF}\nv_mov_b32 v1, s3")
    for q in range(8):
        for j in range(4): a(f"v_mov_b32 v{4+j}, s{64+4*q+j}")
        a(f"buffer_store_dwordx4 v[4:7], v1, {S(SWS)}, 0 offen offset:{16*q}\ns_nop 2")
    a("s_waitcnt vmcnt(0)")

def srd_off(a, d, lo, hi, off_reg, nbytes):
    a(f"s_add_u32 s{d}, {lo}, {off_reg}\ns_addc_u32 s{d+1}, {hi}, 0\ns_and_b32 s{d+1}, s{d+1}, 0xffff")
    a(f"s_mov_b32 s{d+2}, {nbytes}\ns_mov_b32 s{d+3}, 0x00020000")

def weave(a, mf, fill, per=1, start=0):
    fill = list(fill)
    for n, m in enumerate(mf):
        a(m)
        if n >= start:
            for _ in range(per if isinstance(per, int) else per[n]):
                if fill: a(fill.pop(0))
    for f in fill: a(f)

def poll(a, cfg, lab, srdn, vaddr, vtmp, cmp, want):
    a(f"""
    s_mov_b32 {sU}, 0
    {lab}:
    buffer_load_dword {vtmp}, {vaddr}, {S(srdn)}, 0 offen {SC}
    s_add_u32 {sU}, {sU}, 1
    s_waitcnt vmcnt(0)
    v_cmp_{cmp}_u32 vcc, {want}, {vtmp}
    s_cmp_ge_u32 {sU}, {cfg.spin}
    s_cbranch_scc1 {lab}_out
    s_cbranch_vccnz {lab}
    {lab}_out:
    """)

def kernel(cfg):
    a = A()
    a("s_cmp_ge_u32 s2, 256\ns_cbranch_scc1 L_end")
    stamp(a, cfg, 0)
    a(f"""
    s_load_dwordx16 s[4:19], s[0:1], 0
    s_load_dwordx8 s[20:27], s[0:1], 64
    s_load_dwordx2 s[28:29], s[0:1], 96
    v_lshrrev_b32 v1, 6, v0
    v_and_b32 v0, 63, v0
    v_readfirstlane_b32 s3, v1
    s_bitcmp0_b32 s2, 2
    s_waitcnt lgkmcnt(0)
    s_cselect_b64 s[4:5], s[4:5], s[14:15]
    s_cselect_b64 s[6:7], s[6:7], s[16:17]
    s_cselect_b64 s[8:9], s[8:9], s[18:19]
    s_cselect_b64 s[10:11], s[10:11], s[20:21]
    s_cselect_b64 s[12:13], s[12:13], s[22:23]
    s_bfe_u32 {sBR}, s2, 0x10002
    s_and_b32 {sHG}, s2, 3
    s_bfe_u32 {sCQ}, s2, 0x20003
    s_lshr_b32 {sB}, s2, 5
    s_and_b32 {sWI}, s3, 3
    s_mul_i32 s35, {sB}, 229376
    """)
    srd_off(a, SX, "s4", "s5", "s35", 229376)
    a(f"s_lshl_b32 s33, {sHG}, 2\ns_add_u32 s33, s33, {sCQ}\ns_lshl_b32 s35, s33, 9\ns_sub_u32 s34, 0x800000, s35")
    srd_off(a, SW, "s10", "s11", "s35", "s34")
    if cfg.rot: a(f"s_lshr_b32 {sU}, s2, 3\ns_lshr_b32 s35, s2, 7\ns_add_u32 {sU}, {sU}, s35\ns_lshl_b32 s35, s2, 1\ns_add_u32 {sU}, {sU}, s35\ns_and_b32 {sU}, {sU}, 15\ns_lshl_b32 {sU}, {sU}, 13")
    else: a(f"s_mov_b32 {sU}, 0")
    a("s_cmp_ge_u32 s3, 4\ns_cbranch_scc1 A_start")

    def other_srds():
        a(f"s_lshl_b32 s35, {sB}, 22\ns_lshl_b32 s34, s33, 18\ns_add_u32 s35, s35, s34")
        srd_off(a, SK, "s6", "s7", "s35", 262144)
        srd_off(a, SV, "s8", "s9", "s35", 262144)
        a(f"s_lshl_b32 s35, {sBR}, 3\ns_add_u32 s35, s35, {sB}\ns_lshl_b32 s35, s35, 2\ns_add_u32 s35, s35, {sHG}\ns_mul_i32 s35, s35, 229376")
        srd_off(a, SO, "s28", "s29", "s35", 229376)
        a(f"s_lshl_b32 s35, {sHG}, 21\ns_lshl_b32 s34, {sCQ}, 9\ns_add_u32 s35, s35, s34\ns_sub_u32 s34, 0x200000, s34")
        srd_off(a, SWO, "s12", "s13", "s35", "s34")
        srd(a, SWS, "s28", "s29", 0x10000000)
    def adv_stage():
        return ("s_add_u32 s30, s30, 0x80000\ns_add_u32 s31, s31, 128\ns_cmp_eq_u32 s30, 0x800000\n"
                "s_cselect_b32 s30, 256, s30\ns_cselect_b32 s31, 0, s31\ns_cmp_ge_u32 s30, 0x800000\ns_cselect_b32 s31, 0x40000000, s31")
    def wo_src(v):
        a(f"""
        v_lshrrev_b32 v4, 5, v0
        s_lshl_b32 s35, {sWI}, 1
        v_add_u32 v4, s35, v4
        v_and_b32 v5, 31, v0
        v_lshlrev_b32 v6, 1, v4
        v_xor_b32 v5, v5, v6
        v_lshlrev_b32 v4, 11, v4
        v_lshl_add_u32 {v}, v5, 4, v4
        """)
    def wo_pieces(v, slot, soff, add):
        return [f"s_add_u32 m0, {sA}, {slot*16384 + n*4096}\ns_add_u32 s35, {soff}, {add + n*16384}\n"
                f"buffer_load_dwordx4 {v}, {S(SWO)}, s35 offen lds" for n in range(4)]
    def o_pieces(v, slot, soff, add):
        lab = a.label("os")
        return [f"s_add_u32 m0, {sBb}, {slot*7168}\ns_add_u32 s35, {soff}, {add}\nbuffer_load_dwordx4 {v}, {S(SO)}, s35 offen {SC} lds",
                f"s_cmp_eq_u32 {sWI}, 3\ns_cbranch_scc1 {lab}\ns_add_u32 m0, {sBb}, {slot*7168 + 4096}\ns_add_u32 s35, {soff}, {add + 4096}\n"
                f"buffer_load_dwordx4 {v}, {S(SO)}, s35 offen {SC} lds\n{lab}:"]
    def flag_addr(v, prod, word):
        a(f"""
        s_andn2_b32 s35, s2, 0x18
        s_lshl_b32 s34, {prod}, 3
        s_or_b32 s35, s35, s34
        s_lshl_b32 s35, s35, 7
        s_add_u32 s35, s35, {FLAGS + 4*word}
        v_mov_b32 {v}, s35
        """)
    def set_flag(word, wave, va, vb):
        lab = a.label("nf")
        a(f"""
        s_cmp_lg_u32 s3, {wave}
        s_cbranch_scc1 {lab}
        s_lshl_b32 s35, s2, 7
        s_add_u32 s35, s35, {FLAGS + 4*word}
        v_mov_b32 {va}, s35
        s_mov_b64 exec, 1
        buffer_store_dword {VTAG}, {va}, {S(SWS)}, 0 offen {SC}
        s_mov_b64 exec, -1
        {lab}:
        """)

    ACC, FB, PK = 16, 128, 72
    other_srds()
    a(f"""
    v_lshrrev_b32 v1, 4, v0         ; g4
    v_and_b32 v5, 15, v0
    v_lshrrev_b32 v6, 1, v5
    v_xor_b32 v6, v6, v1
    v_lshlrev_b32 v5, 7, v5
    v_lshl_add_u32 v4, v6, 4, v5
    v_xor_b32 v5, 64, v4
    v_bfe_u32 v2, v0, 2, 2          ; r
    v_lshl_add_u32 v7, v1, 3, v2
    v_lshlrev_b32 v7, 8, v7
    v_and_b32 v3, 3, v0
    v_lshl_add_u32 v7, v3, 3, v7
    v_add_u32 v7, 14336, v7
    v_and_b32 v3, 1, v1
    v_lshl_or_b32 v3, v3, 2, v2
    s_lshl_b32 s35, {sWI}, 1
    v_xor_b32 v3, s35, v3
    v_lshl_add_u32 v6, v3, 5, v7
    v_xor_b32 v3, 1, v3
    v_lshl_add_u32 v7, v3, 5, v7
    v_lshrrev_b32 v2, 3, v0
    v_and_b32 v3, 7, v0
    v_lshrrev_b32 v8, 1, v2
    s_and_b32 s35, {sWI}, 1
    s_lshl_b32 s34, s35, 2
    v_add_u32 v8, s34, v8
    v_xor_b32 v3, v3, v8
    s_lshl_b32 s32, {sWI}, 3
    v_add_u32 v2, s32, v2
    v_lshlrev_b32 v2, 11, v2
    v_lshl_add_u32 v12, v3, 4, v2
    v_and_b32 v3, 15, v0
    v_or_b32 v8, s34, v1
    v_lshlrev_b32 v8, 1, v8
    v_xor_b32 v3, v3, v8
    s_lshl_b32 s35, s35, 1
    s_lshr_b32 s34, {sWI}, 1
    s_add_u32 s35, s35, s34
    s_lshl_b32 s34, s35, 2
    v_add_u32 v2, s34, v1
    v_lshlrev_b32 v2, 13, v2
    v_lshl_add_u32 v13, v3, 4, v2
    s_lshl_b32 {sA}, s35, 10
    s_add_u32 {sA}, {sA}, 14336
    s_lshl_b32 {sBb}, {sWI}, 10
    v_and_b32 v2, 15, v0
    v_lshlrev_b32 v2, 4, v2
    v_lshrrev_b32 v3, 5, v0
    v_lshl_add_u32 v2, v3, 8, v2
    v_bfe_u32 v3, v0, 4, 1
    v_lshl_add_u32 v2, v3, 3, v2
    v_add_u32 v14, {sBb}, v2
    s_mov_b32 s30, {2*0x80000 + 256}
    s_mov_b32 s31, 256
    s_mov_b32 s96, 0
    s_mov_b32 s97, 0
    """)
    cbits = struct.unpack("<I", struct.pack("<f", (128 ** -0.5) * math.log2(math.e)))[0]
    def qaddr(): return [f"v_add_u32 v{8+i}, s96, v{4+i}" for i in range(4)]
    def qreads(sub):
        fb = FB + 36 * sub
        w = [f"ds_read_b64_tr_b16 {vr(fb+4*t+2*j,2)}, v{10+t} offset:{sub*8192 + j*1024}" for t in range(2) for j in range(2)]
        x = [f"ds_read_b128 {vr(fb+8+4*qt,4)}, v{8+sub} offset:{qt*2048}" for qt in range(7)]
        return w[:2] + x[:1] + w[2:] + x[1:]
    def qmf(sub, zero=False):
        fb = FB + 36 * sub
        return [f"v_mfma_f32_16x16x32_bf16 {vr(ACC+4*(t*7+qt),4)}, {vr(fb+4*t,4)}, {vr(fb+8+4*qt,4)}, {'0' if zero else vr(ACC+4*(t*7+qt),4)}"
                for qt in range(7) for t in range(2)]
    next_slot = f"s_mov_b32 s97, s96\ns_add_u32 s96, s96, {QSL}\ns_cmp_eq_u32 s96, {3*QSL}\ns_cselect_b32 s96, 0, s96"
    def g_pieces(slot):
        lab = a.label("xs"); out = []
        for n in range(4):
            pre = f"s_cmp_ge_u32 {sWI}, 2\ns_cbranch_scc1 {lab}\n" if n == 3 else ""
            out.append(f"{pre}s_add_u32 s34, {slot}, {sBb}\ns_add_u32 m0, s34, {n*4096}\ns_add_u32 s35, s31, {n*65536}\n"
                       f"buffer_load_dwordx4 v12, {S(SX)}, s35 offen lds" + (f"\n{lab}:" if n == 3 else ""))
        for n in range(4):
            out.append(f"s_add_u32 s34, {slot}, {sA}\ns_add_u32 m0, s34, {n*4096}\ns_add_u32 s35, s30, {n*131072}\n"
                       f"buffer_load_dwordx4 v13, {S(SW)}, s35 offen lds")
        out.append(adv_stage())
        return out
    def q_body(dma):
        a(next_slot)
        for x in qaddr(): a(x)
        p = g_pieces("s97") if dma else []
        weave(a, qmf(1), qreads(0) + [""] + p[:4], per=[2]*6 + [0] + [1, 0]*3 + [1])
        a("s_waitcnt lgkmcnt(0)")
        weave(a, qmf(0), qreads(1) + [""] + p[4:], per=[2]*6 + [1, 1, 0, 1, 0, 1, 1, 0])
        a("s_waitcnt lgkmcnt(0)" + (" vmcnt(7)" if dma else ""))
    def pack(base):
        a(f"s_mov_b32 s34, {cbits:#x}\ns_mov_b32 s35, {cbits:#x}\ns_nop 4")
        for qt in range(7):
            for t in range(2):
                acc = ACC + 4 * (t * 7 + qt); pk = PK + 2 * (qt * 2 + t)
                a(f"v_pk_mul_f32 {vr(acc,2)}, {vr(acc,2)}, s[34:35]\nv_pk_mul_f32 {vr(acc+2,2)}, {vr(acc+2,2)}, s[34:35]")
                a(f"v_cvt_pk_bf16_f32 v{pk}, v{acc}, v{acc+1}\nv_cvt_pk_bf16_f32 v{pk+1}, v{acc+2}, v{acc+3}")
                a(f"ds_write_b64 v14, {vr(pk,2)} offset:{base + qt*4096 + t*512}")
    for x in qaddr(): a(x)
    a("s_barrier")
    stamp(a, cfg, 1)
    for r in qreads(0): a(r)
    a("s_waitcnt lgkmcnt(0)")
    weave(a, qmf(0, True), qreads(1), per=2)
    a(f"s_waitcnt lgkmcnt(0)\ns_barrier\ns_mov_b32 {sIT}, 1\nG_q0:")
    q_body(False)
    if cfg.stamps and cfg.sgrp == "q0":
        for i in range(1, 8):
            lab = a.label("st")
            a(f"s_cmp_lg_u32 {sIT}, {2*i}\ns_cbranch_scc1 {lab}")
            stamp(a, cfg, i, "q0")
            a(f"{lab}:")
    a(f"s_barrier\ns_add_u32 {sIT}, {sIT}, 1\ns_cmp_lt_u32 {sIT}, 16\ns_cbranch_scc1 G_q0")
    stamp(a, cfg, 2)
    a(next_slot)
    for x in qaddr(): a(x)
    weave(a, qmf(1), qreads(0), per=2)
    pack(0)
    a("s_waitcnt lgkmcnt(0)\ns_barrier")
    weave(a, qmf(0, True), qreads(1), per=2)
    a("s_waitcnt lgkmcnt(0)\ns_barrier")
    stamp(a, cfg, 3)
    for p in g_pieces("s97"): a(p)
    a(f"s_mov_b32 {sIT}, 17\nG_q1:")
    q_body(True)
    a(f"s_cmp_lt_u32 {sIT}, 31\ns_cbranch_scc1 G_q1b\ns_waitcnt vmcnt(0)\nG_q1b:")
    a(f"s_barrier\ns_add_u32 {sIT}, {sIT}, 1\ns_cmp_lt_u32 {sIT}, 32\ns_cbranch_scc1 G_q1")
    wo_src("v15")
    a(f"s_lshl_b32 {sA}, {sWI}, 10\ns_add_u32 {sA}, {sA}, {WR0}\ns_lshl_b32 s30, {sCQ}, 19")
    weave(a, qmf(1), wo_pieces("v15", 0, "s30", 0) + wo_pieces("v15", 1, "s30", 0x10000), per=1)
    a(f"v_add_u32 v14, {HO1}, v14")
    pack(0)
    a("s_waitcnt lgkmcnt(0)\ns_barrier")
    stamp(a, cfg, 4)
    a(f"""
    v_lshrrev_b32 v4, 4, v0         ; g4
    v_bfe_u32 v5, v0, 2, 2          ; r
    v_and_b32 v6, 3, v0             ; c
    v_and_b32 v7, 1, v4
    v_lshl_add_u32 v9, v7, 2, v5    ; k & 7
    v_lshrrev_b32 v7, 1, v4
    v_lshl_add_u32 v7, v7, 4, v9
    v_lshlrev_b32 v7, 9, v7
    v_lshrrev_b32 v8, 1, v6
    v_lshl_add_u32 v7, v8, 4, v7
    v_and_b32 v8, 1, v6
    v_lshl_add_u32 v7, v8, 3, v7
    v_add_u32 v7, {WR0}, v7
    v_xor_b32 v9, {sWI}, v9
    v_lshlrev_b32 v8, 4, v0
    v_mov_b32 v14, v8
    """)
    for tau in range(4):
        a(f"""
        s_add_u32 s35, {sHG}, {tau}
        s_and_b32 s34, s35, 1
        s_lshl_b32 s34, s34, 2
        s_bfe_u32 s35, s35, 0x10001
        s_lshl_b32 s35, s35, 8
        v_xor_b32 v1, s34, v9
        v_lshl_add_u32 v1, v1, 5, v7
        v_add_u32 v{10+tau}, s35, v1
        """)
    a(f"""
    v_add_u32 v9, {sBb}, v8
    s_mul_i32 s35, {sWI}, 7168
    v_add_u32 v7, s35, v8
    s_mul_i32 s31, {sCQ}, 57344
    s_add_u32 s33, s31, 4096
    """)
    srd(a, SDBG, "s26", "s27", 256)
    for i in range(112): a(f"v_mov_b32 v{ACC+i}, 0")
    a("s_barrier")
    for qt in range(7): a(f"ds_read_b128 {vr(FB+4*qt,4)}, v7 offset:{qt*1024}")
    for p in wo_pieces("v15", 2, "s30", 0x20000) + wo_pieces("v15", 3, "s30", 0x30000): a(p)
    for qt in range(7):
        a(f"s_waitcnt lgkmcnt({6-qt})\nbuffer_store_dwordx4 {vr(FB+4*qt,4)}, v7, {S(SO)}, {'s31' if qt < 4 else 's33'} offen offset:{(qt&3)*1024} {SC}")
    a("s_barrier\nv_mov_b32 v4, 0")
    poll(a, cfg, "G_pc", SDBG, "v4", VTAG, "eq", "0")
    a("s_barrier")
    set_flag(0, 0, "v4", "v5")
    a("s_barrier")
    def oreads(u, vo="v14"):
        fb = FB + 44 * (u & 1)
        r = [f"ds_read_b64_tr_b16 {vr(fb+4*t+2*j,2)}, v{10+t} offset:{(u%4)*16384 + j*4096}" for t in range(4) for j in range(2)]
        xs = [f"ds_read_b128 {vr(fb+16+4*qt,4)}, {vo} offset:{(u%4)*7168 + qt*1024}" for qt in range(7)]
        return r[:2] + xs[:1] + r[2:] + xs[1:]
    def omf(u):
        fb = FB + 44 * (u & 1)
        return [f"v_mfma_f32_16x16x32_bf16 {vr(ACC+4*(t*7+qt),4)}, {vr(fb+4*t,4)}, {vr(fb+16+4*qt,4)}, {vr(ACC+4*(t*7+qt),4)}" for qt in range(7) for t in range(4)]
    for r in oreads(0): a(r)
    a(f"s_mov_b32 {sIT}, 0\nG_o1:")
    a(f"""
    s_add_u32 s32, {sCQ}, {sIT}
    s_add_u32 s32, s32, 1
    s_and_b32 s32, s32, 3
    s_lshl_b32 s30, s32, 19
    s_cmp_eq_u32 {sIT}, 3
    s_cselect_b32 s35, 0x40000, 0
    s_cselect_b32 s97, {KV0}, 0
    s_add_u32 s30, s30, s35
    s_mul_i32 s33, s32, 57344
    """)
    for p in range(4):
        a("s_waitcnt lgkmcnt(0) vmcnt(8)\ns_barrier")
        lab = a.label("noo")
        a(f"s_cmp_eq_u32 {sIT}, {0 if p == 0 else 3}\ns_cbranch_scc1 {lab}")
        if p == 1:
            flag_addr("v4", "s32", 0)
            poll(a, cfg, "G_po", SWS, "v4", "v5", "ne", VTAG)
        for x in (o_pieces("v9", 3, "s31", 3*7168) if p == 0 else o_pieces("v9", p - 1, "s33", (p-1)*7168)): a(x)
        a(f"{lab}:")
        if p == 3: a("v_add_u32 v14, s97, v8\ns_mov_b32 s31, s33")
        weave(a, omf(p), oreads(p + 1) + [""] + wo_pieces("v15", p, "s30", p * 0x10000), per=[1]*16 + [1, 0, 0]*4)
    a(f"s_add_u32 {sIT}, {sIT}, 1\ns_cmp_lt_u32 {sIT}, 4\ns_cbranch_scc1 G_o1")
    stamp(a, cfg, 5)
    a("G_o2:")
    for p in range(4):
        a(f"s_waitcnt lgkmcnt(0) vmcnt({(8, 4, 0, 0)[p]})\ns_barrier")
        if p == 3: a("v_mov_b32 v14, v8")
        weave(a, omf(p), oreads(p + 1))
    a(f"s_add_u32 {sIT}, {sIT}, 1\ns_cmp_lt_u32 {sIT}, 8\ns_cbranch_scc1 G_o2")
    stamp(a, cfg, 6)
    a(f"""
    s_lshl_b32 s30, {sBR}, 3
    s_add_u32 s30, s30, {sB}
    s_lshl_b32 s30, s30, 2
    s_add_u32 s30, s30, {sCQ}
    s_mul_i32 s30, s30, {12*16384}
    s_lshl_b32 s35, {sWI}, 12
    s_add_u32 s30, s30, s35
    s_add_u32 s30, s30, {RED}
    v_lshlrev_b32 v15, 3, v0
    """)
    for tau in range(1, 4):
        a(f"""
        s_add_u32 s35, {sHG}, {tau}
        s_and_b32 s35, s35, 3
        s_mul_i32 s35, s35, {3*16384}
        s_add_u32 s35, s35, s30
        s_add_u32 s35, s35, {(tau-1)*16384}
        """)
        for pr in range(4):
            b = ACC + 4 * (tau * 7 + 2 * pr)
            for i in range(4 if pr < 3 else 2): a(f"v_cvt_pk_bf16_f32 v{b+i}, v{b+2*i}, v{b+2*i+1}")
            if pr < 3: a(f"buffer_store_dwordx4 {vr(b,4)}, v8, {S(SWS)}, s35 offen offset:{pr*1024} {SC}")
            else: a(f"buffer_store_dwordx2 {vr(b,2)}, v15, {S(SWS)}, s35 offen offset:3072 {SC}")
    a(f"""
    s_lshl_b32 s35, s2, 7
    s_lshl_b32 s34, {sWI}, 2
    s_add_u32 s34, s34, {FLAGS + 16}
    s_add_u32 s35, s35, s34
    v_mov_b32 v4, s35
    v_min_u32 v6, 2, v0
    v_sub_u32 v6, {sHG}, v6
    v_add_u32 v6, -1, v6
    v_and_b32 v6, 3, v6
    s_andn2_b32 s35, s2, 3
    v_or_b32 v6, s35, v6
    v_lshlrev_b32 v6, 7, v6
    v_add_u32 v6, s34, v6
    s_mul_i32 s35, {sB}, 458752
    s_lshl_b32 s34, {sBR}, 11
    s_add_u32 s35, s35, s34
    s_lshl_b32 s34, {sCQ}, 9
    s_add_u32 s35, s35, s34
    s_lshl_b32 s34, {sHG}, 7
    s_add_u32 s35, s35, s34
    s_sub_u32 s34, 3670016, s35
    """)
    srd_off(a, SOUT, "s24", "s25", "s35", "s34")
    a(f"""
    v_and_b32 v7, 15, v0
    v_lshlrev_b32 v7, 12, v7
    v_lshrrev_b32 v9, 4, v0
    v_lshl_add_u32 v7, v9, 3, v7
    s_lshl_b32 s35, {sWI}, 5
    v_add_u32 v7, s35, v7
    s_mul_i32 s35, {sHG}, {3*16384}
    s_add_u32 s30, s30, s35
    s_waitcnt vmcnt(0) lgkmcnt(0)
    s_mov_b64 exec, 1
    buffer_store_dword {VTAG}, v4, {S(SWS)}, 0 offen {SC}
    s_mov_b64 exec, -1
    """)
    poll(a, cfg, "G_pr", SWS, "v6", "v9", "ne", VTAG)
    a("s_add_u32 s33, s30, 16384\ns_add_u32 s34, s30, 32768")
    for pr in range(4):
        for s_, so in enumerate(("s30", "s33", "s34")):
            r = FB + 12 * pr + 4 * s_
            if pr < 3: a(f"buffer_load_dwordx4 {vr(r,4)}, v8, {S(SWS)}, {so} offen offset:{pr*1024} {SC}")
            else: a(f"buffer_load_dwordx2 {vr(r,2)}, v15, {S(SWS)}, {so} offen offset:3072 {SC}")
    a("s_mov_b32 s33, 0xffff0000")
    nst = 0
    for pr in range(4):
        a(f"s_waitcnt vmcnt({3*(3-pr) + nst})")
        for h in range(2 if pr < 3 else 1):
            qt = 2 * pr + h; b = ACC + 4 * qt
            for s_ in range(3):
                r = FB + 12 * pr + 4 * s_ + 2 * h
                for d in range(2):
                    a(f"v_lshlrev_b32 v{200+2*d}, 16, v{r+d}\nv_and_b32 v{201+2*d}, s33, v{r+d}")
                for i in range(4): a(f"v_add_f32 v{b+i}, v{b+i}, v{200+i}")
            a(f"v_cvt_pk_bf16_f32 v{b}, v{b}, v{b+1}\nv_cvt_pk_bf16_f32 v{b+1}, v{b+2}, v{b+3}")
            a(f"s_mov_b32 s35, {qt*65536}\nbuffer_store_dwordx2 {vr(b,2)}, v7, {S(SOUT)}, s35 offen")
            nst += 1
    if cfg.stamps: a("s_waitcnt vmcnt(0)")
    stamp(a, cfg, 7)
    stamp_store(a, cfg, 0, 0, "L_end")
    a("s_branch L_end")

    QF, OA, SS, NM, KF, VF, PP = 16, 48, 112, 144, 160, 192, 224
    L_, MX, T0 = 232, 233, 234
    a(f"""
    A_start:
    s_cmp_ge_u32 s3, 6
    s_cbranch_scc1 A_aux
    v_lshrrev_b32 v4, 4, v0
    v_and_b32 v5, 15, v0
    s_lshl_b32 s35, {sWI}, 2
    v_or_b32 v6, s35, v4
    v_lshlrev_b32 v6, 1, v6
    v_xor_b32 v5, v5, v6
    s_lshl_b32 s34, {sWI}, 3
    v_add_u32 v4, s34, v4
    v_lshlrev_b32 v4, 13, v4
    v_lshl_add_u32 v10, v5, 4, v4
    v_lshrrev_b32 v4, 3, v0
    v_and_b32 v5, 7, v0
    v_lshrrev_b32 v6, 1, v4
    v_add_u32 v6, s35, v6
    v_xor_b32 v5, v5, v6
    v_add_u32 v4, s34, v4
    v_lshlrev_b32 v4, 11, v4
    v_lshl_add_u32 v11, v5, 4, v4
    s_lshl_b32 {sBb}, {sWI}, 10
    s_lshl_b32 {sA}, {sWI}, 11
    s_add_u32 {sA}, {sA}, 14336
    s_mov_b32 s30, 0
    s_mov_b32 s31, 0
    s_mov_b32 s96, 0
    """)
    def a_stage():
        a(f"s_add_u32 s34, s96, {sBb}")
        for n in range(7):
            a(f"s_add_u32 m0, s34, {n*2048}\ns_add_u32 s35, s31, {n*32768}\nbuffer_load_dwordx4 v11, {S(SX)}, s35 offen lds")
        a(f"s_add_u32 s34, s96, {sA}")
        for n in (0, 1, 4, 5, 8, 9, 12, 13):
            a(f"s_add_u32 m0, s34, {n*1024}\ns_add_u32 s35, s30, {n*32768}\nbuffer_load_dwordx4 v10, {S(SW)}, s35 offen lds")
        a(adv_stage())
        a(f"s_add_u32 s96, s96, {QSL}\ns_cmp_eq_u32 s96, {3*QSL}\ns_cselect_b32 s96, 0, s96")
    a_stage(); a_stage()
    other_srds()
    a(f"s_mov_b32 {sIT}, 0\nA_dl:\ns_waitcnt vmcnt(15)\ns_barrier")
    a_stage()
    a(f"s_add_u32 {sIT}, {sIT}, 1\ns_cmp_lt_u32 {sIT}, 16\ns_cbranch_scc1 A_dl\ns_waitcnt vmcnt(15)\ns_branch A_common")
    a(f"""
    A_aux:
    s_cmp_eq_u32 s3, 7
    s_cbranch_scc1 A_kv
    """)
    other_srds()
    a(f"""
    s_cmp_lg_u32 s2, 0
    s_cbranch_scc1 A_notag
    s_mov_b32 s{SK}, s26
    s_and_b32 s{SK+1}, s27, 0xffff
    s_mov_b32 s{SK+2}, 256
    v_mov_b32 v4, {TAG}
    v_mov_b32 v7, 0
    s_mov_b32 s34, 1664525
    s_mov_b32 s35, 1013904223
    buffer_load_dword v5, v4, {S(SWS)}, 0 offen {SC}
    s_waitcnt vmcnt(0)
    v_mul_lo_u32 v5, v5, s34
    v_add_u32 v5, s35, v5
    v_mov_b32 v6, s35
    v_cmp_eq_u32 vcc, 0, v5
    s_nop 1
    v_cndmask_b32 v5, v5, v6, vcc
    s_mov_b64 exec, 1
    buffer_store_dword v5, v7, {S(SK)}, 0 offen {SC}
    buffer_store_dword v5, v4, {S(SWS)}, 0 offen {SC}
    s_mov_b64 exec, -1
    A_notag:
    v_lshrrev_b32 v4, 1, v0
    s_lshl_b32 s35, {sB}, 3
    v_add_u32 v4, s35, v4
    v_lshlrev_b32 v4, 13, v4
    v_and_b32 v5, 1, v0
    v_lshl_add_u32 v4, v5, 7, v4
    v_mov_b32 v6, 0x7fffffff
    v_cmp_gt_u32 vcc, 16, v0
    s_mul_i32 s35, {sCQ}, 28
    v_add_u32 v5, s35, v0
    v_cndmask_b32 v10, v6, v4, vcc
    v_lshlrev_b32 v5, 11, v5
    v_cmp_gt_u32 vcc, 28, v0
    s_mov_b32 s30, {int(cfg.t0) << 19}
    s_mov_b32 s31, {int(cfg.t0) << 7}
    v_cndmask_b32 v11, v6, v5, vcc  ; x lines
    """)
    def touch():
        a(f"buffer_load_dword v235, v11, {S(SX)}, s31 offen\nbuffer_load_dword v235, v10, {S(SW)}, s30 offen")
        a(adv_stage())
    a("s_barrier")
    for n in range(int(cfg.d1) - int(cfg.t0)): touch()
    a(f"s_mov_b32 {sIT}, 1\nA_tl:\ns_barrier")
    touch()
    a(f"""
    s_add_u32 {sIT}, {sIT}, 1
    s_cmp_lt_u32 {sIT}, 16
    s_cbranch_scc1 A_tl
    s_lshl_b32 s33, {sHG}, 2
    s_add_u32 s33, s33, {sCQ}
    """)
    other_srds()
    a("s_branch A_common\nA_kv:")
    other_srds()
    a(f"""
    v_lshrrev_b32 v4, 4, v0
    v_and_b32 v5, 15, v0
    v_lshlrev_b32 v6, 11, v4
    v_lshl_add_u32 v3, v5, 4, v6
    v_and_b32 v7, 1, v4
    v_xor_b32 v7, v7, v5
    v_lshl_add_u32 v2, v7, 4, v6
    s_mov_b32 {sIT}, 0
    s_mov_b32 s30, {sU}
    s_mov_b32 s96, {KV0}
    s_barrier
    A_kl:
    """)
    for half in range(2):
        a("s_barrier")
        for i in range(4 * half, 4 * half + 4):
            a(f"s_add_u32 m0, s96, {i*1056}\ns_add_u32 s35, s30, {i*256}\nbuffer_load_dwordx4 v2, {S(SK)}, s35 offen lds")
    a(f"s_cmp_eq_u32 {sIT}, 3\ns_cbranch_scc1 A_kd")
    for half in range(2):
        a("s_barrier")
        for i in range(4 * half, 4 * half + 4):
            a(f"s_add_u32 m0, s96, {KT + i*1088}\ns_add_u32 s35, s30, {i*256}\nbuffer_load_dwordx4 v3, {S(SV)}, s35 offen lds")
    a(f"s_add_u32 s96, s96, {KVS}\ns_add_u32 s30, s30, 8192\ns_and_b32 s30, s30, 0x1ffff\ns_add_u32 {sIT}, {sIT}, 1\ns_branch A_kl")
    a("A_kd:\ns_barrier\ns_waitcnt vmcnt(8)")
    a(f"""
    A_common:
    s_barrier
    v_lshrrev_b32 v4, 4, v0
    v_and_b32 v5, 15, v0
    v_lshlrev_b32 v6, 11, v4
    v_lshl_add_u32 v3, v5, 4, v6
    v_and_b32 v7, 1, v4
    v_xor_b32 v7, v7, v5
    v_lshl_add_u32 v2, v7, 4, v6
    v_bfe_u32 v7, v0, 4, 1
    s_lshl_b32 s35, {sWI}, 1
    v_add_u32 v7, s35, v7
    v_min_u32 v7, 6, v7
    v_lshlrev_b32 v7, 12, v7
    v_lshl_add_u32 v7, v5, 4, v7
    v_lshrrev_b32 v6, 5, v0         ; half
    v_lshl_add_u32 v9, v6, 8, v7
    v_and_b32 v4, 31, v0
    v_and_b32 v7, 7, v4
    v_mul_u32_u24 v7, 1056, v7
    v_lshrrev_b32 v8, 3, v4
    v_lshl_add_u32 v7, v8, 8, v7
    v_and_b32 v8, 1, v8
    v_xor_b32 v8, v8, v6
    v_lshl_add_u32 v10, v8, 4, v7
    v_bfe_u32 v7, v0, 2, 2
    v_lshl_add_u32 v7, v6, 2, v7
    v_mul_u32_u24 v7, 1088, v7
    v_bfe_u32 v8, v0, 4, 1
    v_lshl_add_u32 v7, v8, 5, v7
    v_and_b32 v8, 3, v0
    v_lshl_add_u32 v7, v8, 3, v7
    v_add_u32 v12, {KT}, v7
    v_bfe_u32 v7, v0, 4, 1
    v_lshlrev_b32 v7, 10, v7
    v_lshl_add_u32 v7, v5, 4, v7
    v_lshl_add_u32 v7, v6, 8, v7
    s_lshl_b32 s35, {sWI}, 11
    v_add_u32 v14, s35, v7
    s_mul_i32 {sA}, {sWI}, 1056
    s_mul_i32 {sBb}, {sWI}, 1088
    s_add_u32 {sBb}, {sBb}, {KT}
    s_lshl_b32 s35, {sWI}, 8
    s_add_u32 {sU}, {sU}, s35
    s_add_u32 s31, {sU}, {3*8192}
    s_and_b32 s31, s31, 0x1ffff
    s_add_u32 s30, {sU}, {4*8192}
    s_and_b32 s30, s30, 0x1ffff
    s_mov_b32 {sT}, {5*8192}
    s_mov_b32 s96, {KV0}
    s_mov_b32 s97, {KV0 + 3*KVS}
    s_mov_b32 s100, 0               ; head
    s_mov_b32 s101, 0x41000000
    s_cmp_eq_u32 {sWI}, 3
    s_cselect_b32 s32, 0xffff, -1
    s_mov_b32 s33, s32
    v_add_u32 v11, s96, v10
    s_mov_b64 s[{SX}:{SX+1}], s[{SW}:{SW+1}]
    s_mov_b32 s{SX+2}, s{SW+2}
    s_lshl_b32 s35, {sB}, 3
    s_lshl_b32 s34, {sWI}, 1
    s_add_u32 s35, s35, s34
    v_lshrrev_b32 v4, 1, v0
    v_add_u32 v4, s35, v4
    v_lshlrev_b32 v4, 13, v4
    v_and_b32 v5, 1, v0
    v_lshl_add_u32 v4, v5, 7, v4
    v_mov_b32 v6, 0x7fffffff
    v_cmp_gt_u32 vcc, 4, v0
    s_mov_b32 s4, {int(cfg.tq) * 0x80000 + 256}
    s_mov_b32 s5, {int(cfg.tw)}
    v_cndmask_b32 v15, v6, v4, vcc
    s_setprio {cfg.prio_a}
    s_barrier
    """)
    def kreads(): return [f"ds_read_b128 {vr(KF+4*s,4)}, v11 offset:{32*s}" for s in range(8)]
    def qk(sb, zero=False):
        return [f"s_waitcnt lgkmcnt(LG{s})\nv_mfma_f32_32x32x16_bf16 {vr(sb,16)}, {vr(KF+4*s,4)}, {vr(QF+4*s,4)}, {('0' if zero else vr(NM,16)) if s == 0 else vr(sb,16)}" for s in range(8)]
    def maxtree(sb):
        return ([f"v_max3_f32 v{MX}, v{sb}, v{sb+1}, v{sb+2}", f"v_max3_f32 v{T0}, v{sb+3}, v{sb+4}, v{sb+5}"]
                + [f"v_max3_f32 v{(MX, T0)[i&1]}, v{(MX, T0)[i&1]}, v{sb+6+2*i}, v{sb+7+2*i}" for i in range(5)]
                + [f"v_max_f32 v{MX}, v{MX}, v{T0}"])
    def first_tile():
        a("s_nop 7\ns_nop 3")
        for x in maxtree(SS): a(x)
        a(f"s_nop 0\nv_mov_b32 v{T0}, v{MX}\ns_nop 1\nv_permlane32_swap_b32 v{T0}, v{MX}\ns_nop 1\nv_max_f32 v{MX}, v{MX}, v{T0}\nv_mov_b32 v{L_}, 0")
        for i in range(16): a(f"v_sub_f32 v{SS+i}, v{SS+i}, v{MX}")
        for i in range(16): a(f"v_sub_f32 v{NM+i}, 0, v{MX}")
    def normalize():
        out = [f"v_mov_b32 v{T0}, v{L_}\ns_nop 1\nv_permlane32_swap_b32 v{T0}, v{L_}\ns_nop 1\nv_add_f32 v{L_}, v{L_}, v{T0}\nv_rcp_f32 v{L_}, v{L_}\ns_nop 0"]
        for t in range(4):
            for jj in range(2):
                b = OA + 16*t + 8*jj
                out += [f"v_mul_f32 v{b+i}, v{b+i}, v{L_}" for i in range(8)]
                out += [f"v_cvt_pk_bf16_f32 v{b+i}, v{b+2*i}, v{b+2*i+1}" for i in range(4)]
        return out
    def o_writes(base):
        a("s_mov_b64 exec, s[32:33]")
        for t in range(4):
            for jj in range(2): a(f"ds_write_b128 v14, {vr(OA+16*t+8*jj,4)} offset:{base + t*7168 + jj*512}")
        a("s_mov_b64 exec, -1")
    for s in range(8): a(f"ds_read_b128 {vr(QF+4*s,4)}, v9 offset:{s*512}")
    for x in kreads(): a(x)
    for s, m in enumerate(qk(SS, True)): a(m.replace(f"LG{s}", str(7 - s)))
    first_tile()
    a("s_cmp_ge_u32 s3, 6\ns_cbranch_scc1 A_head\ns_waitcnt vmcnt(0)\nA_head:")
    stubs = []
    def step(par, first=False, last=False):
        cur, nxt = SS + 16 * par, SS + 16 * (1 - par)
        a(f"""
        s_waitcnt vmcnt({10 if cfg.atouch else 8}) lgkmcnt(0)
        s_barrier
        s_add_u32 s98, s96, {KVS}
        s_cmp_eq_u32 s98, {KV0 + 4*KVS}
        s_cselect_b32 s98, {KV0}, s98
        v_add_u32 v11, s98, v10
        v_add_u32 v13, s96, v12
        """)
        vrd = [f"ds_read_b64_tr_b16 {vr(VF+4*(4*u+t)+2*j,2)}, v13 offset:{(2*u+j)*256 + 64*t}" for u in range(2) for t in range(4) for j in range(2)]
        ex = [f"v_exp_f32 v{cur+i}, v{cur+i}" for i in range(16)]
        cv = [f"v_cvt_pk_bf16_f32 v{PP+i}, v{cur+2*i}, v{cur+2*i+1}" for i in range(8)]
        ad = [f"v_add_f32 v{L_}, v{L_}, v{cur+i}" for i in range(16)]
        dma = []
        for n in range(2):
            dma.append(f"s_add_u32 s34, s96, {sA}\ns_add_u32 m0, s34, {n*4*1056}\ns_add_u32 s35, s30, {n*1024}\nbuffer_load_dwordx4 v2, {S(SK)}, s35 offen lds")
            dma.append(f"s_add_u32 s34, s97, {sBb}\ns_add_u32 m0, s34, {n*4*1088}\ns_add_u32 s35, s31, {n*1024}\nbuffer_load_dwordx4 v3, {S(SV)}, s35 offen lds")
        if cfg.atouch:
            lab = a.label("tw")
            dma[3] += (f"\nbuffer_load_dword v235, v15, {S(SX)}, s4 offen\ns_add_u32 s4, s4, 0x80000\ns_cmp_eq_u32 s100, 0\ns_cbranch_scc1 {lab}\n"
                       f"s_add_u32 s5, s5, 1\ns_lshr_b32 s4, s5, 2\ns_add_u32 s4, s4, {sCQ}\ns_and_b32 s4, s4, 3\ns_lshl_b32 s4, s4, 19\n"
                       f"s_and_b32 s35, s5, 3\ns_lshl_b32 s35, s35, 16\ns_add_u32 s4, s4, s35\ns_lshr_b32 s35, s5, 4\ns_lshl_b32 s35, s35, 18\ns_add_u32 s4, s4, s35\n{lab}:")
        pv = [f"v_mfma_f32_32x32x16_bf16 {vr(OA+16*t,16)}, {vr(VF+4*(4*u+t),4)}, {vr(PP+4*u,4)}, {'0' if first and u == 0 else vr(OA+16*t,16)}" for u in range(2) for t in range(4)]
        adv = (f"s_mov_b32 s97, s96\ns_mov_b32 s96, s98\ns_mov_b32 s31, s30\ns_add_u32 s30, {sT}, {sU}\ns_and_b32 s30, s30, 0x1ffff\n"
               f"s_and_b32 s35, {sT}, 0x60000\ns_add_u32 s30, s30, s35\ns_add_u32 {sT}, {sT}, 8192")
        if not last:
            for x in kreads(): a(x)
            for x in ex[:8]: a(x)
            fill = [[vrd[0], vrd[1], ex[8], cv[0]], [vrd[2], vrd[3], ex[9], cv[1]], [vrd[4], vrd[5], ex[10], cv[2]], [vrd[6], ex[11], ex[12], cv[3]],
                    [vrd[7], vrd[8], ex[13], ad[0]], [vrd[9], vrd[10], ex[14], ad[1]], [vrd[11], vrd[12], ex[15], ad[2]], [vrd[13], vrd[14], vrd[15], ad[3]]]
            nv = 0
            for s, m in enumerate(qk(nxt)):
                a(m.replace(f"LG{s}", str(7 - s + nv)))
                for f in fill[s]:
                    a(f); nv += f.startswith("ds_")
            mt = maxtree(nxt)
            fill = [[cv[4], cv[5], ad[4], ad[5]], [cv[6], cv[7], ad[6], dma[0]], [ad[7], ad[8], dma[1]], [ad[9], ad[10], mt[0], mt[1], dma[2]],
                    [ad[11], mt[2], mt[3], dma[3]], [ad[12], ad[13], mt[4], mt[5]], [ad[14], ad[15], mt[6], mt[7]], [adv]]
            for n, m in enumerate(pv):
                if n == 0: a("s_waitcnt lgkmcnt(8)")
                if n == 4: a("s_waitcnt lgkmcnt(0)")
                a(m)
                if n == 7:
                    stub, back = a.label("stub"), a.label("back")
                    stubs.append((stub, back, 1 - par))
                    a(f"v_cmp_lt_f32 vcc, s101, v{MX}")
                for f in fill[n]: a(f)
            a(f"s_cbranch_vccnz {stub}\n{back}:")
        else:
            for x in vrd[:8]: a(x)
            for x in ex[:8] + cv[:4]: a(x)
            for x in vrd[8:]: a(x)
            fill = [[ex[8], ex[9], ex[10]], [ex[11], ex[12], ex[13]], [ex[14], ex[15], cv[4], cv[5]], [cv[6], cv[7], ad[0], ad[1], ad[2]],
                    [dma[0]] + ad[3:6], [dma[1]] + ad[6:9], [dma[2]] + ad[9:12], [dma[3]] + ad[12:16] + [adv]]
            for n, m in enumerate(pv):
                if n == 0: a("s_waitcnt lgkmcnt(8)")
                if n == 4: a("s_waitcnt lgkmcnt(0)")
                a(m)
                for f in fill[n]: a(f)
    step(0, first=True)
    a(f"s_mov_b32 {sIT}, 0\nA_loop:")
    step(1); step(0)
    a(f"s_add_u32 {sIT}, {sIT}, 1\ns_cmp_lt_u32 {sIT}, 7\ns_cbranch_scc1 A_loop")
    step(1, last=True)
    a("s_cmp_lg_u32 s100, 0\ns_cbranch_scc1 A_fin")
    stamp(a, cfg, 4)
    a(f"s_barrier\nv_add_u32 v9, {HO1}, v9\ns_mov_b32 s100, 1")
    for s in range(8): a(f"ds_read_b128 {vr(QF+4*s,4)}, v9 offset:{s*512}")
    for x in kreads(): a(x)
    nz = normalize()
    for x in nz[:25]: a(x)
    weave(a, [m.replace(f"LG{s}", str(7 - s)) for s, m in enumerate(qk(SS, True))], nz[25:], per=9)
    o_writes(0)
    a(f"""
    s_mov_b64 s[{SX}:{SX+1}], s[{SWO}:{SWO+1}]
    s_mov_b32 s{SX+2}, s{SWO+2}
    s_lshl_b32 s35, {sB}, 2
    s_add_u32 s35, s35, {sWI}
    s_lshl_b32 s35, s35, 11
    v_lshlrev_b32 v4, 7, v0
    v_add_u32 v4, s35, v4
    v_mov_b32 v6, 0x7fffffff
    v_cmp_gt_u32 vcc, 4, v0
    s_mov_b32 s4, 0x40000000
    s_nop 0
    v_cndmask_b32 v15, v6, v4, vcc
    """)
    first_tile()
    a("s_branch A_head\nA_fin:")
    stamp(a, cfg, 5)
    a("s_waitcnt vmcnt(0)\ns_barrier\ns_setprio 0")
    nz = normalize()
    for x in nz: a(x)
    a(f"v_mov_b32 v9, v14\nv_add_u32 v14, {KV0}, v14")
    o_writes(0)
    a(f"s_mul_i32 s34, {sCQ}, 57344\ns_add_u32 s34, s34, 28672\ns_waitcnt lgkmcnt(0)\ns_barrier\ns_mov_b64 exec, s[32:33]")
    for t in range(4):
        if t: a("s_add_u32 s34, s34, 7168")
        for jj in range(2):
            a(f"buffer_store_dwordx4 {vr(OA+16*t+8*jj,4)}, v9, {S(SO)}, s34 offen offset:{jj*512} {SC}")
    a("s_mov_b64 exec, -1")
    wo_src("v15")
    a(f"""
    s_lshl_b32 {sBb}, {sWI}, 10
    s_add_u32 {sA}, {sBb}, {WR0}
    v_lshlrev_b32 v9, 4, v0
    v_add_u32 v9, {sBb}, v9
    v_mov_b32 v4, 0
    s_barrier
    """)
    srd(a, SDBG, "s26", "s27", 256)
    poll(a, cfg, "A_pc", SDBG, "v4", VTAG, "eq", "0")
    a("s_barrier")
    set_flag(1, 4, "v4", "v5")
    for u in range(16, 32):
        it, p = u >> 2, u & 3
        if u >= 19: a(f"s_waitcnt vmcnt({8 if u <= 28 else (5 if u == 29 else 0)})")
        if p == 0 and u < 28:
            a(f"s_add_u32 s32, {sCQ}, {it + 1}\ns_and_b32 s32, s32, 3\ns_lshl_b32 s30, s32, 19\ns_add_u32 s30, s30, 0x40000\n"
              f"s_mov_b32 s31, s33\ns_mul_i32 s33, s32, 57344\ns_add_u32 s33, s33, 28672")
        if u == 28: a("s_mov_b32 s31, s33")
        a("s_barrier")
        if 17 <= u <= 28:
            if p == 1:
                flag_addr("v4", "s32", 1)
                poll(a, cfg, f"A_po{u}", SWS, "v4", "v5", "ne", VTAG)
            for x in (o_pieces("v9", 3, "s31", 3*7168) if p == 0 else o_pieces("v9", p - 1, "s33", (p-1)*7168)): a(x)
        if u <= 27:
            for x in wo_pieces("v15", p, "s30", p * 0x10000): a(x)
    stamp(a, cfg, 6)
    stamp_store(a, cfg, 4, 256, "L_end")
    a("L_end:\ns_endpgm")
    for stub, back, par in stubs:
        a(f"{stub}:\ns_call_b64 s[98:99], A_rare{par}\ns_branch {back}")
    for par in range(2):
        sb = SS + 16 * par
        a(f"""
        A_rare{par}:
        v_mov_b32 v{T0}, v{MX}
        s_nop 1
        v_permlane32_swap_b32 v{T0}, v{MX}
        s_nop 1
        v_max3_f32 v{MX}, v{MX}, v{T0}, 0
        v_exp_f32 v{T0}, -v{MX}
        """)
        for i in range(16): a(f"v_sub_f32 v{sb+i}, v{sb+i}, v{MX}")
        for i in range(16): a(f"v_sub_f32 v{NM+i}, v{NM+i}, v{MX}")
        a(f"v_mul_f32 v{L_}, v{L_}, v{T0}")
        for i in range(64): a(f"v_mul_f32 v{OA+i}, v{OA+i}, v{T0}")
        a("s_setpc_b64 s[98:99]")
    t = a.text()
    ab = cfg.abl.split(",")
    def drop(pred): return "\n".join(l for l in t.split("\n") if not pred(l))
    if "nokv" in ab: t = drop(lambda l: "buffer_load_dwordx4 v2," in l or "buffer_load_dwordx4 v3," in l)
    if "nogdma" in ab: t = drop(lambda l: "buffer_load_dwordx4 v12," in l or "buffer_load_dwordx4 v13," in l)
    if "noadma" in ab: t = drop(lambda l: "buffer_load_dwordx4 v10," in l or "buffer_load_dwordx4 v11," in l)
    if "nowo" in ab: t = drop(lambda l: "buffer_load_dwordx4 v15," in l or "buffer_load_dwordx4 v9," in l)
    if "nogm" in ab: t = drop(lambda l: "v_mfma_f32_16x16" in l)
    if "noam" in ab: t = drop(lambda l: "v_mfma_f32_32x32" in l)
    if "pair16" in ab:
        t = t.replace("s_lshl_b32 s35, s33, 9\n    s_sub_u32 s34, 0x800000, s35", "s_lshl_b32 s35, s33, 8\n    s_sub_u32 s34, 0x800000, s35")
        t = t.replace("s_cselect_b32 s30, 256, s30", "s_cselect_b32 s30, 4096, s30").replace("s_mov_b32 s30, 1048832", "s_mov_b32 s30, 1052672")
    if "wrap" in ab:
        t = t.replace("s_add_u32 s30, s30, 0x80000\n    s_add_u32 s31, s31, 128", "s_add_u32 s30, s30, 0x80000\n    s_and_b32 s30, s30, 0x1fffff\n    s_add_u32 s31, s31, 128\n    s_and_b32 s31, s31, 511")
    if "notouch" in ab: t = drop(lambda l: "buffer_load_dword v235" in l)
    return t

def build(cfg):
    K = NAME + "_kernel"
    body = kernel_head(K) + kernel(cfg) + kernel_desc(K, 240, 240)
    tgt = '.amdgcn_target "amdgcn-amd-amdhsa--gfx950"\n'
    if cfg.echo:
        from gen2 import echo_kernel
        hdr = f"; @launch kernel={K} grid=(256,1,1) block=(512,1,1) lds=163840\n; @launch kernel=echo_kernel grid=(1,1,1) block=(64,1,1) lds=0\n"
        return hdr + tgt + kernel_head("echo_kernel") + echo_kernel(cfg) + kernel_desc("echo_kernel", 8, 8) + body
    return "; @launch grid=(256,1,1) block=(512,1,1) lds=163840\n" + tgt + body

if __name__ == "__main__":
    cfg = Cfg()
    for kv in sys.argv[2:]:
        k, v = kv.split("=")
        setattr(cfg, k, {"True": True, "False": False}.get(v, v))
    open(sys.argv[1], "w").write(build(cfg))
```

```python
import sys, math, struct
from asmlib import *
from gen3 import S, stamp, stamp_store, srd_off, weave, poll, SC
from gen3 import sBR, sHG, sCQ, sB, sWI, sIT, sA, sBb, sT, sU, SX, SW, SK, SV, SO, SWO, SWS, SOUT, SDBG, RED, FLAGS, TAG, VTAG

class Cfg:
    stamps = False
    sgrp = "main"
    qrot = True
    kv0 = 6
    tsched = "13,14,15,1,2,3,4"
    opoll = 5
    kvg = 0
    qtouch = 0
    krot = True
    echo = ""
    abl = ""
    spin = 400000

WQ0 = 28672
KT, HSTEP, SLOTB = 8448, 17152, 34304
SA_, SB_, SC_, SD_ = 94208, 128512, 0, 34304
HO = 36864
WO0 = 94208
ACC, FB = 16, 128

def kernel(cfg):
    a = A()
    a("s_cmp_ge_u32 s2, 256\ns_cbranch_scc1 L_end")
    stamp(a, cfg, 0)
    a(f"""
    s_load_dwordx16 s[4:19], s[0:1], 0
    s_load_dwordx8 s[20:27], s[0:1], 64
    s_load_dwordx2 s[28:29], s[0:1], 96
    v_lshrrev_b32 v1, 6, v0
    v_and_b32 v0, 63, v0
    v_readfirstlane_b32 s3, v1
    v_lshrrev_b32 v4, 4, v0
    v_and_b32 v5, 15, v0
    v_lshlrev_b32 v6, 11, v4
    v_lshl_add_u32 v3, v5, 4, v6
    v_and_b32 v7, 1, v4
    v_xor_b32 v7, v7, v5
    v_lshl_add_u32 v2, v7, 4, v6
    s_bitcmp0_b32 s2, 2
    s_waitcnt lgkmcnt(0)
    s_cselect_b64 s[4:5], s[4:5], s[14:15]
    s_cselect_b64 s[6:7], s[6:7], s[16:17]
    s_cselect_b64 s[8:9], s[8:9], s[18:19]
    s_cselect_b64 s[10:11], s[10:11], s[20:21]
    s_cselect_b64 s[12:13], s[12:13], s[22:23]
    s_bfe_u32 {sBR}, s2, 0x10002
    s_and_b32 {sHG}, s2, 3
    s_bfe_u32 {sCQ}, s2, 0x20003
    s_lshr_b32 {sB}, s2, 5
    s_and_b32 {sWI}, s3, 3
    s_mul_i32 s35, {sB}, 229376
    """)
    srd_off(a, SX, "s4", "s5", "s35", 229376)
    a(f"s_lshl_b32 s33, {sHG}, 2\ns_add_u32 s33, s33, {sCQ}\ns_lshl_b32 s35, s33, 9\ns_sub_u32 s34, 0x800000, s35")
    srd_off(a, SW, "s10", "s11", "s35", "s34")
    a("s_cmp_ge_u32 s3, 4\ns_cbranch_scc1 L_qload")

    def other_srds():
        a(f"s_lshl_b32 s35, {sB}, 22\ns_lshl_b32 s34, s33, 18\ns_add_u32 s35, s35, s34")
        srd_off(a, SK, "s6", "s7", "s35", 262144)
        srd_off(a, SV, "s8", "s9", "s35", 262144)
        a(f"s_lshl_b32 s35, {sBR}, 3\ns_add_u32 s35, s35, {sB}\ns_lshl_b32 s35, s35, 2\ns_add_u32 s35, s35, {sHG}\ns_mul_i32 s35, s35, 229376")
        srd_off(a, SO, "s28", "s29", "s35", 229376)
        a(f"s_lshl_b32 s35, {sHG}, 21\ns_lshl_b32 s34, {sCQ}, 9\ns_add_u32 s35, s35, s34\ns_sub_u32 s34, 0x200000, s34")
        srd_off(a, SWO, "s12", "s13", "s35", "s34")
        srd(a, SWS, "s28", "s29", 0x10000000)
        if cfg.krot: a("s_lshr_b32 s101, s2, 3\ns_lshr_b32 s35, s2, 7\ns_add_u32 s101, s101, s35\ns_lshl_b32 s35, s2, 1\ns_add_u32 s101, s101, s35\ns_and_b32 s101, s101, 15\ns_lshl_b32 s101, s101, 13")
        else: a("s_mov_b32 s101, 0")
    def gmf(u, zero=False):
        fb = FB + 44 * (u & 1)
        return [f"v_mfma_f32_16x16x32_bf16 {vr(ACC+4*(t*7+qt),4)}, {vr(fb+4*t,4)}, {vr(fb+16+4*qt,4)}, {'0' if zero else vr(ACC+4*(t*7+qt),4)}" for qt in range(7) for t in range(4)]
    def gloop(name, period, iters, reads, pre, extra=None):
        a("s_waitcnt lgkmcnt(0)\ns_barrier")
        weave(a, gmf(0, True), reads(1))
        a(f"s_mov_b32 {sIT}, 0\ns_branch {name}_mid\n{name}:")
        for u in range(period):
            a(f"s_waitcnt lgkmcnt(0){pre.get(u, '')}\ns_barrier")
            weave(a, gmf(u), reads(u + 1) + (extra(u) if extra else []))
            if u == 0: a(f"{name}_mid:")
        a(f"s_add_u32 {sIT}, {sIT}, 1\ns_cmp_lt_u32 {sIT}, {iters}\ns_cbranch_scc1 {name}")

    other_srds()
    a(f"""
    s_cmp_lg_u32 s2, 0
    s_cbranch_scc1 L_notag
    s_cmp_lg_u32 s3, 0
    s_cbranch_scc1 L_notag
    s_mov_b32 s{SX}, s26
    s_and_b32 s{SX+1}, s27, 0xffff
    s_mov_b32 s{SX+2}, 256
    v_mov_b32 v4, {TAG}
    v_mov_b32 v7, 0
    s_mov_b32 s34, 1664525
    s_mov_b32 s35, 1013904223
    buffer_load_dword v5, v4, {S(SWS)}, 0 offen {SC}
    s_waitcnt vmcnt(0)
    v_mul_lo_u32 v5, v5, s34
    v_add_u32 v5, s35, v5
    v_mov_b32 v6, s35
    v_cmp_eq_u32 vcc, 0, v5
    s_nop 1
    v_cndmask_b32 v5, v5, v6, vcc
    s_mov_b64 exec, 1
    buffer_store_dword v5, v7, {S(SX)}, 0 offen {SC}
    buffer_store_dword v5, v4, {S(SWS)}, 0 offen {SC}
    s_mov_b64 exec, -1
    L_notag:
    v_lshrrev_b32 v4, 4, v0         ; g4
    v_bfe_u32 v5, v0, 2, 2          ; r
    v_and_b32 v6, 3, v0             ; c
    v_lshl_add_u32 v7, v4, 3, v5
    v_lshlrev_b32 v7, 9, v7
    v_lshrrev_b32 v9, 1, v6
    v_lshl_add_u32 v7, v9, 4, v7
    v_and_b32 v9, 1, v6
    v_lshl_add_u32 v7, v9, 3, v7
    s_lshr_b32 s35, {sWI}, 1
    s_lshl_b32 s35, s35, 8
    s_add_u32 s35, s35, {WQ0}
    v_add_u32 v7, s35, v7
    v_and_b32 v9, 1, v4
    v_lshl_or_b32 v9, v9, 2, v5
    s_and_b32 s35, {sWI}, 1
    s_lshl_b32 s35, s35, 2
    v_xor_b32 v9, s35, v9
    """)
    for t in range(4): a(f"v_xor_b32 v1, {t}, v9\nv_lshl_add_u32 v{10+t}, v1, 5, v7")
    cbits = struct.unpack("<I", struct.pack("<f", (128 ** -0.5) * math.log2(math.e)))[0]
    a(f"""
    v_and_b32 v5, 15, v0
    v_lshrrev_b32 v6, 1, v5
    v_xor_b32 v6, v6, v4
    v_lshlrev_b32 v7, 7, v5
    v_lshl_add_u32 v14, v6, 4, v7
    v_xor_b32 v15, 64, v14
    v_lshlrev_b32 v5, 4, v5
    v_lshrrev_b32 v6, 5, v0
    v_lshl_add_u32 v5, v6, 8, v5
    v_bfe_u32 v6, v0, 4, 1
    v_lshl_add_u32 v5, v6, 3, v5
    s_lshr_b32 s34, {sWI}, 1
    s_mul_i32 s34, s34, 28672
    s_and_b32 s35, {sWI}, 1
    s_lshl_b32 s35, s35, 11
    s_add_u32 s34, s34, s35
    s_add_u32 s34, s34, {HO}
    v_add_u32 v8, s34, v5
    s_mov_b32 s30, {cbits:#x}
    s_mov_b32 s31, {cbits:#x}
    s_barrier
    """)
    def qreads(u):
        fb = FB + 44 * (u & 1)
        r = [f"ds_read_b64_tr_b16 {vr(fb+4*t+2*j,2)}, v{10+t} offset:{(u%4)*16384 + j*2048}" for t in range(4) for j in range(2)]
        xs = [f"ds_read_b128 {vr(fb+16+4*qt,4)}, v{14+(u&1)} offset:{((u>>1)&1)*14336 + qt*2048}" for qt in range(7)]
        return r[:2] + xs[:1] + r[2:] + xs[1:]
    stamp(a, cfg, 1)
    for r in qreads(0): a(r)
    kvg = int(cfg.kvg)
    def gkv(u):
        lab = a.label("gk"); out = []
        if u == 0:
            out.append(f"""s_sub_u32 s98, {sIT}, {kvg}
            s_and_b32 s99, s98, 1
            s_cselect_b64 s[{SX}:{SX+1}], s[{SV}:{SV+1}], s[{SK}:{SK+1}]
            s_cselect_b32 s97, 32, 0
            s_cselect_b32 s96, {KT}, 0
            s_cselect_b64 vcc, -1, 0
            s_add_u32 s97, s97, 1056
            s_add_u32 s96, s96, {SA_}""")
            out.append(f"""s_lshr_b32 s99, s98, 1
            s_mul_i32 s35, s99, {SLOTB}
            s_add_u32 s96, s96, s35
            s_mul_i32 s35, s97, {sWI}
            s_add_u32 s96, s96, s35
            v_cndmask_b32 v9, v2, v3, vcc""")
            out.append(f"""s_lshl_b32 s99, s99, 13
            s_add_u32 s99, s99, s101
            s_and_b32 s99, s99, 0x1ffff
            s_lshl_b32 s35, {sWI}, 8
            s_add_u32 s99, s99, s35
            s_lshl_b32 s97, s97, 2""")
        out.append(f"""s_cmp_gt_u32 s98, 3
        s_cbranch_scc1 {lab}
        s_add_u32 s34, s96, {'s97' if u & 1 else 0}
        s_add_u32 m0, s34, {(u >> 1) * HSTEP}
        s_add_u32 s35, s99, {(u >> 1) * 131072 + (u & 1) * 1024}
        buffer_load_dwordx4 v9, {S(SX)}, s35 offen lds
        {lab}:""")
        return [""] * 3 + out
    if kvg: a(f"s_mov_b32 s{SX+2}, 262144\ns_mov_b32 s98, 4")
    gloop("L_q", 4, 8, qreads, {}, gkv if kvg else None)
    stamp(a, cfg, 2)
    a("s_waitcnt lgkmcnt(0)\ns_barrier")
    for qt in range(7):
        for t in range(4):
            acc = ACC + 4 * (t * 7 + qt)
            a(f"v_pk_mul_f32 {vr(acc,2)}, {vr(acc,2)}, s[30:31]\nv_pk_mul_f32 {vr(acc+2,2)}, {vr(acc+2,2)}, s[30:31]")
            a(f"v_cvt_pk_bf16_f32 v{acc}, v{acc}, v{acc+1}\nv_cvt_pk_bf16_f32 v{acc+1}, v{acc+2}, v{acc+3}")
            a(f"ds_write_b64 v8, {vr(acc,2)} offset:{qt*4096 + t*512}")
    a("s_branch L_join")
    a(f"""
    L_qload:
    v_lshrrev_b32 v4, 5, v0
    v_and_b32 v5, 31, v0
    s_and_b32 s35, {sWI}, 1
    s_lshr_b32 s34, {sWI}, 1
    s_lshl_b32 {sA}, s35, 1
    s_lshl_b32 {sBb}, s34, 2
    s_add_u32 {sA}, {sA}, {sBb}
    v_add_u32 v6, {sA}, v4
    v_lshlrev_b32 v6, 1, v6
    v_xor_b32 v5, v5, v6
    s_lshl_b32 {sBb}, s34, 3
    s_lshl_b32 {sA}, s35, 1
    s_add_u32 {sA}, {sA}, {sBb}
    v_add_u32 v4, {sA}, v4
    v_lshlrev_b32 v4, 13, v4
    v_lshl_add_u32 v10, v5, 4, v4
    s_lshl_b32 {sA}, {sA}, 9
    s_add_u32 {sA}, {sA}, {WQ0}
    v_lshrrev_b32 v4, 3, v0
    v_and_b32 v5, 7, v0
    v_lshrrev_b32 v6, 1, v4
    s_lshl_b32 {sBb}, s35, 2
    v_add_u32 v6, {sBb}, v6
    v_xor_b32 v5, v5, v6
    s_lshl_b32 {sBb}, {sWI}, 3
    v_add_u32 v4, {sBb}, v4
    v_lshlrev_b32 v4, 11, v4
    v_lshl_add_u32 v11, v5, 4, v4
    s_lshl_b32 {sBb}, {sWI}, 10
    """)
    if cfg.qrot: a(f"s_xor_b32 s35, {sB}, {sCQ}\ns_and_b32 s35, s35, 1\ns_lshl_b32 s30, s35, 22\ns_lshl_b32 s31, s35, 10")
    else: a("s_mov_b32 s30, 0\ns_mov_b32 s31, 0")
    qt_ = int(cfg.qtouch)
    if qt_:
        a(f"""
        s_lshl_b32 s35, {sB}, 3
        s_lshl_b32 s34, {sWI}, 1
        s_add_u32 s35, s35, s34
        v_lshrrev_b32 v4, 2, v0
        v_add_u32 v4, s35, v4
        v_lshlrev_b32 v4, 13, v4
        v_and_b32 v5, 3, v0
        v_lshl_add_u32 v4, v5, 7, v4
        v_mov_b32 v6, 0x7fffffff
        v_cmp_gt_u32 vcc, 8, v0
        s_mul_i32 s35, {sCQ}, 28
        s_mul_i32 s34, {sWI}, 7
        v_cndmask_b32 v12, v6, v4, vcc
        s_add_u32 s35, s35, s34
        v_add_u32 v5, s35, v0
        v_lshlrev_b32 v5, 11, v5
        v_cmp_gt_u32 vcc, 7, v0
        s_mov_b32 s98, {2 << 19}
        s_mov_b32 s99, {2 << 7}
        v_cndmask_b32 v13, v6, v5, vcc
        """)
    def qtouch():
        a(f"buffer_load_dword v235, v13, {S(SX)}, s99 offen\nbuffer_load_dword v235, v12, {S(SW)}, s98 offen")
        a("s_add_u32 s98, s98, 0x80000\ns_add_u32 s99, s99, 128\ns_cmp_ge_u32 s99, 2048\ns_cselect_b32 s99, 0x40000000, s99")
    def issue_wq(slot):
        for pc in (0, 2, 8, 10):
            a(f"s_add_u32 m0, {sA}, {slot*16384 + pc*1024}\ns_add_u32 s35, s30, {pc*16384}")
            a(f"buffer_load_dwordx4 v10, {S(SW)}, s35 offen lds")
        a("s_add_u32 s30, s30, 0x40000\ns_and_b32 s30, s30, 0x7fffff")
    def issue_x(slot):
        lab = a.label("xs")
        for n in range(4):
            if n == 3: a(f"s_cmp_ge_u32 {sWI}, 2\ns_cbranch_scc1 {lab}")
            a(f"s_add_u32 m0, {sBb}, {slot*14336 + n*4096}\ns_add_u32 s35, s31, {n*65536}")
            a(f"buffer_load_dwordx4 v11, {S(SX)}, s35 offen lds")
        a(f"{lab}:\ns_add_u32 s31, s31, 128\ns_and_b32 s31, s31, 2047")
    def kv_piece(tile, hd, n, isv, slot):
        a(f"s_add_u32 s35, s101, {tile*8192}\ns_and_b32 s35, s35, 0x1ffff\ns_add_u32 s35, s35, s32\ns_add_u32 s35, s35, {hd*131072 + n*1024}")
        a(f"s_add_u32 m0, {'s97' if isv else 's96'}, {slot + hd*HSTEP + n*4*(1088 if isv else 1056)}\ns_nop 0")
        a(f"buffer_load_dwordx4 {'v3' if isv else 'v2'}, {S(SV if isv else SK)}, s35 offen lds")
    issue_x(0); issue_wq(0); issue_wq(1)
    other_srds()
    a(f"s_mul_i32 s96, {sWI}, 1056\ns_mul_i32 s97, {sWI}, 1088\ns_add_u32 s97, s97, {KT}\ns_lshl_b32 s32, {sWI}, 8")
    a("s_waitcnt vmcnt(4)\ns_barrier")
    issue_x(1); issue_wq(2)
    a("s_waitcnt vmcnt(7)\ns_barrier")
    issue_wq(3); issue_wq(0)
    for _ in range(qt_ - 1): qtouch()
    kv0 = int(cfg.kv0)
    kvl = [] if kvg else [(tile, hd, n, isv) for tile in range(2) for isv in range(2) for hd in range(2) for n in range(2)]
    a(f"s_mov_b32 {sIT}, 0\ns_branch L_qlmid\nL_qlloop:")
    for u in range(4):
        a(f"s_waitcnt vmcnt({8 if u & 1 else 11})\ns_barrier")
        if u & 1: issue_x((u >> 1) & 1)
        issue_wq(u)
        if qt_ and u % 2 == 0: qtouch()
        if u == 0: a("L_qlmid:")
    a(f"s_add_u32 {sIT}, {sIT}, 1\ns_cmp_lt_u32 {sIT}, {kv0}\ns_cbranch_scc1 L_qlloop")
    q = []
    for u in range(4 * kv0 - 4, 4 * kv0):
        if u & 1: q.append(("x", (u >> 1) + 2, 3))
        q.append(("w", u + 4, 4))
    per = -(-16 // max(32 - 4 * kv0 - 2, 4))
    for u in range(4 * kv0, 32):
        need = [i for i, e in enumerate(q) if (e[0] == "w" and e[1] <= u + 1) or (e[0] == "x" and e[1] <= (u + 1) >> 1)]
        left = sum(e[2] for e in q[max(need) + 1:]) if need else 63
        a(f"s_waitcnt vmcnt({min(left, 63)})\ns_barrier")
        if (u & 1) and (u >> 1) + 2 < 16: issue_x((u >> 1) & 1); q.append(("x", (u >> 1) + 2, 3))
        if u + 4 < 32: issue_wq(u % 4); q.append(("w", u + 4, 4))
        if qt_ and u % 2 == 0 and (u >> 1) + qt_ < 16: qtouch(); q.append(("k", 0, 2))
        for _ in range(per):
            if kvl:
                tile, hd, n, isv = kvl.pop(0)
                kv_piece(tile, hd, n, isv, (SA_, SB_)[tile]); q.append(("k", 0, 1))
    a("s_barrier")
    for isv in range(2):
        for hd in range(2):
            for n in range(2): kv_piece(2, hd, n, isv, SC_)
    if not kvg: a("s_waitcnt vmcnt(20)")

    QF, OA, SS, NM, KF, VF, PP = 16, 48, 112, 144, 160, 192, 224
    L_, MX, T0 = 232, 233, 234
    a(f"""
    L_join:
    s_lshr_b32 s34, s3, 2
    s_lshl_b32 s35, s34, 17
    s_add_u32 s{SK}, s{SK}, s35
    s_addc_u32 s{SK+1}, s{SK+1}, 0
    s_mov_b32 s{SK+2}, 131072
    s_add_u32 s{SV}, s{SV}, s35
    s_addc_u32 s{SV+1}, s{SV+1}, 0
    s_mov_b32 s{SV+2}, 131072
    s_mul_i32 s30, s34, {HSTEP}
    s_mul_i32 {sA}, {sWI}, 1056
    s_add_u32 {sA}, {sA}, s30
    s_mul_i32 {sBb}, {sWI}, 1088
    s_add_u32 {sBb}, {sBb}, s30
    s_add_u32 {sBb}, {sBb}, {KT}
    v_and_b32 v5, 15, v0
    v_bfe_u32 v7, v0, 4, 1
    s_lshl_b32 s35, {sWI}, 1
    v_add_u32 v7, s35, v7
    v_min_u32 v7, 6, v7
    v_lshlrev_b32 v7, 12, v7
    v_lshl_add_u32 v7, v5, 4, v7
    v_lshrrev_b32 v6, 5, v0         ; half
    v_lshl_add_u32 v7, v6, 8, v7
    s_mul_i32 s35, s34, 28672
    s_add_u32 {sT}, s35, {HO}
    v_add_u32 v9, {sT}, v7
    v_bfe_u32 v7, v0, 4, 1
    v_lshlrev_b32 v7, 10, v7
    v_lshl_add_u32 v7, v5, 4, v7
    v_lshl_add_u32 v7, v6, 8, v7
    s_lshl_b32 {sT}, {sWI}, 11
    s_add_u32 s35, s35, {sT}
    v_add_u32 v14, s35, v7
    v_and_b32 v4, 31, v0
    v_and_b32 v7, 7, v4
    v_mul_u32_u24 v7, 1056, v7
    v_lshrrev_b32 v1, 3, v4
    v_lshl_add_u32 v7, v1, 8, v7
    v_and_b32 v1, 1, v1
    v_xor_b32 v1, v1, v6
    v_lshl_add_u32 v7, v1, 4, v7
    v_add_u32 v10, s30, v7
    v_bfe_u32 v7, v0, 2, 2
    v_lshl_add_u32 v7, v6, 2, v7
    v_mul_u32_u24 v7, 1088, v7
    v_bfe_u32 v1, v0, 4, 1
    v_lshl_add_u32 v7, v1, 5, v7
    v_and_b32 v1, 3, v0
    v_lshl_add_u32 v7, v1, 3, v7
    s_add_u32 s35, s30, {KT}
    v_add_u32 v12, s35, v7
    v_add_u32 v11, {SA_}, v10
    s_lshl_b32 s35, {sWI}, 8
    s_add_u32 s101, s101, s35
    s_add_u32 s31, s101, {3*8192}
    s_and_b32 s31, s31, 0x1ffff
    s_mov_b32 s96, {SA_}
    s_mov_b32 s97, {SD_}
    s_mov_b32 s100, 0x41000000
    s_cmp_eq_u32 {sWI}, 3
    s_cselect_b32 s32, 0xffff, -1
    s_mov_b32 s33, s32
    s_waitcnt lgkmcnt(0){" vmcnt(12)" if kvg else ""}
    s_barrier
    """)
    def kreads(): return [f"ds_read_b128 {vr(KF+4*s,4)}, v11 offset:{32*s}" for s in range(8)]
    def qk(sb, zero=False):
        return [f"s_waitcnt lgkmcnt(LG{s})\nv_mfma_f32_32x32x16_bf16 {vr(sb,16)}, {vr(KF+4*s,4)}, {vr(QF+4*s,4)}, {('0' if zero else vr(NM,16)) if s == 0 else vr(sb,16)}" for s in range(8)]
    def maxtree(sb):
        return ([f"v_max3_f32 v{MX}, v{sb}, v{sb+1}, v{sb+2}", f"v_max3_f32 v{T0}, v{sb+3}, v{sb+4}, v{sb+5}"]
                + [f"v_max3_f32 v{(MX, T0)[i&1]}, v{(MX, T0)[i&1]}, v{sb+6+2*i}, v{sb+7+2*i}" for i in range(5)]
                + [f"v_max_f32 v{MX}, v{MX}, v{T0}"])
    for s in range(8): a(f"ds_read_b128 {vr(QF+4*s,4)}, v9 offset:{s*512}")
    for x in kreads(): a(x)
    a(f"""
    v_lshrrev_b32 v4, 5, v0
    s_lshl_b32 s35, {sWI}, 1
    v_add_u32 v4, s35, v4
    v_and_b32 v5, 31, v0
    v_lshlrev_b32 v6, 1, v4
    v_xor_b32 v5, v5, v6
    v_lshlrev_b32 v4, 11, v4
    v_lshl_add_u32 v15, v5, 4, v4
    v_lshrrev_b32 v4, 4, v0
    v_lshlrev_b32 v4, 5, v4
    v_bfe_u32 v5, v0, 2, 2
    v_add_u32 v4, v4, v5
    s_lshl_b32 s35, {sB}, 2
    v_add_u32 v4, s35, v4
    v_lshlrev_b32 v4, 11, v4
    v_and_b32 v5, 3, v0
    v_lshl_add_u32 v8, v5, 7, v4
    s_waitcnt lgkmcnt(8)
    s_barrier
    """)
    stamp(a, cfg, 3)
    def kpiece(n, slot, src): return f"s_add_u32 s34, {slot}, {sA}\ns_add_u32 m0, s34, {n*4*1056}\ns_add_u32 s35, {src}, {n*1024}\nbuffer_load_dwordx4 v2, {S(SK)}, s35 offen lds"
    def vpiece(n, slot, src): return f"s_add_u32 s34, {slot}, {sBb}\ns_add_u32 m0, s34, {n*4*1088}\ns_add_u32 s35, {src}, {n*1024}\nbuffer_load_dwordx4 v3, {S(SV)}, s35 offen lds"
    weave(a, [m.replace(f"LG{s}", str(7 - s)) for s, m in enumerate(qk(SS, True))], [kpiece(0, "s97", "s31"), kpiece(1, "s97", "s31")])
    a("s_nop 7\ns_nop 3")
    for x in maxtree(SS): a(x)
    a(f"s_nop 0\nv_mov_b32 v{T0}, v{MX}\ns_nop 1\nv_permlane32_swap_b32 v{T0}, v{MX}\ns_nop 1\nv_max_f32 v{MX}, v{MX}, v{T0}\nv_mov_b32 v{L_}, 0")
    for i in range(16): a(f"v_sub_f32 v{SS+i}, v{SS+i}, v{MX}")
    for i in range(16): a(f"v_sub_f32 v{NM+i}, 0, v{MX}")
    stamp(a, cfg, 1, "a")
    if cfg.stamps and cfg.sgrp == "a": a("s_waitcnt lgkmcnt(0)")
    stubs = []
    def step(par, wait, dma=None, first=False, last=False):
        cur, nxt = SS + 16 * par, SS + 16 * (1 - par)
        a(f"""
        s_waitcnt vmcnt({wait})
        s_barrier
        s_add_u32 s98, s96, {SLOTB}
        s_cmp_eq_u32 s96, {SB_}
        s_cselect_b32 s98, 0, s98
        s_cmp_eq_u32 s96, {SD_}
        s_cselect_b32 s98, {SA_}, s98
        v_add_u32 v11, s98, v10
        v_add_u32 v13, s96, v12
        s_add_u32 s30, s31, 8192
        s_and_b32 s30, s30, 0x1ffff
        """)
        vrd = [f"ds_read_b64_tr_b16 {vr(VF+4*(4*u+t)+2*j,2)}, v13 offset:{(2*u+j)*256 + 64*t}" for u in range(2) for t in range(4) for j in range(2)]
        ex = [f"v_exp_f32 v{cur+i}, v{cur+i}" for i in range(16)]
        cv = [f"v_cvt_pk_bf16_f32 v{PP+i}, v{cur+2*i}, v{cur+2*i+1}" for i in range(8)]
        ad = [f"v_add_f32 v{L_}, v{L_}, v{cur+i}" for i in range(16)]
        if dma is None: dma = [kpiece(0, "s96", "s30"), vpiece(0, "s97", "s31"), kpiece(1, "s96", "s30"), vpiece(1, "s97", "s31")]
        dma = list(dma) + [""] * (4 - len(dma))
        pv = [f"v_mfma_f32_32x32x16_bf16 {vr(OA+16*t,16)}, {vr(VF+4*(4*u+t),4)}, {vr(PP+4*u,4)}, {'0' if first and u == 0 else vr(OA+16*t,16)}" for u in range(2) for t in range(4)]
        adv = "s_mov_b32 s97, s96\ns_mov_b32 s96, s98\ns_mov_b32 s31, s30"
        if not last:
            for x in kreads(): a(x)
            for x in ex[:8]: a(x)
            fill = [[vrd[0], vrd[1], ex[8], cv[0]], [vrd[2], vrd[3], ex[9], cv[1]], [vrd[4], vrd[5], ex[10], cv[2]], [vrd[6], ex[11], ex[12], cv[3]],
                    [vrd[7], vrd[8], ex[13], ad[0]], [vrd[9], vrd[10], ex[14], ad[1]], [vrd[11], vrd[12], ex[15], ad[2]], [vrd[13], vrd[14], vrd[15], ad[3]]]
            nv = 0
            for s, m in enumerate(qk(nxt)):
                a(m.replace(f"LG{s}", str(7 - s + nv)))
                for f in fill[s]:
                    a(f); nv += f.startswith("ds_")
            mt = maxtree(nxt)
            fill = [[cv[4], cv[5], ad[4], ad[5]], [cv[6], cv[7], ad[6], dma[0]], [ad[7], ad[8], dma[1]], [ad[9], ad[10], mt[0], mt[1], dma[2]],
                    [ad[11], mt[2], mt[3], dma[3]], [ad[12], ad[13], mt[4], mt[5]], [ad[14], ad[15], mt[6], mt[7]], [adv]]
            for n, m in enumerate(pv):
                if n == 0: a("s_waitcnt lgkmcnt(8)")
                if n == 4: a("s_waitcnt lgkmcnt(0)")
                a(m)
                if n == 7:
                    stub, back = a.label("stub"), a.label("back")
                    stubs.append((stub, back, 1 - par))
                    a(f"v_cmp_lt_f32 vcc, s100, v{MX}")
                for f in fill[n]: a(f)
            a(f"s_cbranch_vccnz {stub}\n{back}:")
        else:
            for x in vrd[:8]: a(x)
            for x in ex[:8] + cv[:4]: a(x)
            for x in vrd[8:]: a(x)
            fill = [[ex[8], ex[9], ex[10]], [ex[11], ex[12], ex[13]], [ex[14], ex[15], cv[4], cv[5]], [cv[6], cv[7], ad[0], ad[1], ad[2]],
                    [dma[0]] + ad[3:6], ad[6:9], ad[9:12], ad[12:16]]
            for n, m in enumerate(pv):
                if n == 0: a("s_waitcnt lgkmcnt(8)")
                if n == 4: a("s_waitcnt lgkmcnt(0)")
                a(m)
                for f in fill[n]: a(f)
    def wo_pieces(mbase, moff, soff):
        return [f"s_add_u32 m0, {mbase}, {moff + n*4096}\ns_add_u32 s35, {soff}, {n*16384}\nbuffer_load_dwordx4 v15, {S(SWO)}, s35 offen lds" for n in range(4)]
    step(0, 6 if kvg else 14, first=True)
    step(1, 6 if kvg else 10)
    a(f"s_mov_b32 {sIT}, 0\nL_aloop:")
    if cfg.stamps and cfg.sgrp == "a":
        for i in range(5):
            lab = a.label("st")
            a(f"s_cmp_lg_u32 {sIT}, {i}\ns_cbranch_scc1 {lab}")
            stamp(a, cfg, 2 + i, "a")
            a(f"s_waitcnt lgkmcnt(0)\n{lab}:")
    step(0, 8); step(1, 8)
    a(f"s_add_u32 {sIT}, {sIT}, 1\ns_cmp_lt_u32 {sIT}, 5\ns_cbranch_scc1 L_aloop")
    stamp(a, cfg, 7, "a")
    if cfg.stamps and cfg.sgrp == "a": a("s_waitcnt lgkmcnt(0)")
    ts = [int(x) for x in cfg.tsched.split(",")]
    def wtouch(waves):
        if not waves: return []
        lab = a.label("wt"); m = sum(1 << w for w in waves)
        return [f"s_lshr_b32 s35, {m}, s3\ns_bitcmp1_b32 s35, 0\ns_cbranch_scc0 {lab}\nbuffer_load_dword v235, v8, {S(SWO)}, s6 offen\n{lab}:"]
    def at(t): return wtouch([i + 1 for i in range(7) if ts[i] == t])
    a(f"s_lshl_b32 s4, {sCQ}, 19\ns_lshl_b32 s35, s3, 18\ns_add_u32 s6, s4, s35\ns_and_b32 s6, s6, 0x1fffff")
    step(0, 8, [vpiece(0, "s97", "s31"), vpiece(1, "s97", "s31")] + at(12))
    a(f"""
    s_lshr_b32 s34, s3, 2
    s_lshl_b32 s35, s34, 16
    s_add_u32 s5, s4, s35
    s_lshl_b32 {sA}, {sWI}, 10
    s_add_u32 {sA}, {sA}, {WO0}
    s_lshl_b32 s35, s34, 14
    s_add_u32 {sBb}, {sA}, s35
    """)
    def plus(l, t):
        l = list(l)
        if t: l[-1] += "\n" + t[0]
        return l
    step(1, 6, plus(wo_pieces(sBb, 0, "s5"), at(13)))
    a("s_add_u32 s5, s5, 0x20000")
    step(0, 6, plus(wo_pieces(sBb, 32768, "s5"), at(14)))
    step(1, 8, at(15), last=True)
    stamp(a, cfg, 4)
    a(f"v_mov_b32 v{T0}, v{L_}\ns_nop 1\nv_permlane32_swap_b32 v{T0}, v{L_}\ns_nop 1\nv_add_f32 v{L_}, v{L_}, v{T0}\nv_rcp_f32 v{L_}, v{L_}\ns_mul_i32 s34, {sCQ}, 57344\ns_barrier\ns_mov_b64 exec, s[32:33]")
    for t in range(4):
        for jj in range(2):
            b = OA + 16*t + 8*jj
            for i in range(8): a(f"v_mul_f32 v{b+i}, v{b+i}, v{L_}")
            for i in range(4): a(f"v_cvt_pk_bf16_f32 v{b+i}, v{b+2*i}, v{b+2*i+1}")
            a(f"ds_write_b128 v14, {vr(b,4)} offset:{t*7168 + jj*512}")
            a(f"buffer_store_dwordx4 {vr(b,4)}, v14, {S(SO)}, s34 offen offset:{jj*512} {SC}")
        a("s_add_u32 s34, s34, 7168")
    a("s_mov_b64 exec, -1\nv_lshlrev_b32 v14, 4, v0\ns_cmp_ge_u32 s3, 4\ns_cbranch_scc1 L_omm")

    srd(a, SDBG, "s26", "s27", 256)
    a(f"""
    s_lshl_b32 {sBb}, {sWI}, 10
    v_add_u32 v9, {sBb}, v14
    s_add_u32 s30, s4, 0x40000
    s_and_b32 s30, s30, 0x1fffff
    s_add_u32 s31, {sCQ}, 1
    s_and_b32 s31, s31, 3
    s_add_u32 s6, s6, 0x100000
    s_and_b32 s6, s6, 0x1fffff
    v_mov_b32 v4, 0
    s_waitcnt vmcnt(12) lgkmcnt(0)
    s_barrier
    buffer_load_dword {VTAG}, v4, {S(SDBG)}, 0 offen {SC}
    """)
    def wo_next(u):
        for x in wo_pieces(sA, (u % 4) * 16384, "s30"): a(x)
        a("s_add_u32 s30, s30, 0x10000\ns_and_b32 s30, s30, 0x1fffff")
        late = [i - 3 for i in range(3, 7) if ts[i] == u]
        if late:
            lab = a.label("lt")
            if u >= 5: a(f"s_cmp_lg_u32 {sIT}, 0\ns_cbranch_scc1 {lab}")
            for x in wtouch(late): a(x)
            a(f"{lab}:")
    a("s_barrier"); stamp(a, cfg, 1, "o"); wo_next(0)
    a("s_waitcnt vmcnt(13)\ns_barrier"); wo_next(1)
    a("s_barrier"); wo_next(2)
    a("s_waitcnt vmcnt(8)\ns_barrier"); stamp(a, cfg, 2, "o"); wo_next(3)
    a("s_waitcnt vmcnt(8)\ns_barrier")
    stamp(a, cfg, 3, "o")
    a(f"v_cmp_eq_u32 vcc, 0, {VTAG}\ns_cbranch_vccz L_tagok")
    poll(a, cfg, "L_pt", SDBG, "v4", VTAG, "eq", "0")
    a(f"""
    L_tagok:
    s_cmp_lg_u32 s3, 0
    s_cbranch_scc1 L_noflag
    s_lshl_b32 s35, s2, 7
    s_add_u32 s35, s35, {FLAGS}
    v_mov_b32 v5, s35
    s_mov_b64 exec, 1
    buffer_store_dword {VTAG}, v5, {S(SWS)}, 0 offen {SC}
    s_mov_b64 exec, -1
    L_noflag:
    """)
    wo_next(4)
    a(f"s_mov_b32 {sIT}, 0\nL_olloop:")
    for u in range(5, 13):
        if u == 5:
            a(f"""
            s_andn2_b32 s35, s2, 0x18
            s_lshl_b32 s34, s31, 3
            s_or_b32 s35, s35, s34
            s_lshl_b32 s35, s35, 7
            s_add_u32 s35, s35, {FLAGS}
            v_mov_b32 v5, s35
            s_mul_i32 s33, s31, 57344
            s_add_u32 s31, s31, 1
            s_and_b32 s31, s31, 3
            """)
            poll(a, cfg, "L_po", SWS, "v5", "v6", "ne", VTAG)
            a("s_barrier")
            if cfg.stamps and cfg.sgrp == "o":
                for i in range(3):
                    lab = a.label("st")
                    a(f"s_cmp_lg_u32 {sIT}, {i}\ns_cbranch_scc1 {lab}")
                    stamp(a, cfg, 4 + i, "o")
                    a(f"{lab}:")
        else:
            a("s_waitcnt vmcnt(9)\ns_barrier")
        lab = a.label("os"); sl = (u + 3) % 8
        a(f"s_add_u32 m0, {sBb}, {sl*7168}\ns_add_u32 s35, s33, 4096")
        a(f"buffer_load_dwordx4 v9, {S(SO)}, s33 offen {SC} lds")
        a(f"s_cmp_eq_u32 {sWI}, 3\ns_cbranch_scc1 {lab}\ns_add_u32 m0, {sBb}, {sl*7168 + 4096}\ns_nop 0")
        a(f"buffer_load_dwordx4 v9, {S(SO)}, s35 offen {SC} lds\n{lab}:\ns_add_u32 s33, s33, 7168")
        wo_next(u)
    a(f"s_add_u32 {sIT}, {sIT}, 1\ns_cmp_lt_u32 {sIT}, 3\ns_cbranch_scc1 L_olloop")
    a("s_waitcnt vmcnt(9)\ns_barrier\ns_waitcnt vmcnt(4)\ns_barrier\ns_barrier")
    stamp(a, cfg, 5)
    stamp(a, cfg, 7, "o")
    stamp_store(a, cfg, 0, 0, "L_end")
    a("s_branch L_end")

    a(f"""
    L_omm:
    v_lshrrev_b32 v4, 4, v0         ; g4
    v_bfe_u32 v5, v0, 2, 2          ; r
    v_and_b32 v6, 3, v0             ; c
    v_and_b32 v7, 1, v4
    v_lshl_add_u32 v9, v7, 2, v5    ; k & 7
    v_lshrrev_b32 v7, 1, v4
    v_lshl_add_u32 v7, v7, 4, v9
    v_lshlrev_b32 v7, 9, v7
    v_lshrrev_b32 v8, 1, v6
    v_lshl_add_u32 v7, v8, 4, v7
    v_and_b32 v8, 1, v6
    v_lshl_add_u32 v7, v8, 3, v7
    v_add_u32 v7, {WO0}, v7
    v_xor_b32 v9, {sWI}, v9
    """)
    for tau in range(4):
        a(f"""
        s_add_u32 s35, {sHG}, {tau}
        s_and_b32 s34, s35, 1
        s_lshl_b32 s34, s34, 2
        s_bfe_u32 s35, s35, 0x10001
        s_lshl_b32 s35, s35, 8
        v_xor_b32 v1, s34, v9
        v_lshl_add_u32 v1, v1, 5, v7
        v_add_u32 v{10+tau}, s35, v1
        """)
    def oreads(u):
        fb = FB + 44 * (u & 1)
        r = [f"ds_read_b64_tr_b16 {vr(fb+4*t+2*j,2)}, v{10+t} offset:{(u%4)*16384 + j*4096}" for t in range(4) for j in range(2)]
        xs = [f"ds_read_b128 {vr(fb+16+4*qt,4)}, v14 offset:{(u%8)*7168 + qt*1024}" for qt in range(7)]
        return r[:2] + xs[:1] + r[2:] + xs[1:]
    srd(a, SDBG, "s26", "s27", 256)
    a(f"v_mov_b32 v4, 0\ns_waitcnt vmcnt(12) lgkmcnt(0)\ns_barrier")
    stamp(a, cfg, 5)
    for r in oreads(0): a(r)
    a(f"buffer_load_dword {VTAG}, v4, {S(SDBG)}, 0 offen {SC}")
    gloop("L_o", 8, 4, oreads, {2: " vmcnt(9)", 4: " vmcnt(0)"})
    stamp(a, cfg, 6)
    a(f"""
    s_lshl_b32 s30, {sBR}, 3
    s_add_u32 s30, s30, {sB}
    s_lshl_b32 s30, s30, 2
    s_add_u32 s30, s30, {sCQ}
    s_mul_i32 s30, s30, {12*16384}
    s_lshl_b32 s35, {sWI}, 12
    s_add_u32 s30, s30, s35
    s_add_u32 s30, s30, {RED}
    v_lshlrev_b32 v15, 3, v0
    """)
    for tau in range(1, 4):
        a(f"""
        s_add_u32 s35, {sHG}, {tau}
        s_and_b32 s35, s35, 3
        s_mul_i32 s35, s35, {3*16384}
        s_add_u32 s35, s35, s30
        s_add_u32 s35, s35, {(tau-1)*16384}
        """)
        for pr in range(4):
            b = ACC + 4 * (tau * 7 + 2 * pr)
            for i in range(4 if pr < 3 else 2): a(f"v_cvt_pk_bf16_f32 v{b+i}, v{b+2*i}, v{b+2*i+1}")
            if pr < 3: a(f"buffer_store_dwordx4 {vr(b,4)}, v14, {S(SWS)}, s35 offen offset:{pr*1024} {SC}")
            else: a(f"buffer_store_dwordx2 {vr(b,2)}, v15, {S(SWS)}, s35 offen offset:3072 {SC}")
    a(f"""
    s_lshl_b32 s35, s2, 7
    s_lshl_b32 s34, {sWI}, 2
    s_add_u32 s34, s34, {FLAGS + 16}
    s_add_u32 s35, s35, s34
    v_mov_b32 v5, s35
    v_min_u32 v6, 2, v0
    v_sub_u32 v6, {sHG}, v6
    v_add_u32 v6, -1, v6
    v_and_b32 v6, 3, v6
    s_andn2_b32 s35, s2, 3
    v_or_b32 v6, s35, v6
    v_lshlrev_b32 v6, 7, v6
    v_add_u32 v6, s34, v6
    s_mul_i32 s35, {sB}, 458752
    s_lshl_b32 s34, {sBR}, 11
    s_add_u32 s35, s35, s34
    s_lshl_b32 s34, {sCQ}, 9
    s_add_u32 s35, s35, s34
    s_lshl_b32 s34, {sHG}, 7
    s_add_u32 s35, s35, s34
    s_sub_u32 s34, 3670016, s35
    """)
    srd_off(a, SOUT, "s24", "s25", "s35", "s34")
    a(f"""
    v_and_b32 v7, 15, v0
    v_lshlrev_b32 v7, 12, v7
    v_lshrrev_b32 v9, 4, v0
    v_lshl_add_u32 v7, v9, 3, v7
    s_lshl_b32 s35, {sWI}, 5
    v_add_u32 v7, s35, v7
    s_mul_i32 s35, {sHG}, {3*16384}
    s_add_u32 s30, s30, s35
    s_waitcnt vmcnt(0) lgkmcnt(0)
    v_cmp_eq_u32 vcc, 0, {VTAG}
    s_cbranch_vccz L_tagok2
    """)
    poll(a, cfg, "L_pt2", SDBG, "v4", VTAG, "eq", "0")
    a(f"""
    L_tagok2:
    s_mov_b64 exec, 1
    buffer_store_dword {VTAG}, v5, {S(SWS)}, 0 offen {SC}
    s_mov_b64 exec, -1
    """)
    stamp(a, cfg, 1)
    poll(a, cfg, "L_pr", SWS, "v6", "v9", "ne", VTAG)
    stamp(a, cfg, 2)
    a("s_add_u32 s33, s30, 16384\ns_add_u32 s34, s30, 32768")
    for pr in range(4):
        for s_, so in enumerate(("s30", "s33", "s34")):
            r = FB + 12 * pr + 4 * s_
            if pr < 3: a(f"buffer_load_dwordx4 {vr(r,4)}, v14, {S(SWS)}, {so} offen offset:{pr*1024} {SC}")
            else: a(f"buffer_load_dwordx2 {vr(r,2)}, v15, {S(SWS)}, {so} offen offset:3072 {SC}")
    a("s_mov_b32 s33, 0xffff0000")
    nst = 0
    for pr in range(4):
        a(f"s_waitcnt vmcnt({3*(3-pr) + nst})")
        for h in range(2 if pr < 3 else 1):
            qt = 2 * pr + h; b = ACC + 4 * qt
            for s_ in range(3):
                r = FB + 12 * pr + 4 * s_ + 2 * h
                for d in range(2):
                    a(f"v_lshlrev_b32 v{200+2*d}, 16, v{r+d}\nv_and_b32 v{201+2*d}, s33, v{r+d}")
                for i in range(4): a(f"v_add_f32 v{b+i}, v{b+i}, v{200+i}")
            a(f"v_cvt_pk_bf16_f32 v{b}, v{b}, v{b+1}\nv_cvt_pk_bf16_f32 v{b+1}, v{b+2}, v{b+3}")
            a(f"s_mov_b32 s35, {qt*65536}\nbuffer_store_dwordx2 {vr(b,2)}, v7, {S(SOUT)}, s35 offen")
            nst += 1
    if cfg.stamps: a("s_waitcnt vmcnt(0)")
    stamp(a, cfg, 7)
    stamp_store(a, cfg, 4, 256, "L_end")
    a("L_end:\ns_endpgm")
    for stub, back, par in stubs:
        a(f"{stub}:\ns_call_b64 s[98:99], L_rare{par}\ns_branch {back}")
    for par in range(2):
        sb = SS + 16 * par
        a(f"""
        L_rare{par}:
        v_mov_b32 v{T0}, v{MX}
        s_nop 1
        v_permlane32_swap_b32 v{T0}, v{MX}
        s_nop 1
        v_max3_f32 v{MX}, v{MX}, v{T0}, 0
        v_exp_f32 v{T0}, -v{MX}
        """)
        for i in range(16): a(f"v_sub_f32 v{sb+i}, v{sb+i}, v{MX}")
        for i in range(16): a(f"v_sub_f32 v{NM+i}, v{NM+i}, v{MX}")
        a(f"v_mul_f32 v{L_}, v{L_}, v{T0}")
        for i in range(64): a(f"v_mul_f32 v{OA+i}, v{OA+i}, v{T0}")
        a("s_setpc_b64 s[98:99]")
    return a.text()

def build(cfg):
    K = NAME + "_kernel"
    body = kernel_head(K) + kernel(cfg) + kernel_desc(K, 240, 240)
    tgt = '.amdgcn_target "amdgcn-amd-amdhsa--gfx950"\n'
    if cfg.echo:
        from gen2 import echo_kernel
        hdr = f"; @launch kernel={K} grid=(256,1,1) block=(512,1,1) lds=163840\n; @launch kernel=echo_kernel grid=(1,1,1) block=(64,1,1) lds=0\n"
        return hdr + tgt + kernel_head("echo_kernel") + echo_kernel(cfg) + kernel_desc("echo_kernel", 8, 8) + body
    return "; @launch grid=(256,1,1) block=(512,1,1) lds=163840\n" + tgt + body

if __name__ == "__main__":
    cfg = Cfg()
    for kv in sys.argv[2:]:
        k, v = kv.split("=")
        setattr(cfg, k, {"True": True, "False": False}.get(v, v))
    open(sys.argv[1], "w").write(build(cfg))
```

```python
import sys, math, struct
from asmlib import *
from gen3 import S, stamp, stamp_store, srd_off, weave, poll, SC
from gen3 import sBR, sHG, sCQ, sB, sWI, sIT, sA, sBb, sT, sU, SX, SW, SK, SV, SO, SWO, SWS, SOUT, SDBG, RED, FLAGS, TAG, VTAG

class Cfg:
    stamps = False
    sgrp = "main"
    kvpol = ""
    await_ = 8
    early = False
    qord = "alt4"
    qrot = True
    kv0 = 7
    tsched = "113,115,1,4,7,10,13"
    fa = 2
    olead = 3
    st0 = 1
    kvper = 4
    zpad = False
    kvg = 0
    qtouch = 0
    krot = True
    echo = ""
    abl = ""
    spin = 400000

WQ0 = 28672
KT, HSTEP, SLOTB = 8448, 17152, 34304
SA_, SB_, SC_, SD_ = 94208, 128512, 0, 34304
HO = 36864
WO0 = 94208
ACC, FB = 16, 128

def kernel(cfg):
    a = A()
    a("s_cmp_ge_u32 s2, 256\ns_cbranch_scc1 L_end")
    stamp(a, cfg, 0)
    a(f"""
    s_load_dwordx16 s[4:19], s[0:1], 0
    s_load_dwordx8 s[20:27], s[0:1], 64
    s_load_dwordx2 s[28:29], s[0:1], 96
    v_lshrrev_b32 v1, 6, v0
    v_and_b32 v0, 63, v0
    v_readfirstlane_b32 s3, v1
    v_lshrrev_b32 v4, 4, v0
    v_and_b32 v5, 15, v0
    v_lshlrev_b32 v6, 11, v4
    v_lshl_add_u32 v3, v5, 4, v6
    v_and_b32 v7, 1, v4
    v_xor_b32 v7, v7, v5
    v_lshl_add_u32 v2, v7, 4, v6
    s_bitcmp0_b32 s2, 2
    s_waitcnt lgkmcnt(0)
    s_cselect_b64 s[4:5], s[4:5], s[14:15]
    s_cselect_b64 s[6:7], s[6:7], s[16:17]
    s_cselect_b64 s[8:9], s[8:9], s[18:19]
    s_cselect_b64 s[10:11], s[10:11], s[20:21]
    s_cselect_b64 s[12:13], s[12:13], s[22:23]
    s_bfe_u32 {sBR}, s2, 0x10002
    s_and_b32 {sHG}, s2, 3
    s_bfe_u32 {sCQ}, s2, 0x20003
    s_lshr_b32 {sB}, s2, 5
    s_and_b32 {sWI}, s3, 3
    s_mul_i32 s35, {sB}, 229376
    """)
    srd_off(a, SX, "s4", "s5", "s35", 229376)
    a(f"s_lshl_b32 s33, {sHG}, 2\ns_add_u32 s33, s33, {sCQ}\ns_lshl_b32 s35, s33, 9\ns_sub_u32 s34, 0x800000, s35")
    srd_off(a, SW, "s10", "s11", "s35", "s34")
    a("s_cmp_ge_u32 s3, 4\ns_cbranch_scc1 L_qload")

    def other_srds():
        a(f"s_lshl_b32 s35, {sB}, 22\ns_lshl_b32 s34, s33, 18\ns_add_u32 s35, s35, s34")
        srd_off(a, SK, "s6", "s7", "s35", 262144)
        srd_off(a, SV, "s8", "s9", "s35", 262144)
        a(f"s_lshl_b32 s35, {sBR}, 3\ns_add_u32 s35, s35, {sB}\ns_lshl_b32 s35, s35, 2\ns_add_u32 s35, s35, {sHG}\ns_mul_i32 s35, s35, 229376")
        srd_off(a, SO, "s28", "s29", "s35", 229376)
        a(f"s_lshl_b32 s35, {sHG}, 21\ns_lshl_b32 s34, {sCQ}, 9\ns_add_u32 s35, s35, s34\ns_sub_u32 s34, 0x200000, s34")
        srd_off(a, SWO, "s12", "s13", "s35", "s34")
        srd(a, SWS, "s28", "s29", 0x10000000)
        if cfg.krot: a("s_lshr_b32 s101, s2, 3\ns_lshr_b32 s35, s2, 7\ns_add_u32 s101, s101, s35\ns_lshl_b32 s35, s2, 1\ns_add_u32 s101, s101, s35\ns_and_b32 s101, s101, 15\ns_lshl_b32 s101, s101, 13")
        else: a("s_mov_b32 s101, 0")
    def gmf(u, zero=False):
        fb = FB + 44 * (u & 1)
        return [f"v_mfma_f32_16x16x32_bf16 {vr(ACC+4*(t*7+qt),4)}, {vr(fb+4*t,4)}, {vr(fb+16+4*qt,4)}, {'0' if zero else vr(ACC+4*(t*7+qt),4)}" for qt in range(7) for t in range(4)]
    def gloop(name, period, iters, reads, pre, extra=None):
        a("s_waitcnt lgkmcnt(0)\ns_barrier")
        weave(a, gmf(0, True), reads(1))
        a(f"s_mov_b32 {sIT}, 0\ns_branch {name}_mid\n{name}:")
        for u in range(period):
            a(f"s_waitcnt lgkmcnt(0){pre.get(u, '')}\ns_barrier")
            weave(a, gmf(u), reads(u + 1) + (extra(u) if extra else []))
            if u == 0: a(f"{name}_mid:")
        a(f"s_add_u32 {sIT}, {sIT}, 1\ns_cmp_lt_u32 {sIT}, {iters}\ns_cbranch_scc1 {name}")

    other_srds()
    a(f"""
    s_cmp_lg_u32 s2, 0
    s_cbranch_scc1 L_notag
    s_cmp_lg_u32 s3, 0
    s_cbranch_scc1 L_notag
    s_mov_b32 s{SX}, s26
    s_and_b32 s{SX+1}, s27, 0xffff
    s_mov_b32 s{SX+2}, 256
    v_mov_b32 v4, {TAG}
    v_mov_b32 v7, 0
    s_mov_b32 s34, 1664525
    s_mov_b32 s35, 1013904223
    buffer_load_dword v5, v4, {S(SWS)}, 0 offen {SC}
    s_waitcnt vmcnt(0)
    v_mul_lo_u32 v5, v5, s34
    v_add_u32 v5, s35, v5
    v_mov_b32 v6, s35
    v_cmp_eq_u32 vcc, 0, v5
    s_nop 1
    v_cndmask_b32 v5, v5, v6, vcc
    s_mov_b64 exec, 1
    buffer_store_dword v5, v7, {S(SX)}, 0 offen {SC}
    buffer_store_dword v5, v4, {S(SWS)}, 0 offen {SC}
    s_mov_b64 exec, -1
    L_notag:
    v_lshrrev_b32 v4, 4, v0         ; g4
    v_bfe_u32 v5, v0, 2, 2          ; r
    v_and_b32 v6, 3, v0             ; c
    v_lshl_add_u32 v7, v4, 3, v5
    v_lshlrev_b32 v7, 9, v7
    v_lshrrev_b32 v9, 1, v6
    v_lshl_add_u32 v7, v9, 4, v7
    v_and_b32 v9, 1, v6
    v_lshl_add_u32 v7, v9, 3, v7
    s_lshr_b32 s35, {sWI}, 1
    s_lshl_b32 s35, s35, 8
    s_add_u32 s35, s35, {WQ0}
    v_add_u32 v7, s35, v7
    v_and_b32 v9, 1, v4
    v_lshl_or_b32 v9, v9, 2, v5
    s_and_b32 s35, {sWI}, 1
    s_lshl_b32 s35, s35, 2
    v_xor_b32 v9, s35, v9
    """)
    for t in range(4): a(f"v_xor_b32 v1, {t}, v9\nv_lshl_add_u32 v{10+t}, v1, 5, v7")
    cbits = struct.unpack("<I", struct.pack("<f", (128 ** -0.5) * math.log2(math.e)))[0]
    a(f"""
    v_and_b32 v5, 15, v0
    v_lshrrev_b32 v6, 1, v5
    v_xor_b32 v6, v6, v4
    v_lshlrev_b32 v7, 7, v5
    v_lshl_add_u32 v14, v6, 4, v7
    v_xor_b32 v15, 64, v14
    v_lshlrev_b32 v5, 4, v5
    v_lshrrev_b32 v6, 5, v0
    v_lshl_add_u32 v5, v6, 8, v5
    v_bfe_u32 v6, v0, 4, 1
    v_lshl_add_u32 v5, v6, 3, v5
    s_lshr_b32 s34, {sWI}, 1
    s_mul_i32 s34, s34, 28672
    s_and_b32 s35, {sWI}, 1
    s_lshl_b32 s35, s35, 11
    s_add_u32 s34, s34, s35
    s_add_u32 s34, s34, {HO}
    v_add_u32 v8, s34, v5
    s_mov_b32 s30, {cbits:#x}
    s_mov_b32 s31, {cbits:#x}
    s_barrier
    """)
    def qreads(u):
        fb = FB + 44 * (u & 1)
        r = [f"ds_read_b64_tr_b16 {vr(fb+4*t+2*j,2)}, v{10+t} offset:{(u%4)*16384 + j*2048}" for t in range(4) for j in range(2)]
        xs = [f"ds_read_b128 {vr(fb+16+4*qt,4)}, v{14+(u&1)} offset:{((u>>1)&1)*14336 + qt*2048}" for qt in range(7)]
        return r[:2] + xs[:1] + r[2:] + xs[1:]
    stamp(a, cfg, 1)
    for r in qreads(0): a(r)
    kvg = int(cfg.kvg)
    def gkv(u):
        lab = a.label("gk"); out = []
        if u == 0:
            out.append(f"""s_sub_u32 s98, {sIT}, {kvg}
            s_and_b32 s99, s98, 1
            s_cselect_b64 s[{SX}:{SX+1}], s[{SV}:{SV+1}], s[{SK}:{SK+1}]
            s_cselect_b32 s97, 32, 0
            s_cselect_b32 s96, {KT}, 0
            s_cselect_b64 vcc, -1, 0
            s_add_u32 s97, s97, 1056
            s_add_u32 s96, s96, {SA_}""")
            out.append(f"""s_lshr_b32 s99, s98, 1
            s_mul_i32 s35, s99, {SLOTB}
            s_add_u32 s96, s96, s35
            s_mul_i32 s35, s97, {sWI}
            s_add_u32 s96, s96, s35
            v_cndmask_b32 v9, v2, v3, vcc""")
            out.append(f"""s_lshl_b32 s99, s99, 13
            s_add_u32 s99, s99, s101
            s_and_b32 s99, s99, 0x1ffff
            s_lshl_b32 s35, {sWI}, 8
            s_add_u32 s99, s99, s35
            s_lshl_b32 s97, s97, 2""")
        out.append(f"""s_cmp_gt_u32 s98, 3
        s_cbranch_scc1 {lab}
        s_add_u32 s34, s96, {'s97' if u & 1 else 0}
        s_add_u32 m0, s34, {(u >> 1) * HSTEP}
        s_add_u32 s35, s99, {(u >> 1) * 131072 + (u & 1) * 1024}
        buffer_load_dwordx4 v9, {S(SX)}, s35 offen lds
        {lab}:""")
        return [""] * 3 + out
    if kvg: a(f"s_mov_b32 s{SX+2}, 262144\ns_mov_b32 s98, 4")
    gloop("L_q", 4, 8, qreads, {}, gkv if kvg else None)
    stamp(a, cfg, 2)
    a("s_waitcnt lgkmcnt(0)\ns_barrier")
    for qt in range(7):
        for t in range(4):
            acc = ACC + 4 * (t * 7 + qt)
            a(f"v_pk_mul_f32 {vr(acc,2)}, {vr(acc,2)}, s[30:31]\nv_pk_mul_f32 {vr(acc+2,2)}, {vr(acc+2,2)}, s[30:31]")
            a(f"v_cvt_pk_bf16_f32 v{acc}, v{acc}, v{acc+1}\nv_cvt_pk_bf16_f32 v{acc+1}, v{acc+2}, v{acc+3}")
            a(f"ds_write_b64 v8, {vr(acc,2)} offset:{qt*4096 + t*512}")
    a("s_branch L_join")
    a(f"""
    L_qload:
    v_lshrrev_b32 v4, 5, v0
    v_and_b32 v5, 31, v0
    s_and_b32 s35, {sWI}, 1
    s_lshr_b32 s34, {sWI}, 1
    s_lshl_b32 {sA}, s35, 1
    s_lshl_b32 {sBb}, s34, 2
    s_add_u32 {sA}, {sA}, {sBb}
    v_add_u32 v6, {sA}, v4
    v_lshlrev_b32 v6, 1, v6
    v_xor_b32 v5, v5, v6
    s_lshl_b32 {sBb}, s34, 3
    s_lshl_b32 {sA}, s35, 1
    s_add_u32 {sA}, {sA}, {sBb}
    v_add_u32 v4, {sA}, v4
    v_lshlrev_b32 v4, 13, v4
    v_lshl_add_u32 v10, v5, 4, v4
    s_lshl_b32 {sA}, {sA}, 9
    s_add_u32 {sA}, {sA}, {WQ0}
    v_lshrrev_b32 v4, 3, v0
    v_and_b32 v5, 7, v0
    v_lshrrev_b32 v6, 1, v4
    s_lshl_b32 {sBb}, s35, 2
    v_add_u32 v6, {sBb}, v6
    v_xor_b32 v5, v5, v6
    s_lshl_b32 {sBb}, {sWI}, 3
    v_add_u32 v4, {sBb}, v4
    v_lshlrev_b32 v4, 11, v4
    v_lshl_add_u32 v11, v5, 4, v4
    s_lshl_b32 {sBb}, {sWI}, 10
    """)
    def tab(order): return sum(st << (4 * t) for t, st in enumerate(order))
    if cfg.qord:
        if cfg.qord == "alt2":
            orders = [[g] + [(t + 1 + g if t & 1 else t - 1 - g) for t in range(1, 15)] + [15 - g] for g in range(2)]
            a(f"s_xor_b32 s35, {sB}, {sCQ}\ns_and_b32 s35, s35, 1")
        else:
            orders = []
            for g in range(4):
                f = lambda j: [4 * j + ((g + i) & 3) for i in (1, 2, 3)]
                orders.append([g, 4 + g] + f(0) + [8 + g] + f(1) + [12 + g] + f(2) + f(3))
            a(f"s_add_u32 s35, {sB}, {sCQ}\ns_and_b32 s35, s35, 3")
        for g, o in enumerate(orders):
            assert sorted(o) == list(range(16))
            v = tab(o)
            a(f"s_cmp_eq_u32 s35, {g}\ns_cselect_b32 s98, {v & 0xffffffff:#x}, s98\ns_cselect_b32 s99, {v >> 32:#x}, s99")
        a("s_mov_b64 s[0:1], s[98:99]\ns_and_b32 s31, s0, 15\ns_lshl_b32 s30, s31, 19\ns_lshl_b32 s31, s31, 7")
    elif cfg.qrot: a(f"s_xor_b32 s35, {sB}, {sCQ}\ns_and_b32 s35, s35, 1\ns_lshl_b32 s30, s35, 22\ns_lshl_b32 s31, s35, 10")
    else: a("s_mov_b32 s30, 0\ns_mov_b32 s31, 0")
    qt_ = int(cfg.qtouch)
    if qt_:
        a(f"""
        s_lshl_b32 s35, {sB}, 3
        s_lshl_b32 s34, {sWI}, 1
        s_add_u32 s35, s35, s34
        v_lshrrev_b32 v4, 2, v0
        v_add_u32 v4, s35, v4
        v_lshlrev_b32 v4, 13, v4
        v_and_b32 v5, 3, v0
        v_lshl_add_u32 v4, v5, 7, v4
        v_mov_b32 v6, 0x7fffffff
        v_cmp_gt_u32 vcc, 8, v0
        s_mul_i32 s35, {sCQ}, 28
        s_mul_i32 s34, {sWI}, 7
        v_cndmask_b32 v12, v6, v4, vcc
        s_add_u32 s35, s35, s34
        v_add_u32 v5, s35, v0
        v_lshlrev_b32 v5, 11, v5
        v_cmp_gt_u32 vcc, 7, v0
        s_mov_b32 s98, {2 << 19}
        s_mov_b32 s99, {2 << 7}
        v_cndmask_b32 v13, v6, v5, vcc
        """)
    def qtouch():
        a(f"buffer_load_dword v235, v13, {S(SX)}, s99 offen\nbuffer_load_dword v235, v12, {S(SW)}, s98 offen")
        a("s_add_u32 s98, s98, 0x80000\ns_add_u32 s99, s99, 128\ns_cmp_ge_u32 s99, 2048\ns_cselect_b32 s99, 0x40000000, s99")
    def issue_wq(slot):
        for pc in (0, 2, 8, 10):
            a(f"s_add_u32 m0, {sA}, {slot*16384 + pc*1024}\ns_add_u32 s35, s30, {pc*16384}")
            a(f"buffer_load_dwordx4 v10, {S(SW)}, s35 offen lds")
        if cfg.qord and (slot & 1): a("s_lshr_b64 s[98:99], s[98:99], 4\ns_and_b32 s30, s98, 15\ns_lshl_b32 s30, s30, 19")
        else: a("s_add_u32 s30, s30, 0x40000\ns_and_b32 s30, s30, 0x7fffff")
    def issue_x(slot):
        lab = a.label("xs")
        for n in range(4):
            if n == 3: a(f"s_cmp_ge_u32 {sWI}, 2\ns_cbranch_scc1 {lab}")
            a(f"s_add_u32 m0, {sBb}, {slot*14336 + n*4096}\ns_add_u32 s35, s31, {n*65536}")
            a(f"buffer_load_dwordx4 v11, {S(SX)}, s35 offen lds")
        if cfg.qord: a(f"{lab}:\ns_lshr_b64 s[0:1], s[0:1], 4\ns_and_b32 s31, s0, 15\ns_lshl_b32 s31, s31, 7")
        else: a(f"{lab}:\ns_add_u32 s31, s31, 128\ns_and_b32 s31, s31, 2047")
    def kv_piece(tile, hd, n, isv, slot):
        a(f"s_add_u32 s35, s101, {tile*8192}\ns_and_b32 s35, s35, 0x1ffff\ns_add_u32 s35, s35, s32\ns_add_u32 s35, s35, {hd*131072 + n*1024}")
        a(f"s_add_u32 m0, {'s97' if isv else 's96'}, {slot + hd*HSTEP + n*4*(1088 if isv else 1056)}\ns_nop 0")
        a(f"buffer_load_dwordx4 {'v3' if isv else 'v2'}, {S(SV if isv else SK)}, s35 offen lds")
    issue_x(0); issue_wq(0); issue_wq(1)
    other_srds()
    a(f"s_mul_i32 s96, {sWI}, 1056\ns_mul_i32 s97, {sWI}, 1088\ns_add_u32 s97, s97, {KT}\ns_lshl_b32 s32, {sWI}, 8")
    a("s_waitcnt vmcnt(4)\ns_barrier")
    issue_x(1); issue_wq(2)
    a("s_waitcnt vmcnt(7)\ns_barrier")
    issue_wq(3); issue_wq(0)
    for _ in range(qt_ - 1): qtouch()
    kv0 = int(cfg.kv0)
    kvl = [] if kvg else [(tile, hd, n, isv) for tile in range(2) for isv in range(2) for hd in range(2) for n in range(2)]
    a(f"s_mov_b32 {sIT}, 0\ns_branch L_qlmid\nL_qlloop:")
    for u in range(4):
        a(f"s_waitcnt vmcnt({8 if u & 1 else 11})\ns_barrier")
        if u & 1: issue_x((u >> 1) & 1)
        issue_wq(u)
        if qt_ and u % 2 == 0: qtouch()
        if u == 0: a("L_qlmid:")
    a(f"s_add_u32 {sIT}, {sIT}, 1\ns_cmp_lt_u32 {sIT}, {kv0}\ns_cbranch_scc1 L_qlloop")
    q = []
    for u in range(4 * kv0 - 4, 4 * kv0):
        if u & 1: q.append(("x", (u >> 1) + 2, 3))
        q.append(("w", u + 4, 4))
    per = int(cfg.kvper) or -(-16 // max(32 - 4 * kv0 - 2, 4))
    for u in range(4 * kv0, 32):
        need = [i for i, e in enumerate(q) if (e[0] == "w" and e[1] <= u + 1) or (e[0] == "x" and e[1] <= (u + 1) >> 1)]
        left = sum(e[2] for e in q[max(need) + 1:]) if need else 63
        a(f"s_waitcnt vmcnt({min(left, 63)})\ns_barrier")
        if (u & 1) and (u >> 1) + 2 < 16: issue_x((u >> 1) & 1); q.append(("x", (u >> 1) + 2, 3))
        if u + 4 < 32: issue_wq(u % 4); q.append(("w", u + 4, 4))
        if qt_ and u % 2 == 0 and (u >> 1) + qt_ < 16: qtouch(); q.append(("k", 0, 2))
        for _ in range(per):
            if kvl:
                tile, hd, n, isv = kvl.pop(0)
                kv_piece(tile, hd, n, isv, (SA_, SB_)[tile]); q.append(("k", 0, 1))
    a("s_barrier")
    for isv in range(2):
        for hd in range(2):
            for n in range(2): kv_piece(2, hd, n, isv, SC_)
    if not kvg: a("s_waitcnt vmcnt(20)")

    QF, OA, SS, NM, KF, VF, PP = 16, 48, 112, 144, 160, 192, 224
    L_, MX, T0 = 232, 233, 234
    a(f"""
    L_join:
    s_lshr_b32 s34, s3, 2
    s_lshl_b32 s35, s34, 17
    s_add_u32 s{SK}, s{SK}, s35
    s_addc_u32 s{SK+1}, s{SK+1}, 0
    s_mov_b32 s{SK+2}, 131072
    s_add_u32 s{SV}, s{SV}, s35
    s_addc_u32 s{SV+1}, s{SV+1}, 0
    s_mov_b32 s{SV+2}, 131072
    s_mul_i32 s30, s34, {HSTEP}
    s_mul_i32 {sA}, {sWI}, 1056
    s_add_u32 {sA}, {sA}, s30
    s_mul_i32 {sBb}, {sWI}, 1088
    s_add_u32 {sBb}, {sBb}, s30
    s_add_u32 {sBb}, {sBb}, {KT}
    v_and_b32 v5, 15, v0
    v_bfe_u32 v7, v0, 4, 1
    s_lshl_b32 s35, {sWI}, 1
    v_add_u32 v7, s35, v7
    v_min_u32 v7, 6, v7
    v_lshlrev_b32 v7, 12, v7
    v_lshl_add_u32 v7, v5, 4, v7
    v_lshrrev_b32 v6, 5, v0         ; half
    v_lshl_add_u32 v7, v6, 8, v7
    s_mul_i32 s35, s34, 28672
    s_add_u32 {sT}, s35, {HO}
    v_add_u32 v9, {sT}, v7
    v_bfe_u32 v7, v0, 4, 1
    v_lshlrev_b32 v7, 10, v7
    v_lshl_add_u32 v7, v5, 4, v7
    v_lshl_add_u32 v7, v6, 8, v7
    s_lshl_b32 {sT}, {sWI}, 11
    s_add_u32 s35, s35, {sT}
    v_add_u32 v14, s35, v7
    v_and_b32 v4, 31, v0
    v_and_b32 v7, 7, v4
    v_mul_u32_u24 v7, 1056, v7
    v_lshrrev_b32 v1, 3, v4
    v_lshl_add_u32 v7, v1, 8, v7
    v_and_b32 v1, 1, v1
    v_xor_b32 v1, v1, v6
    v_lshl_add_u32 v7, v1, 4, v7
    v_add_u32 v10, s30, v7
    v_bfe_u32 v7, v0, 2, 2
    v_lshl_add_u32 v7, v6, 2, v7
    v_mul_u32_u24 v7, 1088, v7
    v_bfe_u32 v1, v0, 4, 1
    v_lshl_add_u32 v7, v1, 5, v7
    v_and_b32 v1, 3, v0
    v_lshl_add_u32 v7, v1, 3, v7
    s_add_u32 s35, s30, {KT}
    v_add_u32 v12, s35, v7
    v_add_u32 v11, {SA_}, v10
    s_lshl_b32 s35, {sWI}, 8
    s_add_u32 s101, s101, s35
    s_add_u32 s31, s101, {3*8192}
    s_and_b32 s31, s31, 0x1ffff
    s_mov_b32 s96, {SA_}
    s_mov_b32 s97, {SD_}
    s_mov_b32 s100, 0x41000000
    s_cmp_eq_u32 {sWI}, 3
    s_cselect_b32 s32, 0xffff, -1
    s_mov_b32 s33, s32
    s_waitcnt lgkmcnt(0){" vmcnt(12)" if kvg else ""}
    s_barrier
    """)
    def kreads(): return [f"ds_read_b128 {vr(KF+4*s,4)}, v11 offset:{32*s}" for s in range(8)]
    def qk(sb, zero=False):
        return [f"s_waitcnt lgkmcnt(LG{s})\nv_mfma_f32_32x32x16_bf16 {vr(sb,16)}, {vr(KF+4*s,4)}, {vr(QF+4*s,4)}, {('0' if zero else vr(NM,16)) if s == 0 else vr(sb,16)}" for s in range(8)]
    def maxtree(sb):
        return ([f"v_max3_f32 v{MX}, v{sb}, v{sb+1}, v{sb+2}", f"v_max3_f32 v{T0}, v{sb+3}, v{sb+4}, v{sb+5}"]
                + [f"v_max3_f32 v{(MX, T0)[i&1]}, v{(MX, T0)[i&1]}, v{sb+6+2*i}, v{sb+7+2*i}" for i in range(5)]
                + [f"v_max_f32 v{MX}, v{MX}, v{T0}"])
    for s in range(8): a(f"ds_read_b128 {vr(QF+4*s,4)}, v9 offset:{s*512}")
    for x in kreads(): a(x)
    a(f"""
    v_lshrrev_b32 v4, 5, v0
    s_lshl_b32 s35, {sWI}, 1
    v_add_u32 v4, s35, v4
    v_and_b32 v5, 31, v0
    v_lshlrev_b32 v6, 1, v4
    v_xor_b32 v5, v5, v6
    v_lshlrev_b32 v4, 11, v4
    v_lshl_add_u32 v15, v5, 4, v4   ; wo source offset
    v_lshrrev_b32 v4, 4, v0
    v_lshlrev_b32 v4, 5, v4
    v_bfe_u32 v5, v0, 2, 2
    v_add_u32 v4, v4, v5
    s_lshl_b32 s35, {sB}, 2
    v_add_u32 v4, s35, v4
    v_lshlrev_b32 v4, 11, v4
    v_and_b32 v5, 3, v0
    v_lshl_add_u32 v8, v5, 7, v4    ; wo lines to touch
    s_waitcnt lgkmcnt(8)
    s_barrier
    """)
    if cfg.zpad:
        a("s_not_b64 exec, s[32:33]\ns_cbranch_execz L_nopad")
        for i in range(32): a(f"v_mov_b32 v{QF+i}, 0")
        a("L_nopad:\ns_mov_b64 exec, -1")
    stamp(a, cfg, 3)
    def kpiece(n, slot, src): return f"s_add_u32 s34, {slot}, {sA}\ns_add_u32 m0, s34, {n*4*1056}\ns_add_u32 s35, {src}, {n*1024}\nbuffer_load_dwordx4 v2, {S(SK)}, s35 offen lds"
    def vpiece(n, slot, src): return f"s_add_u32 s34, {slot}, {sBb}\ns_add_u32 m0, s34, {n*4*1088}\ns_add_u32 s35, {src}, {n*1024}\nbuffer_load_dwordx4 v3, {S(SV)}, s35 offen lds"
    weave(a, [m.replace(f"LG{s}", str(7 - s)) for s, m in enumerate(qk(SS, True))], [kpiece(0, "s97", "s31"), kpiece(1, "s97", "s31")])
    a("s_nop 7\ns_nop 3")
    for x in maxtree(SS): a(x)
    a(f"s_nop 0\nv_mov_b32 v{T0}, v{MX}\ns_nop 1\nv_permlane32_swap_b32 v{T0}, v{MX}\ns_nop 1\nv_max_f32 v{MX}, v{MX}, v{T0}\nv_mov_b32 v{L_}, 0")
    for i in range(16): a(f"v_sub_f32 v{SS+i}, v{SS+i}, v{MX}")
    for i in range(16): a(f"v_sub_f32 v{NM+i}, 0, v{MX}")
    stamp(a, cfg, 1, "a")
    if cfg.stamps and cfg.sgrp == "a": a("s_waitcnt lgkmcnt(0)")
    stubs = []
    def step(par, wait, dma=None, first=False, last=False):
        cur, nxt = SS + 16 * par, SS + 16 * (1 - par)
        a(f"""
        s_waitcnt vmcnt({wait})
        s_barrier
        s_add_u32 s98, s96, {SLOTB}
        s_cmp_eq_u32 s96, {SB_}
        s_cselect_b32 s98, 0, s98
        s_cmp_eq_u32 s96, {SD_}
        s_cselect_b32 s98, {SA_}, s98
        v_add_u32 v11, s98, v10
        v_add_u32 v13, s96, v12
        s_add_u32 s30, s31, 8192
        s_and_b32 s30, s30, 0x1ffff
        """)
        vrd = [f"ds_read_b64_tr_b16 {vr(VF+4*(4*u+t)+2*j,2)}, v13 offset:{(2*u+j)*256 + 64*t}" for u in range(2) for t in range(4) for j in range(2)]
        ex = [f"v_exp_f32 v{cur+i}, v{cur+i}" for i in range(16)]
        cv = [f"v_cvt_pk_bf16_f32 v{PP+i}, v{cur+2*i}, v{cur+2*i+1}" for i in range(8)]
        ad = [f"v_add_f32 v{L_}, v{L_}, v{cur+i}" for i in range(16)]
        if dma is None: dma = [kpiece(0, "s96", "s30"), vpiece(0, "s97", "s31"), kpiece(1, "s96", "s30"), vpiece(1, "s97", "s31")]
        dma = list(dma) + [""] * (4 - len(dma))
        pv = [f"v_mfma_f32_32x32x16_bf16 {vr(OA+16*t,16)}, {vr(VF+4*(4*u+t),4)}, {vr(PP+4*u,4)}, {'0' if first and u == 0 else vr(OA+16*t,16)}" for u in range(2) for t in range(4)]
        adv = "s_mov_b32 s97, s96\ns_mov_b32 s96, s98\ns_mov_b32 s31, s30"
        if not last:
            for x in kreads(): a(x)
            for x in ex[:8]: a(x)
            fill = [[vrd[0], vrd[1], ex[8], cv[0]], [vrd[2], vrd[3], ex[9], cv[1]], [vrd[4], vrd[5], ex[10], cv[2]], [vrd[6], ex[11], ex[12], cv[3]],
                    [vrd[7], vrd[8], ex[13], ad[0]], [vrd[9], vrd[10], ex[14], ad[1]], [vrd[11], vrd[12], ex[15], ad[2]], [vrd[13], vrd[14], vrd[15], ad[3]]]
            if cfg.early:
                for i in range(4): fill[2 * i].append(dma[i])
                dma = [""] * 4
            nv = 0
            for s, m in enumerate(qk(nxt)):
                a(m.replace(f"LG{s}", str(7 - s + nv)))
                for f in fill[s]:
                    a(f); nv += f.startswith("ds_")
            mt = maxtree(nxt)
            fill = [[cv[4], cv[5], ad[4], ad[5]], [cv[6], cv[7], ad[6], dma[0]], [ad[7], ad[8], dma[1]], [ad[9], ad[10], mt[0], mt[1], dma[2]],
                    [ad[11], mt[2], mt[3], dma[3]], [ad[12], ad[13], mt[4], mt[5]], [ad[14], ad[15], mt[6], mt[7]], [adv]]
            for n, m in enumerate(pv):
                if n == 0: a("s_waitcnt lgkmcnt(8)")
                if n == 4: a("s_waitcnt lgkmcnt(0)")
                a(m)
                if n == 7:
                    stub, back = a.label("stub"), a.label("back")
                    stubs.append((stub, back, 1 - par))
                    a(f"v_cmp_lt_f32 vcc, s100, v{MX}")
                for f in fill[n]: a(f)
            a(f"s_cbranch_vccnz {stub}\n{back}:")
        else:
            for x in vrd[:8]: a(x)
            for x in ex[:8] + cv[:4]: a(x)
            for x in vrd[8:]: a(x)
            fill = [[ex[8], ex[9], ex[10]], [ex[11], ex[12], ex[13]], [ex[14], ex[15], cv[4], cv[5]], [cv[6], cv[7], ad[0], ad[1], ad[2]],
                    [dma[0]] + ad[3:6], ad[6:9], ad[9:12], ad[12:16]]
            for n, m in enumerate(pv):
                if n == 0: a("s_waitcnt lgkmcnt(8)")
                if n == 4: a("s_waitcnt lgkmcnt(0)")
                a(m)
                for f in fill[n]: a(f)
    def wo_pieces(mbase, moff, soff):
        return [f"s_add_u32 m0, {mbase}, {moff + n*4096}\ns_add_u32 s35, {soff}, {n*16384}\nbuffer_load_dwordx4 v15, {S(SWO)}, s35 offen lds" for n in range(4)]
    step(0, 6 if kvg else 14, first=True)
    step(1, 6 if kvg else 10)
    a(f"s_mov_b32 {sIT}, 0\nL_aloop:")
    if cfg.stamps and cfg.sgrp == "a":
        for i in range(5):
            lab = a.label("st")
            a(f"s_cmp_lg_u32 {sIT}, {i}\ns_cbranch_scc1 {lab}")
            stamp(a, cfg, 2 + i, "a")
            a(f"s_waitcnt lgkmcnt(0)\n{lab}:")
    step(0, int(cfg.await_)); step(1, int(cfg.await_))
    a(f"s_add_u32 {sIT}, {sIT}, 1\ns_cmp_lt_u32 {sIT}, 5\ns_cbranch_scc1 L_aloop")
    stamp(a, cfg, 7, "a")
    if cfg.stamps and cfg.sgrp == "a": a("s_waitcnt lgkmcnt(0)")
    ts = [int(x) for x in cfg.tsched.split(",")]
    def wtouch(waves):
        if not waves: return []
        lab = a.label("wt"); m = sum(1 << w for w in waves)
        return [f"s_lshr_b32 s35, {m}, s3\ns_bitcmp1_b32 s35, 0\ns_cbranch_scc0 {lab}\nbuffer_load_dword v235, v8, {S(SWO)}, s6 offen\n{lab}:"]
    def at(t): return wtouch([i + 1 for i in range(7) if ts[i] == 100 + t])
    a(f"""
    s_lshl_b32 s4, {sCQ}, 19
    s_sub_u32 s35, s3, 1
    s_cmp_ge_u32 s3, 5
    s_cselect_b32 s34, 3, 0
    s_cselect_b32 s6, 1, 0
    s_sub_u32 s35, s35, s34
    s_cmp_eq_u32 s3, 1
    s_cselect_b32 s6, 1, s6
    s_add_u32 s35, s35, {sCQ}
    s_and_b32 s35, s35, 3
    s_lshl_b32 s35, s35, 1
    s_add_u32 s6, s6, s35
    s_lshl_b32 s6, s6, 18           ; wo rows of block (wave number)
    """)
    srd(a, SDBG, "s26", "s27", 256)
    a("v_mov_b32 v4, 0")
    step(0, 8, [vpiece(0, "s97", "s31"), vpiece(1, "s97", "s31"), f"buffer_load_dword {VTAG}, v4, {S(SDBG)}, 0 offen {SC}"] + at(12))
    a(f"""
    s_lshr_b32 s34, s3, 2
    s_lshl_b32 s35, s34, 16
    s_add_u32 s5, s4, s35
    s_lshl_b32 {sA}, {sWI}, 10
    s_add_u32 {sA}, {sA}, {WO0}
    s_lshl_b32 s35, s34, 14
    s_add_u32 {sBb}, {sA}, s35
    """)
    def plus(l, t):
        l = list(l)
        if t: l[-1] += "\n" + t[0]
        return l
    step(1, 6, plus(wo_pieces(sBb, 0, "s5"), at(13)))
    a("s_add_u32 s5, s5, 0x20000")
    step(0, 6, plus(wo_pieces(sBb, 32768, "s5"), at(14)))
    step(1, 8, at(15), last=True)
    stamp(a, cfg, 4)
    a(f"v_mov_b32 v{T0}, v{L_}\ns_nop 1\nv_permlane32_swap_b32 v{T0}, v{L_}\ns_nop 1\nv_add_f32 v{L_}, v{L_}, v{T0}\nv_rcp_f32 v{L_}, v{L_}\ns_mul_i32 s34, {sCQ}, 57344\ns_barrier\ns_mov_b64 exec, s[32:33]")
    def epi(store):
        for t in range(4):
            for jj in range(2):
                b = OA + 16*t + 8*jj
                for i in range(8): a(f"v_mul_f32 v{b+i}, v{b+i}, v{L_}")
                for i in range(4): a(f"v_cvt_pk_bf16_f32 v{b+i}, v{b+2*i}, v{b+2*i+1}")
                a(f"ds_write_b128 v14, {vr(b,4)} offset:{t*7168 + jj*512}")
                if store: a(f"buffer_store_dwordx4 {vr(b,4)}, v14, {S(SO)}, s34 offen offset:{jj*512} {SC}")
            if store: a("s_add_u32 s34, s34, 7168")
        a("s_mov_b64 exec, -1\nv_lshlrev_b32 v14, 4, v0")
    a("s_cmp_ge_u32 s3, 4\ns_cbranch_scc1 L_omm")

    epi(True)
    a(f"""
    s_lshl_b32 {sBb}, {sWI}, 10
    v_add_u32 v9, {sBb}, v14
    s_mul_i32 s35, {sWI}, 7168
    s_add_u32 s35, s35, 28672
    v_add_u32 v7, s35, v14
    s_mul_i32 s33, {sCQ}, 57344
    s_add_u32 s32, s33, 4096
    s_lshl_b32 s35, s2, 7
    s_add_u32 s35, s35, {FLAGS}
    v_mov_b32 v6, s35
    s_waitcnt vmcnt(12) lgkmcnt(0)
    s_barrier
    """)
    for i in range(7): a(f"ds_read_b128 {vr(16+4*i,4)}, v7 offset:{i*1024}")
    a(f"v_cmp_eq_u32 vcc, 0, {VTAG}\ns_cbranch_vccz L_tagok")
    poll(a, cfg, "L_pt", SDBG, "v4", VTAG, "eq", "0")
    a("L_tagok:")
    def head_of(blk, reg):
        d, h = (0, blk) if blk < 2 else ((blk - 1, 0) if blk < 5 else (blk - 4, 1))
        a(f"s_add_u32 {reg}, {sCQ}, {d}\ns_and_b32 {reg}, {reg}, 3\ns_lshl_b32 {reg}, {reg}, 1")
        if h: a(f"s_add_u32 {reg}, {reg}, 1")
    def flag(word):
        lab = a.label("nf")
        a(f"s_cmp_lg_u32 s3, 0\ns_cbranch_scc1 {lab}\ns_mov_b64 exec, 1\nbuffer_store_dword {VTAG}, v6, {S(SWS)}, 0 offen offset:{4*word} {SC}\ns_mov_b64 exec, -1\n{lab}:")
    q = [("w", 2, 4), ("sa", 0, 8)]
    fa, ol, st0 = int(cfg.fa), int(cfg.olead), int(cfg.st0)
    fb = st0 + 9
    for u in range(32):
        need = [i for i, e in enumerate(q) if (e[0] in "wo" and e[1] <= u + 1) or (e[0] == "sa" and u >= fa) or (e[0] == "sb" and u >= fb)]
        if need:
            a(f"s_waitcnt vmcnt({sum(e[2] for e in q[max(need) + 1:])})")
            q = q[max(need) + 1:]
        a("s_barrier")
        if u in (0, 3, 4, 5, 13, 21): stamp(a, cfg, {0: 1, 3: 2, 4: 3, 5: 4, 13: 5, 21: 6}[u], "o")
        if u == fa: flag(0)
        if u == fb: flag(1)
        o = u + ol
        def flag_addr(o, v):
            head_of(o >> 2, "s5")
            a(f"""
            s_andn2_b32 s35, s2, 0x18
            s_lshr_b32 s34, s5, 1
            s_lshl_b32 s34, s34, 3
            s_or_b32 s35, s35, s34
            s_lshl_b32 s35, s35, 7
            s_add_u32 s35, s35, {FLAGS + (4 if o >= 20 else 0)}
            v_mov_b32 {v}, s35
            """)
        if (o + 2) % 4 == 0 and 12 <= o + 2 < 32:
            flag_addr(o + 2, "v5")
            a(f"buffer_load_dword v13, v5, {S(SWS)}, 0 offen {SC}")
            q.append(("o", u + 3, 1))
        if 8 <= o < 32:
            if o % 4 == 0:
                if o == 8: flag_addr(o, "v5")
                else: a(f"v_cmp_ne_u32 vcc, {VTAG}, v13\ns_cbranch_vccz L_po{o}_out")
                poll(a, cfg, f"L_po{o}", SWS, "v5", "v12", "ne", VTAG)
                if o == 8: q = []
                a("s_mul_i32 s31, s5, 28672")
            lab = a.label("os"); sl = o % 8
            a(f"s_add_u32 m0, {sBb}, {sl*7168}\ns_add_u32 s35, s31, {(o&3)*7168}\nbuffer_load_dwordx4 v9, {S(SO)}, s35 offen {SC} lds")
            a(f"s_cmp_eq_u32 {sWI}, 3\ns_cbranch_scc1 {lab}\ns_add_u32 m0, {sBb}, {sl*7168 + 4096}\ns_add_u32 s35, s35, 4096")
            a(f"buffer_load_dwordx4 v9, {S(SO)}, s35 offen {SC} lds\n{lab}:")
            q.append(("o", o, 1))
        w = u + 4
        if w < 32:
            if w % 4 == 0:
                head_of(w >> 2, "s30")
                a("s_lshl_b32 s30, s30, 18")
            for n in range(4):
                a(f"s_add_u32 m0, {sA}, {(w%4)*16384 + n*4096}\ns_add_u32 s35, s30, {(w&3)*65536 + n*16384}\nbuffer_load_dwordx4 v15, {S(SWO)}, s35 offen lds")
            q.append(("w", w, 4))
        if st0 <= u < st0 + 7:
            i = u - st0
            a(f"s_waitcnt lgkmcnt({6-i})\nbuffer_store_dwordx4 {vr(16+4*i,4)}, v7, {S(SO)}, {'s33' if i < 4 else 's32'} offen offset:{(i&3)*1024} {SC}")
            q.append(("sb", 0, 1))
        for blk in range(1, 8):
            if ts[blk - 1] == u:
                lab = a.label("lt")
                a(f"s_cmp_lg_u32 s3, {blk & 3}\ns_cbranch_scc1 {lab}")
                head_of(blk, "s6")
                a(f"s_lshl_b32 s6, s6, 18\nbuffer_load_dword v235, v8, {S(SWO)}, s6 offen\n{lab}:")
    stamp(a, cfg, 5)
    stamp(a, cfg, 7, "o")
    stamp_store(a, cfg, 0, 0, "L_end")
    a("s_branch L_end")

    a("L_omm:")
    epi(False)
    a(f"""
    v_lshrrev_b32 v4, 4, v0         ; g4
    v_bfe_u32 v5, v0, 2, 2          ; r
    v_and_b32 v6, 3, v0             ; c
    v_and_b32 v7, 1, v4
    v_lshl_add_u32 v9, v7, 2, v5    ; k & 7
    v_lshrrev_b32 v7, 1, v4
    v_lshl_add_u32 v7, v7, 4, v9
    v_lshlrev_b32 v7, 9, v7
    v_lshrrev_b32 v8, 1, v6
    v_lshl_add_u32 v7, v8, 4, v7
    v_and_b32 v8, 1, v6
    v_lshl_add_u32 v7, v8, 3, v7
    v_add_u32 v7, {WO0}, v7
    v_xor_b32 v9, {sWI}, v9
    """)
    for tau in range(4):
        a(f"""
        s_add_u32 s35, {sHG}, {tau}
        s_and_b32 s34, s35, 1
        s_lshl_b32 s34, s34, 2
        s_bfe_u32 s35, s35, 0x10001
        s_lshl_b32 s35, s35, 8
        v_xor_b32 v1, s34, v9
        v_lshl_add_u32 v1, v1, 5, v7
        v_add_u32 v{10+tau}, s35, v1
        """)
    def oreads(u):
        fb = FB + 44 * (u & 1)
        r = [f"ds_read_b64_tr_b16 {vr(fb+4*t+2*j,2)}, v{10+t} offset:{(u%4)*16384 + j*4096}" for t in range(4) for j in range(2)]
        xs = [f"ds_read_b128 {vr(fb+16+4*qt,4)}, v14 offset:{(u%8)*7168 + qt*1024}" for qt in range(7)]
        return r[:2] + xs[:1] + r[2:] + xs[1:]
    a(f"v_mov_b32 v4, 0\ns_waitcnt vmcnt(4) lgkmcnt(0)\ns_barrier")
    stamp(a, cfg, 5)
    for r in oreads(0): a(r)
    gloop("L_o", 8, 4, oreads, {2: " vmcnt(0)"})
    stamp(a, cfg, 6)
    a(f"""
    s_lshl_b32 s30, {sBR}, 3
    s_add_u32 s30, s30, {sB}
    s_lshl_b32 s30, s30, 2
    s_add_u32 s30, s30, {sCQ}
    s_mul_i32 s30, s30, {12*16384}
    s_lshl_b32 s35, {sWI}, 12
    s_add_u32 s30, s30, s35
    s_add_u32 s30, s30, {RED}
    v_lshlrev_b32 v15, 3, v0
    """)
    for tau in range(1, 4):
        a(f"""
        s_add_u32 s35, {sHG}, {tau}
        s_and_b32 s35, s35, 3
        s_mul_i32 s35, s35, {3*16384}
        s_add_u32 s35, s35, s30
        s_add_u32 s35, s35, {(tau-1)*16384}
        """)
        for pr in range(4):
            b = ACC + 4 * (tau * 7 + 2 * pr)
            for i in range(4 if pr < 3 else 2): a(f"v_cvt_pk_bf16_f32 v{b+i}, v{b+2*i}, v{b+2*i+1}")
            if pr < 3: a(f"buffer_store_dwordx4 {vr(b,4)}, v14, {S(SWS)}, s35 offen offset:{pr*1024} {SC}")
            else: a(f"buffer_store_dwordx2 {vr(b,2)}, v15, {S(SWS)}, s35 offen offset:3072 {SC}")
    a(f"""
    s_lshl_b32 s35, s2, 7
    s_lshl_b32 s34, {sWI}, 2
    s_add_u32 s34, s34, {FLAGS + 16}
    s_add_u32 s35, s35, s34
    v_mov_b32 v5, s35
    v_min_u32 v6, 2, v0
    v_sub_u32 v6, {sHG}, v6
    v_add_u32 v6, -1, v6
    v_and_b32 v6, 3, v6
    s_andn2_b32 s35, s2, 3
    v_or_b32 v6, s35, v6
    v_lshlrev_b32 v6, 7, v6
    v_add_u32 v6, s34, v6
    s_mul_i32 s35, {sB}, 458752
    s_lshl_b32 s34, {sBR}, 11
    s_add_u32 s35, s35, s34
    s_lshl_b32 s34, {sCQ}, 9
    s_add_u32 s35, s35, s34
    s_lshl_b32 s34, {sHG}, 7
    s_add_u32 s35, s35, s34
    s_sub_u32 s34, 3670016, s35
    """)
    srd_off(a, SOUT, "s24", "s25", "s35", "s34")
    a(f"""
    v_and_b32 v7, 15, v0
    v_lshlrev_b32 v7, 12, v7
    v_lshrrev_b32 v9, 4, v0
    v_lshl_add_u32 v7, v9, 3, v7
    s_lshl_b32 s35, {sWI}, 5
    v_add_u32 v7, s35, v7
    s_mul_i32 s35, {sHG}, {3*16384}
    s_add_u32 s30, s30, s35
    s_waitcnt vmcnt(0) lgkmcnt(0)
    v_cmp_eq_u32 vcc, 0, {VTAG}
    s_cbranch_vccz L_tagok2
    """)
    poll(a, cfg, "L_pt2", SDBG, "v4", VTAG, "eq", "0")
    a(f"""
    L_tagok2:
    s_mov_b64 exec, 1
    buffer_store_dword {VTAG}, v5, {S(SWS)}, 0 offen {SC}
    s_mov_b64 exec, -1
    """)
    stamp(a, cfg, 1)
    poll(a, cfg, "L_pr", SWS, "v6", "v9", "ne", VTAG)
    stamp(a, cfg, 2)
    a("s_add_u32 s33, s30, 16384\ns_add_u32 s34, s30, 32768")
    for pr in range(4):
        for s_, so in enumerate(("s30", "s33", "s34")):
            r = FB + 12 * pr + 4 * s_
            if pr < 3: a(f"buffer_load_dwordx4 {vr(r,4)}, v14, {S(SWS)}, {so} offen offset:{pr*1024} {SC}")
            else: a(f"buffer_load_dwordx2 {vr(r,2)}, v15, {S(SWS)}, {so} offen offset:3072 {SC}")
    a("s_mov_b32 s33, 0xffff0000")
    nst = 0
    for pr in range(4):
        a(f"s_waitcnt vmcnt({3*(3-pr) + nst})")
        for h in range(2 if pr < 3 else 1):
            qt = 2 * pr + h; b = ACC + 4 * qt
            for s_ in range(3):
                r = FB + 12 * pr + 4 * s_ + 2 * h
                for d in range(2):
                    a(f"v_lshlrev_b32 v{200+2*d}, 16, v{r+d}\nv_and_b32 v{201+2*d}, s33, v{r+d}")
                for i in range(4): a(f"v_add_f32 v{b+i}, v{b+i}, v{200+i}")
            a(f"v_cvt_pk_bf16_f32 v{b}, v{b}, v{b+1}\nv_cvt_pk_bf16_f32 v{b+1}, v{b+2}, v{b+3}")
            a(f"s_mov_b32 s35, {qt*65536}\nbuffer_store_dwordx2 {vr(b,2)}, v7, {S(SOUT)}, s35 offen")
            nst += 1
    if cfg.stamps: a("s_waitcnt vmcnt(0)")
    stamp(a, cfg, 7)
    stamp_store(a, cfg, 4, 256, "L_end")
    a("L_end:\ns_endpgm")
    for stub, back, par in stubs:
        a(f"{stub}:\ns_call_b64 s[98:99], L_rare{par}\ns_branch {back}")
    for par in range(2):
        sb = SS + 16 * par
        a(f"""
        L_rare{par}:
        v_mov_b32 v{T0}, v{MX}
        s_nop 1
        v_permlane32_swap_b32 v{T0}, v{MX}
        s_nop 1
        v_max3_f32 v{MX}, v{MX}, v{T0}, 0
        v_exp_f32 v{T0}, -v{MX}
        """)
        for i in range(16): a(f"v_sub_f32 v{sb+i}, v{sb+i}, v{MX}")
        for i in range(16): a(f"v_sub_f32 v{NM+i}, v{NM+i}, v{MX}")
        a(f"v_mul_f32 v{L_}, v{L_}, v{T0}")
        for i in range(64): a(f"v_mul_f32 v{OA+i}, v{OA+i}, v{T0}")
        a("s_setpc_b64 s[98:99]")
    t = a.text()
    if "noam" in cfg.abl: t = "\n".join(l for l in t.split("\n") if "v_mfma_f32_32x32" not in l)
    if cfg.kvpol:
        import re
        t = re.sub(r"(buffer_load_dwordx4 v[23], s\[\d+:\d+\], s35 offen) lds", r"\1 " + cfg.kvpol.replace("+", " ") + " lds", t)
    return t

def build(cfg):
    K = NAME + "_kernel"
    body = kernel_head(K) + kernel(cfg) + kernel_desc(K, 240, 240)
    tgt = '.amdgcn_target "amdgcn-amd-amdhsa--gfx950"\n'
    if cfg.echo:
        from gen2 import echo_kernel
        hdr = f"; @launch kernel={K} grid=(256,1,1) block=(512,1,1) lds=163840\n; @launch kernel=echo_kernel grid=(1,1,1) block=(64,1,1) lds=0\n"
        return hdr + tgt + kernel_head("echo_kernel") + echo_kernel(cfg) + kernel_desc("echo_kernel", 8, 8) + body
    return "; @launch grid=(256,1,1) block=(512,1,1) lds=163840\n" + tgt + body

if __name__ == "__main__":
    cfg = Cfg()
    for kv in sys.argv[2:]:
        k, v = kv.split("=")
        setattr(cfg, k, {"True": True, "False": False}.get(v, v))
    open(sys.argv[1], "w").write(build(cfg))
```

```python
import sys, math, struct
from asmlib import *
from gen3 import S, stamp, stamp_store, srd_off, weave, poll, SC
from gen3 import sBR, sHG, sCQ, sB, sWI, sIT, sA, sBb, sT, sU, SX, SW, SK, SV, SO, SWO, SWS, SOUT, SDBG, RED, FLAGS, TAG, VTAG

class Cfg:
    stamps = False
    sgrp = "main"
    kvpol = ""
    await_ = 8
    early = False
    qord = "alt4"
    qrot = True
    kv0 = 7
    tsched = "113,115,1,4,7,10,13"
    fa = 2
    olead = 3
    st0 = 1
    kvper = 4
    kvu = 0
    zpad = False
    kvg = 0
    qtouch = 0
    krot = True
    echo = ""
    abl = ""
    spin = 400000

WQ0 = 28672
KT, HSTEP, SLOTB = 8448, 17152, 34304
VD = "v237"
SA_, SB_, SC_, SD_ = 94208, 128512, 0, 34304
HO = 36864
WO0 = 94208
ACC, FB = 16, 128

def kernel(cfg):
    a = A()
    a("s_cmp_ge_u32 s2, 256\ns_cbranch_scc1 L_end")
    stamp(a, cfg, 0)
    a(f"""
    s_load_dwordx16 s[4:19], s[0:1], 0
    s_load_dwordx8 s[20:27], s[0:1], 64
    s_load_dwordx2 s[28:29], s[0:1], 96
    v_lshrrev_b32 v1, 6, v0
    v_and_b32 v0, 63, v0
    v_readfirstlane_b32 s3, v1
    v_lshrrev_b32 v4, 4, v0
    v_and_b32 v5, 15, v0
    v_lshlrev_b32 v6, 11, v4
    v_lshl_add_u32 v3, v5, 4, v6
    v_mov_b32 v2, v3
    s_bitcmp0_b32 s2, 2
    s_waitcnt lgkmcnt(0)
    s_cselect_b64 s[4:5], s[4:5], s[14:15]
    s_cselect_b64 s[6:7], s[6:7], s[16:17]
    s_cselect_b64 s[8:9], s[8:9], s[18:19]
    s_cselect_b64 s[10:11], s[10:11], s[20:21]
    s_cselect_b64 s[12:13], s[12:13], s[22:23]
    s_bfe_u32 {sBR}, s2, 0x10002
    s_and_b32 {sHG}, s2, 3
    s_bfe_u32 {sCQ}, s2, 0x20003
    s_lshr_b32 {sB}, s2, 5
    s_and_b32 {sWI}, s3, 3
    s_mul_i32 s35, {sB}, 229376
    """)
    srd_off(a, SX, "s4", "s5", "s35", 229376)
    a(f"s_lshl_b32 s33, {sHG}, 2\ns_add_u32 s33, s33, {sCQ}\ns_lshl_b32 s35, s33, 9\ns_sub_u32 s34, 0x800000, s35")
    srd_off(a, SW, "s10", "s11", "s35", "s34")
    a("s_cmp_ge_u32 s3, 4\ns_cbranch_scc1 L_qload")

    def other_srds():
        a(f"s_lshl_b32 s35, {sB}, 22\ns_lshl_b32 s34, s33, 18\ns_add_u32 s35, s35, s34")
        srd_off(a, SK, "s6", "s7", "s35", 262144)
        srd_off(a, SV, "s8", "s9", "s35", 262144)
        a(f"s_lshl_b32 s35, {sBR}, 3\ns_add_u32 s35, s35, {sB}\ns_lshl_b32 s35, s35, 2\ns_add_u32 s35, s35, {sHG}\ns_mul_i32 s35, s35, 229376")
        srd_off(a, SO, "s28", "s29", "s35", 229376)
        a(f"s_lshl_b32 s35, {sHG}, 21\ns_lshl_b32 s34, {sCQ}, 9\ns_add_u32 s35, s35, s34\ns_sub_u32 s34, 0x200000, s34")
        srd_off(a, SWO, "s12", "s13", "s35", "s34")
        srd(a, SWS, "s28", "s29", 0x10000000)
        if cfg.krot: a("s_lshr_b32 s101, s2, 3\ns_lshr_b32 s35, s2, 7\ns_add_u32 s101, s101, s35\ns_lshl_b32 s35, s2, 1\ns_add_u32 s101, s101, s35\ns_and_b32 s101, s101, 15\ns_lshl_b32 s101, s101, 13")
        else: a("s_mov_b32 s101, 0")
    def gmf(u, zero=False):
        fb = FB + 44 * (u & 1)
        return [f"v_mfma_f32_16x16x32_bf16 {vr(ACC+4*(t*7+qt),4)}, {vr(fb+4*t,4)}, {vr(fb+16+4*qt,4)}, {'0' if zero else vr(ACC+4*(t*7+qt),4)}" for qt in range(7) for t in range(4)]
    def gloop(name, period, iters, reads, pre, extra=None):
        a("s_waitcnt lgkmcnt(0)\ns_barrier")
        weave(a, gmf(0, True), reads(1))
        a(f"s_mov_b32 {sIT}, 0\ns_branch {name}_mid\n{name}:")
        for u in range(period):
            a(f"s_waitcnt lgkmcnt(0){pre.get(u, '')}\ns_barrier")
            weave(a, gmf(u), reads(u + 1) + (extra(u) if extra else []))
            if u == 0: a(f"{name}_mid:")
        a(f"s_add_u32 {sIT}, {sIT}, 1\ns_cmp_lt_u32 {sIT}, {iters}\ns_cbranch_scc1 {name}")

    other_srds()
    a(f"""
    s_cmp_lg_u32 s2, 0
    s_cbranch_scc1 L_notag
    s_cmp_lg_u32 s3, 0
    s_cbranch_scc1 L_notag
    s_mov_b32 s{SX}, s26
    s_and_b32 s{SX+1}, s27, 0xffff
    s_mov_b32 s{SX+2}, 256
    v_mov_b32 v4, {TAG}
    v_mov_b32 v7, 0
    s_mov_b32 s34, 1664525
    s_mov_b32 s35, 1013904223
    buffer_load_dword v5, v4, {S(SWS)}, 0 offen {SC}
    s_waitcnt vmcnt(0)
    v_mul_lo_u32 v5, v5, s34
    v_add_u32 v5, s35, v5
    v_mov_b32 v6, s35
    v_cmp_eq_u32 vcc, 0, v5
    s_nop 1
    v_cndmask_b32 v5, v5, v6, vcc
    s_mov_b64 exec, 1
    buffer_store_dword v5, v7, {S(SX)}, 0 offen {SC}
    buffer_store_dword v5, v4, {S(SWS)}, 0 offen {SC}
    s_mov_b64 exec, -1
    L_notag:
    v_lshrrev_b32 v4, 4, v0         ; g4
    v_bfe_u32 v5, v0, 2, 2          ; r
    v_and_b32 v6, 3, v0             ; c
    v_lshl_add_u32 v7, v4, 3, v5
    v_lshlrev_b32 v7, 9, v7
    v_lshrrev_b32 v9, 1, v6
    v_lshl_add_u32 v7, v9, 4, v7
    v_and_b32 v9, 1, v6
    v_lshl_add_u32 v7, v9, 3, v7
    s_lshr_b32 s35, {sWI}, 1
    s_lshl_b32 s35, s35, 8
    s_add_u32 s35, s35, {WQ0}
    v_add_u32 v7, s35, v7
    v_and_b32 v9, 1, v4
    v_lshl_or_b32 v9, v9, 2, v5
    s_and_b32 s35, {sWI}, 1
    s_lshl_b32 s35, s35, 2
    v_xor_b32 v9, s35, v9
    """)
    for t in range(4): a(f"v_xor_b32 v1, {t}, v9\nv_lshl_add_u32 v{10+t}, v1, 5, v7")
    cbits = struct.unpack("<I", struct.pack("<f", (128 ** -0.5) * math.log2(math.e)))[0]
    a(f"""
    v_and_b32 v5, 15, v0
    v_lshrrev_b32 v6, 1, v5
    v_xor_b32 v6, v6, v4
    v_lshlrev_b32 v7, 7, v5
    v_lshl_add_u32 v14, v6, 4, v7
    v_xor_b32 v15, 64, v14
    v_lshlrev_b32 v5, 4, v5
    v_lshrrev_b32 v6, 5, v0
    v_lshl_add_u32 v5, v6, 8, v5
    v_bfe_u32 v6, v0, 4, 1
    v_lshl_add_u32 v5, v6, 3, v5
    s_lshr_b32 s34, {sWI}, 1
    s_mul_i32 s34, s34, 28672
    s_and_b32 s35, {sWI}, 1
    s_lshl_b32 s35, s35, 11
    s_add_u32 s34, s34, s35
    s_add_u32 s34, s34, {HO}
    v_add_u32 v8, s34, v5
    s_mov_b32 s30, {cbits:#x}
    s_mov_b32 s31, {cbits:#x}
    s_barrier
    """)
    def qreads(u):
        fb = FB + 44 * (u & 1)
        r = [f"ds_read_b64_tr_b16 {vr(fb+4*t+2*j,2)}, v{10+t} offset:{(u%4)*16384 + j*2048}" for t in range(4) for j in range(2)]
        xs = [f"ds_read_b128 {vr(fb+16+4*qt,4)}, v{14+(u&1)} offset:{((u>>1)&1)*14336 + qt*2048}" for qt in range(7)]
        return r[:2] + xs[:1] + r[2:] + xs[1:]
    stamp(a, cfg, 1)
    for r in qreads(0): a(r)
    kvg = int(cfg.kvg)
    def gkv(u):
        lab = a.label("gk"); out = []
        if u == 0:
            out.append(f"""s_sub_u32 s98, {sIT}, {kvg}
            s_and_b32 s99, s98, 1
            s_cselect_b64 s[{SX}:{SX+1}], s[{SV}:{SV+1}], s[{SK}:{SK+1}]
            s_cselect_b32 s97, 0, 0
            s_cselect_b32 s96, {KT}, 0
            s_cselect_b64 vcc, -1, 0
            s_add_u32 s97, s97, 1056
            s_add_u32 s96, s96, {SA_}""")
            out.append(f"""s_lshr_b32 s99, s98, 1
            s_mul_i32 s35, s99, {SLOTB}
            s_add_u32 s96, s96, s35
            s_mul_i32 s35, s97, {sWI}
            s_add_u32 s96, s96, s35
            v_cndmask_b32 v9, v2, v3, vcc""")
            out.append(f"""s_lshl_b32 s99, s99, 13
            s_add_u32 s99, s99, s101
            s_and_b32 s99, s99, 0x1ffff
            s_lshl_b32 s35, {sWI}, 8
            s_add_u32 s99, s99, s35
            s_lshl_b32 s97, s97, 2""")
        out.append(f"""s_cmp_gt_u32 s98, 3
        s_cbranch_scc1 {lab}
        s_add_u32 s34, s96, {'s97' if u & 1 else 0}
        s_add_u32 m0, s34, {(u >> 1) * HSTEP}
        s_add_u32 s35, s99, {(u >> 1) * 131072 + (u & 1) * 1024}
        buffer_load_dwordx4 v9, {S(SX)}, s35 offen lds
        {lab}:""")
        return [""] * 3 + out
    if kvg: a(f"s_mov_b32 s{SX+2}, 262144\ns_mov_b32 s98, 4")
    gloop("L_q", 4, 8, qreads, {}, gkv if kvg else None)
    stamp(a, cfg, 2)
    a("s_waitcnt lgkmcnt(0)\ns_barrier")
    for qt in range(7):
        for t in range(4):
            acc = ACC + 4 * (t * 7 + qt)
            a(f"v_pk_mul_f32 {vr(acc,2)}, {vr(acc,2)}, s[30:31]\nv_pk_mul_f32 {vr(acc+2,2)}, {vr(acc+2,2)}, s[30:31]")
            a(f"v_cvt_pk_bf16_f32 v{acc}, v{acc}, v{acc+1}\nv_cvt_pk_bf16_f32 v{acc+1}, v{acc+2}, v{acc+3}")
            a(f"ds_write_b64 v8, {vr(acc,2)} offset:{qt*4096 + t*512}")
    a("s_branch L_join")
    a(f"""
    L_qload:
    v_lshrrev_b32 v4, 5, v0
    v_and_b32 v5, 31, v0
    s_and_b32 s35, {sWI}, 1
    s_lshr_b32 s34, {sWI}, 1
    s_lshl_b32 {sA}, s35, 1
    s_lshl_b32 {sBb}, s34, 2
    s_add_u32 {sA}, {sA}, {sBb}
    v_add_u32 v6, {sA}, v4
    v_lshlrev_b32 v6, 1, v6
    v_xor_b32 v5, v5, v6
    s_lshl_b32 {sBb}, s34, 3
    s_lshl_b32 {sA}, s35, 1
    s_add_u32 {sA}, {sA}, {sBb}
    v_add_u32 v4, {sA}, v4
    v_lshlrev_b32 v4, 13, v4
    v_lshl_add_u32 v10, v5, 4, v4
    s_lshl_b32 {sA}, {sA}, 9
    s_add_u32 {sA}, {sA}, {WQ0}
    v_lshrrev_b32 v4, 3, v0
    v_and_b32 v5, 7, v0
    v_lshrrev_b32 v6, 1, v4
    s_lshl_b32 {sBb}, s35, 2
    v_add_u32 v6, {sBb}, v6
    v_xor_b32 v5, v5, v6
    s_lshl_b32 {sBb}, {sWI}, 3
    v_add_u32 v4, {sBb}, v4
    v_lshlrev_b32 v4, 11, v4
    v_lshl_add_u32 v11, v5, 4, v4
    s_lshl_b32 {sBb}, {sWI}, 10
    """)
    def tab(order): return sum(st << (4 * t) for t, st in enumerate(order))
    if cfg.qord:
        if cfg.qord == "alt2":
            orders = [[g] + [(t + 1 + g if t & 1 else t - 1 - g) for t in range(1, 15)] + [15 - g] for g in range(2)]
            a(f"s_xor_b32 s35, {sB}, {sCQ}\ns_and_b32 s35, s35, 1")
        else:
            orders = []
            for g in range(4):
                f = lambda j: [4 * j + ((g + i) & 3) for i in (1, 2, 3)]
                orders.append([g, 4 + g] + f(0) + [8 + g] + f(1) + [12 + g] + f(2) + f(3))
            a(f"s_add_u32 s35, {sB}, {sCQ}\ns_and_b32 s35, s35, 3")
        for g, o in enumerate(orders):
            assert sorted(o) == list(range(16))
            v = tab(o)
            a(f"s_cmp_eq_u32 s35, {g}\ns_cselect_b32 s98, {v & 0xffffffff:#x}, s98\ns_cselect_b32 s99, {v >> 32:#x}, s99")
        a("s_mov_b64 s[0:1], s[98:99]\ns_and_b32 s31, s0, 15\ns_lshl_b32 s30, s31, 19\ns_lshl_b32 s31, s31, 7")
    elif cfg.qrot: a(f"s_xor_b32 s35, {sB}, {sCQ}\ns_and_b32 s35, s35, 1\ns_lshl_b32 s30, s35, 22\ns_lshl_b32 s31, s35, 10")
    else: a("s_mov_b32 s30, 0\ns_mov_b32 s31, 0")
    qt_ = int(cfg.qtouch)
    if qt_:
        a(f"""
        s_lshl_b32 s35, {sB}, 3
        s_lshl_b32 s34, {sWI}, 1
        s_add_u32 s35, s35, s34
        v_lshrrev_b32 v4, 2, v0
        v_add_u32 v4, s35, v4
        v_lshlrev_b32 v4, 13, v4
        v_and_b32 v5, 3, v0
        v_lshl_add_u32 v4, v5, 7, v4
        v_mov_b32 v6, 0x7fffffff
        v_cmp_gt_u32 vcc, 8, v0
        s_mul_i32 s35, {sCQ}, 28
        s_mul_i32 s34, {sWI}, 7
        v_cndmask_b32 v12, v6, v4, vcc
        s_add_u32 s35, s35, s34
        v_add_u32 v5, s35, v0
        v_lshlrev_b32 v5, 11, v5
        v_cmp_gt_u32 vcc, 7, v0
        s_mov_b32 s98, {2 << 19}
        s_mov_b32 s99, {2 << 7}
        v_cndmask_b32 v13, v6, v5, vcc
        """)
    def qtouch():
        a(f"buffer_load_dword {VD}, v13, {S(SX)}, s99 offen\nbuffer_load_dword {VD}, v12, {S(SW)}, s98 offen")
        a("s_add_u32 s98, s98, 0x80000\ns_add_u32 s99, s99, 128\ns_cmp_ge_u32 s99, 2048\ns_cselect_b32 s99, 0x40000000, s99")
    def issue_wq(slot):
        for pc in (0, 2, 8, 10):
            a(f"s_add_u32 m0, {sA}, {slot*16384 + pc*1024}\ns_add_u32 s35, s30, {pc*16384}")
            a(f"buffer_load_dwordx4 v10, {S(SW)}, s35 offen lds")
        if cfg.qord and (slot & 1): a("s_lshr_b64 s[98:99], s[98:99], 4\ns_and_b32 s30, s98, 15\ns_lshl_b32 s30, s30, 19")
        else: a("s_add_u32 s30, s30, 0x40000\ns_and_b32 s30, s30, 0x7fffff")
    def issue_x(slot):
        lab = a.label("xs")
        for n in range(4):
            if n == 3: a(f"s_cmp_ge_u32 {sWI}, 2\ns_cbranch_scc1 {lab}")
            a(f"s_add_u32 m0, {sBb}, {slot*14336 + n*4096}\ns_add_u32 s35, s31, {n*65536}")
            a(f"buffer_load_dwordx4 v11, {S(SX)}, s35 offen lds")
        if cfg.qord: a(f"{lab}:\ns_lshr_b64 s[0:1], s[0:1], 4\ns_and_b32 s31, s0, 15\ns_lshl_b32 s31, s31, 7")
        else: a(f"{lab}:\ns_add_u32 s31, s31, 128\ns_and_b32 s31, s31, 2047")
    def kv_piece(tile, hd, n, isv, slot):
        a(f"s_add_u32 s35, s101, {tile*8192}\ns_and_b32 s35, s35, 0x1ffff\ns_add_u32 s35, s35, s32\ns_add_u32 s35, s35, {hd*131072 + n*1024}")
        a(f"s_add_u32 m0, {'s97' if isv else 's96'}, {slot + hd*HSTEP + n*4*(1056 if isv else 1056)}\ns_nop 0")
        a(f"buffer_load_dwordx4 {'v3' if isv else 'v2'}, {S(SV if isv else SK)}, s35 offen lds")
    issue_x(0); issue_wq(0); issue_wq(1)
    other_srds()
    a(f"s_mul_i32 s96, {sWI}, 1056\ns_mul_i32 s97, {sWI}, 1056\ns_add_u32 s97, s97, {KT}\ns_lshl_b32 s32, {sWI}, 8")
    a("s_waitcnt vmcnt(4)\ns_barrier")
    issue_x(1); issue_wq(2)
    a("s_waitcnt vmcnt(7)\ns_barrier")
    issue_wq(3); issue_wq(0)
    for _ in range(qt_ - 1): qtouch()
    kv0 = int(cfg.kv0)
    kvl = [] if kvg else [(tile, hd, n, isv) for tile in range(2) for isv in range(2) for hd in range(2) for n in range(2)]
    a(f"s_mov_b32 {sIT}, 0\ns_branch L_qlmid\nL_qlloop:")
    for u in range(4):
        a(f"s_waitcnt vmcnt({8 if u & 1 else 11})\ns_barrier")
        if u & 1: issue_x((u >> 1) & 1)
        issue_wq(u)
        if qt_ and u % 2 == 0: qtouch()
        if u == 0: a("L_qlmid:")
    a(f"s_add_u32 {sIT}, {sIT}, 1\ns_cmp_lt_u32 {sIT}, {kv0}\ns_cbranch_scc1 L_qlloop")
    q = []
    for u in range(4 * kv0 - 4, 4 * kv0):
        if u & 1: q.append(("x", (u >> 1) + 2, 3))
        q.append(("w", u + 4, 4))
    per = int(cfg.kvper) or -(-16 // max(32 - 4 * kv0 - 2, 4))
    for u in range(4 * kv0, 32):
        need = [i for i, e in enumerate(q) if (e[0] == "w" and e[1] <= u + 1) or (e[0] == "x" and e[1] <= (u + 1) >> 1)]
        left = sum(e[2] for e in q[max(need) + 1:]) if need else 63
        a(f"s_waitcnt vmcnt({min(left, 63)})\ns_barrier")
        if (u & 1) and (u >> 1) + 2 < 16: issue_x((u >> 1) & 1); q.append(("x", (u >> 1) + 2, 3))
        if u + 4 < 32: issue_wq(u % 4); q.append(("w", u + 4, 4))
        if qt_ and u % 2 == 0 and (u >> 1) + qt_ < 16: qtouch(); q.append(("k", 0, 2))
        for _ in range(per if u >= int(cfg.kvu) else 0):
            if kvl:
                tile, hd, n, isv = kvl.pop(0)
                kv_piece(tile, hd, n, isv, (SA_, SB_)[tile]); q.append(("k", 0, 1))
    a("s_barrier")
    for tile, hd, n, isv in kvl: kv_piece(tile, hd, n, isv, (SA_, SB_)[tile])
    for isv in range(2):
        for hd in range(2):
            for n in range(2): kv_piece(2, hd, n, isv, SC_)
    if not kvg: a("s_waitcnt vmcnt(20)")

    QF, OA, SS, NM, KF, VF, PP = 16, 48, 112, 144, 160, 192, 224
    L_, MX, T0, T1 = 232, 234, 235, 238
    a(f"""
    L_join:
    s_lshr_b32 s34, s3, 2
    s_lshl_b32 s35, s34, 17
    s_add_u32 s{SK}, s{SK}, s35
    s_addc_u32 s{SK+1}, s{SK+1}, 0
    s_mov_b32 s{SK+2}, 131072
    s_add_u32 s{SV}, s{SV}, s35
    s_addc_u32 s{SV+1}, s{SV+1}, 0
    s_mov_b32 s{SV+2}, 131072
    s_mul_i32 s30, s34, {HSTEP}
    s_mul_i32 {sA}, {sWI}, 1056
    s_add_u32 {sA}, {sA}, s30
    s_add_u32 {sBb}, {sA}, {KT}
    v_lshlrev_b32 v5, 4, v0
    s_mul_i32 s35, s34, 28672
    s_lshl_b32 {sT}, {sWI}, 13
    s_add_u32 {sT}, {sT}, s35
    s_add_u32 {sT}, {sT}, {HO}
    v_add_u32 v9, {sT}, v5
    s_lshl_b32 {sT}, {sWI}, 11
    s_add_u32 s35, s35, {sT}
    v_add_u32 v14, s35, v5
    v_and_b32 v7, 7, v0
    v_mul_u32_u24 v7, 1056, v7
    v_bfe_u32 v1, v0, 3, 1
    v_lshl_add_u32 v7, v1, 8, v7
    v_lshrrev_b32 v1, 4, v0
    v_lshl_add_u32 v7, v1, 4, v7
    v_add_u32 v10, s30, v7
    v_bfe_u32 v7, v0, 2, 3
    v_mul_u32_u24 v7, 1056, v7
    v_lshrrev_b32 v1, 5, v0
    v_lshl_add_u32 v7, v1, 8, v7
    v_and_b32 v1, 3, v0
    v_lshl_add_u32 v7, v1, 3, v7
    s_add_u32 s35, s30, {KT}
    v_add_u32 v12, s35, v7
    v_add_u32 v11, {SA_}, v10
    s_lshl_b32 s35, {sWI}, 8
    s_add_u32 s101, s101, s35
    s_add_u32 s31, s101, {3*8192}
    s_and_b32 s31, s31, 0x1ffff
    s_mov_b32 s96, {SA_}
    s_mov_b32 s97, {SD_}
    s_mov_b32 s100, 0x41000000
    v_lshrrev_b32 v4, 5, v0
    s_lshl_b32 s35, {sWI}, 1
    v_add_u32 v4, s35, v4
    v_and_b32 v5, 31, v0
    v_lshlrev_b32 v6, 1, v4
    v_xor_b32 v5, v5, v6
    v_lshlrev_b32 v4, 11, v4
    v_lshl_add_u32 v15, v5, 4, v4   ; wo source offset
    v_lshrrev_b32 v4, 4, v0
    v_lshlrev_b32 v4, 5, v4
    v_bfe_u32 v5, v0, 2, 2
    v_add_u32 v4, v4, v5
    s_lshl_b32 s35, {sB}, 2
    v_add_u32 v4, s35, v4
    v_lshlrev_b32 v4, 11, v4
    v_and_b32 v5, 3, v0
    v_lshl_add_u32 v1, v5, 7, v4    ; wo lines to touch
    s_cmp_eq_u32 {sWI}, 3
    s_waitcnt lgkmcnt(0){" vmcnt(12)" if kvg else ""}
    v_mov_b32 v8, v1
    s_cbranch_scc1 L_attn1
    """)
    ts = [int(x) for x in cfg.tsched.split(",")]
    stubs = []
    def kpiece(n, slot, src): return f"s_add_u32 s34, {slot}, {sA}\ns_add_u32 m0, s34, {n*4*1056}\ns_add_u32 s35, {src}, {n*1024}\nbuffer_load_dwordx4 v2, {S(SK)}, s35 offen lds"
    def vpiece(n, slot, src): return f"s_add_u32 s34, {slot}, {sBb}\ns_add_u32 m0, s34, {n*4*1056}\ns_add_u32 s35, {src}, {n*1024}\nbuffer_load_dwordx4 v3, {S(SV)}, s35 offen lds"
    def wo_pieces(mbase, moff, soff):
        return [f"s_add_u32 m0, {mbase}, {moff + n*4096}\ns_add_u32 s35, {soff}, {n*16384}\nbuffer_load_dwordx4 v15, {S(SWO)}, s35 offen lds" for n in range(4)]
    def kreads(): return [f"ds_read_b128 {vr(KF+16*kt+4*s_,4)}, v11 offset:{kt*512 + 64*s_}" for s_ in range(4) for kt in range(2)]
    def tree(dst, tmp, b, n):
        if n == 8: return [f"v_max3_f32 v{dst}, v{b}, v{b+1}, v{b+2}", f"v_max3_f32 v{tmp}, v{b+3}, v{b+4}, v{b+5}",
                           f"v_max3_f32 v{dst}, v{dst}, v{b+6}, v{b+7}", f"v_max_f32 v{dst}, v{dst}, v{tmp}"]
        return ([f"v_max3_f32 v{dst}, v{b}, v{b+1}, v{b+2}", f"v_max3_f32 v{tmp}, v{b+3}, v{b+4}, v{b+5}"]
                + [f"v_max3_f32 v{(dst, tmp)[i&1]}, v{(dst, tmp)[i&1]}, v{b+6+2*i}, v{b+7+2*i}" for i in range(5)]
                + [f"v_max_f32 v{dst}, v{dst}, v{tmp}"])
    def across(op, r, tmp):
        for sw in ("16", "32"):
            a(f"s_nop 0\nv_mov_b32 v{tmp}, v{r}\ns_nop 1\nv_permlane{sw}_swap_b32 v{tmp}, v{r}\ns_nop 1\n{op} v{r}, v{r}, v{tmp}")
    def epi(store, NQ):
        for p in range(4):
            for qi in range(NQ):
                b = OA + 32*qi + 8*p
                for i in range(8): a(f"v_mul_f32 v{b+i}, v{b+i}, v{L_+qi}")
                for i in range(4): a(f"v_cvt_pk_bf16_f32 v{b+i}, v{b+2*i}, v{b+2*i+1}")
                a(f"ds_write_b128 v14, {vr(b,4)} offset:{p*7168 + qi*1024}")
                if store: a(f"buffer_store_dwordx4 {vr(b,4)}, v14, {S(SO)}, s34 offen offset:{qi*1024} {SC}")
            if store: a("s_add_u32 s34, s34, 7168")
        if store: a(f"s_waitcnt vmcnt({4 * NQ})")
    def attn(NQ):
        def qk(sb, zero=False):
            out = []
            for s_ in range(4):
                for kt in range(2):
                    for qi in range(NQ):
                        d = vr(sb + 8*qi + 4*kt, 4)
                        out.append((f"s_waitcnt lgkmcnt(LG{2*s_+kt})\n" if qi == 0 else "") +
                                   f"v_mfma_f32_16x16x32_bf16 {d}, {vr(KF+16*kt+4*s_,4)}, {vr(QF+16*qi+4*s_,4)}, {('0' if zero else vr(NM+4*qi,4)) if s_ == 0 else d}")
            return out
        def emit_qk(ms, fill):
            nv = 0
            for n, m in enumerate(ms):
                i = n // NQ
                a(m.replace(f"LG{i}", str(min(15, 7 - i + nv))))
                for f in fill[n]:
                    a(f); nv += f.startswith("ds_")
        a("s_barrier")
        for qi in range(NQ):
            for s_ in range(4): a(f"ds_read_b128 {vr(QF+16*qi+4*s_,4)}, v9 offset:{qi*4096 + s_*1024}")
        for x in kreads(): a(x)
        a("s_waitcnt lgkmcnt(8)\ns_barrier")
        stamp(a, cfg, 3)
        emit_qk(qk(SS, True), [[kpiece(0, "s97", "s31")], [], [kpiece(1, "s97", "s31")]] + [[]] * 16)
        a("s_nop 7")
        for qi in range(NQ):
            for x in tree(MX, T0, SS + 8*qi, 8): a(x)
            across("v_max_f32", MX, T0)
            a(f"v_mov_b32 v{L_+qi}, 0")
            for i in range(8): a(f"v_sub_f32 v{SS+8*qi+i}, v{SS+8*qi+i}, v{MX}")
            for i in range(4): a(f"v_sub_f32 v{NM+4*qi+i}, 0, v{MX}")
        def step(par, wait, dma=None, first=False, last=False):
            cur, nxt = SS + 16 * par, SS + 16 * (1 - par)
            a(f"""
            s_waitcnt vmcnt({wait})
            s_barrier
            s_add_u32 s98, s96, {SLOTB}
            s_cmp_eq_u32 s96, {SB_}
            s_cselect_b32 s98, 0, s98
            s_cmp_eq_u32 s96, {SD_}
            s_cselect_b32 s98, {SA_}, s98
            v_add_u32 v11, s98, v10
            v_add_u32 v13, s96, v12
            s_add_u32 s30, s31, 8192
            s_and_b32 s30, s30, 0x1ffff
            """)
            N = 8 * NQ
            vrd = [f"ds_read_b64_tr_b16 {vr(VF+4*t+2*j,2)}, v13 offset:{j*512 + 32*t}" for t in range(8) for j in range(2)]
            ex = [f"v_exp_f32 v{cur+i}, v{cur+i}" for i in range(N)]
            cv = [f"v_cvt_pk_bf16_f32 v{PP+i}, v{cur+2*i}, v{cur+2*i+1}" for i in range(N // 2)]
            ad = [f"v_add_f32 v{L_+(i>>3)}, v{L_+(i>>3)}, v{cur+i}" for i in range(N)]
            if NQ == 2: ad = [ad[(i >> 1) + 8 * (i & 1)] for i in range(16)]
            if dma is None: dma = [kpiece(0, "s96", "s30"), vpiece(0, "s97", "s31"), kpiece(1, "s96", "s30"), vpiece(1, "s97", "s31")]
            dma = list(dma) + [""] * (4 - len(dma))
            pv = [(f"s_waitcnt lgkmcnt({14 - 2*t})\n" if qi == 0 else "") +
                  f"v_mfma_f32_16x16x32_bf16 {vr(OA+32*qi+4*t,4)}, {vr(VF+4*t,4)}, {vr(PP+4*qi,4)}, {'0' if first else vr(OA+32*qi+4*t,4)}" for t in range(8) for qi in range(NQ)]
            adv = "s_mov_b32 s97, s96\ns_mov_b32 s96, s98\ns_mov_b32 s31, s30"
            def spread(items, gaps, lo=0):
                out = [[] for _ in range(gaps)]
                for i, x in enumerate(items): out[lo + i * (gaps - lo) // len(items)].append(x)
                return out
            def merge(*ls): return [sum((l[i] for l in ls), []) for i in range(len(ls[0]))]
            if not last:
                for x in kreads(): a(x)
                for x in ex[:8]: a(x)
                rest = (ex[8:] + cv[:4])[::1]
                if NQ == 2: valu = [ex[8], cv[0], ex[9], cv[1], ex[10], cv[2], ex[11], cv[3], ex[12], ex[13], cv[4], ex[14], cv[5], ex[15], cv[6], cv[7]]
                else: valu = cv + ad[:4]
                fill = merge(spread(vrd, N), spread(valu, N))
                if cfg.early:
                    fill = merge(fill, spread(dma, N)); dma = [""] * 4
                emit_qk(qk(nxt), fill)
                a("s_nop 0")
                mt = tree(MX, T0, nxt, N)
                fill = merge(spread(ad if NQ == 2 else ad[4:], N - 1) + [[]], spread(dma, N - 1) + [[]], spread(mt, N - 1, N // 2 - 1) + [[]])
                for n, m in enumerate(pv):
                    a(m)
                    if n == N - 1:
                        stub, back = a.label("stub"), a.label("back")
                        stubs.append((stub, back, 1 - par, NQ))
                        a(f"v_cmp_lt_f32 vcc, s100, v{MX}\n{adv}")
                    for f in fill[n]: a(f)
                a(f"s_cbranch_vccnz {stub}\n{back}:")
            else:
                for x in vrd[:8]: a(x)
                for x in ex[:8] + cv[:4]: a(x)
                for x in vrd[8:]: a(x)
                for x in ex[8:] + cv[4:]: a(x)
                a("s_nop 0")
                fill = merge(spread(ad, N), spread(dma, N))
                for n, m in enumerate(pv):
                    a(m)
                    for f in fill[n]: a(f)
        def wtouch(waves):
            if not waves: return []
            lab = a.label("wt"); m = sum(1 << w for w in waves)
            return [f"s_lshr_b32 s35, {m}, s3\ns_bitcmp1_b32 s35, 0\ns_cbranch_scc0 {lab}\nbuffer_load_dword {VD}, v8, {S(SWO)}, s6 offen\n{lab}:"]
        def at(t): return wtouch([i + 1 for i in range(7) if ts[i] == 100 + t])
        def plus(l, t):
            l = list(l)
            if t: l[-1] += "\n" + t[0]
            return l
        aw = int(cfg.await_)
        step(0, min(aw + 6, 6 if kvg else 14), first=True)
        step(1, min(aw + 2, 6 if kvg else 10))
        a(f"s_mov_b32 {sIT}, 0\nL_aloop{NQ}:")
        step(0, aw); step(1, aw)
        a(f"s_add_u32 {sIT}, {sIT}, 1\ns_cmp_lt_u32 {sIT}, 5\ns_cbranch_scc1 L_aloop{NQ}")
        a(f"""
        s_lshl_b32 s4, {sCQ}, 19
        s_sub_u32 s35, s3, 1
        s_cmp_ge_u32 s3, 5
        s_cselect_b32 s34, 3, 0
        s_cselect_b32 s6, 1, 0
        s_sub_u32 s35, s35, s34
        s_cmp_eq_u32 s3, 1
        s_cselect_b32 s6, 1, s6
        s_add_u32 s35, s35, {sCQ}
        s_and_b32 s35, s35, 3
        s_lshl_b32 s35, s35, 1
        s_add_u32 s6, s6, s35
        s_lshl_b32 s6, s6, 18           ; wo rows of block (wave number)
        v_mov_b32 v4, 0
        """)
        srd(a, SDBG, "s26", "s27", 256)
        step(0, 8, [vpiece(0, "s97", "s31"), vpiece(1, "s97", "s31"), f"buffer_load_dword {VTAG}, v4, {S(SDBG)}, 0 offen {SC}"] + at(12))
        a(f"""
        s_lshr_b32 s34, s3, 2
        s_lshl_b32 s35, s34, 16
        s_add_u32 s5, s4, s35
        s_lshl_b32 {sA}, {sWI}, 10
        s_add_u32 {sA}, {sA}, {WO0}
        s_lshl_b32 s35, s34, 14
        s_add_u32 {sBb}, {sA}, s35
        """)
        step(1, 6, plus(wo_pieces(sBb, 0, "s5"), at(13)))
        a("s_add_u32 s5, s5, 0x20000")
        step(0, 6, plus(wo_pieces(sBb, 32768, "s5"), at(14)))
        step(1, 8, at(15), last=True)
        stamp(a, cfg, 4)
        for qi in range(NQ):
            across("v_add_f32", L_ + qi, T0)
            a(f"v_rcp_f32 v{L_+qi}, v{L_+qi}")
        a(f"s_mul_i32 s34, {sCQ}, 57344\ns_barrier\ns_cmp_ge_u32 s3, 4\ns_cbranch_scc1 L_epx{NQ}")
        epi(True, NQ)
        a(f"s_branch L_oload\nL_epx{NQ}:")
        epi(False, NQ)
        a("s_branch L_omm")
    attn(2)
    a("L_attn1:")
    attn(1)

    a(f"""
    L_oload:
    v_lshlrev_b32 v14, 4, v0
    s_lshl_b32 {sBb}, {sWI}, 10
    v_add_u32 v9, {sBb}, v14
    s_mul_i32 s35, {sWI}, 7168
    s_add_u32 s35, s35, 28672
    v_add_u32 v7, s35, v14
    s_mul_i32 s33, {sCQ}, 57344
    s_add_u32 s32, s33, 4096
    s_lshl_b32 s35, s2, 7
    s_add_u32 s35, s35, {FLAGS}
    v_mov_b32 v6, s35
    s_waitcnt lgkmcnt(0)
    s_barrier
    """)
    for i in range(7): a(f"ds_read_b128 {vr(16+4*i,4)}, v7 offset:{i*1024}")
    a(f"v_cmp_eq_u32 vcc, 0, {VTAG}\ns_cbranch_vccz L_tagok")
    poll(a, cfg, "L_pt", SDBG, "v4", VTAG, "eq", "0")
    a("L_tagok:")
    def head_of(blk, reg):
        d, h = (0, blk) if blk < 2 else ((blk - 1, 0) if blk < 5 else (blk - 4, 1))
        a(f"s_add_u32 {reg}, {sCQ}, {d}\ns_and_b32 {reg}, {reg}, 3\ns_lshl_b32 {reg}, {reg}, 1")
        if h: a(f"s_add_u32 {reg}, {reg}, 1")
    def flag(word):
        lab = a.label("nf")
        a(f"s_cmp_lg_u32 s3, 0\ns_cbranch_scc1 {lab}\ns_mov_b64 exec, 1\nbuffer_store_dword {VTAG}, v6, {S(SWS)}, 0 offen offset:{4*word} {SC}\ns_mov_b64 exec, -1\n{lab}:")
    q = [("sa", 0, 4)]
    fa, ol, st0 = int(cfg.fa), int(cfg.olead), int(cfg.st0)
    fb = st0 + 9
    for u in range(32):
        need = [i for i, e in enumerate(q) if (e[0] in "wo" and e[1] <= u + 1) or (e[0] == "sa" and u >= fa) or (e[0] == "sb" and u >= fb)]
        if need:
            a(f"s_waitcnt vmcnt({sum(e[2] for e in q[max(need) + 1:])})")
            q = q[max(need) + 1:]
        a("s_barrier")
        if u in (0, 3, 4, 5, 13, 21): stamp(a, cfg, {0: 1, 3: 2, 4: 3, 5: 4, 13: 5, 21: 6}[u], "o")
        if u == fa: flag(0)
        if u == fb: flag(1)
        o = u + ol
        def flag_addr(o, v):
            head_of(o >> 2, "s5")
            a(f"""
            s_andn2_b32 s35, s2, 0x18
            s_lshr_b32 s34, s5, 1
            s_lshl_b32 s34, s34, 3
            s_or_b32 s35, s35, s34
            s_lshl_b32 s35, s35, 7
            s_add_u32 s35, s35, {FLAGS + (4 if o >= 20 else 0)}
            v_mov_b32 {v}, s35
            """)
        if (o + 2) % 4 == 0 and 12 <= o + 2 < 32:
            flag_addr(o + 2, "v5")
            a(f"buffer_load_dword v13, v5, {S(SWS)}, 0 offen {SC}")
            q.append(("o", u + 3, 1))
        if 8 <= o < 32:
            if o % 4 == 0:
                if o == 8: flag_addr(o, "v5")
                else: a(f"v_cmp_ne_u32 vcc, {VTAG}, v13\ns_cbranch_vccz L_po{o}_out")
                poll(a, cfg, f"L_po{o}", SWS, "v5", "v12", "ne", VTAG)
                if o == 8: q = []
                a("s_mul_i32 s31, s5, 28672")
            lab = a.label("os"); sl = o % 8
            a(f"s_add_u32 m0, {sBb}, {sl*7168}\ns_add_u32 s35, s31, {(o&3)*7168}\nbuffer_load_dwordx4 v9, {S(SO)}, s35 offen {SC} lds")
            a(f"s_cmp_eq_u32 {sWI}, 3\ns_cbranch_scc1 {lab}\ns_add_u32 m0, {sBb}, {sl*7168 + 4096}\ns_add_u32 s35, s35, 4096")
            a(f"buffer_load_dwordx4 v9, {S(SO)}, s35 offen {SC} lds\n{lab}:")
            q.append(("o", o, 1))
        w = u + 4
        if w < 32:
            if w % 4 == 0:
                head_of(w >> 2, "s30")
                a("s_lshl_b32 s30, s30, 18")
            for n in range(4):
                a(f"s_add_u32 m0, {sA}, {(w%4)*16384 + n*4096}\ns_add_u32 s35, s30, {(w&3)*65536 + n*16384}\nbuffer_load_dwordx4 v15, {S(SWO)}, s35 offen lds")
            q.append(("w", w, 4))
        if st0 <= u < st0 + 7:
            i = u - st0
            a(f"s_waitcnt lgkmcnt({6-i})\nbuffer_store_dwordx4 {vr(16+4*i,4)}, v7, {S(SO)}, {'s33' if i < 4 else 's32'} offen offset:{(i&3)*1024} {SC}")
            q.append(("sb", 0, 1))
        for blk in range(1, 8):
            if ts[blk - 1] == u:
                lab = a.label("lt")
                a(f"s_cmp_lg_u32 s3, {blk & 3}\ns_cbranch_scc1 {lab}")
                head_of(blk, "s6")
                a(f"s_lshl_b32 s6, s6, 18\nbuffer_load_dword {VD}, v8, {S(SWO)}, s6 offen\n{lab}:")
    stamp(a, cfg, 5)
    stamp(a, cfg, 7, "o")
    stamp_store(a, cfg, 0, 0, "L_end")
    a("s_branch L_end")

    a(f"""
    L_omm:
    v_lshlrev_b32 v14, 4, v0
    v_lshrrev_b32 v4, 4, v0         ; g4
    v_bfe_u32 v5, v0, 2, 2          ; r
    v_and_b32 v6, 3, v0             ; c
    v_and_b32 v7, 1, v4
    v_lshl_add_u32 v9, v7, 2, v5    ; k & 7
    v_lshl_add_u32 v7, v4, 2, v5
    v_lshlrev_b32 v7, 9, v7
    v_lshrrev_b32 v8, 1, v6
    v_lshl_add_u32 v7, v8, 4, v7
    v_and_b32 v8, 1, v6
    v_lshl_add_u32 v7, v8, 3, v7
    v_add_u32 v7, {WO0}, v7
    v_xor_b32 v9, {sWI}, v9
    """)
    for tau in range(4):
        a(f"""
        s_add_u32 s35, {sHG}, {tau}
        s_and_b32 s34, s35, 1
        s_lshl_b32 s34, s34, 2
        s_bfe_u32 s35, s35, 0x10001
        s_lshl_b32 s35, s35, 8
        v_xor_b32 v1, s34, v9
        v_lshl_add_u32 v1, v1, 5, v7
        v_add_u32 v{10+tau}, s35, v1
        """)
    def oreads(u):
        fb = FB + 44 * (u & 1)
        r = [f"ds_read_b64_tr_b16 {vr(fb+4*t+2*j,2)}, v{10+t} offset:{(u%4)*16384 + j*8192}" for t in range(4) for j in range(2)]
        xs = [f"ds_read_b128 {vr(fb+16+4*qt,4)}, v14 offset:{(u%8)*7168 + qt*1024}" for qt in range(7)]
        return r[:2] + xs[:1] + r[2:] + xs[1:]
    a(f"v_mov_b32 v4, 0\ns_waitcnt vmcnt(4) lgkmcnt(0)\ns_barrier")
    stamp(a, cfg, 5)
    for r in oreads(0): a(r)
    gloop("L_o", 8, 4, oreads, {2: " vmcnt(0)"})
    stamp(a, cfg, 6)
    a(f"""
    s_lshl_b32 s30, {sBR}, 3
    s_add_u32 s30, s30, {sB}
    s_lshl_b32 s30, s30, 2
    s_add_u32 s30, s30, {sCQ}
    s_mul_i32 s30, s30, {12*16384}
    s_lshl_b32 s35, {sWI}, 12
    s_add_u32 s30, s30, s35
    s_add_u32 s30, s30, {RED}
    v_lshlrev_b32 v15, 3, v0
    """)
    for tau in range(1, 4):
        a(f"""
        s_add_u32 s35, {sHG}, {tau}
        s_and_b32 s35, s35, 3
        s_mul_i32 s35, s35, {3*16384}
        s_add_u32 s35, s35, s30
        s_add_u32 s35, s35, {(tau-1)*16384}
        """)
        for pr in range(4):
            b = ACC + 4 * (tau * 7 + 2 * pr)
            for i in range(4 if pr < 3 else 2): a(f"v_cvt_pk_bf16_f32 v{b+i}, v{b+2*i}, v{b+2*i+1}")
            if pr < 3: a(f"buffer_store_dwordx4 {vr(b,4)}, v14, {S(SWS)}, s35 offen offset:{pr*1024} {SC}")
            else: a(f"buffer_store_dwordx2 {vr(b,2)}, v15, {S(SWS)}, s35 offen offset:3072 {SC}")
    a(f"""
    s_lshl_b32 s35, s2, 7
    s_lshl_b32 s34, {sWI}, 2
    s_add_u32 s34, s34, {FLAGS + 16}
    s_add_u32 s35, s35, s34
    v_mov_b32 v5, s35
    v_min_u32 v6, 2, v0
    v_sub_u32 v6, {sHG}, v6
    v_add_u32 v6, -1, v6
    v_and_b32 v6, 3, v6
    s_andn2_b32 s35, s2, 3
    v_or_b32 v6, s35, v6
    v_lshlrev_b32 v6, 7, v6
    v_add_u32 v6, s34, v6
    s_mul_i32 s35, {sB}, 458752
    s_lshl_b32 s34, {sBR}, 11
    s_add_u32 s35, s35, s34
    s_lshl_b32 s34, {sCQ}, 9
    s_add_u32 s35, s35, s34
    s_lshl_b32 s34, {sHG}, 7
    s_add_u32 s35, s35, s34
    s_sub_u32 s34, 3670016, s35
    """)
    srd_off(a, SOUT, "s24", "s25", "s35", "s34")
    a(f"""
    v_and_b32 v7, 15, v0
    v_lshlrev_b32 v7, 12, v7
    v_lshrrev_b32 v9, 4, v0
    v_lshl_add_u32 v7, v9, 3, v7
    s_lshl_b32 s35, {sWI}, 5
    v_add_u32 v7, s35, v7
    s_mul_i32 s35, {sHG}, {3*16384}
    s_add_u32 s30, s30, s35
    s_waitcnt vmcnt(0) lgkmcnt(0)
    v_cmp_eq_u32 vcc, 0, {VTAG}
    s_cbranch_vccz L_tagok2
    """)
    poll(a, cfg, "L_pt2", SDBG, "v4", VTAG, "eq", "0")
    a(f"""
    L_tagok2:
    s_mov_b64 exec, 1
    buffer_store_dword {VTAG}, v5, {S(SWS)}, 0 offen {SC}
    s_mov_b64 exec, -1
    """)
    stamp(a, cfg, 1)
    poll(a, cfg, "L_pr", SWS, "v6", "v9", "ne", VTAG)
    stamp(a, cfg, 2)
    a("s_add_u32 s33, s30, 16384\ns_add_u32 s34, s30, 32768")
    for pr in range(4):
        for s_, so in enumerate(("s30", "s33", "s34")):
            r = FB + 12 * pr + 4 * s_
            if pr < 3: a(f"buffer_load_dwordx4 {vr(r,4)}, v14, {S(SWS)}, {so} offen offset:{pr*1024} {SC}")
            else: a(f"buffer_load_dwordx2 {vr(r,2)}, v15, {S(SWS)}, {so} offen offset:3072 {SC}")
    a("s_mov_b32 s33, 0xffff0000")
    nst = 0
    for pr in range(4):
        a(f"s_waitcnt vmcnt({3*(3-pr) + nst})")
        for h in range(2 if pr < 3 else 1):
            qt = 2 * pr + h; b = ACC + 4 * qt
            for s_ in range(3):
                r = FB + 12 * pr + 4 * s_ + 2 * h
                for d in range(2):
                    a(f"v_lshlrev_b32 v{200+2*d}, 16, v{r+d}\nv_and_b32 v{201+2*d}, s33, v{r+d}")
                for i in range(4): a(f"v_add_f32 v{b+i}, v{b+i}, v{200+i}")
            a(f"v_cvt_pk_bf16_f32 v{b}, v{b}, v{b+1}\nv_cvt_pk_bf16_f32 v{b+1}, v{b+2}, v{b+3}")
            a(f"s_mov_b32 s35, {qt*65536}\nbuffer_store_dwordx2 {vr(b,2)}, v7, {S(SOUT)}, s35 offen")
            nst += 1
    if cfg.stamps: a("s_waitcnt vmcnt(0)")
    stamp(a, cfg, 7)
    stamp_store(a, cfg, 4, 256, "L_end")
    a("L_end:\ns_endpgm")
    for stub, back, par, NQ in stubs:
        a(f"{stub}:\ns_call_b64 s[98:99], L_rare{par}{NQ}\ns_branch {back}")
    for NQ in (2, 1):
        for par in range(2):
            a(f"L_rare{par}{NQ}:")
            for qi in range(NQ):
                sb = SS + 16 * par + 8 * qi
                for x in tree(MX, T0, sb, 8): a(x)
                across("v_max_f32", MX, T0)
                a(f"v_max_f32 v{MX}, 0, v{MX}\nv_exp_f32 v{T0}, -v{MX}")
                for i in range(8): a(f"v_sub_f32 v{sb+i}, v{sb+i}, v{MX}")
                for i in range(4): a(f"v_sub_f32 v{NM+4*qi+i}, v{NM+4*qi+i}, v{MX}")
                a(f"v_mul_f32 v{L_+qi}, v{L_+qi}, v{T0}")
                for i in range(32): a(f"v_mul_f32 v{OA+32*qi+i}, v{OA+32*qi+i}, v{T0}")
            a("s_setpc_b64 s[98:99]")
    t = a.text()
    if "noam" in cfg.abl: t = "\n".join(l for l in t.split("\n") if "v_mfma_f32_32x32" not in l)
    if "am75" in cfg.abl: t = "\n".join(l for l in t.split("\n") if not ("v_mfma_f32_32x32" in l and any(x in l for x in ("v[184:187], v[40:43]", "v[188:191], v[44:47]", "v[216:219], v[228:231]", "v[220:223], v[228:231]"))))
    if cfg.kvpol:
        import re
        t = re.sub(r"(buffer_load_dwordx4 v[23], s\[\d+:\d+\], s35 offen) lds", r"\1 " + cfg.kvpol.replace("+", " ") + " lds", t)
    return t

def build(cfg):
    K = NAME + "_kernel"
    body = kernel_head(K) + kernel(cfg) + kernel_desc(K, 240, 240)
    tgt = '.amdgcn_target "amdgcn-amd-amdhsa--gfx950"\n'
    if cfg.echo:
        from gen2 import echo_kernel
        hdr = f"; @launch kernel={K} grid=(256,1,1) block=(512,1,1) lds=163840\n; @launch kernel=echo_kernel grid=(1,1,1) block=(64,1,1) lds=0\n"
        return hdr + tgt + kernel_head("echo_kernel") + echo_kernel(cfg) + kernel_desc("echo_kernel", 8, 8) + body
    return "; @launch grid=(256,1,1) block=(512,1,1) lds=163840\n" + tgt + body

if __name__ == "__main__":
    cfg = Cfg()
    for kv in sys.argv[2:]:
        k, v = kv.split("=")
        setattr(cfg, k, {"True": True, "False": False}.get(v, v))
    open(sys.argv[1], "w").write(build(cfg))
```

```python
import sys, math, struct
from asmlib import *
from gen3 import S, stamp, stamp_store, srd_off, weave, poll, SC
from gen3 import sBR, sHG, sCQ, sB, sWI, sIT, sA, sBb, sT, sU, SX, SW, SK, SV, SO, SWO, SWS, SOUT, SDBG, RED, FLAGS, TAG, VTAG

class Cfg:
    stamps = False
    sgrp = "main"
    kvpol = "nt"
    await_ = 8
    early = False
    align = 0
    ctouch = 0
    qord = ""
    qrot = True
    kv0 = 7
    tsched = "113,115,1,4,7,10,13"
    fa = 2
    olead = 3
    st0 = 1
    kvper = 4
    kvu = 0
    zpad = False
    kvg = 0
    qtouch = 0
    krot = True
    echo = ""
    abl = ""
    spin = 400000

WQ0 = 28672
KT, HSTEP, SLOTB = 8448, 17152, 34304
VD = "v237"
SA_, SB_, SC_, SD_ = 94208, 128512, 0, 34304
HO = 36864
WO0 = 94208
ACC, FB = 16, 128

def kernel(cfg):
    a = A()
    a("L_first:\ns_cmp_ge_u32 s2, 256\ns_cbranch_scc1 L_end")
    stamp(a, cfg, 0)
    a(f"""
    s_load_dwordx16 s[4:19], s[0:1], 0
    s_load_dwordx8 s[20:27], s[0:1], 64
    s_load_dwordx2 s[28:29], s[0:1], 96
    v_lshrrev_b32 v1, 6, v0
    v_and_b32 v0, 63, v0
    v_readfirstlane_b32 s3, v1
    v_lshrrev_b32 v4, 4, v0
    v_and_b32 v5, 15, v0
    v_lshlrev_b32 v6, 11, v4
    v_lshl_add_u32 v3, v5, 4, v6
    v_mov_b32 v2, v3
    s_bitcmp0_b32 s2, 2
    s_waitcnt lgkmcnt(0)
    s_cselect_b64 s[4:5], s[4:5], s[14:15]
    s_cselect_b64 s[6:7], s[6:7], s[16:17]
    s_cselect_b64 s[8:9], s[8:9], s[18:19]
    s_cselect_b64 s[10:11], s[10:11], s[20:21]
    s_cselect_b64 s[12:13], s[12:13], s[22:23]
    s_bfe_u32 {sBR}, s2, 0x10002
    s_and_b32 {sHG}, s2, 3
    s_bfe_u32 {sCQ}, s2, 0x20003
    s_lshr_b32 {sB}, s2, 5
    s_and_b32 {sWI}, s3, 3
    s_mul_i32 s35, {sB}, 229376
    """)
    srd_off(a, SX, "s4", "s5", "s35", 229376)
    a(f"s_lshl_b32 s33, {sHG}, 2\ns_add_u32 s33, s33, {sCQ}\ns_lshl_b32 s35, s33, 9\ns_sub_u32 s34, 0x800000, s35")
    srd_off(a, SW, "s10", "s11", "s35", "s34")
    a("s_cmp_ge_u32 s3, 4\ns_cbranch_scc1 L_qload")

    def other_srds():
        a(f"s_lshl_b32 s35, {sB}, 22\ns_lshl_b32 s34, s33, 18\ns_add_u32 s35, s35, s34")
        srd_off(a, SK, "s6", "s7", "s35", 262144)
        srd_off(a, SV, "s8", "s9", "s35", 262144)
        a(f"s_lshl_b32 s35, {sBR}, 3\ns_add_u32 s35, s35, {sB}\ns_lshl_b32 s35, s35, 2\ns_add_u32 s35, s35, {sHG}\ns_mul_i32 s35, s35, 229376")
        srd_off(a, SO, "s28", "s29", "s35", 229376)
        a(f"s_lshl_b32 s35, {sHG}, 21\ns_lshl_b32 s34, {sCQ}, 9\ns_add_u32 s35, s35, s34\ns_sub_u32 s34, 0x200000, s34")
        srd_off(a, SWO, "s12", "s13", "s35", "s34")
        srd(a, SWS, "s28", "s29", 0x10000000)
        if cfg.krot: a("s_lshr_b32 s101, s2, 3\ns_lshr_b32 s35, s2, 7\ns_add_u32 s101, s101, s35\ns_lshl_b32 s35, s2, 1\ns_add_u32 s101, s101, s35\ns_and_b32 s101, s101, 15\ns_lshl_b32 s101, s101, 13")
        else: a("s_mov_b32 s101, 0")
    def gmf(u, zero=False):
        fb = FB + 44 * (u & 1)
        return [f"v_mfma_f32_16x16x32_bf16 {vr(ACC+4*(t*7+qt),4)}, {vr(fb+4*t,4)}, {vr(fb+16+4*qt,4)}, {'0' if zero else vr(ACC+4*(t*7+qt),4)}" for qt in range(7) for t in range(4)]
    def gloop(name, period, iters, reads, pre, extra=None):
        a("s_waitcnt lgkmcnt(0)\ns_barrier")
        weave(a, gmf(0, True), reads(1))
        a(f"s_mov_b32 {sIT}, 0\ns_branch {name}_mid")
        if int(cfg.align): a(f".p2align {cfg.align}")
        a(f"{name}:")
        for u in range(period):
            a(f"s_waitcnt lgkmcnt(0){pre.get(u, '')}\ns_barrier")
            weave(a, gmf(u), reads(u + 1) + (extra(u) if extra else []))
            if u == 0: a(f"{name}_mid:")
        if cfg.stamps and cfg.sgrp == "q" and name == "L_q":
            for i in range(7):
                lab = a.label("st")
                a(f"s_cmp_lg_u32 {sIT}, {i}\ns_cbranch_scc1 {lab}")
                stamp(a, cfg, 1 + i, "q")
                a(f"{lab}:")
        a(f"s_add_u32 {sIT}, {sIT}, 1\ns_cmp_lt_u32 {sIT}, {iters}\ns_cbranch_scc1 {name}")

    def code_touch(va, vb):
        lab = a.label("pc")
        return f"""s_getpc_b64 s[0:1]
        {lab}:
        s_sub_u32 s0, s0, {lab} - L_first
        s_subb_u32 s1, s1, 0
        s_lshr_b32 s35, s2, 3
        s_mul_i32 s35, s35, 10
        v_min_u32 {va}, 9, v0
        v_add_u32 {va}, s35, {va}
        v_lshlrev_b32 {va}, 7, {va}
        v_min_u32 {va}, L_last - L_first - 4, {va}
        global_load_dword {VD}, {va}, s[0:1]"""
    if int(cfg.ctouch) & 1:
        a("s_cmp_lg_u32 s3, 1\ns_cbranch_scc1 L_noct")
        a(code_touch("v4", "v5"))
        a("L_noct:")
    other_srds()
    a(f"""
    s_cmp_lg_u32 s2, 0
    s_cbranch_scc1 L_notag
    s_cmp_lg_u32 s3, 0
    s_cbranch_scc1 L_notag
    s_mov_b32 s{SX}, s26
    s_and_b32 s{SX+1}, s27, 0xffff
    s_mov_b32 s{SX+2}, 256
    v_mov_b32 v4, {TAG}
    v_mov_b32 v7, 0
    s_mov_b32 s34, 1664525
    s_mov_b32 s35, 1013904223
    buffer_load_dword v5, v4, {S(SWS)}, 0 offen {SC}
    s_waitcnt vmcnt(0)
    v_mul_lo_u32 v5, v5, s34
    v_add_u32 v5, s35, v5
    v_mov_b32 v6, s35
    v_cmp_eq_u32 vcc, 0, v5
    s_nop 1
    v_cndmask_b32 v5, v5, v6, vcc
    s_mov_b64 exec, 1
    buffer_store_dword v5, v7, {S(SX)}, 0 offen {SC}
    buffer_store_dword v5, v4, {S(SWS)}, 0 offen {SC}
    s_mov_b64 exec, -1
    L_notag:
    v_lshrrev_b32 v4, 4, v0         ; g4
    v_bfe_u32 v5, v0, 2, 2          ; r
    v_and_b32 v6, 3, v0             ; c
    v_lshl_add_u32 v7, v4, 3, v5
    v_lshlrev_b32 v7, 9, v7
    v_lshrrev_b32 v9, 1, v6
    v_lshl_add_u32 v7, v9, 4, v7
    v_and_b32 v9, 1, v6
    v_lshl_add_u32 v7, v9, 3, v7
    s_lshr_b32 s35, {sWI}, 1
    s_lshl_b32 s35, s35, 8
    s_add_u32 s35, s35, {WQ0}
    v_add_u32 v7, s35, v7
    v_and_b32 v9, 1, v4
    v_lshl_or_b32 v9, v9, 2, v5
    s_and_b32 s35, {sWI}, 1
    s_lshl_b32 s35, s35, 2
    v_xor_b32 v9, s35, v9
    """)
    for t in range(4): a(f"v_xor_b32 v1, {t}, v9\nv_lshl_add_u32 v{10+t}, v1, 5, v7")
    cbits = struct.unpack("<I", struct.pack("<f", (128 ** -0.5) * math.log2(math.e)))[0]
    a(f"""
    v_and_b32 v5, 15, v0
    v_lshrrev_b32 v6, 1, v5
    v_xor_b32 v6, v6, v4
    v_lshlrev_b32 v7, 7, v5
    v_lshl_add_u32 v14, v6, 4, v7
    v_xor_b32 v15, 64, v14
    v_lshlrev_b32 v5, 4, v5
    v_lshrrev_b32 v6, 5, v0
    v_lshl_add_u32 v5, v6, 8, v5
    v_bfe_u32 v6, v0, 4, 1
    v_lshl_add_u32 v5, v6, 3, v5
    s_lshr_b32 s34, {sWI}, 1
    s_mul_i32 s34, s34, 28672
    s_and_b32 s35, {sWI}, 1
    s_lshl_b32 s35, s35, 11
    s_add_u32 s34, s34, s35
    s_add_u32 s34, s34, {HO}
    v_add_u32 v8, s34, v5
    s_mov_b32 s30, {cbits:#x}
    s_mov_b32 s31, {cbits:#x}
    s_barrier
    """)
    def qreads(u):
        fb = FB + 44 * (u & 1)
        r = [f"ds_read_b64_tr_b16 {vr(fb+4*t+2*j,2)}, v{10+t} offset:{(u%4)*16384 + j*2048}" for t in range(4) for j in range(2)]
        xs = [f"ds_read_b128 {vr(fb+16+4*qt,4)}, v{14+(u&1)} offset:{((u>>1)&1)*14336 + qt*2048}" for qt in range(7)]
        return r[:2] + xs[:1] + r[2:] + xs[1:]
    stamp(a, cfg, 1)
    for r in qreads(0): a(r)
    kvg = int(cfg.kvg)
    def gkv(u):
        lab = a.label("gk"); out = []
        if u == 0:
            out.append(f"""s_sub_u32 s98, {sIT}, {kvg}
            s_and_b32 s99, s98, 1
            s_cselect_b64 s[{SX}:{SX+1}], s[{SV}:{SV+1}], s[{SK}:{SK+1}]
            s_cselect_b32 s97, 0, 0
            s_cselect_b32 s96, {KT}, 0
            s_cselect_b64 vcc, -1, 0
            s_add_u32 s97, s97, 1056
            s_add_u32 s96, s96, {SA_}""")
            out.append(f"""s_lshr_b32 s99, s98, 1
            s_mul_i32 s35, s99, {SLOTB}
            s_add_u32 s96, s96, s35
            s_mul_i32 s35, s97, {sWI}
            s_add_u32 s96, s96, s35
            v_cndmask_b32 v9, v2, v3, vcc""")
            out.append(f"""s_lshl_b32 s99, s99, 13
            s_add_u32 s99, s99, s101
            s_and_b32 s99, s99, 0x1ffff
            s_lshl_b32 s35, {sWI}, 8
            s_add_u32 s99, s99, s35
            s_lshl_b32 s97, s97, 2""")
        out.append(f"""s_cmp_gt_u32 s98, 3
        s_cbranch_scc1 {lab}
        s_add_u32 s34, s96, {'s97' if u & 1 else 0}
        s_add_u32 m0, s34, {(u >> 1) * HSTEP}
        s_add_u32 s35, s99, {(u >> 1) * 131072 + (u & 1) * 1024}
        buffer_load_dwordx4 v9, {S(SX)}, s35 offen lds
        {lab}:""")
        return [""] * 3 + out
    if kvg: a(f"s_mov_b32 s{SX+2}, 262144\ns_mov_b32 s98, 4")
    gloop("L_q", 4, 8, qreads, {}, gkv if kvg else None)
    stamp(a, cfg, 2)
    a("s_waitcnt lgkmcnt(0)\ns_barrier")
    for qt in range(7):
        for t in range(4):
            acc = ACC + 4 * (t * 7 + qt)
            a(f"v_pk_mul_f32 {vr(acc,2)}, {vr(acc,2)}, s[30:31]\nv_pk_mul_f32 {vr(acc+2,2)}, {vr(acc+2,2)}, s[30:31]")
            a(f"v_cvt_pk_bf16_f32 v{acc}, v{acc}, v{acc+1}\nv_cvt_pk_bf16_f32 v{acc+1}, v{acc+2}, v{acc+3}")
            a(f"ds_write_b64 v8, {vr(acc,2)} offset:{qt*4096 + t*512}")
    a("s_branch L_join")
    a(f"""
    L_qload:
    v_lshrrev_b32 v4, 5, v0
    v_and_b32 v5, 31, v0
    s_and_b32 s35, {sWI}, 1
    s_lshr_b32 s34, {sWI}, 1
    s_lshl_b32 {sA}, s35, 1
    s_lshl_b32 {sBb}, s34, 2
    s_add_u32 {sA}, {sA}, {sBb}
    v_add_u32 v6, {sA}, v4
    v_lshlrev_b32 v6, 1, v6
    v_xor_b32 v5, v5, v6
    s_lshl_b32 {sBb}, s34, 3
    s_lshl_b32 {sA}, s35, 1
    s_add_u32 {sA}, {sA}, {sBb}
    v_add_u32 v4, {sA}, v4
    v_lshlrev_b32 v4, 13, v4
    v_lshl_add_u32 v10, v5, 4, v4
    s_lshl_b32 {sA}, {sA}, 9
    s_add_u32 {sA}, {sA}, {WQ0}
    v_lshrrev_b32 v4, 3, v0
    v_and_b32 v5, 7, v0
    v_lshrrev_b32 v6, 1, v4
    s_lshl_b32 {sBb}, s35, 2
    v_add_u32 v6, {sBb}, v6
    v_xor_b32 v5, v5, v6
    s_lshl_b32 {sBb}, {sWI}, 3
    v_add_u32 v4, {sBb}, v4
    v_lshlrev_b32 v4, 11, v4
    v_lshl_add_u32 v11, v5, 4, v4
    s_lshl_b32 {sBb}, {sWI}, 10
    """)
    def tab(order): return sum(st << (4 * t) for t, st in enumerate(order))
    if cfg.qord:
        if cfg.qord == "alt2":
            orders = [[g] + [(t + 1 + g if t & 1 else t - 1 - g) for t in range(1, 15)] + [15 - g] for g in range(2)]
            a(f"s_xor_b32 s35, {sB}, {sCQ}\ns_and_b32 s35, s35, 1")
        else:
            orders = []
            for g in range(4):
                f = lambda j: [4 * j + ((g + i) & 3) for i in (1, 2, 3)]
                orders.append([g, 4 + g] + f(0) + [8 + g] + f(1) + [12 + g] + f(2) + f(3))
            a(f"s_add_u32 s35, {sB}, {sCQ}\ns_and_b32 s35, s35, 3")
        for g, o in enumerate(orders):
            assert sorted(o) == list(range(16))
            v = tab(o)
            a(f"s_cmp_eq_u32 s35, {g}\ns_cselect_b32 s98, {v & 0xffffffff:#x}, s98\ns_cselect_b32 s99, {v >> 32:#x}, s99")
        a("s_mov_b64 s[0:1], s[98:99]\ns_and_b32 s31, s0, 15\ns_lshl_b32 s30, s31, 19\ns_lshl_b32 s31, s31, 7")
    elif cfg.qrot: a(f"s_xor_b32 s35, {sB}, {sCQ}\ns_and_b32 s35, s35, 1\ns_lshl_b32 s30, s35, 22\ns_lshl_b32 s31, s35, 10")
    else: a("s_mov_b32 s30, 0\ns_mov_b32 s31, 0")
    qt_ = int(cfg.qtouch)
    if qt_:
        a(f"""
        s_lshl_b32 s35, {sB}, 3
        s_lshl_b32 s34, {sWI}, 1
        s_add_u32 s35, s35, s34
        v_lshrrev_b32 v4, 2, v0
        v_add_u32 v4, s35, v4
        v_lshlrev_b32 v4, 13, v4
        v_and_b32 v5, 3, v0
        v_lshl_add_u32 v4, v5, 7, v4
        v_mov_b32 v6, 0x7fffffff
        v_cmp_gt_u32 vcc, 8, v0
        s_mul_i32 s35, {sCQ}, 28
        s_mul_i32 s34, {sWI}, 7
        v_cndmask_b32 v12, v6, v4, vcc
        s_add_u32 s35, s35, s34
        v_add_u32 v5, s35, v0
        v_lshlrev_b32 v5, 11, v5
        v_cmp_gt_u32 vcc, 7, v0
        s_mov_b32 s98, {2 << 19}
        s_mov_b32 s99, {2 << 7}
        v_cndmask_b32 v13, v6, v5, vcc
        """)
    def qtouch():
        a(f"buffer_load_dword {VD}, v13, {S(SX)}, s99 offen\nbuffer_load_dword {VD}, v12, {S(SW)}, s98 offen")
        a("s_add_u32 s98, s98, 0x80000\ns_add_u32 s99, s99, 128\ns_cmp_ge_u32 s99, 2048\ns_cselect_b32 s99, 0x40000000, s99")
    def issue_wq(slot):
        for pc in (0, 2, 8, 10):
            a(f"s_add_u32 m0, {sA}, {slot*16384 + pc*1024}\ns_add_u32 s35, s30, {pc*16384}")
            a(f"buffer_load_dwordx4 v10, {S(SW)}, s35 offen lds")
        if cfg.qord and (slot & 1): a("s_lshr_b64 s[98:99], s[98:99], 4\ns_and_b32 s30, s98, 15\ns_lshl_b32 s30, s30, 19")
        else: a("s_add_u32 s30, s30, 0x40000\ns_and_b32 s30, s30, 0x7fffff")
    def issue_x(slot):
        lab = a.label("xs")
        for n in range(4):
            if n == 3: a(f"s_cmp_ge_u32 {sWI}, 2\ns_cbranch_scc1 {lab}")
            a(f"s_add_u32 m0, {sBb}, {slot*14336 + n*4096}\ns_add_u32 s35, s31, {n*65536}")
            a(f"buffer_load_dwordx4 v11, {S(SX)}, s35 offen lds")
        if cfg.qord: a(f"{lab}:\ns_lshr_b64 s[0:1], s[0:1], 4\ns_and_b32 s31, s0, 15\ns_lshl_b32 s31, s31, 7")
        else: a(f"{lab}:\ns_add_u32 s31, s31, 128\ns_and_b32 s31, s31, 2047")
    def kv_piece(tile, hd, n, isv, slot):
        a(f"s_add_u32 s35, s101, {tile*8192}\ns_and_b32 s35, s35, 0x1ffff\ns_add_u32 s35, s35, s32\ns_add_u32 s35, s35, {hd*131072 + n*1024}")
        a(f"s_add_u32 m0, {'s97' if isv else 's96'}, {slot + hd*HSTEP + n*4*(1056 if isv else 1056)}\ns_nop 0")
        a(f"buffer_load_dwordx4 {'v3' if isv else 'v2'}, {S(SV if isv else SK)}, s35 offen lds")
    issue_x(0); issue_wq(0); issue_wq(1)
    other_srds()
    a(f"s_mul_i32 s96, {sWI}, 1056\ns_mul_i32 s97, {sWI}, 1056\ns_add_u32 s97, s97, {KT}\ns_lshl_b32 s32, {sWI}, 8")
    a("s_waitcnt vmcnt(4)\ns_barrier")
    issue_x(1); issue_wq(2)
    a("s_waitcnt vmcnt(7)\ns_barrier")
    issue_wq(3); issue_wq(0)
    for _ in range(qt_ - 1): qtouch()
    kv0 = int(cfg.kv0)
    kvl = [] if kvg else [(tile, hd, n, isv) for tile in range(2) for isv in range(2) for hd in range(2) for n in range(2)]
    a(f"s_mov_b32 {sIT}, 0\ns_branch L_qlmid\nL_qlloop:")
    for u in range(4):
        a(f"s_waitcnt vmcnt({8 if u & 1 else 11})\ns_barrier")
        if u & 1: issue_x((u >> 1) & 1)
        issue_wq(u)
        if qt_ and u % 2 == 0: qtouch()
        if u == 0: a("L_qlmid:")
    a(f"s_add_u32 {sIT}, {sIT}, 1\ns_cmp_lt_u32 {sIT}, {kv0}\ns_cbranch_scc1 L_qlloop")
    q = []
    for u in range(4 * kv0 - 4, 4 * kv0):
        if u & 1: q.append(("x", (u >> 1) + 2, 3))
        q.append(("w", u + 4, 4))
    per = int(cfg.kvper) or -(-16 // max(32 - 4 * kv0 - 2, 4))
    for u in range(4 * kv0, 32):
        need = [i for i, e in enumerate(q) if (e[0] == "w" and e[1] <= u + 1) or (e[0] == "x" and e[1] <= (u + 1) >> 1)]
        left = sum(e[2] for e in q[max(need) + 1:]) if need else 63
        a(f"s_waitcnt vmcnt({min(left, 63)})\ns_barrier")
        if (u & 1) and (u >> 1) + 2 < 16: issue_x((u >> 1) & 1); q.append(("x", (u >> 1) + 2, 3))
        if u + 4 < 32: issue_wq(u % 4); q.append(("w", u + 4, 4))
        if qt_ and u % 2 == 0 and (u >> 1) + qt_ < 16: qtouch(); q.append(("k", 0, 2))
        for _ in range(per if u >= int(cfg.kvu) else 0):
            if kvl:
                tile, hd, n, isv = kvl.pop(0)
                kv_piece(tile, hd, n, isv, (SA_, SB_)[tile]); q.append(("k", 0, 1))
    a("s_barrier")
    for tile, hd, n, isv in kvl: kv_piece(tile, hd, n, isv, (SA_, SB_)[tile])
    for isv in range(2):
        for hd in range(2):
            for n in range(2): kv_piece(2, hd, n, isv, SC_)
    if not kvg: a("s_waitcnt vmcnt(20)")

    QF, OA, SS, NM, KF, VF, PP = 16, 48, 112, 144, 160, 192, 224
    L_, MX, T0, T1 = 232, 234, 235, 238
    a(f"""
    L_join:
    s_lshr_b32 s34, s3, 2
    s_lshl_b32 s35, s34, 17
    s_add_u32 s{SK}, s{SK}, s35
    s_addc_u32 s{SK+1}, s{SK+1}, 0
    s_mov_b32 s{SK+2}, 131072
    s_add_u32 s{SV}, s{SV}, s35
    s_addc_u32 s{SV+1}, s{SV+1}, 0
    s_mov_b32 s{SV+2}, 131072
    s_mul_i32 s30, s34, {HSTEP}
    s_mul_i32 {sA}, {sWI}, 1056
    s_add_u32 {sA}, {sA}, s30
    s_add_u32 {sBb}, {sA}, {KT}
    v_lshlrev_b32 v5, 4, v0
    s_mul_i32 s35, s34, 28672
    s_lshl_b32 {sT}, {sWI}, 13
    s_add_u32 {sT}, {sT}, s35
    s_add_u32 {sT}, {sT}, {HO}
    v_add_u32 v9, {sT}, v5
    s_lshl_b32 {sT}, {sWI}, 11
    s_add_u32 s35, s35, {sT}
    v_add_u32 v14, s35, v5
    v_and_b32 v7, 7, v0
    v_mul_u32_u24 v7, 1056, v7
    v_bfe_u32 v1, v0, 3, 1
    v_lshl_add_u32 v7, v1, 8, v7
    v_lshrrev_b32 v1, 4, v0
    v_lshl_add_u32 v7, v1, 4, v7
    v_add_u32 v10, s30, v7
    v_bfe_u32 v7, v0, 2, 3
    v_mul_u32_u24 v7, 1056, v7
    v_lshrrev_b32 v1, 5, v0
    v_lshl_add_u32 v7, v1, 8, v7
    v_and_b32 v1, 3, v0
    v_lshl_add_u32 v7, v1, 3, v7
    s_add_u32 s35, s30, {KT}
    v_add_u32 v12, s35, v7
    v_add_u32 v11, {SA_}, v10
    s_lshl_b32 s35, {sWI}, 8
    s_add_u32 s101, s101, s35
    s_add_u32 s31, s101, {3*8192}
    s_and_b32 s31, s31, 0x1ffff
    s_mov_b32 s96, {SA_}
    s_mov_b32 s97, {SD_}
    s_mov_b32 s100, 0x41000000
    v_lshrrev_b32 v4, 5, v0
    s_lshl_b32 s35, {sWI}, 1
    v_add_u32 v4, s35, v4
    v_and_b32 v5, 31, v0
    v_lshlrev_b32 v6, 1, v4
    v_xor_b32 v5, v5, v6
    v_lshlrev_b32 v4, 11, v4
    v_lshl_add_u32 v15, v5, 4, v4   ; wo source offset
    v_lshrrev_b32 v4, 4, v0
    v_lshlrev_b32 v4, 5, v4
    v_bfe_u32 v5, v0, 2, 2
    v_add_u32 v4, v4, v5
    s_lshl_b32 s35, {sB}, 2
    v_add_u32 v4, s35, v4
    v_lshlrev_b32 v4, 11, v4
    v_and_b32 v5, 3, v0
    v_lshl_add_u32 v1, v5, 7, v4    ; wo lines to touch
    s_cmp_eq_u32 {sWI}, 3
    s_waitcnt lgkmcnt(0){" vmcnt(12)" if kvg else ""}
    v_mov_b32 v8, v1
    s_cbranch_scc1 L_attn1
    """)
    ts = [int(x) for x in cfg.tsched.split(",")]
    stubs = []
    def kpiece(n, slot, src): return f"s_add_u32 s34, {slot}, {sA}\ns_add_u32 m0, s34, {n*4*1056}\ns_add_u32 s35, {src}, {n*1024}\nbuffer_load_dwordx4 v2, {S(SK)}, s35 offen lds"
    def vpiece(n, slot, src): return f"s_add_u32 s34, {slot}, {sBb}\ns_add_u32 m0, s34, {n*4*1056}\ns_add_u32 s35, {src}, {n*1024}\nbuffer_load_dwordx4 v3, {S(SV)}, s35 offen lds"
    def wo_pieces(mbase, moff, soff):
        return [f"s_add_u32 m0, {mbase}, {moff + n*4096}\ns_add_u32 s35, {soff}, {n*16384}\nbuffer_load_dwordx4 v15, {S(SWO)}, s35 offen lds" for n in range(4)]
    def kreads(): return [f"ds_read_b128 {vr(KF+16*kt+4*s_,4)}, v11 offset:{kt*512 + 64*s_}" for s_ in range(4) for kt in range(2)]
    def tree(dst, tmp, b, n):
        if n == 8: return [f"v_max3_f32 v{dst}, v{b}, v{b+1}, v{b+2}", f"v_max3_f32 v{tmp}, v{b+3}, v{b+4}, v{b+5}",
                           f"v_max3_f32 v{dst}, v{dst}, v{b+6}, v{b+7}", f"v_max_f32 v{dst}, v{dst}, v{tmp}"]
        return ([f"v_max3_f32 v{dst}, v{b}, v{b+1}, v{b+2}", f"v_max3_f32 v{tmp}, v{b+3}, v{b+4}, v{b+5}"]
                + [f"v_max3_f32 v{(dst, tmp)[i&1]}, v{(dst, tmp)[i&1]}, v{b+6+2*i}, v{b+7+2*i}" for i in range(5)]
                + [f"v_max_f32 v{dst}, v{dst}, v{tmp}"])
    def across(op, r, tmp):
        for sw in ("16", "32"):
            a(f"s_nop 0\nv_mov_b32 v{tmp}, v{r}\ns_nop 1\nv_permlane{sw}_swap_b32 v{tmp}, v{r}\ns_nop 1\n{op} v{r}, v{r}, v{tmp}")
    def epi(store, NQ):
        for p in range(4):
            for qi in range(NQ):
                b = OA + 32*qi + 8*p
                for i in range(8): a(f"v_mul_f32 v{b+i}, v{b+i}, v{L_+qi}")
                for i in range(4): a(f"v_cvt_pk_bf16_f32 v{b+i}, v{b+2*i}, v{b+2*i+1}")
                a(f"ds_write_b128 v14, {vr(b,4)} offset:{p*7168 + qi*1024}")
                if store: a(f"buffer_store_dwordx4 {vr(b,4)}, v14, {S(SO)}, s34 offen offset:{qi*1024} {SC}")
            if store: a("s_add_u32 s34, s34, 7168")
        if store: a(f"s_waitcnt vmcnt({4 * NQ})")
    def attn(NQ):
        def qk(sb, zero=False):
            out = []
            for s_ in range(4):
                for kt in range(2):
                    for qi in range(NQ):
                        d = vr(sb + 8*qi + 4*kt, 4)
                        out.append((f"s_waitcnt lgkmcnt(LG{2*s_+kt})\n" if qi == 0 else "") +
                                   f"v_mfma_f32_16x16x32_bf16 {d}, {vr(KF+16*kt+4*s_,4)}, {vr(QF+16*qi+4*s_,4)}, {('0' if zero else vr(NM+4*qi,4)) if s_ == 0 else d}")
            return out
        def emit_qk(ms, fill):
            nv = 0
            for n, m in enumerate(ms):
                i = n // NQ
                a(m.replace(f"LG{i}", str(min(15, 7 - i + nv))))
                for f in fill[n]:
                    a(f); nv += f.startswith("ds_")
        a("s_barrier")
        for qi in range(NQ):
            for s_ in range(4): a(f"ds_read_b128 {vr(QF+16*qi+4*s_,4)}, v9 offset:{qi*4096 + s_*1024}")
        for x in kreads(): a(x)
        a("s_waitcnt lgkmcnt(8)\ns_barrier")
        stamp(a, cfg, 3)
        emit_qk(qk(SS, True), [[kpiece(0, "s97", "s31")], [], [kpiece(1, "s97", "s31")]] + [[]] * 16)
        a("s_nop 7")
        for qi in range(NQ):
            for x in tree(MX, T0, SS + 8*qi, 8): a(x)
            across("v_max_f32", MX, T0)
            a(f"v_mov_b32 v{L_+qi}, 0")
            for i in range(8): a(f"v_sub_f32 v{SS+8*qi+i}, v{SS+8*qi+i}, v{MX}")
            for i in range(4): a(f"v_sub_f32 v{NM+4*qi+i}, 0, v{MX}")
        def step(par, wait, dma=None, first=False, last=False):
            cur, nxt = SS + 16 * par, SS + 16 * (1 - par)
            a(f"""
            s_waitcnt vmcnt({wait})
            s_barrier
            s_add_u32 s98, s96, {SLOTB}
            s_cmp_eq_u32 s96, {SB_}
            s_cselect_b32 s98, 0, s98
            s_cmp_eq_u32 s96, {SD_}
            s_cselect_b32 s98, {SA_}, s98
            v_add_u32 v11, s98, v10
            v_add_u32 v13, s96, v12
            s_add_u32 s30, s31, 8192
            s_and_b32 s30, s30, 0x1ffff
            """)
            N = 8 * NQ
            vrd = [f"ds_read_b64_tr_b16 {vr(VF+4*t+2*j,2)}, v13 offset:{j*512 + 32*t}" for t in range(8) for j in range(2)]
            ex = [f"v_exp_f32 v{cur+i}, v{cur+i}" for i in range(N)]
            cv = [f"v_cvt_pk_bf16_f32 v{PP+i}, v{cur+2*i}, v{cur+2*i+1}" for i in range(N // 2)]
            ad = [f"v_add_f32 v{L_+(i>>3)}, v{L_+(i>>3)}, v{cur+i}" for i in range(N)]
            if NQ == 2: ad = [ad[(i >> 1) + 8 * (i & 1)] for i in range(16)]
            if dma is None: dma = [kpiece(0, "s96", "s30"), vpiece(0, "s97", "s31"), kpiece(1, "s96", "s30"), vpiece(1, "s97", "s31")]
            dma = list(dma) + [""] * (4 - len(dma))
            pv = [(f"s_waitcnt lgkmcnt({14 - 2*t})\n" if qi == 0 else "") +
                  f"v_mfma_f32_16x16x32_bf16 {vr(OA+32*qi+4*t,4)}, {vr(VF+4*t,4)}, {vr(PP+4*qi,4)}, {'0' if first else vr(OA+32*qi+4*t,4)}" for t in range(8) for qi in range(NQ)]
            adv = "s_mov_b32 s97, s96\ns_mov_b32 s96, s98\ns_mov_b32 s31, s30"
            def spread(items, gaps, lo=0):
                out = [[] for _ in range(gaps)]
                for i, x in enumerate(items): out[lo + i * (gaps - lo) // len(items)].append(x)
                return out
            def merge(*ls): return [sum((l[i] for l in ls), []) for i in range(len(ls[0]))]
            if not last:
                for x in kreads(): a(x)
                for x in ex[:8]: a(x)
                rest = (ex[8:] + cv[:4])[::1]
                if NQ == 2: valu = [ex[8], cv[0], ex[9], cv[1], ex[10], cv[2], ex[11], cv[3], ex[12], ex[13], cv[4], ex[14], cv[5], ex[15], cv[6], cv[7]]
                else: valu = cv + ad[:4]
                fill = merge(spread(vrd, N), spread(valu, N))
                if cfg.early:
                    fill = merge(fill, spread(dma, N)); dma = [""] * 4
                emit_qk(qk(nxt), fill)
                a("s_nop 0")
                mt = tree(MX, T0, nxt, N)
                fill = merge(spread(ad if NQ == 2 else ad[4:], N - 1) + [[]], spread(dma, N - 1) + [[]], spread(mt, N - 1, N // 2 - 1) + [[]])
                for n, m in enumerate(pv):
                    a(m)
                    if n == N - 1:
                        stub, back = a.label("stub"), a.label("back")
                        stubs.append((stub, back, 1 - par, NQ))
                        a(f"v_cmp_lt_f32 vcc, s100, v{MX}\n{adv}")
                    for f in fill[n]: a(f)
                a(f"s_cbranch_vccnz {stub}\n{back}:")
            else:
                for x in vrd[:8]: a(x)
                for x in ex[:8] + cv[:4]: a(x)
                for x in vrd[8:]: a(x)
                for x in ex[8:] + cv[4:]: a(x)
                a("s_nop 0")
                fill = merge(spread(ad, N), spread(dma, N))
                for n, m in enumerate(pv):
                    a(m)
                    for f in fill[n]: a(f)
        def wtouch(waves):
            if not waves: return []
            lab = a.label("wt"); m = sum(1 << w for w in waves)
            return [f"s_lshr_b32 s35, {m}, s3\ns_bitcmp1_b32 s35, 0\ns_cbranch_scc0 {lab}\nbuffer_load_dword {VD}, v8, {S(SWO)}, s6 offen\n{lab}:"]
        def at(t): return wtouch([i + 1 for i in range(7) if ts[i] == 100 + t])
        def plus(l, t):
            l = list(l)
            if t: l[-1] += "\n" + t[0]
            return l
        aw = int(cfg.await_)
        step(0, min(aw + 6, 6 if kvg else 14), first=True)
        step(1, min(aw + 2, 6 if kvg else 10))
        a(f"s_mov_b32 {sIT}, 0\nL_aloop{NQ}:")
        step(0, aw); step(1, aw)
        a(f"s_add_u32 {sIT}, {sIT}, 1\ns_cmp_lt_u32 {sIT}, 5\ns_cbranch_scc1 L_aloop{NQ}")
        a(f"""
        s_lshl_b32 s4, {sCQ}, 19
        s_sub_u32 s35, s3, 1
        s_cmp_ge_u32 s3, 5
        s_cselect_b32 s34, 3, 0
        s_cselect_b32 s6, 1, 0
        s_sub_u32 s35, s35, s34
        s_cmp_eq_u32 s3, 1
        s_cselect_b32 s6, 1, s6
        s_add_u32 s35, s35, {sCQ}
        s_and_b32 s35, s35, 3
        s_lshl_b32 s35, s35, 1
        s_add_u32 s6, s6, s35
        s_lshl_b32 s6, s6, 18           ; wo rows of block (wave number)
        v_mov_b32 v4, 0
        """)
        srd(a, SDBG, "s26", "s27", 256)
        step(0, 8, [vpiece(0, "s97", "s31"), vpiece(1, "s97", "s31"), f"buffer_load_dword {VTAG}, v4, {S(SDBG)}, 0 offen {SC}" + ("\n" + code_touch("v5", "v6") if int(cfg.ctouch) & 2 and NQ == 1 else "")] + at(12))
        a(f"""
        s_lshr_b32 s34, s3, 2
        s_lshl_b32 s35, s34, 16
        s_add_u32 s5, s4, s35
        s_lshl_b32 {sA}, {sWI}, 10
        s_add_u32 {sA}, {sA}, {WO0}
        s_lshl_b32 s35, s34, 14
        s_add_u32 {sBb}, {sA}, s35
        """)
        step(1, 6, plus(wo_pieces(sBb, 0, "s5"), at(13)))
        a("s_add_u32 s5, s5, 0x20000")
        step(0, 6, plus(wo_pieces(sBb, 32768, "s5"), at(14)))
        step(1, 8, at(15), last=True)
        stamp(a, cfg, 4)
        for qi in range(NQ):
            across("v_add_f32", L_ + qi, T0)
            a(f"v_rcp_f32 v{L_+qi}, v{L_+qi}")
        a(f"s_mul_i32 s34, {sCQ}, 57344\ns_barrier\ns_cmp_ge_u32 s3, 4\ns_cbranch_scc1 L_epx{NQ}")
        epi(True, NQ)
        a(f"s_branch L_oload\nL_epx{NQ}:")
        epi(False, NQ)
        a("s_branch L_omm")
    attn(2)
    a("L_attn1:")
    attn(1)

    a(f"""
    L_oload:
    v_lshlrev_b32 v14, 4, v0
    s_lshl_b32 {sBb}, {sWI}, 10
    v_add_u32 v9, {sBb}, v14
    s_mul_i32 s35, {sWI}, 7168
    s_add_u32 s35, s35, 28672
    v_add_u32 v7, s35, v14
    s_mul_i32 s33, {sCQ}, 57344
    s_add_u32 s32, s33, 4096
    s_lshl_b32 s35, s2, 7
    s_add_u32 s35, s35, {FLAGS}
    v_mov_b32 v6, s35
    s_waitcnt lgkmcnt(0)
    s_barrier
    """)
    for i in range(7): a(f"ds_read_b128 {vr(16+4*i,4)}, v7 offset:{i*1024}")
    a(f"v_cmp_eq_u32 vcc, 0, {VTAG}\ns_cbranch_vccz L_tagok")
    poll(a, cfg, "L_pt", SDBG, "v4", VTAG, "eq", "0")
    a("L_tagok:")
    def head_of(blk, reg):
        d, h = (0, blk) if blk < 2 else ((blk - 1, 0) if blk < 5 else (blk - 4, 1))
        a(f"s_add_u32 {reg}, {sCQ}, {d}\ns_and_b32 {reg}, {reg}, 3\ns_lshl_b32 {reg}, {reg}, 1")
        if h: a(f"s_add_u32 {reg}, {reg}, 1")
    def flag(word):
        lab = a.label("nf")
        a(f"s_cmp_lg_u32 s3, 0\ns_cbranch_scc1 {lab}\ns_mov_b64 exec, 1\nbuffer_store_dword {VTAG}, v6, {S(SWS)}, 0 offen offset:{4*word} {SC}\ns_mov_b64 exec, -1\n{lab}:")
    q = [("sa", 0, 4)]
    fa, ol, st0 = int(cfg.fa), int(cfg.olead), int(cfg.st0)
    fb = st0 + 9
    for u in range(32):
        need = [i for i, e in enumerate(q) if (e[0] in "wo" and e[1] <= u + 1) or (e[0] == "sa" and u >= fa) or (e[0] == "sb" and u >= fb)]
        if need:
            a(f"s_waitcnt vmcnt({sum(e[2] for e in q[max(need) + 1:])})")
            q = q[max(need) + 1:]
        a("s_barrier")
        if u in (0, 3, 4, 5, 13, 21): stamp(a, cfg, {0: 1, 3: 2, 4: 3, 5: 4, 13: 5, 21: 6}[u], "o")
        if u == fa: flag(0)
        if u == fb: flag(1)
        o = u + ol
        def flag_addr(o, v):
            head_of(o >> 2, "s5")
            a(f"""
            s_andn2_b32 s35, s2, 0x18
            s_lshr_b32 s34, s5, 1
            s_lshl_b32 s34, s34, 3
            s_or_b32 s35, s35, s34
            s_lshl_b32 s35, s35, 7
            s_add_u32 s35, s35, {FLAGS + (4 if o >= 20 else 0)}
            v_mov_b32 {v}, s35
            """)
        if (o + 2) % 4 == 0 and 12 <= o + 2 < 32:
            flag_addr(o + 2, "v5")
            a(f"buffer_load_dword v13, v5, {S(SWS)}, 0 offen {SC}")
            q.append(("o", u + 3, 1))
        if 8 <= o < 32:
            if o % 4 == 0:
                if o == 8: flag_addr(o, "v5")
                else: a(f"v_cmp_ne_u32 vcc, {VTAG}, v13\ns_cbranch_vccz L_po{o}_out")
                poll(a, cfg, f"L_po{o}", SWS, "v5", "v12", "ne", VTAG)
                if o == 8: q = []
                a("s_mul_i32 s31, s5, 28672")
            lab = a.label("os"); sl = o % 8
            a(f"s_add_u32 m0, {sBb}, {sl*7168}\ns_add_u32 s35, s31, {(o&3)*7168}\nbuffer_load_dwordx4 v9, {S(SO)}, s35 offen {SC} lds")
            a(f"s_cmp_eq_u32 {sWI}, 3\ns_cbranch_scc1 {lab}\ns_add_u32 m0, {sBb}, {sl*7168 + 4096}\ns_add_u32 s35, s35, 4096")
            a(f"buffer_load_dwordx4 v9, {S(SO)}, s35 offen {SC} lds\n{lab}:")
            q.append(("o", o, 1))
        w = u + 4
        if w < 32:
            if w % 4 == 0:
                head_of(w >> 2, "s30")
                a("s_lshl_b32 s30, s30, 18")
            for n in range(4):
                a(f"s_add_u32 m0, {sA}, {(w%4)*16384 + n*4096}\ns_add_u32 s35, s30, {(w&3)*65536 + n*16384}\nbuffer_load_dwordx4 v15, {S(SWO)}, s35 offen lds")
            q.append(("w", w, 4))
        if st0 <= u < st0 + 7:
            i = u - st0
            a(f"s_waitcnt lgkmcnt({6-i})\nbuffer_store_dwordx4 {vr(16+4*i,4)}, v7, {S(SO)}, {'s33' if i < 4 else 's32'} offen offset:{(i&3)*1024} {SC}")
            q.append(("sb", 0, 1))
        for blk in range(1, 8):
            if ts[blk - 1] == u:
                lab = a.label("lt")
                a(f"s_cmp_lg_u32 s3, {blk & 3}\ns_cbranch_scc1 {lab}")
                head_of(blk, "s6")
                a(f"s_lshl_b32 s6, s6, 18\nbuffer_load_dword {VD}, v8, {S(SWO)}, s6 offen\n{lab}:")
    stamp(a, cfg, 5)
    stamp(a, cfg, 7, "o")
    stamp_store(a, cfg, 0, 0, "L_end")
    a("s_branch L_end")

    a(f"""
    L_omm:
    v_lshlrev_b32 v14, 4, v0
    v_lshrrev_b32 v4, 4, v0         ; g4
    v_bfe_u32 v5, v0, 2, 2          ; r
    v_and_b32 v6, 3, v0             ; c
    v_and_b32 v7, 1, v4
    v_lshl_add_u32 v9, v7, 2, v5    ; k & 7
    v_lshl_add_u32 v7, v4, 2, v5
    v_lshlrev_b32 v7, 9, v7
    v_lshrrev_b32 v8, 1, v6
    v_lshl_add_u32 v7, v8, 4, v7
    v_and_b32 v8, 1, v6
    v_lshl_add_u32 v7, v8, 3, v7
    v_add_u32 v7, {WO0}, v7
    v_xor_b32 v9, {sWI}, v9
    """)
    for tau in range(4):
        a(f"""
        s_add_u32 s35, {sHG}, {tau}
        s_and_b32 s34, s35, 1
        s_lshl_b32 s34, s34, 2
        s_bfe_u32 s35, s35, 0x10001
        s_lshl_b32 s35, s35, 8
        v_xor_b32 v1, s34, v9
        v_lshl_add_u32 v1, v1, 5, v7
        v_add_u32 v{10+tau}, s35, v1
        """)
    def oreads(u):
        fb = FB + 44 * (u & 1)
        r = [f"ds_read_b64_tr_b16 {vr(fb+4*t+2*j,2)}, v{10+t} offset:{(u%4)*16384 + j*8192}" for t in range(4) for j in range(2)]
        xs = [f"ds_read_b128 {vr(fb+16+4*qt,4)}, v14 offset:{(u%8)*7168 + qt*1024}" for qt in range(7)]
        return r[:2] + xs[:1] + r[2:] + xs[1:]
    a(f"v_mov_b32 v4, 0\ns_waitcnt vmcnt(4) lgkmcnt(0)\ns_barrier")
    stamp(a, cfg, 5)
    for r in oreads(0): a(r)
    gloop("L_o", 8, 4, oreads, {2: " vmcnt(0)"})
    stamp(a, cfg, 6)
    a(f"""
    s_lshl_b32 s30, {sBR}, 3
    s_add_u32 s30, s30, {sB}
    s_lshl_b32 s30, s30, 2
    s_add_u32 s30, s30, {sCQ}
    s_mul_i32 s30, s30, {12*16384}
    s_lshl_b32 s35, {sWI}, 12
    s_add_u32 s30, s30, s35
    s_add_u32 s30, s30, {RED}
    v_lshlrev_b32 v15, 3, v0
    """)
    for tau in range(1, 4):
        a(f"""
        s_add_u32 s35, {sHG}, {tau}
        s_and_b32 s35, s35, 3
        s_mul_i32 s35, s35, {3*16384}
        s_add_u32 s35, s35, s30
        s_add_u32 s35, s35, {(tau-1)*16384}
        """)
        for pr in range(4):
            b = ACC + 4 * (tau * 7 + 2 * pr)
            for i in range(4 if pr < 3 else 2): a(f"v_cvt_pk_bf16_f32 v{b+i}, v{b+2*i}, v{b+2*i+1}")
            if pr < 3: a(f"buffer_store_dwordx4 {vr(b,4)}, v14, {S(SWS)}, s35 offen offset:{pr*1024} {SC}")
            else: a(f"buffer_store_dwordx2 {vr(b,2)}, v15, {S(SWS)}, s35 offen offset:3072 {SC}")
    a(f"""
    s_lshl_b32 s35, s2, 7
    s_lshl_b32 s34, {sWI}, 2
    s_add_u32 s34, s34, {FLAGS + 16}
    s_add_u32 s35, s35, s34
    v_mov_b32 v5, s35
    v_min_u32 v6, 2, v0
    v_sub_u32 v6, {sHG}, v6
    v_add_u32 v6, -1, v6
    v_and_b32 v6, 3, v6
    s_andn2_b32 s35, s2, 3
    v_or_b32 v6, s35, v6
    v_lshlrev_b32 v6, 7, v6
    v_add_u32 v6, s34, v6
    s_mul_i32 s35, {sB}, 458752
    s_lshl_b32 s34, {sBR}, 11
    s_add_u32 s35, s35, s34
    s_lshl_b32 s34, {sCQ}, 9
    s_add_u32 s35, s35, s34
    s_lshl_b32 s34, {sHG}, 7
    s_add_u32 s35, s35, s34
    s_sub_u32 s34, 3670016, s35
    """)
    srd_off(a, SOUT, "s24", "s25", "s35", "s34")
    a(f"""
    v_and_b32 v7, 15, v0
    v_lshlrev_b32 v7, 12, v7
    v_lshrrev_b32 v9, 4, v0
    v_lshl_add_u32 v7, v9, 3, v7
    s_lshl_b32 s35, {sWI}, 5
    v_add_u32 v7, s35, v7
    s_mul_i32 s35, {sHG}, {3*16384}
    s_add_u32 s30, s30, s35
    s_waitcnt vmcnt(0) lgkmcnt(0)
    v_cmp_eq_u32 vcc, 0, {VTAG}
    s_cbranch_vccz L_tagok2
    """)
    poll(a, cfg, "L_pt2", SDBG, "v4", VTAG, "eq", "0")
    a(f"""
    L_tagok2:
    s_mov_b64 exec, 1
    buffer_store_dword {VTAG}, v5, {S(SWS)}, 0 offen {SC}
    s_mov_b64 exec, -1
    """)
    stamp(a, cfg, 1)
    poll(a, cfg, "L_pr", SWS, "v6", "v9", "ne", VTAG)
    stamp(a, cfg, 2)
    a("s_add_u32 s33, s30, 16384\ns_add_u32 s34, s30, 32768")
    for pr in range(4):
        for s_, so in enumerate(("s30", "s33", "s34")):
            r = FB + 12 * pr + 4 * s_
            if pr < 3: a(f"buffer_load_dwordx4 {vr(r,4)}, v14, {S(SWS)}, {so} offen offset:{pr*1024} {SC}")
            else: a(f"buffer_load_dwordx2 {vr(r,2)}, v15, {S(SWS)}, {so} offen offset:3072 {SC}")
    a("s_mov_b32 s33, 0xffff0000")
    nst = 0
    for pr in range(4):
        a(f"s_waitcnt vmcnt({3*(3-pr) + nst})")
        for h in range(2 if pr < 3 else 1):
            qt = 2 * pr + h; b = ACC + 4 * qt
            for s_ in range(3):
                r = FB + 12 * pr + 4 * s_ + 2 * h
                for d in range(2):
                    a(f"v_lshlrev_b32 v{200+2*d}, 16, v{r+d}\nv_and_b32 v{201+2*d}, s33, v{r+d}")
                for i in range(4): a(f"v_add_f32 v{b+i}, v{b+i}, v{200+i}")
            a(f"v_cvt_pk_bf16_f32 v{b}, v{b}, v{b+1}\nv_cvt_pk_bf16_f32 v{b+1}, v{b+2}, v{b+3}")
            a(f"s_mov_b32 s35, {qt*65536}\nbuffer_store_dwordx2 {vr(b,2)}, v7, {S(SOUT)}, s35 offen")
            nst += 1
    if cfg.stamps: a("s_waitcnt vmcnt(0)")
    stamp(a, cfg, 7)
    stamp_store(a, cfg, 4, 256, "L_end")
    a("L_end:\ns_endpgm")
    for stub, back, par, NQ in stubs:
        a(f"{stub}:\ns_call_b64 s[98:99], L_rare{par}{NQ}\ns_branch {back}")
    for NQ in (2, 1):
        for par in range(2):
            a(f"L_rare{par}{NQ}:")
            for qi in range(NQ):
                sb = SS + 16 * par + 8 * qi
                for x in tree(MX, T0, sb, 8): a(x)
                across("v_max_f32", MX, T0)
                a(f"v_max_f32 v{MX}, 0, v{MX}\nv_exp_f32 v{T0}, -v{MX}")
                for i in range(8): a(f"v_sub_f32 v{sb+i}, v{sb+i}, v{MX}")
                for i in range(4): a(f"v_sub_f32 v{NM+4*qi+i}, v{NM+4*qi+i}, v{MX}")
                a(f"v_mul_f32 v{L_+qi}, v{L_+qi}, v{T0}")
                for i in range(32): a(f"v_mul_f32 v{OA+32*qi+i}, v{OA+32*qi+i}, v{T0}")
            a("s_setpc_b64 s[98:99]")
    a("L_last:")
    t = a.text()
    if "noam" in cfg.abl: t = "\n".join(l for l in t.split("\n") if "v_mfma_f32_32x32" not in l)
    if "am75" in cfg.abl: t = "\n".join(l for l in t.split("\n") if not ("v_mfma_f32_32x32" in l and any(x in l for x in ("v[184:187], v[40:43]", "v[188:191], v[44:47]", "v[216:219], v[228:231]", "v[220:223], v[228:231]"))))
    if cfg.kvpol:
        import re
        t = re.sub(r"(buffer_load_dwordx4 v[23], s\[\d+:\d+\], s35 offen) lds", r"\1 " + cfg.kvpol.replace("+", " ") + " lds", t)
    return t

def build(cfg):
    K = NAME + "_kernel"
    body = kernel_head(K) + kernel(cfg) + kernel_desc(K, 240, 240)
    tgt = '.amdgcn_target "amdgcn-amd-amdhsa--gfx950"\n'
    if cfg.echo:
        from gen2 import echo_kernel
        hdr = f"; @launch kernel={K} grid=(256,1,1) block=(512,1,1) lds=163840\n; @launch kernel=echo_kernel grid=(1,1,1) block=(64,1,1) lds=0\n"
        return hdr + tgt + kernel_head("echo_kernel") + echo_kernel(cfg) + kernel_desc("echo_kernel", 8, 8) + body
    return "; @launch grid=(256,1,1) block=(512,1,1) lds=163840\n" + tgt + body

if __name__ == "__main__":
    cfg = Cfg()
    for kv in sys.argv[2:]:
        k, v = kv.split("=")
        setattr(cfg, k, {"True": True, "False": False}.get(v, v))
    open(sys.argv[1], "w").write(build(cfg))
```

```python
import sys, math, struct, re
from asmlib import *

class Cfg:
    stamps = False
    sgrp = "main"
    kvpol = "nt"
    qord = "rot"
    kv0 = 7
    kvper = 4
    await_ = 8
    early = False
    tsched = "113,113,114,114,115,115,115,12"
    fa = 2
    st0 = 1
    sper = 4
    mix = False
    uneven = False
    chk = False
    outpol = ""
    echo = ""
    abl = ""
    spin = 400000

WQ0 = 28672
KT, HSTEP, SLOTB = 8448, 17152, 34304
SA_, SB_, SC_, SD_ = 94208, 128512, 0, 34304
HO, WO0 = 36864, 94208
RED, FLAGS, TAG = 16 << 20, 48 << 20, (48 << 20) + 65536
SX, SW, SK, SV, SO, SWO, SWS = 36, 40, 44, 48, 52, 56, 60
SOUT, SDBG = SX, SW
sBR, sHG, sCQ, sB, sWI, sIT, sA, sBb, sT, sU, sH0, sROT = ("s%d" % i for i in range(80, 92))
SC = "sc1"
VTAG, VD = "v236", "v237"
ACC, FB = 16, 128
def S(d): return f"s[{d}:{d+3}]"

def srd_off(a, d, lo, hi, off_reg, nbytes):
    a(f"s_add_u32 s{d}, {lo}, {off_reg}\ns_addc_u32 s{d+1}, {hi}, 0\ns_and_b32 s{d+1}, s{d+1}, 0xffff")
    a(f"s_mov_b32 s{d+2}, {nbytes}\ns_mov_b32 s{d+3}, 0x00020000")

def weave(a, mf, fill):
    fill = list(fill)
    for m in mf:
        a(m)
        if fill: a(fill.pop(0))
    for f in fill: a(f)

def kernel(cfg):
    a = A()
    HD = 262144 if cfg.mix else 131072
    def stamp(i, grp="main"):
        if cfg.stamps and (grp == cfg.sgrp or i == 0): a(f"s_memrealtime s[{64+2*i}:{65+2*i}]")
    def stamp_store(wave, wgoff):
        if not cfg.stamps: return
        a(f"s_cmp_lg_u32 s3, {wave}\ns_cbranch_scc1 L_end")
        a(f"s_waitcnt lgkmcnt(0)\ns_add_u32 s3, s2, {wgoff}\ns_lshl_b32 s3, s3, 7\ns_add_u32 s3, s3, {STAMP_OFF}\nv_mov_b32 v1, s3")
        for q in range(4):
            for j in range(4): a(f"v_mov_b32 v{4+j}, s{64+4*q+j}")
            a(f"buffer_store_dwordx4 v[4:7], v1, {S(SWS)}, 0 offen offset:{16*q}\ns_nop 2")
        a("s_waitcnt vmcnt(0)")
    def poll(lab, srdn, vaddr, vtmp, cmp, want):
        a(f"""
        s_mov_b32 {sU}, 0
        {lab}:
        buffer_load_dword {vtmp}, {vaddr}, {S(srdn)}, 0 offen {SC}
        s_add_u32 {sU}, {sU}, 1
        s_waitcnt vmcnt(0)
        v_cmp_{cmp}_u32 vcc, {want}, {vtmp}
        s_cmp_ge_u32 {sU}, {cfg.spin}
        s_cbranch_scc1 {lab}_out
        s_cbranch_vccnz {lab}
        {lab}_out:
        """)
    def select(pairs):
        a("s_bitcmp0_b32 s2, 2")
        for p in pairs: a(f"s_cselect_b64 s[{p}:{p+1}], s[{p}:{p+1}], s[{p+10}:{p+11}]")
    def other_srds():
        select((6, 8, 12))
        a(f"s_lshl_b32 s35, {sB}, 22\ns_lshl_b32 s34, {sH0}, 17\ns_add_u32 s35, s35, s34")
        srd_off(a, SK, "s6", "s7", "s35", HD + 131072)
        srd_off(a, SV, "s8", "s9", "s35", HD + 131072)
        a(f"s_lshl_b32 s35, {sBR}, 3\ns_add_u32 s35, s35, {sB}\ns_lshl_b32 s35, s35, 2\ns_add_u32 s35, s35, {sHG}\ns_mul_i32 s35, s35, 229376")
        srd_off(a, SO, "s28", "s29", "s35", 2 * 229376)
        a(f"s_lshl_b32 s35, {sHG}, 21\ns_lshl_b32 s34, {sCQ}, 9\ns_add_u32 s35, s35, s34\ns_sub_u32 s34, 0x800000, s35")
        srd_off(a, SWO, "s12", "s13", "s35", "s34")
        srd(a, SWS, "s28", "s29", 0x10000000)
        a(f"s_lshr_b32 {sROT}, s2, 3\ns_lshr_b32 s35, s2, 7\ns_add_u32 {sROT}, {sROT}, s35\ns_lshl_b32 s35, s2, 1\n"
          f"s_add_u32 {sROT}, {sROT}, s35\ns_and_b32 {sROT}, {sROT}, 15\ns_lshl_b32 {sROT}, {sROT}, 13")

    a("s_cmp_ge_u32 s2, 256\ns_cbranch_scc1 L_end")
    stamp(0)
    a(f"""
    s_load_dwordx16 s[4:19], s[0:1], 0
    s_load_dwordx8 s[20:27], s[0:1], 64
    s_load_dwordx2 s[28:29], s[0:1], 96
    v_lshrrev_b32 v1, 6, v0
    v_and_b32 v0, 63, v0
    v_readfirstlane_b32 s3, v1
    s_bfe_u32 {sBR}, s2, 0x10002
    s_and_b32 {sHG}, s2, 3
    s_bfe_u32 {sCQ}, s2, 0x20003
    s_lshr_b32 {sB}, s2, 5
    s_lshl_b32 {sH0}, {sHG}, 3
    """)
    if cfg.mix: a(f"s_lshl_b32 s35, {sCQ}, 1\ns_and_b32 s35, s35, 4\ns_add_u32 {sH0}, {sH0}, s35\ns_and_b32 s35, {sCQ}, 1\ns_add_u32 {sH0}, {sH0}, s35")
    else: a(f"s_lshl_b32 s35, {sCQ}, 1\ns_add_u32 {sH0}, {sH0}, s35")
    a(f"s_and_b32 {sWI}, s3, 3\ns_cmp_lt_u32 s3, 4\ns_cbranch_scc1 L_qmm")

    a(f"""
    v_lshrrev_b32 v4, 5, v0
    v_and_b32 v5, 31, v0
    s_and_b32 s35, {sWI}, 1
    s_lshr_b32 s34, {sWI}, 1
    s_lshl_b32 {sA}, s35, 1
    s_lshl_b32 {sBb}, s34, 2
    s_add_u32 {sT}, {sA}, {sBb}
    v_add_u32 v6, {sT}, v4
    v_lshlrev_b32 v6, 1, v6
    v_xor_b32 v5, v5, v6
    s_lshl_b32 {sBb}, s34, 3
    s_add_u32 {sA}, {sA}, {sBb}
    v_add_u32 v4, {sA}, v4
    v_lshlrev_b32 v4, 13, v4
    v_lshl_add_u32 v10, v5, 4, v4
    """)
    if cfg.mix: a("v_and_b32 v5, 16, v5\nv_lshl_add_u32 v10, v5, 4, v10")
    a(f"""
    s_lshl_b32 {sA}, {sA}, 9
    s_add_u32 {sA}, {sA}, {WQ0}
    v_lshrrev_b32 v4, 3, v0
    v_and_b32 v5, 7, v0
    v_lshrrev_b32 v6, 1, v4
    s_lshl_b32 {sBb}, s35, 2
    v_add_u32 v6, {sBb}, v6
    v_xor_b32 v5, v5, v6
    s_lshl_b32 {sBb}, {sWI}, 3
    v_add_u32 v4, {sBb}, v4
    v_lshlrev_b32 v4, 11, v4
    v_lshl_add_u32 v11, v5, 4, v4
    s_lshl_b32 {sBb}, {sWI}, 10
    s_xor_b32 s35, {sB}, {sCQ}
    s_and_b32 s35, s35, 1
    """)
    alt = cfg.qord == "alt2"
    if alt:
        for g in range(2):
            o = [g] + [(t + 1 + g if t & 1 else t - 1 - g) for t in range(1, 15)] + [15 - g]
            v = sum(st << (4 * t) for t, st in enumerate(o))
            a(f"s_cmp_eq_u32 s35, {g}\ns_cselect_b32 s98, {v & 0xffffffff:#x}, s98\ns_cselect_b32 s99, {v >> 32:#x}, s99")
        a("s_mov_b64 s[92:93], s[98:99]\ns_lshl_b32 s30, s35, 19\ns_lshl_b32 s31, s35, 7")
    elif cfg.qord == "rot": a("s_lshl_b32 s30, s35, 22\ns_lshl_b32 s31, s35, 10")
    else: a("s_mov_b32 s30, 0\ns_mov_b32 s31, 0")
    a(f"s_mul_i32 s33, {sB}, 229376\ns_lshl_b32 s32, {sH0}, 8\ns_sub_u32 s34, 0x800000, s32\ns_waitcnt lgkmcnt(0)")
    select((4, 10))
    srd_off(a, SX, "s4", "s5", "s33", 229376)
    srd_off(a, SW, "s10", "s11", "s32", "s34")
    def issue_wq(slot):
        for pc in (0, 2, 8, 10):
            a(f"s_add_u32 m0, {sA}, {slot*16384 + pc*1024}\ns_add_u32 s35, s30, {pc*16384}\nbuffer_load_dwordx4 v10, {S(SW)}, s35 offen lds")
        if alt and (slot & 1): a("s_lshr_b64 s[98:99], s[98:99], 4\ns_and_b32 s30, s98, 15\ns_lshl_b32 s30, s30, 19")
        else: a("s_add_u32 s30, s30, 0x40000\ns_and_b32 s30, s30, 0x7fffff")
    def issue_x(slot):
        lab = a.label("xs")
        for n in range(4):
            if n == 3: a(f"s_cmp_ge_u32 {sWI}, 2\ns_cbranch_scc1 {lab}")
            a(f"s_add_u32 m0, {sBb}, {slot*14336 + n*4096}\ns_add_u32 s35, s31, {n*65536}\nbuffer_load_dwordx4 v11, {S(SX)}, s35 offen lds")
        if alt: a(f"{lab}:\ns_lshr_b64 s[92:93], s[92:93], 4\ns_and_b32 s31, s92, 15\ns_lshl_b32 s31, s31, 7")
        else: a(f"{lab}:\ns_add_u32 s31, s31, 128\ns_and_b32 s31, s31, 2047")
    def kv_piece(tile, hd, n, isv, slot):
        a(f"s_add_u32 s35, {sROT}, {tile*8192}\ns_and_b32 s35, s35, 0x1ffff\ns_add_u32 s35, s35, s32")
        a(f"s_add_u32 m0, s96, {slot + hd*HSTEP + isv*KT + n*4224}\ns_add_u32 s35, s35, {hd*HD + n*1024}")
        a(f"buffer_load_dwordx4 v2, {S(SV if isv else SK)}, s35 offen KVPOL lds")
    kv_src = "v_lshrrev_b32 v4, 4, v0\nv_and_b32 v5, 15, v0\nv_lshlrev_b32 v4, 11, v4\nv_lshl_add_u32 v2, v5, 4, v4"
    stamp(1, "s")
    issue_x(0); issue_wq(0); issue_wq(1)
    stamp(2, "s")
    other_srds()
    a(kv_src)
    a(f"s_mul_i32 s96, {sWI}, 1056\ns_lshl_b32 s32, {sWI}, 8\ns_waitcnt vmcnt(4)\ns_barrier")
    issue_x(1); issue_wq(2)
    a("s_waitcnt vmcnt(7)\ns_barrier")
    issue_wq(3); issue_wq(0)
    kv0 = int(cfg.kv0)
    kvl = [(tile, hd, n, isv) for tile in range(2) for isv in range(2) for hd in range(2) for n in range(2)]
    a(f"s_mov_b32 {sIT}, 0\ns_branch L_qlmid\nL_qlloop:")
    for u in range(4):
        a(f"s_waitcnt vmcnt({8 if u & 1 else 11})\ns_barrier")
        if u & 1: issue_x((u >> 1) & 1)
        issue_wq(u)
        if u == 0: a("L_qlmid:")
    a(f"s_add_u32 {sIT}, {sIT}, 1\ns_cmp_lt_u32 {sIT}, {kv0}\ns_cbranch_scc1 L_qlloop")
    q = []
    for u in range(4 * kv0 - 4, 4 * kv0):
        if u & 1: q.append(("x", (u >> 1) + 2, 3))
        q.append(("w", u + 4, 4))
    for u in range(4 * kv0, 32):
        need = [i for i, e in enumerate(q) if (e[0] == "w" and e[1] <= u + 1) or (e[0] == "x" and e[1] <= (u + 1) >> 1)]
        if need:
            a(f"s_waitcnt vmcnt({sum(e[2] for e in q[max(need) + 1:])})")
            q = q[max(need) + 1:]
        a("s_barrier")
        if (u & 1) and (u >> 1) + 2 < 16: issue_x((u >> 1) & 1); q.append(("x", (u >> 1) + 2, 3))
        if u + 4 < 32: issue_wq(u % 4); q.append(("w", u + 4, 4))
        for _ in range(int(cfg.kvper)):
            if kvl:
                tile, hd, n, isv = kvl.pop(0)
                kv_piece(tile, hd, n, isv, (SA_, SB_)[tile]); q.append(("k", 0, 1))
    a("s_barrier")
    for tile, hd, n, isv in kvl: kv_piece(tile, hd, n, isv, (SA_, SB_)[tile])
    for isv in range(2):
        for hd in range(2):
            for n in range(2): kv_piece(2, hd, n, isv, SC_)
    a("s_waitcnt vmcnt(20)\ns_branch L_join")

    def gmf(u, zero=False):
        fb = FB + 44 * (u & 1)
        return [f"v_mfma_f32_16x16x32_bf16 {vr(ACC+4*(t*7+qt),4)}, {vr(fb+4*t,4)}, {vr(fb+16+4*qt,4)}, {'0' if zero else vr(ACC+4*(t*7+qt),4)}" for qt in range(7) for t in range(4)]
    def gloop(name, period, blocks, reads, pre):
        a("s_waitcnt lgkmcnt(0)\ns_barrier")
        weave(a, gmf(0, True), reads(1))
        a(f"s_mov_b32 {sIT}, 0\ns_branch {name}_mid\n{name}:")
        for u in range(period):
            a(f"s_waitcnt lgkmcnt(0){pre.get(u, '')}\ns_barrier")
            weave(a, gmf(u), reads(u + 1))
            if u == 0: a(f"{name}_mid:")
            if u % 4 == 3:
                if cfg.stamps and cfg.sgrp == name:
                    for i in range(u // 4, 7, period // 4):
                        lab = a.label("st")
                        a(f"s_cmp_lg_u32 {sIT}, {i}\ns_cbranch_scc1 {lab}")
                        stamp(1 + i, name)
                        a(f"{lab}:")
                a(f"s_add_u32 {sIT}, {sIT}, 1\ns_cmp_lt_u32 {sIT}, {blocks}")
                a(f"s_cbranch_scc1 {name}" if u == period - 1 else f"s_cbranch_scc0 {name}_out")
        a(f"{name}_out:")
    cbits = struct.unpack("<I", struct.pack("<f", (128 ** -0.5) * math.log2(math.e)))[0]
    a(f"""
    L_qmm:
    v_lshrrev_b32 v4, 4, v0         ; g4
    v_bfe_u32 v5, v0, 2, 2          ; r
    v_and_b32 v6, 3, v0             ; c
    v_lshl_add_u32 v7, v4, 3, v5
    v_lshlrev_b32 v7, 9, v7
    v_lshrrev_b32 v9, 1, v6
    v_lshl_add_u32 v7, v9, 4, v7
    v_and_b32 v9, 1, v6
    v_lshl_add_u32 v7, v9, 3, v7
    s_lshr_b32 s35, {sWI}, 1
    s_lshl_b32 s35, s35, 8
    s_add_u32 s35, s35, {WQ0}
    v_add_u32 v7, s35, v7
    v_and_b32 v9, 1, v4
    v_lshl_or_b32 v9, v9, 2, v5
    s_and_b32 s35, {sWI}, 1
    s_lshl_b32 s35, s35, 2
    v_xor_b32 v9, s35, v9
    """)
    for t in range(4): a(f"v_xor_b32 v1, {t}, v9\nv_lshl_add_u32 v{10+t}, v1, 5, v7")
    a(f"""
    v_and_b32 v5, 15, v0
    v_lshrrev_b32 v6, 1, v5
    v_xor_b32 v6, v6, v4
    v_lshlrev_b32 v7, 7, v5
    v_lshl_add_u32 v14, v6, 4, v7
    v_xor_b32 v15, 64, v14
    v_lshlrev_b32 v5, 4, v5
    v_lshrrev_b32 v6, 5, v0
    v_lshl_add_u32 v5, v6, 8, v5
    v_bfe_u32 v6, v0, 4, 1
    v_lshl_add_u32 v5, v6, 3, v5
    s_lshr_b32 s34, {sWI}, 1
    s_mul_i32 s34, s34, 28672
    s_and_b32 s35, {sWI}, 1
    s_lshl_b32 s35, s35, 11
    s_add_u32 s34, s34, s35
    s_add_u32 s34, s34, {HO}
    v_add_u32 v8, s34, v5
    s_mov_b32 s30, {cbits:#x}
    s_mov_b32 s31, {cbits:#x}
    """)
    a(kv_src)
    a("s_waitcnt lgkmcnt(0)")
    other_srds()
    a(f"""
    s_or_b32 s35, s2, s3
    s_cbranch_scc1 L_notag
    s_mov_b32 s{SX}, s26
    s_and_b32 s{SX+1}, s27, 0xffff
    s_mov_b32 s{SX+2}, 256
    s_mov_b32 s{SX+3}, 0x00020000
    v_mov_b32 v4, {TAG}
    v_mov_b32 v7, 0
    s_mov_b32 s34, 1664525
    s_mov_b32 s35, 1013904223
    buffer_load_dword v5, v4, {S(SWS)}, 0 offen {SC}
    s_waitcnt vmcnt(0)
    v_mul_lo_u32 v5, v5, s34
    v_add_u32 v5, s35, v5
    v_mov_b32 v6, s35
    v_cmp_eq_u32 vcc, 0, v5
    s_nop 1
    v_cndmask_b32 v5, v5, v6, vcc
    s_mov_b64 exec, 1
    buffer_store_dword v5, v7, {S(SX)}, 0 offen {SC}
    buffer_store_dword v5, v4, {S(SWS)}, 0 offen {SC}
    s_mov_b64 exec, -1
    L_notag:
    s_barrier
    """)
    def qreads(u):
        fb = FB + 44 * (u & 1)
        r = [f"ds_read_b64_tr_b16 {vr(fb+4*t+2*j,2)}, v{10+t} offset:{(u%4)*16384 + j*2048}" for t in range(4) for j in range(2)]
        xs = [f"ds_read_b128 {vr(fb+16+4*qt,4)}, v{14+(u&1)} offset:{((u>>1)&1)*14336 + qt*2048}" for qt in range(7)]
        return r[:2] + xs[:1] + r[2:] + xs[1:]
    stamp(1); stamp(1, "s")
    for r in qreads(0): a(r)
    gloop("L_q", 4, 8, qreads, {})
    stamp(2)
    a("s_waitcnt lgkmcnt(0)\ns_barrier")
    for qt in range(7):
        for t in range(4):
            acc = ACC + 4 * (t * 7 + qt)
            a(f"v_pk_mul_f32 {vr(acc,2)}, {vr(acc,2)}, s[30:31]\nv_pk_mul_f32 {vr(acc+2,2)}, {vr(acc+2,2)}, s[30:31]")
            a(f"v_cvt_pk_bf16_f32 v{acc}, v{acc}, v{acc+1}\nv_cvt_pk_bf16_f32 v{acc+1}, v{acc+2}, v{acc+3}")
            a(f"ds_write_b64 v8, {vr(acc,2)} offset:{qt*4096 + t*512}")

    QF, OA, SS, NM, KF, VF, PP = 16, 48, 112, 144, 160, 192, 224
    L_, MX, T0 = 232, 234, 235
    a(f"""
    L_join:
    s_lshr_b32 s34, s3, 2
    s_mul_i32 s35, s34, {HD}
    s_add_u32 s{SK}, s{SK}, s35
    s_addc_u32 s{SK+1}, s{SK+1}, 0
    s_mov_b32 s{SK+2}, 131072
    s_add_u32 s{SV}, s{SV}, s35
    s_addc_u32 s{SV+1}, s{SV+1}, 0
    s_mov_b32 s{SV+2}, 131072
    s_mul_i32 s30, s34, {HSTEP}
    s_mul_i32 {sA}, {sWI}, 1056
    s_add_u32 {sA}, {sA}, s30
    s_add_u32 {sBb}, {sA}, {KT}
    v_lshlrev_b32 v5, 4, v0
    s_mul_i32 s35, s34, 28672
    s_lshl_b32 {sT}, {sWI}, 13
    s_add_u32 {sT}, {sT}, s35
    s_add_u32 {sT}, {sT}, {HO}
    v_add_u32 v9, {sT}, v5
    s_lshl_b32 {sT}, {sWI}, 11
    s_add_u32 s35, s35, {sT}
    v_add_u32 v14, s35, v5
    v_and_b32 v7, 7, v0
    v_mul_u32_u24 v7, 1056, v7
    v_bfe_u32 v1, v0, 3, 1
    v_lshl_add_u32 v7, v1, 8, v7
    v_lshrrev_b32 v1, 4, v0
    v_lshl_add_u32 v7, v1, 4, v7
    v_add_u32 v10, s30, v7
    v_bfe_u32 v7, v0, 2, 3
    v_mul_u32_u24 v7, 1056, v7
    v_lshrrev_b32 v1, 5, v0
    v_lshl_add_u32 v7, v1, 8, v7
    v_and_b32 v1, 3, v0
    v_lshl_add_u32 v7, v1, 3, v7
    s_add_u32 s35, s30, {KT}
    v_add_u32 v12, s35, v7
    v_add_u32 v11, {SA_}, v10
    s_lshl_b32 s35, {sWI}, 8
    s_add_u32 s31, {sROT}, s35
    s_add_u32 s31, s31, {3*8192}
    s_and_b32 s31, s31, 0x1ffff
    s_mov_b32 s96, {SA_}
    s_mov_b32 s97, {SD_}
    s_mov_b32 s100, 0x41000000
    v_lshrrev_b32 v4, 5, v0
    s_lshl_b32 s35, {sWI}, 1
    v_add_u32 v4, s35, v4
    v_and_b32 v5, 31, v0
    v_lshlrev_b32 v6, 1, v4
    v_xor_b32 v5, v5, v6
    v_lshlrev_b32 v4, 11, v4
    v_lshl_add_u32 v15, v5, 4, v4
    v_lshrrev_b32 v4, 4, v0
    v_lshlrev_b32 v4, 5, v4
    v_bfe_u32 v5, v0, 2, 2
    v_add_u32 v4, v4, v5
    s_lshl_b32 s35, {sB}, 2
    v_add_u32 v4, s35, v4
    v_lshlrev_b32 v4, 11, v4
    v_and_b32 v5, 3, v0
    v_lshl_add_u32 v3, v5, 7, v4
    v_mov_b32 v4, 0
    """)
    srd(a, SDBG, "s26", "s27", 256)
    a(f"s_cmp_eq_u32 {sWI}, 3\ns_waitcnt lgkmcnt(0)\ns_cbranch_scc1 L_attn1")
    ts = [int(x) for x in cfg.tsched.split(",")]
    stubs = []
    def blk(b): return (0, b, 0) if b < 2 else ((b - 1, 0, 0) if b < 5 else ((b - 4, 1, 0) if b < 8 else (3, 1, 1)))
    def producer(b, reg): a(f"s_add_u32 {reg}, {sCQ}, {blk(b)[0]}\ns_and_b32 {reg}, {reg}, 3")
    def wo_rows(b, reg):
        d, h, g = blk(b)
        producer(b, reg)
        if cfg.mix: a(f"s_lshl_b32 s35, {reg}, 1\ns_and_b32 s35, s35, 4\ns_and_b32 {reg}, {reg}, 1\ns_add_u32 {reg}, {reg}, s35\ns_add_u32 {reg}, {reg}, {2*h + 8*g}")
        else: a(f"s_lshl_b32 {reg}, {reg}, 1\ns_add_u32 {reg}, {reg}, {h + 8*g}")
        a(f"s_lshl_b32 {reg}, {reg}, 18")
    def touch_block(b, wave):
        lab = a.label("wt"); t = A()
        keep, a.l = a.l, t.l
        a(f"s_cmp_lg_u32 s3, {wave}\ns_cbranch_scc1 {lab}")
        wo_rows(b, "s6")
        a(f"buffer_load_dword {VD}, v3, {S(SWO)}, s6 offen\n{lab}:")
        a.l = keep
        return t.text()
    def kpiece(n, slot, src): return f"s_add_u32 s34, {slot}, {sA}\ns_add_u32 m0, s34, {n*4224}\ns_add_u32 s35, {src}, {n*1024}\nbuffer_load_dwordx4 v2, {S(SK)}, s35 offen KVPOL lds"
    def vpiece(n, slot, src): return f"s_add_u32 s34, {slot}, {sBb}\ns_add_u32 m0, s34, {n*4224}\ns_add_u32 s35, {src}, {n*1024}\nbuffer_load_dwordx4 v2, {S(SV)}, s35 offen KVPOL lds"
    def wo_pieces(mbase, moff, soff, add=0):
        return [f"s_add_u32 m0, {mbase}, {moff + n*4096}\ns_add_u32 s35, {soff}, {add + n*16384}\nbuffer_load_dwordx4 v15, {S(SWO)}, s35 offen lds" for n in range(4)]
    def kreads(): return [f"ds_read_b128 {vr(KF+16*kt+4*s_,4)}, v11 offset:{kt*512 + 64*s_}" for s_ in range(4) for kt in range(2)]
    def tree(dst, tmp, b, n):
        if n == 8: return [f"v_max3_f32 v{dst}, v{b}, v{b+1}, v{b+2}", f"v_max3_f32 v{tmp}, v{b+3}, v{b+4}, v{b+5}",
                           f"v_max3_f32 v{dst}, v{dst}, v{b+6}, v{b+7}", f"v_max_f32 v{dst}, v{dst}, v{tmp}"]
        return ([f"v_max3_f32 v{dst}, v{b}, v{b+1}, v{b+2}", f"v_max3_f32 v{tmp}, v{b+3}, v{b+4}, v{b+5}"]
                + [f"v_max3_f32 v{(dst, tmp)[i&1]}, v{(dst, tmp)[i&1]}, v{b+6+2*i}, v{b+7+2*i}" for i in range(5)]
                + [f"v_max_f32 v{dst}, v{dst}, v{tmp}"])
    def across(op, r, tmp):
        for sw in ("16", "32"):
            a(f"s_nop 0\nv_mov_b32 v{tmp}, v{r}\ns_nop 1\nv_permlane{sw}_swap_b32 v{tmp}, v{r}\ns_nop 1\n{op} v{r}, v{r}, v{tmp}")
    def epi(store, NQ):
        for p in range(4):
            for qi in range(NQ):
                b = OA + 32*qi + 8*p
                for i in range(8): a(f"v_mul_f32 v{b+i}, v{b+i}, v{L_+qi}")
                for i in range(4): a(f"v_cvt_pk_bf16_f32 v{b+i}, v{b+2*i}, v{b+2*i+1}")
                a(f"ds_write_b128 v14, {vr(b,4)} offset:{p*7168 + qi*1024}")
                if store: a(f"buffer_store_dwordx4 {vr(b,4)}, v14, {S(SO)}, s34 offen offset:{qi*1024} {SC}")
            if store: a("s_add_u32 s34, s34, 7168")
        if store: a(f"s_waitcnt vmcnt({4 * NQ})")
    def attn(NQ):
        N = 8 * NQ
        def qk(sb, zero=False):
            out = []
            for s_ in range(4):
                for kt in range(2):
                    for qi in range(NQ):
                        d = vr(sb + 8*qi + 4*kt, 4)
                        out.append((f"s_waitcnt lgkmcnt(LG{2*s_+kt})\n" if qi == 0 else "") +
                                   f"v_mfma_f32_16x16x32_bf16 {d}, {vr(KF+16*kt+4*s_,4)}, {vr(QF+16*qi+4*s_,4)}, {('0' if zero else vr(NM+4*qi,4)) if s_ == 0 else d}")
            return out
        def emit_qk(ms, fill):
            nv = 0
            for n, m in enumerate(ms):
                i = n // NQ
                a(m.replace(f"LG{i}", str(min(15, 7 - i + nv))))
                for f in fill[n]:
                    a(f); nv += f.startswith("ds_")
        def spread(items, gaps, lo=0):
            out = [[] for _ in range(gaps)]
            for i, x in enumerate(items): out[lo + i * (gaps - lo) // len(items)].append(x)
            return out
        def merge(*ls): return [sum((l[i] for l in ls), []) for i in range(len(ls[0]))]
        a("s_barrier")
        for qi in range(NQ):
            for s_ in range(4): a(f"ds_read_b128 {vr(QF+16*qi+4*s_,4)}, v9 offset:{qi*4096 + s_*1024}")
        for x in kreads(): a(x)
        a("s_waitcnt lgkmcnt(8)\ns_barrier")
        stamp(3)
        emit_qk(qk(SS, True), [[kpiece(0, "s97", "s31")], [], [kpiece(1, "s97", "s31")]] + [[]] * 16)
        a("s_nop 7")
        for qi in range(NQ):
            for x in tree(MX, T0, SS + 8*qi, 8): a(x)
            across("v_max_f32", MX, T0)
            a(f"v_mov_b32 v{L_+qi}, 0")
            for i in range(8): a(f"v_sub_f32 v{SS+8*qi+i}, v{SS+8*qi+i}, v{MX}")
            for i in range(4): a(f"v_sub_f32 v{NM+4*qi+i}, 0, v{MX}")
        def step(par, wait, dma=None, first=False, last=False):
            cur, nxt = SS + 16 * par, SS + 16 * (1 - par)
            a(f"""
            s_waitcnt vmcnt({wait})
            s_barrier
            s_add_u32 s98, s96, {SLOTB}
            s_cmp_eq_u32 s96, {SB_}
            s_cselect_b32 s98, 0, s98
            s_cmp_eq_u32 s96, {SD_}
            s_cselect_b32 s98, {SA_}, s98
            v_add_u32 v11, s98, v10
            v_add_u32 v13, s96, v12
            s_add_u32 s30, s31, 8192
            s_and_b32 s30, s30, 0x1ffff
            """)
            vrd = [f"ds_read_b64_tr_b16 {vr(VF+4*t+2*j,2)}, v13 offset:{j*512 + 32*t}" for t in range(8) for j in range(2)]
            ex = [f"v_exp_f32 v{cur+i}, v{cur+i}" for i in range(N)]
            cv = [f"v_cvt_pk_bf16_f32 v{PP+i}, v{cur+2*i}, v{cur+2*i+1}" for i in range(N // 2)]
            ad = [f"v_add_f32 v{L_+(i>>3)}, v{L_+(i>>3)}, v{cur+i}" for i in range(N)]
            if NQ == 2: ad = [ad[(i >> 1) + 8 * (i & 1)] for i in range(16)]
            if dma is None: dma = [kpiece(0, "s96", "s30"), vpiece(0, "s97", "s31"), kpiece(1, "s96", "s30"), vpiece(1, "s97", "s31")]
            dma = list(dma) + [""] * (4 - len(dma))
            pv = [(f"s_waitcnt lgkmcnt({14 - 2*t})\n" if qi == 0 else "") +
                  f"v_mfma_f32_16x16x32_bf16 {vr(OA+32*qi+4*t,4)}, {vr(VF+4*t,4)}, {vr(PP+4*qi,4)}, {'0' if first else vr(OA+32*qi+4*t,4)}" for t in range(8) for qi in range(NQ)]
            if not last:
                for x in kreads(): a(x)
                for x in ex[:8]: a(x)
                if NQ == 2: valu = [ex[8], cv[0], ex[9], cv[1], ex[10], cv[2], ex[11], cv[3], ex[12], ex[13], cv[4], ex[14], cv[5], ex[15], cv[6], cv[7]]
                else: valu = cv + ad[:4]
                fill = merge(spread(vrd, N), spread(valu, N))
                if cfg.early:
                    fill = merge(fill, spread(dma, N)); dma = [""] * 4
                emit_qk(qk(nxt), fill)
                a("s_nop 0")
                mt = tree(MX, T0, nxt, N)
                fill = merge(spread(ad if NQ == 2 else ad[4:], N - 1) + [[]], spread(dma, N - 1) + [[]], spread(mt, N - 1, N // 2 - 1) + [[]])
                for n, m in enumerate(pv):
                    a(m)
                    for f in fill[n]: a(f)
                stub, back = a.label("stub"), a.label("back")
                stubs.append((stub, back, 1 - par, NQ))
                a(f"v_cmp_lt_f32 vcc, s100, v{MX}\ns_mov_b32 s97, s96\ns_mov_b32 s96, s98\ns_mov_b32 s31, s30\ns_cbranch_vccnz {stub}\n{back}:")
            else:
                for x in vrd[:8]: a(x)
                for x in ex[:8] + cv[:4]: a(x)
                for x in vrd[8:]: a(x)
                for x in ex[8:] + cv[4:]: a(x)
                a("s_nop 0")
                fill = merge(spread(ad, N), spread(dma, N))
                for n, m in enumerate(pv):
                    a(m)
                    for f in fill[n]: a(f)
        def at(t): return "".join(touch_block(b, b) for b in range(1, 8) if ts[b - 1] == 100 + t)
        aw = int(cfg.await_)
        step(0, min(aw + 6, 14), first=True)
        step(1, min(aw + 2, 10))
        a(f"s_mov_b32 {sIT}, 0\nL_aloop{NQ}:")
        step(0, aw); step(1, aw)
        a(f"s_add_u32 {sIT}, {sIT}, 1\ns_cmp_lt_u32 {sIT}, 5\ns_cbranch_scc1 L_aloop{NQ}")
        step(0, 8, [vpiece(0, "s97", "s31"), vpiece(1, "s97", "s31"), f"buffer_load_dword {VTAG}, v4, {S(SDBG)}, 0 offen {SC}", at(12)])
        wo_rows(0, "s5")
        a(f"""
        s_lshr_b32 s34, s3, 2
        s_lshl_b32 s35, s34, 16
        s_add_u32 s5, s5, s35
        s_lshl_b32 {sA}, {sWI}, 10
        s_add_u32 {sA}, {sA}, {WO0}
        s_lshl_b32 s35, s34, 14
        s_add_u32 {sBb}, {sA}, s35
        """)
        w = wo_pieces(sBb, 0, "s5"); w[3] += "\n" + at(13)
        step(1, 6, w)
        w = wo_pieces(sBb, 32768, "s5", 0x20000); w[3] += "\n" + at(14)
        step(0, 6, w)
        step(1, 8, [at(15)], last=True)
        stamp(4)
        for qi in range(NQ):
            across("v_add_f32", L_ + qi, T0)
            a(f"v_rcp_f32 v{L_+qi}, v{L_+qi}")
        a(f"s_mul_i32 s34, {sCQ}, 57344\ns_barrier\ns_cmp_ge_u32 s3, 4\ns_cbranch_scc1 L_epx{NQ}")
        epi(True, NQ)
        a(f"s_branch L_oload\nL_epx{NQ}:")
        epi(False, NQ)
        a("s_branch L_omm")
    attn(2)
    a("L_attn1:")
    attn(1)

    TBL = sum((d | h << 2 | g << 3) << (4 * b) for b, (d, h, g) in enumerate(map(blk, range(9))))
    def nblocks():
        if cfg.uneven: a(f"s_bitcmp1_b32 {sHG}, 0\ns_cselect_b32 s101, 7, 9")
        else: a("s_mov_b32 s101, 8")
    def decode(first):
        if first is not None: a(f"s_mov_b32 s92, {(TBL >> (4*first)) & 0xffffffff:#x}\ns_mov_b32 s93, {TBL >> (4*first + 32):#x}")
        else: a("s_lshr_b64 s[92:93], s[92:93], 4")
        a(f"s_add_u32 s5, s92, {sCQ}\ns_and_b32 s5, s5, 3\ns_bfe_u32 s6, s92, 0x20002")
    fa, st0, sper = int(cfg.fa), int(cfg.st0), int(cfg.sper)
    a(f"""
    L_oload:
    v_lshlrev_b32 v14, 4, v0
    s_cmp_ge_u32 s3, 2
    s_cbranch_scc1 L_ol2
    v_lshrrev_b32 v4, 5, v0
    s_lshl_b32 s35, s3, 2
    v_add_u32 v4, s35, v4
    v_and_b32 v5, 31, v0
    v_lshlrev_b32 v6, 1, v4
    v_xor_b32 v5, v5, v6
    v_lshlrev_b32 v4, 11, v4
    v_lshl_add_u32 v15, v5, 4, v4
    v_xor_b32 v13, 64, v15
    v_add_u32 v13, 4096, v13
    s_lshl_b32 {sA}, s3, 11
    s_add_u32 {sA}, {sA}, {WO0}
    s_mov_b32 {sIT}, 1
    """)
    nblocks()
    decode(0)
    a("s_waitcnt lgkmcnt(0)\ns_barrier\nL_owl:")
    decode(None)
    if cfg.mix: a("s_lshl_b32 s35, s5, 1\ns_and_b32 s35, s35, 4\ns_and_b32 s30, s5, 1\ns_add_u32 s30, s30, s35\ns_and_b32 s35, s6, 1\ns_lshl_b32 s35, s35, 1")
    else: a("s_lshl_b32 s30, s5, 1\ns_and_b32 s35, s6, 1")
    a("s_add_u32 s30, s30, s35\ns_lshr_b32 s35, s6, 1\ns_lshl_b32 s35, s35, 3\ns_add_u32 s30, s30, s35\ns_lshl_b32 s30, s30, 18")
    for p in range(4):
        a("s_waitcnt vmcnt(16)\ns_barrier")
        for n in range(4):
            a(f"s_add_u32 m0, {sA}, {p*16384 + n*4096}\ns_add_u32 s35, s30, {p*65536 + n*16384}\nbuffer_load_dwordx4 v15, {S(SWO)}, s35 offen lds")
            a(f"s_add_u32 m0, {sA}, {p*16384 + n*4096 + 1024}\ns_nop 0\nbuffer_load_dwordx4 v13, {S(SWO)}, s35 offen lds")
    a(f"s_add_u32 {sIT}, {sIT}, 1\ns_cmp_lt_u32 {sIT}, s101\ns_cbranch_scc1 L_owl")
    a("s_waitcnt vmcnt(16)\ns_barrier\ns_waitcnt vmcnt(8)\ns_barrier\ns_waitcnt vmcnt(0)\ns_barrier\ns_barrier")
    stamp(5)
    if cfg.sgrp != "o2": stamp_store(0, 0)
    a("s_branch L_end")
    def sample():
        a(f"""
        s_andn2_b32 s35, s2, 0x18
        s_lshl_b32 s34, s5, 3
        s_or_b32 s35, s35, s34
        s_lshr_b32 s34, s6, 1
        s_add_u32 s35, s35, s34
        s_lshl_b32 s35, s35, 5
        s_and_b32 s34, s6, 1
        s_add_u32 s35, s35, s34
        s_lshl_b32 s35, s35, 2
        s_add_u32 s35, s35, {FLAGS}
        v_mov_b32 v5, s35
        s_mul_i32 s32, s5, 57344
        s_mul_i32 s34, s34, 28672
        s_add_u32 s32, s32, s34
        s_lshr_b32 s34, s6, 1
        s_mul_i32 s34, s34, 229376
        s_add_u32 s32, s32, s34
        buffer_load_dword v13, v5, {S(SWS)}, 0 offen {SC}
        """)
    a("L_ol2:\ns_cmp_eq_u32 s3, 3\ns_cbranch_scc1 L_ol3")
    nblocks()
    decode(2)
    a(f"s_mov_b32 {sIT}, 2\ns_mov_b32 s33, 0\ns_waitcnt lgkmcnt(0)\ns_barrier")
    a(f"v_mov_b32 v4, 0\nv_cmp_eq_u32 vcc, 0, {VTAG}\ns_cbranch_vccz L_pt_out")
    poll("L_pt", SDBG, "v4", VTAG, "eq", "0")
    for u in range(5):
        if u == fa: a("s_waitcnt vmcnt(0)")
        a("s_barrier")
        if u == 4: sample()
    a("s_waitcnt vmcnt(0)\nL_ool:")
    for p in range(4):
        a("s_waitcnt vmcnt(7)\ns_barrier")
        if p == 0:
            a(f"s_mov_b32 s31, s32\nv_cmp_ne_u32 vcc, {VTAG}, v13\ns_cbranch_vccz L_po_out")
            poll("L_po", SWS, "v5", "v12", "ne", VTAG)
        if p == 2:
            decode(None); sample()
        for n in range(7):
            if n % 4 == 0: a(f"s_add_u32 m0, s33, {p*7168 + n*1024}\ns_add_u32 s35, s31, {p*7168 + n*1024}")
            a(f"buffer_load_dwordx4 v14, {S(SO)}, s35 offen offset:{(n&3)*1024} {SC} lds")
    a(f"s_xor_b32 s33, s33, 28672\ns_add_u32 {sIT}, {sIT}, 1\ns_cmp_lt_u32 {sIT}, s101\ns_cbranch_scc1 L_ool")
    a("s_waitcnt vmcnt(7)\ns_barrier\ns_waitcnt vmcnt(0)\ns_barrier\ns_barrier\ns_branch L_end")
    a(f"""
    L_ol3:
    v_add_u32 v7, 28672, v14
    s_mul_i32 s33, {sCQ}, 57344
    s_lshl_b32 s35, s2, 7
    s_add_u32 s35, s35, {FLAGS}
    v_mov_b32 v6, s35
    v_mov_b32 v4, 0
    s_waitcnt lgkmcnt(0)
    s_barrier
    """)
    for i in range(28): a(f"ds_read_b128 {vr(16+4*i,4)}, v7 offset:{i*1024}")
    a(f"v_cmp_eq_u32 vcc, 0, {VTAG}\ns_cbranch_vccz L_pt3_out")
    poll("L_pt3", SDBG, "v4", VTAG, "eq", "0")
    def flag(word): a(f"s_mov_b64 exec, 1\nbuffer_store_dword {VTAG}, v6, {S(SWS)}, 0 offen offset:{4*word} {SC}\ns_mov_b64 exec, -1")
    nst, young = 0, 0
    fb = st0 + -(-28 // sper) + 3
    assert fa < 4 and fb < 14
    for u in range(28):
        if u == fa: a(f"s_waitcnt vmcnt({nst + young})")
        a("s_barrier")
        if 5 <= u <= 11: stamp(u - 4, "o2")
        if u == fa: flag(0); young += nst == 28
        if u == st0: a("s_waitcnt lgkmcnt(0)")
        while u >= st0 and nst < min(28, (u - st0 + 1) * sper):
            if nst % 4 == 0: a(f"s_add_u32 s34, s33, {nst*1024}")
            a(f"buffer_store_dwordx4 {vr(16+4*nst,4)}, v7, {S(SO)}, s34 offen offset:{(nst&3)*1024} {SC}")
            nst += 1; young = 0
        if u == fb: a(f"s_waitcnt vmcnt({young})"); flag(1)
        for b in range(1, 9):
            if ts[b - 1] == u and (b < 8 or cfg.uneven):
                lab = a.label("lt")
                if cfg.uneven and b >= 7: a(f"s_bitcmp1_b32 {sHG}, 0\ns_cbranch_scc1 {lab}")
                wo_rows(b, "s6")
                a(f"buffer_load_dword {VD}, v3, {S(SWO)}, s6 offen\n{lab}:")
                if not (cfg.uneven and b >= 7): young += 1
    if cfg.uneven: a(f"s_bitcmp1_b32 {sHG}, 0\ns_cbranch_scc1 L_ol3e\n" + "s_barrier\n" * 8 + "L_ol3e:")
    else: a("s_barrier\n" * 4)
    if cfg.sgrp == "o2": stamp_store(3, 0)
    a("s_branch L_end")

    a(f"""
    L_omm:
    v_lshlrev_b32 v14, 4, v0
    v_lshrrev_b32 v4, 4, v0         ; g4
    v_bfe_u32 v5, v0, 2, 2          ; r
    v_and_b32 v6, 3, v0             ; c
    v_bfe_u32 v9, v0, 2, 3          ; k & 7
    v_lshl_add_u32 v7, v4, 2, v5
    v_lshlrev_b32 v7, 9, v7
    v_lshl_add_u32 v7, v6, 3, v7
    v_add_u32 v7, {WO0}, v7
    v_xor_b32 v9, {sWI}, v9
    """)
    for tau in range(4):
        a(f"""
        s_add_u32 s35, {sHG}, {tau}
        s_and_b32 s34, s35, 1
        s_lshl_b32 s34, s34, 2
        s_bfe_u32 s35, s35, 0x10001
        s_lshl_b32 s35, s35, 8
        v_xor_b32 v1, s34, v9
        v_lshl_add_u32 v1, v1, 5, v7
        v_add_u32 v{10+tau}, s35, v1
        """)
    def oreads(u):
        fb = FB + 44 * (u & 1)
        r = [f"ds_read_b64_tr_b16 {vr(fb+4*t+2*j,2)}, v{10+t} offset:{(u%4)*16384 + j*8192}" for t in range(4) for j in range(2)]
        xs = [f"ds_read_b128 {vr(fb+16+4*qt,4)}, v14 offset:{(u%8)*7168 + qt*1024}" for qt in range(7)]
        return r[:2] + xs[:1] + r[2:] + xs[1:]
    nblocks()
    a("v_mov_b32 v4, 0\ns_waitcnt vmcnt(4) lgkmcnt(0)\ns_barrier")
    stamp(5)
    if cfg.sgrp == "L_o": stamp(0)
    for r in oreads(0): a(r)
    a(f"""
    s_lshl_b32 s30, {sBR}, 3
    s_add_u32 s30, s30, {sB}
    s_lshl_b32 s30, s30, 2
    s_add_u32 s30, s30, {sCQ}
    s_mul_i32 s30, s30, {12*16384}
    s_lshl_b32 s35, {sWI}, 12
    s_add_u32 s30, s30, s35
    s_add_u32 s30, s30, {RED}
    s_mul_i32 s35, {sB}, 458752
    s_lshl_b32 s34, {sBR}, 11
    s_add_u32 s35, s35, s34
    s_lshl_b32 s34, {sCQ}, 9
    s_add_u32 s35, s35, s34
    s_lshl_b32 s34, {sHG}, 7
    s_add_u32 s35, s35, s34
    s_sub_u32 s34, 3670016, s35
    """)
    srd_off(a, SOUT, "s24", "s25", "s35", "s34")
    for tau in range(1, 4):
        a(f"s_add_u32 s35, {sHG}, {tau}\ns_and_b32 s35, s35, 3\ns_mul_i32 s35, s35, {3*16384}\ns_add_u32 s35, s35, s30\ns_add_u32 s{4+tau}, s35, {(tau-1)*16384}")
    a(f"""
    s_mul_i32 s35, {sHG}, {3*16384}
    s_add_u32 s8, s30, s35
    s_add_u32 s9, s8, 16384
    s_add_u32 s10, s8, 32768
    v_and_b32 v7, 15, v0
    v_lshlrev_b32 v7, 12, v7
    v_lshrrev_b32 v9, 4, v0
    v_lshl_add_u32 v7, v9, 3, v7
    s_lshl_b32 s35, {sWI}, 5
    v_add_u32 v7, s35, v7
    s_lshl_b32 s35, s2, 7
    s_lshl_b32 s34, {sWI}, 2
    s_add_u32 s34, s34, {FLAGS + 16}
    s_add_u32 s35, s35, s34
    v_mov_b32 v5, s35
    v_min_u32 v6, 2, v0
    v_sub_u32 v6, {sHG}, v6
    v_add_u32 v6, -1, v6
    v_and_b32 v6, 3, v6
    s_andn2_b32 s35, s2, 3
    v_or_b32 v6, s35, v6
    v_lshlrev_b32 v6, 7, v6
    v_add_u32 v6, s34, v6
    s_mov_b32 s12, 0x3f80
    s_mov_b32 s13, 0x3f800000
    """)
    gloop("L_o", 8, "s101", oreads, {2: " vmcnt(0)"})
    stamp(6)
    a(f"v_cmp_eq_u32 vcc, 0, {VTAG}\ns_cbranch_vccz L_pt2_out")
    poll("L_pt2", SDBG, "v4", VTAG, "eq", "0")
    RB = FB
    def box_loads(s_):
        return [f"buffer_load_dwordx4 {vr(RB+16*s_+4*pr,4)}, v14, {S(SWS)}, s{8+s_} offen offset:{pr*1024} {SC}" for pr in range(4)]
    for tau in range(1, 4):
        c = 216 + 4 * (tau - 1)
        for pr in range(4):
            b = ACC + 4 * (tau * 7 + 2 * pr)
            if pr < 3:
                for i in range(4): a(f"v_cvt_pk_bf16_f32 v{b+i}, v{b+2*i}, v{b+2*i+1}")
                a(f"buffer_store_dwordx4 {vr(b,4)}, v14, {S(SWS)}, s{4+tau} offen offset:{pr*1024} {SC}")
                if cfg.chk: a(f"v_add3_u32 v{c+2}, v{b}, v{b+1}, {VTAG if pr == 0 else 'v%d' % (c+2)}\nv_add3_u32 v{c+2}, v{b+2}, v{b+3}, v{c+2}")
            else:
                a(f"v_cvt_pk_bf16_f32 v{c}, v{b}, v{b+1}\nv_cvt_pk_bf16_f32 v{c+1}, v{b+2}, v{b+3}")
                if cfg.chk: a(f"v_mov_b32 v{c+3}, {VTAG}\nv_add3_u32 v{c+2}, v{c}, v{c+1}, v{c+2}")
                a(f"buffer_store_dwordx4 {vr(c,4)}, v14, {S(SWS)}, s{4+tau} offen offset:3072 {SC}")
    a(f"""
    s_waitcnt lgkmcnt(0){"" if cfg.chk else " vmcnt(0)"}
    s_mov_b64 exec, 1
    buffer_store_dword {VTAG}, v5, {S(SWS)}, 0 offen {SC}
    s_mov_b64 exec, -1
    """)
    stamp(1)
    a(f"""
    s_mov_b32 s30, 7
    s_mov_b32 s31, 0
    s_mov_b32 {sU}, 0
    L_rx:
    s_cmp_eq_u32 s30, 0
    s_cbranch_scc1 L_rx_np
    buffer_load_dword v9, v6, {S(SWS)}, 0 offen {SC}
    L_rx_np:
    s_add_u32 {sU}, {sU}, 1
    s_waitcnt vmcnt(0)
    """)
    for s_ in range(3):
        r = RB + 16 * s_
        a(f"s_bitcmp1_b32 s31, {s_}\ns_cbranch_scc0 L_rx_a{s_}")
        if cfg.chk:
            a(f"v_add3_u32 v1, v{r}, v{r+1}, {VTAG}")
            for i in range(2, 14, 2): a(f"v_add3_u32 v1, v{r+i}, v{r+i+1}, v1")
            a(f"""
            v_cmp_ne_u32 s[34:35], {VTAG}, v{r+15}
            v_cmp_ne_u32 vcc, v1, v{r+14}
            s_cmp_ge_u32 {sU}, {cfg.spin}
            s_cbranch_scc1 L_rx_k{s_}
            s_or_b64 vcc, vcc, s[34:35]
            s_cbranch_scc0 L_rx_k{s_}
            s_bitset1_b32 s30, {s_}
            s_branch L_rx_a{s_}
            L_rx_k{s_}:
            """)
        for qt in range(7):
            for i in range(4):
                a(f"v_dot2_f32_bf16 v{ACC+4*qt+i}, v{r+2*qt+(i>>1)}, s{12+(i&1)}, v{ACC+4*qt+i}")
        a(f"L_rx_a{s_}:")
    a(f"""
    v_cmp_eq_u32 vcc, {VTAG}, v9
    s_cmp_eq_u32 s30, 0
    s_cbranch_scc1 L_rx_done
    s_nop 0
    s_cmp_ge_u32 {sU}, {cfg.spin}
    s_cselect_b32 s31, 7, vcc_lo
    s_and_b32 s31, s31, s30
    s_andn2_b32 s30, s30, s31
    """)
    for s_ in range(3):
        a(f"s_bitcmp1_b32 s31, {s_}\ns_cbranch_scc0 L_rx_l{s_}")
        for x in box_loads(s_): a(x)
        a(f"L_rx_l{s_}:")
    a("s_branch L_rx\nL_rx_done:")
    stamp(2)
    for qt in range(7):
        b = ACC + 4 * qt
        a(f"v_cvt_pk_bf16_f32 v{b}, v{b}, v{b+1}\nv_cvt_pk_bf16_f32 v{b+1}, v{b+2}, v{b+3}")
        a(f"s_mov_b32 s35, {qt*65536}\nbuffer_store_dwordx2 {vr(b,2)}, v7, {S(SOUT)}, s35 offen {cfg.outpol.replace('+', ' ')}")
    if cfg.stamps: a("s_waitcnt vmcnt(0)")
    stamp(7)
    stamp_store(4, 256)
    a("L_end:\ns_endpgm")
    for stub, back, par, NQ in stubs:
        a(f"{stub}:\ns_call_b64 s[98:99], L_rare{par}{NQ}\ns_branch {back}")
    for NQ in (2, 1):
        for par in range(2):
            a(f"L_rare{par}{NQ}:")
            for qi in range(NQ):
                sb = SS + 16 * par + 8 * qi
                for x in tree(MX, T0, sb, 8): a(x)
                across("v_max_f32", MX, T0)
                a(f"v_max_f32 v{MX}, 0, v{MX}\nv_exp_f32 v{T0}, -v{MX}")
                for i in range(8): a(f"v_sub_f32 v{sb+i}, v{sb+i}, v{MX}")
                for i in range(4): a(f"v_sub_f32 v{NM+4*qi+i}, v{NM+4*qi+i}, v{MX}")
                a(f"v_mul_f32 v{L_+qi}, v{L_+qi}, v{T0}")
                for i in range(32): a(f"v_mul_f32 v{OA+32*qi+i}, v{OA+32*qi+i}, v{T0}")
            a("s_setpc_b64 s[98:99]")
    return a.text().replace(" KVPOL", " " + cfg.kvpol if cfg.kvpol else "")

def build(cfg):
    K = NAME + "_kernel"
    body = kernel_head(K) + kernel(cfg) + kernel_desc(K, 240, 240)
    tgt = '.amdgcn_target "amdgcn-amd-amdhsa--gfx950"\n'
    if cfg.echo:
        from gen2 import echo_kernel
        hdr = f"; @launch kernel={K} grid=(256,1,1) block=(512,1,1) lds=163840\n; @launch kernel=echo_kernel grid=(1,1,1) block=(64,1,1) lds=0\n"
        return hdr + tgt + kernel_head("echo_kernel") + echo_kernel(cfg) + kernel_desc("echo_kernel", 8, 8) + body
    return "; @launch grid=(256,1,1) block=(512,1,1) lds=163840\n" + tgt + body

if __name__ == "__main__":
    cfg = Cfg()
    for kv in sys.argv[2:]:
        k, v = kv.split("=")
        assert hasattr(cfg, k), k
        setattr(cfg, k, {"True": True, "False": False}.get(v, v))
    open(sys.argv[1], "w").write(build(cfg))
```

```python
import sys, math, struct, re
from asmlib import *

class Cfg:
    stamps = False
    sgrp = "main"
    kvpol = "nt"
    qord = "rot"
    kv0 = 7
    kvper = 4
    await_ = 8
    early = False
    tsched = "113,113,114,114,115,115,115,12"
    fa = 2
    st0 = 1
    sper = 4
    mix = False
    uneven = False
    outpol = ""
    echo = ""
    abl = ""
    spin = 400000

WQ0 = 28672
KT, HSTEP, SLOTB = 8448, 17152, 34304
SA_, SB_, SC_, SD_ = 94208, 128512, 0, 34304
HO, WO0 = 36864, 94208
RED, FLAGS, TAG = 16 << 20, 48 << 20, (48 << 20) + 65536
SX, SW, SK, SV, SO, SWO, SWS = 36, 40, 44, 48, 52, 56, 60
SOUT, SDBG = SX, SW
sBR, sHG, sCQ, sB, sWI, sIT, sA, sBb, sT, sU, sH0, sROT = ("s%d" % i for i in range(80, 92))
SC = "sc1"
VTAG, VD = "v236", "v237"
ACC, FB = 16, 128
def S(d): return f"s[{d}:{d+3}]"

def srd_off(a, d, lo, hi, off_reg, nbytes):
    a(f"s_add_u32 s{d}, {lo}, {off_reg}\ns_addc_u32 s{d+1}, {hi}, 0\ns_and_b32 s{d+1}, s{d+1}, 0xffff")
    a(f"s_mov_b32 s{d+2}, {nbytes}\ns_mov_b32 s{d+3}, 0x00020000")

def weave(a, mf, fill):
    fill = list(fill)
    for m in mf:
        a(m)
        if fill: a(fill.pop(0))
    for f in fill: a(f)

def kernel(cfg):
    a = A()
    HD = 262144 if cfg.mix else 131072
    def stamp(i, grp="main"):
        if cfg.stamps and (grp == cfg.sgrp or i == 0): a(f"s_memrealtime s[{64+2*i}:{65+2*i}]")
    def stamp_store(wave, wgoff):
        if not cfg.stamps: return
        a(f"s_cmp_lg_u32 s3, {wave}\ns_cbranch_scc1 L_end")
        a(f"s_waitcnt lgkmcnt(0)\ns_add_u32 s3, s2, {wgoff}\ns_lshl_b32 s3, s3, 7\ns_add_u32 s3, s3, {STAMP_OFF}\nv_mov_b32 v1, s3")
        for q in range(4):
            for j in range(4): a(f"v_mov_b32 v{4+j}, s{64+4*q+j}")
            a(f"buffer_store_dwordx4 v[4:7], v1, {S(SWS)}, 0 offen offset:{16*q}\ns_nop 2")
        a("s_waitcnt vmcnt(0)")
    def poll(lab, srdn, vaddr, vtmp, cmp, want):
        a(f"""
        s_mov_b32 {sU}, 0
        {lab}:
        buffer_load_dword {vtmp}, {vaddr}, {S(srdn)}, 0 offen {SC}
        s_add_u32 {sU}, {sU}, 1
        s_waitcnt vmcnt(0)
        v_cmp_{cmp}_u32 vcc, {want}, {vtmp}
        s_cmp_ge_u32 {sU}, {cfg.spin}
        s_cbranch_scc1 {lab}_out
        s_cbranch_vccnz {lab}
        {lab}_out:
        """)
    def select(pairs):
        a("s_bitcmp0_b32 s2, 2")
        for p in pairs: a(f"s_cselect_b64 s[{p}:{p+1}], s[{p}:{p+1}], s[{p+10}:{p+11}]")
    def other_srds():
        select((6, 8, 12))
        a(f"s_lshl_b32 s35, {sB}, 22\ns_lshl_b32 s34, {sH0}, 17\ns_add_u32 s35, s35, s34")
        srd_off(a, SK, "s6", "s7", "s35", HD + 131072)
        srd_off(a, SV, "s8", "s9", "s35", HD + 131072)
        a(f"s_lshl_b32 s35, {sBR}, 3\ns_add_u32 s35, s35, {sB}\ns_lshl_b32 s35, s35, 2\ns_add_u32 s35, s35, {sHG}\ns_mul_i32 s35, s35, 229376")
        srd_off(a, SO, "s28", "s29", "s35", 2 * 229376)
        a(f"s_lshl_b32 s35, {sHG}, 21\ns_lshl_b32 s34, {sCQ}, 9\ns_add_u32 s35, s35, s34\ns_sub_u32 s34, 0x800000, s35")
        srd_off(a, SWO, "s12", "s13", "s35", "s34")
        srd(a, SWS, "s28", "s29", 0x10000000)
        a(f"s_lshr_b32 {sROT}, s2, 3\ns_lshr_b32 s35, s2, 7\ns_add_u32 {sROT}, {sROT}, s35\ns_lshl_b32 s35, s2, 1\n"
          f"s_add_u32 {sROT}, {sROT}, s35\ns_and_b32 {sROT}, {sROT}, 15\ns_lshl_b32 {sROT}, {sROT}, 13")

    a("s_cmp_ge_u32 s2, 256\ns_cbranch_scc1 L_end")
    stamp(0)
    a(f"""
    s_load_dwordx16 s[4:19], s[0:1], 0
    s_load_dwordx8 s[20:27], s[0:1], 64
    s_load_dwordx2 s[28:29], s[0:1], 96
    v_lshrrev_b32 v1, 6, v0
    v_and_b32 v0, 63, v0
    v_readfirstlane_b32 s3, v1
    s_bfe_u32 {sBR}, s2, 0x10002
    s_and_b32 {sHG}, s2, 3
    s_bfe_u32 {sCQ}, s2, 0x20003
    s_lshr_b32 {sB}, s2, 5
    s_lshl_b32 {sH0}, {sHG}, 3
    """)
    if cfg.mix: a(f"s_lshl_b32 s35, {sCQ}, 1\ns_and_b32 s35, s35, 4\ns_add_u32 {sH0}, {sH0}, s35\ns_and_b32 s35, {sCQ}, 1\ns_add_u32 {sH0}, {sH0}, s35")
    else: a(f"s_lshl_b32 s35, {sCQ}, 1\ns_add_u32 {sH0}, {sH0}, s35")
    a(f"s_and_b32 {sWI}, s3, 3\ns_cmp_lt_u32 s3, 4\ns_cbranch_scc1 L_qmm")

    a(f"""
    v_lshrrev_b32 v4, 5, v0
    v_and_b32 v5, 31, v0
    s_and_b32 s35, {sWI}, 1
    s_lshr_b32 s34, {sWI}, 1
    s_lshl_b32 {sA}, s35, 1
    s_lshl_b32 {sBb}, s34, 2
    s_add_u32 {sT}, {sA}, {sBb}
    v_add_u32 v6, {sT}, v4
    v_lshlrev_b32 v6, 1, v6
    v_xor_b32 v5, v5, v6
    s_lshl_b32 {sBb}, s34, 3
    s_add_u32 {sA}, {sA}, {sBb}
    v_add_u32 v4, {sA}, v4
    v_lshlrev_b32 v4, 13, v4
    v_lshl_add_u32 v10, v5, 4, v4
    """)
    if cfg.mix: a("v_and_b32 v5, 16, v5\nv_lshl_add_u32 v10, v5, 4, v10")
    a(f"""
    s_lshl_b32 {sA}, {sA}, 9
    s_add_u32 {sA}, {sA}, {WQ0}
    v_lshrrev_b32 v4, 3, v0
    v_and_b32 v5, 7, v0
    v_lshrrev_b32 v6, 1, v4
    s_lshl_b32 {sBb}, s35, 2
    v_add_u32 v6, {sBb}, v6
    v_xor_b32 v5, v5, v6
    s_lshl_b32 {sBb}, {sWI}, 3
    v_add_u32 v4, {sBb}, v4
    v_lshlrev_b32 v4, 11, v4
    v_lshl_add_u32 v11, v5, 4, v4
    s_lshl_b32 {sBb}, {sWI}, 10
    s_xor_b32 s35, {sB}, {sCQ}
    s_and_b32 s35, s35, 1
    """)
    alt = cfg.qord == "alt2"
    if alt:
        for g in range(2):
            o = [g] + [(t + 1 + g if t & 1 else t - 1 - g) for t in range(1, 15)] + [15 - g]
            v = sum(st << (4 * t) for t, st in enumerate(o))
            a(f"s_cmp_eq_u32 s35, {g}\ns_cselect_b32 s98, {v & 0xffffffff:#x}, s98\ns_cselect_b32 s99, {v >> 32:#x}, s99")
        a("s_mov_b64 s[92:93], s[98:99]\ns_lshl_b32 s30, s35, 19\ns_lshl_b32 s31, s35, 7")
    elif cfg.qord == "rot": a("s_lshl_b32 s30, s35, 22\ns_lshl_b32 s31, s35, 10")
    else: a("s_mov_b32 s30, 0\ns_mov_b32 s31, 0")
    a(f"s_mul_i32 s33, {sB}, 229376\ns_lshl_b32 s32, {sH0}, 8\ns_sub_u32 s34, 0x800000, s32\ns_waitcnt lgkmcnt(0)")
    select((4, 10))
    srd_off(a, SX, "s4", "s5", "s33", 229376)
    srd_off(a, SW, "s10", "s11", "s32", "s34")
    def issue_wq(slot):
        for pc in (0, 2, 8, 10):
            a(f"s_add_u32 m0, {sA}, {slot*16384 + pc*1024}\ns_add_u32 s35, s30, {pc*16384}\nbuffer_load_dwordx4 v10, {S(SW)}, s35 offen lds")
        if alt and (slot & 1): a("s_lshr_b64 s[98:99], s[98:99], 4\ns_and_b32 s30, s98, 15\ns_lshl_b32 s30, s30, 19")
        else: a("s_add_u32 s30, s30, 0x40000\ns_and_b32 s30, s30, 0x7fffff")
    def issue_x(slot):
        lab = a.label("xs")
        for n in range(4):
            if n == 3: a(f"s_cmp_ge_u32 {sWI}, 2\ns_cbranch_scc1 {lab}")
            a(f"s_add_u32 m0, {sBb}, {slot*14336 + n*4096}\ns_add_u32 s35, s31, {n*65536}\nbuffer_load_dwordx4 v11, {S(SX)}, s35 offen lds")
        if alt: a(f"{lab}:\ns_lshr_b64 s[92:93], s[92:93], 4\ns_and_b32 s31, s92, 15\ns_lshl_b32 s31, s31, 7")
        else: a(f"{lab}:\ns_add_u32 s31, s31, 128\ns_and_b32 s31, s31, 2047")
    def kv_piece(tile, hd, n, isv, slot):
        a(f"s_add_u32 s35, {sROT}, {tile*8192}\ns_and_b32 s35, s35, 0x1ffff\ns_add_u32 s35, s35, s32")
        a(f"s_add_u32 m0, s96, {slot + hd*HSTEP + isv*KT + n*4224}\ns_add_u32 s35, s35, {hd*HD + n*1024}")
        a(f"buffer_load_dwordx4 v2, {S(SV if isv else SK)}, s35 offen KVPOL lds")
    kv_src = "v_lshrrev_b32 v4, 4, v0\nv_and_b32 v5, 15, v0\nv_lshlrev_b32 v4, 11, v4\nv_lshl_add_u32 v2, v5, 4, v4"
    stamp(1, "s")
    issue_x(0); issue_wq(0); issue_wq(1)
    stamp(2, "s")
    other_srds()
    a(kv_src)
    a(f"s_mul_i32 s96, {sWI}, 1056\ns_lshl_b32 s32, {sWI}, 8\ns_waitcnt vmcnt(4)\ns_barrier")
    issue_x(1); issue_wq(2)
    a("s_waitcnt vmcnt(7)\ns_barrier")
    issue_wq(3); issue_wq(0)
    kv0 = int(cfg.kv0)
    kvl = [(tile, hd, n, isv) for tile in range(2) for isv in range(2) for hd in range(2) for n in range(2)]
    a(f"s_mov_b32 {sIT}, 0\ns_branch L_qlmid\nL_qlloop:")
    for u in range(4):
        a(f"s_waitcnt vmcnt({8 if u & 1 else 11})\ns_barrier")
        if u & 1: issue_x((u >> 1) & 1)
        issue_wq(u)
        if u == 0: a("L_qlmid:")
    a(f"s_add_u32 {sIT}, {sIT}, 1\ns_cmp_lt_u32 {sIT}, {kv0}\ns_cbranch_scc1 L_qlloop")
    q = []
    for u in range(4 * kv0 - 4, 4 * kv0):
        if u & 1: q.append(("x", (u >> 1) + 2, 3))
        q.append(("w", u + 4, 4))
    for u in range(4 * kv0, 32):
        need = [i for i, e in enumerate(q) if (e[0] == "w" and e[1] <= u + 1) or (e[0] == "x" and e[1] <= (u + 1) >> 1)]
        if need:
            a(f"s_waitcnt vmcnt({sum(e[2] for e in q[max(need) + 1:])})")
            q = q[max(need) + 1:]
        a("s_barrier")
        if (u & 1) and (u >> 1) + 2 < 16: issue_x((u >> 1) & 1); q.append(("x", (u >> 1) + 2, 3))
        if u + 4 < 32: issue_wq(u % 4); q.append(("w", u + 4, 4))
        for _ in range(int(cfg.kvper)):
            if kvl:
                tile, hd, n, isv = kvl.pop(0)
                kv_piece(tile, hd, n, isv, (SA_, SB_)[tile]); q.append(("k", 0, 1))
    a("s_barrier")
    for tile, hd, n, isv in kvl: kv_piece(tile, hd, n, isv, (SA_, SB_)[tile])
    for isv in range(2):
        for hd in range(2):
            for n in range(2): kv_piece(2, hd, n, isv, SC_)
    a("s_waitcnt vmcnt(20)\ns_branch L_join")

    def gmf(u, zero=False):
        fb = FB + 44 * (u & 1)
        return [f"v_mfma_f32_16x16x32_bf16 {vr(ACC+4*(t*7+qt),4)}, {vr(fb+4*t,4)}, {vr(fb+16+4*qt,4)}, {'0' if zero else vr(ACC+4*(t*7+qt),4)}" for qt in range(7) for t in range(4)]
    def gloop(name, period, blocks, reads, pre):
        a("s_waitcnt lgkmcnt(0)\ns_barrier")
        weave(a, gmf(0, True), reads(1))
        a(f"s_mov_b32 {sIT}, 0\ns_branch {name}_mid\n{name}:")
        for u in range(period):
            a(f"s_waitcnt lgkmcnt(0){pre.get(u, '')}\ns_barrier")
            weave(a, gmf(u), reads(u + 1))
            if u == 0: a(f"{name}_mid:")
            if u % 4 == 3:
                if cfg.stamps and cfg.sgrp == name:
                    for i in range(u // 4, 7, period // 4):
                        lab = a.label("st")
                        a(f"s_cmp_lg_u32 {sIT}, {i}\ns_cbranch_scc1 {lab}")
                        stamp(1 + i, name)
                        a(f"{lab}:")
                a(f"s_add_u32 {sIT}, {sIT}, 1\ns_cmp_lt_u32 {sIT}, {blocks}")
                a(f"s_cbranch_scc1 {name}" if u == period - 1 else f"s_cbranch_scc0 {name}_out")
        a(f"{name}_out:")
    cbits = struct.unpack("<I", struct.pack("<f", (128 ** -0.5) * math.log2(math.e)))[0]
    a(f"""
    L_qmm:
    v_lshrrev_b32 v4, 4, v0         ; g4
    v_bfe_u32 v5, v0, 2, 2          ; r
    v_and_b32 v6, 3, v0             ; c
    v_lshl_add_u32 v7, v4, 3, v5
    v_lshlrev_b32 v7, 9, v7
    v_lshrrev_b32 v9, 1, v6
    v_lshl_add_u32 v7, v9, 4, v7
    v_and_b32 v9, 1, v6
    v_lshl_add_u32 v7, v9, 3, v7
    s_lshr_b32 s35, {sWI}, 1
    s_lshl_b32 s35, s35, 8
    s_add_u32 s35, s35, {WQ0}
    v_add_u32 v7, s35, v7
    v_and_b32 v9, 1, v4
    v_lshl_or_b32 v9, v9, 2, v5
    s_and_b32 s35, {sWI}, 1
    s_lshl_b32 s35, s35, 2
    v_xor_b32 v9, s35, v9
    """)
    for t in range(4): a(f"v_xor_b32 v1, {t}, v9\nv_lshl_add_u32 v{10+t}, v1, 5, v7")
    a(f"""
    v_and_b32 v5, 15, v0
    v_lshrrev_b32 v6, 1, v5
    v_xor_b32 v6, v6, v4
    v_lshlrev_b32 v7, 7, v5
    v_lshl_add_u32 v14, v6, 4, v7
    v_xor_b32 v15, 64, v14
    v_lshlrev_b32 v5, 4, v5
    v_lshrrev_b32 v6, 5, v0
    v_lshl_add_u32 v5, v6, 8, v5
    v_bfe_u32 v6, v0, 4, 1
    v_lshl_add_u32 v5, v6, 3, v5
    s_lshr_b32 s34, {sWI}, 1
    s_mul_i32 s34, s34, 28672
    s_and_b32 s35, {sWI}, 1
    s_lshl_b32 s35, s35, 11
    s_add_u32 s34, s34, s35
    s_add_u32 s34, s34, {HO}
    v_add_u32 v8, s34, v5
    s_mov_b32 s30, {cbits:#x}
    s_mov_b32 s31, {cbits:#x}
    """)
    a(kv_src)
    a("s_waitcnt lgkmcnt(0)")
    other_srds()
    a(f"""
    s_or_b32 s35, s2, s3
    s_cbranch_scc1 L_notag
    s_mov_b32 s{SX}, s26
    s_and_b32 s{SX+1}, s27, 0xffff
    s_mov_b32 s{SX+2}, 256
    s_mov_b32 s{SX+3}, 0x00020000
    v_mov_b32 v4, {TAG}
    v_mov_b32 v7, 0
    s_mov_b32 s34, 1664525
    s_mov_b32 s35, 1013904223
    buffer_load_dword v5, v4, {S(SWS)}, 0 offen {SC}
    s_waitcnt vmcnt(0)
    v_mul_lo_u32 v5, v5, s34
    v_add_u32 v5, s35, v5
    v_mov_b32 v6, s35
    v_cmp_eq_u32 vcc, 0, v5
    s_nop 1
    v_cndmask_b32 v5, v5, v6, vcc
    s_mov_b64 exec, 1
    buffer_store_dword v5, v7, {S(SX)}, 0 offen {SC}
    buffer_store_dword v5, v4, {S(SWS)}, 0 offen {SC}
    s_mov_b64 exec, -1
    L_notag:
    s_barrier
    """)
    def qreads(u):
        fb = FB + 44 * (u & 1)
        r = [f"ds_read_b64_tr_b16 {vr(fb+4*t+2*j,2)}, v{10+t} offset:{(u%4)*16384 + j*2048}" for t in range(4) for j in range(2)]
        xs = [f"ds_read_b128 {vr(fb+16+4*qt,4)}, v{14+(u&1)} offset:{((u>>1)&1)*14336 + qt*2048}" for qt in range(7)]
        return r[:2] + xs[:1] + r[2:] + xs[1:]
    stamp(1); stamp(1, "s")
    for r in qreads(0): a(r)
    gloop("L_q", 4, 8, qreads, {})
    stamp(2)
    a("s_waitcnt lgkmcnt(0)\ns_barrier")
    for qt in range(7):
        for t in range(4):
            acc = ACC + 4 * (t * 7 + qt)
            a(f"v_pk_mul_f32 {vr(acc,2)}, {vr(acc,2)}, s[30:31]\nv_pk_mul_f32 {vr(acc+2,2)}, {vr(acc+2,2)}, s[30:31]")
            a(f"v_cvt_pk_bf16_f32 v{acc}, v{acc}, v{acc+1}\nv_cvt_pk_bf16_f32 v{acc+1}, v{acc+2}, v{acc+3}")
            a(f"ds_write_b64 v8, {vr(acc,2)} offset:{qt*4096 + t*512}")

    QF, OA, SS, NM, KF, VF, PP = 16, 48, 112, 144, 160, 192, 224
    L_, MX, T0 = 232, 234, 235
    a(f"""
    L_join:
    s_lshr_b32 s34, s3, 2
    s_mul_i32 s35, s34, {HD}
    s_add_u32 s{SK}, s{SK}, s35
    s_addc_u32 s{SK+1}, s{SK+1}, 0
    s_mov_b32 s{SK+2}, 131072
    s_add_u32 s{SV}, s{SV}, s35
    s_addc_u32 s{SV+1}, s{SV+1}, 0
    s_mov_b32 s{SV+2}, 131072
    s_mul_i32 s30, s34, {HSTEP}
    s_mul_i32 {sA}, {sWI}, 1056
    s_add_u32 {sA}, {sA}, s30
    s_add_u32 {sBb}, {sA}, {KT}
    v_lshlrev_b32 v5, 4, v0
    s_mul_i32 s35, s34, 28672
    s_lshl_b32 {sT}, {sWI}, 13
    s_add_u32 {sT}, {sT}, s35
    s_add_u32 {sT}, {sT}, {HO}
    v_add_u32 v9, {sT}, v5
    s_lshl_b32 {sT}, {sWI}, 11
    s_add_u32 s35, s35, {sT}
    v_add_u32 v14, s35, v5
    v_and_b32 v7, 7, v0
    v_mul_u32_u24 v7, 1056, v7
    v_bfe_u32 v1, v0, 3, 1
    v_lshl_add_u32 v7, v1, 8, v7
    v_lshrrev_b32 v1, 4, v0
    v_lshl_add_u32 v7, v1, 4, v7
    v_add_u32 v10, s30, v7
    v_bfe_u32 v7, v0, 2, 3
    v_mul_u32_u24 v7, 1056, v7
    v_lshrrev_b32 v1, 5, v0
    v_lshl_add_u32 v7, v1, 8, v7
    v_and_b32 v1, 3, v0
    v_lshl_add_u32 v7, v1, 3, v7
    s_add_u32 s35, s30, {KT}
    v_add_u32 v12, s35, v7
    v_add_u32 v11, {SA_}, v10
    s_lshl_b32 s35, {sWI}, 8
    s_add_u32 s31, {sROT}, s35
    s_add_u32 s31, s31, {3*8192}
    s_and_b32 s31, s31, 0x1ffff
    s_mov_b32 s96, {SA_}
    s_mov_b32 s97, {SD_}
    s_mov_b32 s100, 0x41000000
    v_lshrrev_b32 v4, 5, v0
    s_lshl_b32 s35, {sWI}, 1
    v_add_u32 v4, s35, v4
    v_and_b32 v5, 31, v0
    v_lshlrev_b32 v6, 1, v4
    v_xor_b32 v5, v5, v6
    v_lshlrev_b32 v4, 11, v4
    v_lshl_add_u32 v15, v5, 4, v4
    v_lshrrev_b32 v4, 4, v0
    v_lshlrev_b32 v4, 5, v4
    v_bfe_u32 v5, v0, 2, 2
    v_add_u32 v4, v4, v5
    s_lshl_b32 s35, {sB}, 2
    v_add_u32 v4, s35, v4
    v_lshlrev_b32 v4, 11, v4
    v_and_b32 v5, 3, v0
    v_lshl_add_u32 v3, v5, 7, v4
    v_mov_b32 v4, 0
    """)
    srd(a, SDBG, "s26", "s27", 256)
    a(f"s_cmp_eq_u32 {sWI}, 3\ns_waitcnt lgkmcnt(0)\ns_cbranch_scc1 L_attn1")
    ts = [int(x) for x in cfg.tsched.split(",")]
    stubs = []
    def blk(b): return (0, b, 0) if b < 2 else ((b - 1, 0, 0) if b < 5 else ((b - 4, 1, 0) if b < 8 else (3, 1, 1)))
    def producer(b, reg): a(f"s_add_u32 {reg}, {sCQ}, {blk(b)[0]}\ns_and_b32 {reg}, {reg}, 3")
    def wo_rows(b, reg):
        d, h, g = blk(b)
        producer(b, reg)
        if cfg.mix: a(f"s_lshl_b32 s35, {reg}, 1\ns_and_b32 s35, s35, 4\ns_and_b32 {reg}, {reg}, 1\ns_add_u32 {reg}, {reg}, s35\ns_add_u32 {reg}, {reg}, {2*h + 8*g}")
        else: a(f"s_lshl_b32 {reg}, {reg}, 1\ns_add_u32 {reg}, {reg}, {h + 8*g}")
        a(f"s_lshl_b32 {reg}, {reg}, 18")
    def touch_block(b, wave):
        lab = a.label("wt"); t = A()
        keep, a.l = a.l, t.l
        a(f"s_cmp_lg_u32 s3, {wave}\ns_cbranch_scc1 {lab}")
        wo_rows(b, "s6")
        a(f"buffer_load_dword {VD}, v3, {S(SWO)}, s6 offen\n{lab}:")
        a.l = keep
        return t.text()
    def kpiece(n, slot, src): return f"s_add_u32 s34, {slot}, {sA}\ns_add_u32 m0, s34, {n*4224}\ns_add_u32 s35, {src}, {n*1024}\nbuffer_load_dwordx4 v2, {S(SK)}, s35 offen KVPOL lds"
    def vpiece(n, slot, src): return f"s_add_u32 s34, {slot}, {sBb}\ns_add_u32 m0, s34, {n*4224}\ns_add_u32 s35, {src}, {n*1024}\nbuffer_load_dwordx4 v2, {S(SV)}, s35 offen KVPOL lds"
    def wo_pieces(mbase, moff, soff, add=0):
        return [f"s_add_u32 m0, {mbase}, {moff + n*4096}\ns_add_u32 s35, {soff}, {add + n*16384}\nbuffer_load_dwordx4 v15, {S(SWO)}, s35 offen lds" for n in range(4)]
    def kreads(): return [f"ds_read_b128 {vr(KF+16*kt+4*s_,4)}, v11 offset:{kt*512 + 64*s_}" for s_ in range(4) for kt in range(2)]
    def tree(dst, tmp, b, n):
        if n == 8: return [f"v_max3_f32 v{dst}, v{b}, v{b+1}, v{b+2}", f"v_max3_f32 v{tmp}, v{b+3}, v{b+4}, v{b+5}",
                           f"v_max3_f32 v{dst}, v{dst}, v{b+6}, v{b+7}", f"v_max_f32 v{dst}, v{dst}, v{tmp}"]
        return ([f"v_max3_f32 v{dst}, v{b}, v{b+1}, v{b+2}", f"v_max3_f32 v{tmp}, v{b+3}, v{b+4}, v{b+5}"]
                + [f"v_max3_f32 v{(dst, tmp)[i&1]}, v{(dst, tmp)[i&1]}, v{b+6+2*i}, v{b+7+2*i}" for i in range(5)]
                + [f"v_max_f32 v{dst}, v{dst}, v{tmp}"])
    def across(op, r, tmp):
        for sw in ("16", "32"):
            a(f"s_nop 0\nv_mov_b32 v{tmp}, v{r}\ns_nop 1\nv_permlane{sw}_swap_b32 v{tmp}, v{r}\ns_nop 1\n{op} v{r}, v{r}, v{tmp}")
    def epi(store, NQ):
        for p in range(4):
            for qi in range(NQ):
                b = OA + 32*qi + 8*p
                for i in range(8): a(f"v_mul_f32 v{b+i}, v{b+i}, v{L_+qi}")
                for i in range(4): a(f"v_cvt_pk_bf16_f32 v{b+i}, v{b+2*i}, v{b+2*i+1}")
                a(f"ds_write_b128 v14, {vr(b,4)} offset:{p*7168 + qi*1024}")
                if store: a(f"buffer_store_dwordx4 {vr(b,4)}, v14, {S(SO)}, s34 offen offset:{qi*1024} {SC}")
            if store: a("s_add_u32 s34, s34, 7168")
        if store: a(f"s_waitcnt vmcnt({4 * NQ})")
    def attn(NQ):
        N = 8 * NQ
        def qk(sb, zero=False):
            out = []
            for s_ in range(4):
                for kt in range(2):
                    for qi in range(NQ):
                        d = vr(sb + 8*qi + 4*kt, 4)
                        out.append((f"s_waitcnt lgkmcnt(LG{2*s_+kt})\n" if qi == 0 else "") +
                                   f"v_mfma_f32_16x16x32_bf16 {d}, {vr(KF+16*kt+4*s_,4)}, {vr(QF+16*qi+4*s_,4)}, {('0' if zero else vr(NM+4*qi,4)) if s_ == 0 else d}")
            return out
        def emit_qk(ms, fill):
            nv = 0
            for n, m in enumerate(ms):
                i = n // NQ
                a(m.replace(f"LG{i}", str(min(15, 7 - i + nv))))
                for f in fill[n]:
                    a(f); nv += f.startswith("ds_")
        def spread(items, gaps, lo=0):
            out = [[] for _ in range(gaps)]
            for i, x in enumerate(items): out[lo + i * (gaps - lo) // len(items)].append(x)
            return out
        def merge(*ls): return [sum((l[i] for l in ls), []) for i in range(len(ls[0]))]
        a("s_barrier")
        for qi in range(NQ):
            for s_ in range(4): a(f"ds_read_b128 {vr(QF+16*qi+4*s_,4)}, v9 offset:{qi*4096 + s_*1024}")
        for x in kreads(): a(x)
        a("s_waitcnt lgkmcnt(8)\ns_barrier")
        stamp(3)
        emit_qk(qk(SS, True), [[kpiece(0, "s97", "s31")], [], [kpiece(1, "s97", "s31")]] + [[]] * 16)
        a("s_nop 7")
        for qi in range(NQ):
            for x in tree(MX, T0, SS + 8*qi, 8): a(x)
            across("v_max_f32", MX, T0)
            a(f"v_mov_b32 v{L_+qi}, 0")
            for i in range(8): a(f"v_sub_f32 v{SS+8*qi+i}, v{SS+8*qi+i}, v{MX}")
            for i in range(4): a(f"v_sub_f32 v{NM+4*qi+i}, 0, v{MX}")
        def step(par, wait, dma=None, first=False, last=False):
            cur, nxt = SS + 16 * par, SS + 16 * (1 - par)
            a(f"""
            s_waitcnt vmcnt({wait})
            s_barrier
            s_add_u32 s98, s96, {SLOTB}
            s_cmp_eq_u32 s96, {SB_}
            s_cselect_b32 s98, 0, s98
            s_cmp_eq_u32 s96, {SD_}
            s_cselect_b32 s98, {SA_}, s98
            v_add_u32 v11, s98, v10
            v_add_u32 v13, s96, v12
            s_add_u32 s30, s31, 8192
            s_and_b32 s30, s30, 0x1ffff
            """)
            vrd = [f"ds_read_b64_tr_b16 {vr(VF+4*t+2*j,2)}, v13 offset:{j*512 + 32*t}" for t in range(8) for j in range(2)]
            ex = [f"v_exp_f32 v{cur+i}, v{cur+i}" for i in range(N)]
            cv = [f"v_cvt_pk_bf16_f32 v{PP+i}, v{cur+2*i}, v{cur+2*i+1}" for i in range(N // 2)]
            ad = [f"v_add_f32 v{L_+(i>>3)}, v{L_+(i>>3)}, v{cur+i}" for i in range(N)]
            if NQ == 2: ad = [ad[(i >> 1) + 8 * (i & 1)] for i in range(16)]
            if dma is None: dma = [kpiece(0, "s96", "s30"), vpiece(0, "s97", "s31"), kpiece(1, "s96", "s30"), vpiece(1, "s97", "s31")]
            dma = list(dma) + [""] * (4 - len(dma))
            pv = [(f"s_waitcnt lgkmcnt({14 - 2*t})\n" if qi == 0 else "") +
                  f"v_mfma_f32_16x16x32_bf16 {vr(OA+32*qi+4*t,4)}, {vr(VF+4*t,4)}, {vr(PP+4*qi,4)}, {'0' if first else vr(OA+32*qi+4*t,4)}" for t in range(8) for qi in range(NQ)]
            if not last:
                for x in kreads(): a(x)
                for x in ex[:8]: a(x)
                if NQ == 2: valu = [ex[8], cv[0], ex[9], cv[1], ex[10], cv[2], ex[11], cv[3], ex[12], ex[13], cv[4], ex[14], cv[5], ex[15], cv[6], cv[7]]
                else: valu = cv + ad[:4]
                fill = merge(spread(vrd, N), spread(valu, N))
                if cfg.early:
                    fill = merge(fill, spread(dma, N)); dma = [""] * 4
                emit_qk(qk(nxt), fill)
                a("s_nop 0")
                mt = tree(MX, T0, nxt, N)
                fill = merge(spread(ad if NQ == 2 else ad[4:], N - 1) + [[]], spread(dma, N - 1) + [[]], spread(mt, N - 1, N // 2 - 1) + [[]])
                for n, m in enumerate(pv):
                    a(m)
                    for f in fill[n]: a(f)
                stub, back = a.label("stub"), a.label("back")
                stubs.append((stub, back, 1 - par, NQ))
                a(f"v_cmp_lt_f32 vcc, s100, v{MX}\ns_mov_b32 s97, s96\ns_mov_b32 s96, s98\ns_mov_b32 s31, s30\ns_cbranch_vccnz {stub}\n{back}:")
            else:
                for x in vrd[:8]: a(x)
                for x in ex[:8] + cv[:4]: a(x)
                for x in vrd[8:]: a(x)
                for x in ex[8:] + cv[4:]: a(x)
                a("s_nop 0")
                fill = merge(spread(ad, N), spread(dma, N))
                for n, m in enumerate(pv):
                    a(m)
                    for f in fill[n]: a(f)
        def at(t): return "".join(touch_block(b, b) for b in range(1, 8) if ts[b - 1] == 100 + t)
        aw = int(cfg.await_)
        step(0, min(aw + 6, 14), first=True)
        step(1, min(aw + 2, 10))
        a(f"s_mov_b32 {sIT}, 0\nL_aloop{NQ}:")
        step(0, aw); step(1, aw)
        a(f"s_add_u32 {sIT}, {sIT}, 1\ns_cmp_lt_u32 {sIT}, 5\ns_cbranch_scc1 L_aloop{NQ}")
        step(0, 8, [vpiece(0, "s97", "s31"), vpiece(1, "s97", "s31"), f"buffer_load_dword {VTAG}, v4, {S(SDBG)}, 0 offen {SC}", at(12)])
        wo_rows(0, "s5")
        a(f"""
        s_lshr_b32 s34, s3, 2
        s_lshl_b32 s35, s34, 16
        s_add_u32 s5, s5, s35
        s_lshl_b32 {sA}, {sWI}, 10
        s_add_u32 {sA}, {sA}, {WO0}
        s_lshl_b32 s35, s34, 14
        s_add_u32 {sBb}, {sA}, s35
        """)
        w = wo_pieces(sBb, 0, "s5"); w[3] += "\n" + at(13)
        step(1, 6, w)
        w = wo_pieces(sBb, 32768, "s5", 0x20000); w[3] += "\n" + at(14)
        step(0, 6, w)
        step(1, 8, [at(15)], last=True)
        stamp(4)
        for qi in range(NQ):
            across("v_add_f32", L_ + qi, T0)
            a(f"v_rcp_f32 v{L_+qi}, v{L_+qi}")
        a(f"s_mul_i32 s34, {sCQ}, 57344\ns_barrier\ns_cmp_ge_u32 s3, 4\ns_cbranch_scc1 L_epx{NQ}")
        epi(True, NQ)
        a(f"s_branch L_oload\nL_epx{NQ}:")
        epi(False, NQ)
        a("s_branch L_omm")
    attn(2)
    a("L_attn1:")
    attn(1)

    TBL = sum((d | h << 2 | g << 3) << (4 * b) for b, (d, h, g) in enumerate(map(blk, range(9))))
    def nblocks():
        if cfg.uneven: a(f"s_bitcmp1_b32 {sHG}, 0\ns_cselect_b32 s101, 7, 9")
        else: a("s_mov_b32 s101, 8")
    def decode(first):
        if first is not None: a(f"s_mov_b32 s92, {(TBL >> (4*first)) & 0xffffffff:#x}\ns_mov_b32 s93, {TBL >> (4*first + 32):#x}")
        else: a("s_lshr_b64 s[92:93], s[92:93], 4")
        a(f"s_add_u32 s5, s92, {sCQ}\ns_and_b32 s5, s5, 3\ns_bfe_u32 s6, s92, 0x20002")
    fa, st0, sper = int(cfg.fa), int(cfg.st0), int(cfg.sper)
    a(f"""
    L_oload:
    v_lshlrev_b32 v14, 4, v0
    s_cmp_ge_u32 s3, 2
    s_cbranch_scc1 L_ol2
    v_lshrrev_b32 v4, 5, v0
    s_lshl_b32 s35, s3, 2
    v_add_u32 v4, s35, v4
    v_and_b32 v5, 31, v0
    v_lshlrev_b32 v6, 1, v4
    v_xor_b32 v5, v5, v6
    v_lshlrev_b32 v4, 11, v4
    v_lshl_add_u32 v15, v5, 4, v4
    v_xor_b32 v13, 64, v15
    v_add_u32 v13, 4096, v13
    s_lshl_b32 {sA}, s3, 11
    s_add_u32 {sA}, {sA}, {WO0}
    s_mov_b32 {sIT}, 1
    """)
    nblocks()
    decode(0)
    a("s_waitcnt lgkmcnt(0)\ns_barrier\nL_owl:")
    decode(None)
    if cfg.mix: a("s_lshl_b32 s35, s5, 1\ns_and_b32 s35, s35, 4\ns_and_b32 s30, s5, 1\ns_add_u32 s30, s30, s35\ns_and_b32 s35, s6, 1\ns_lshl_b32 s35, s35, 1")
    else: a("s_lshl_b32 s30, s5, 1\ns_and_b32 s35, s6, 1")
    a("s_add_u32 s30, s30, s35\ns_lshr_b32 s35, s6, 1\ns_lshl_b32 s35, s35, 3\ns_add_u32 s30, s30, s35\ns_lshl_b32 s30, s30, 18")
    for p in range(4):
        a("s_waitcnt vmcnt(16)\ns_barrier")
        for n in range(4):
            a(f"s_add_u32 m0, {sA}, {p*16384 + n*4096}\ns_add_u32 s35, s30, {p*65536 + n*16384}\nbuffer_load_dwordx4 v15, {S(SWO)}, s35 offen lds")
            a(f"s_add_u32 m0, {sA}, {p*16384 + n*4096 + 1024}\ns_nop 0\nbuffer_load_dwordx4 v13, {S(SWO)}, s35 offen lds")
    a(f"s_add_u32 {sIT}, {sIT}, 1\ns_cmp_lt_u32 {sIT}, s101\ns_cbranch_scc1 L_owl")
    a("s_waitcnt vmcnt(16)\ns_barrier\ns_waitcnt vmcnt(8)\ns_barrier\ns_waitcnt vmcnt(0)\ns_barrier\ns_barrier")
    stamp(5)
    if cfg.sgrp != "o2": stamp_store(0, 0)
    a("s_branch L_end")
    def sample():
        a(f"""
        s_andn2_b32 s35, s2, 0x18
        s_lshl_b32 s34, s5, 3
        s_or_b32 s35, s35, s34
        s_lshr_b32 s34, s6, 1
        s_add_u32 s35, s35, s34
        s_lshl_b32 s35, s35, 5
        s_and_b32 s34, s6, 1
        s_add_u32 s35, s35, s34
        s_lshl_b32 s35, s35, 2
        s_add_u32 s35, s35, {FLAGS}
        v_mov_b32 v5, s35
        s_mul_i32 s32, s5, 57344
        s_mul_i32 s34, s34, 28672
        s_add_u32 s32, s32, s34
        s_lshr_b32 s34, s6, 1
        s_mul_i32 s34, s34, 229376
        s_add_u32 s32, s32, s34
        buffer_load_dword v13, v5, {S(SWS)}, 0 offen {SC}
        """)
    a("L_ol2:\ns_cmp_eq_u32 s3, 3\ns_cbranch_scc1 L_ol3")
    nblocks()
    decode(2)
    a(f"s_mov_b32 {sIT}, 2\ns_mov_b32 s33, 0\ns_waitcnt lgkmcnt(0)\ns_barrier")
    a(f"v_mov_b32 v4, 0\nv_cmp_eq_u32 vcc, 0, {VTAG}\ns_cbranch_vccz L_pt_out")
    poll("L_pt", SDBG, "v4", VTAG, "eq", "0")
    for u in range(5):
        if u == fa: a("s_waitcnt vmcnt(0)")
        a("s_barrier")
        if u == 4: sample()
    a("s_waitcnt vmcnt(0)\nL_ool:")
    for p in range(4):
        a("s_waitcnt vmcnt(7)\ns_barrier")
        if p == 0:
            a(f"s_mov_b32 s31, s32\nv_cmp_ne_u32 vcc, {VTAG}, v13\ns_cbranch_vccz L_po_out")
            poll("L_po", SWS, "v5", "v12", "ne", VTAG)
        if p == 2:
            decode(None); sample()
        for n in range(7):
            if n % 4 == 0: a(f"s_add_u32 m0, s33, {p*7168 + n*1024}\ns_add_u32 s35, s31, {p*7168 + n*1024}")
            a(f"buffer_load_dwordx4 v14, {S(SO)}, s35 offen offset:{(n&3)*1024} {SC} lds")
    a(f"s_xor_b32 s33, s33, 28672\ns_add_u32 {sIT}, {sIT}, 1\ns_cmp_lt_u32 {sIT}, s101\ns_cbranch_scc1 L_ool")
    a("s_waitcnt vmcnt(7)\ns_barrier\ns_waitcnt vmcnt(0)\ns_barrier\ns_barrier\ns_branch L_end")
    a(f"""
    L_ol3:
    v_add_u32 v7, 28672, v14
    s_mul_i32 s33, {sCQ}, 57344
    s_lshl_b32 s35, s2, 7
    s_add_u32 s35, s35, {FLAGS}
    v_mov_b32 v6, s35
    v_mov_b32 v4, 0
    s_waitcnt lgkmcnt(0)
    s_barrier
    """)
    for i in range(28): a(f"ds_read_b128 {vr(16+4*i,4)}, v7 offset:{i*1024}")
    a(f"v_cmp_eq_u32 vcc, 0, {VTAG}\ns_cbranch_vccz L_pt3_out")
    poll("L_pt3", SDBG, "v4", VTAG, "eq", "0")
    def flag(word): a(f"s_mov_b64 exec, 1\nbuffer_store_dword {VTAG}, v6, {S(SWS)}, 0 offen offset:{4*word} {SC}\ns_mov_b64 exec, -1")
    nst, young = 0, 0
    fb = st0 + -(-28 // sper) + 3
    assert fa < 4 and fb < 14
    for u in range(28):
        if u == fa: a(f"s_waitcnt vmcnt({nst + young})")
        a("s_barrier")
        if 5 <= u <= 11: stamp(u - 4, "o2")
        if u == fa: flag(0); young += nst == 28
        if u == st0: a("s_waitcnt lgkmcnt(0)")
        while u >= st0 and nst < min(28, (u - st0 + 1) * sper):
            if nst % 4 == 0: a(f"s_add_u32 s34, s33, {nst*1024}")
            a(f"buffer_store_dwordx4 {vr(16+4*nst,4)}, v7, {S(SO)}, s34 offen offset:{(nst&3)*1024} {SC}")
            nst += 1; young = 0
        if u == fb: a(f"s_waitcnt vmcnt({young})"); flag(1)
        for b in range(1, 9):
            if ts[b - 1] == u and (b < 8 or cfg.uneven):
                lab = a.label("lt")
                if cfg.uneven and b >= 7: a(f"s_bitcmp1_b32 {sHG}, 0\ns_cbranch_scc1 {lab}")
                wo_rows(b, "s6")
                a(f"buffer_load_dword {VD}, v3, {S(SWO)}, s6 offen\n{lab}:")
                if not (cfg.uneven and b >= 7): young += 1
    if cfg.uneven: a(f"s_bitcmp1_b32 {sHG}, 0\ns_cbranch_scc1 L_ol3e\n" + "s_barrier\n" * 8 + "L_ol3e:")
    else: a("s_barrier\n" * 4)
    if cfg.sgrp == "o2": stamp_store(3, 0)
    a("s_branch L_end")

    a(f"""
    L_omm:
    v_lshlrev_b32 v14, 4, v0
    v_lshrrev_b32 v4, 4, v0         ; g4
    v_bfe_u32 v5, v0, 2, 2          ; r
    v_and_b32 v6, 3, v0             ; c
    v_bfe_u32 v9, v0, 2, 3          ; k & 7
    v_lshl_add_u32 v7, v4, 2, v5
    v_lshlrev_b32 v7, 9, v7
    v_lshl_add_u32 v7, v6, 3, v7
    v_add_u32 v7, {WO0}, v7
    v_xor_b32 v9, {sWI}, v9
    """)
    for tau in range(4):
        a(f"""
        s_add_u32 s35, {sHG}, {tau}
        s_and_b32 s34, s35, 1
        s_lshl_b32 s34, s34, 2
        s_bfe_u32 s35, s35, 0x10001
        s_lshl_b32 s35, s35, 8
        v_xor_b32 v1, s34, v9
        v_lshl_add_u32 v1, v1, 5, v7
        v_add_u32 v{10+tau}, s35, v1
        """)
    def oreads(u):
        fb = FB + 44 * (u & 1)
        r = [f"ds_read_b64_tr_b16 {vr(fb+4*t+2*j,2)}, v{10+t} offset:{(u%4)*16384 + j*8192}" for t in range(4) for j in range(2)]
        xs = [f"ds_read_b128 {vr(fb+16+4*qt,4)}, v14 offset:{(u%8)*7168 + qt*1024}" for qt in range(7)]
        return r[:2] + xs[:1] + r[2:] + xs[1:]
    nblocks()
    a("v_mov_b32 v4, 0\ns_waitcnt vmcnt(4) lgkmcnt(0)\ns_barrier")
    stamp(5)
    if cfg.sgrp == "L_o": stamp(0)
    for r in oreads(0): a(r)
    a(f"""
    s_lshl_b32 s30, {sBR}, 3
    s_add_u32 s30, s30, {sB}
    s_lshl_b32 s30, s30, 2
    s_add_u32 s30, s30, {sCQ}
    s_mul_i32 s30, s30, {12*16384}
    s_lshl_b32 s35, {sWI}, 12
    s_add_u32 s30, s30, s35
    s_add_u32 s30, s30, {RED}
    s_mul_i32 s35, {sB}, 458752
    s_lshl_b32 s34, {sBR}, 11
    s_add_u32 s35, s35, s34
    s_lshl_b32 s34, {sCQ}, 9
    s_add_u32 s35, s35, s34
    s_lshl_b32 s34, {sHG}, 7
    s_add_u32 s35, s35, s34
    s_sub_u32 s34, 3670016, s35
    """)
    srd_off(a, SOUT, "s24", "s25", "s35", "s34")
    for tau in range(1, 4):
        a(f"s_add_u32 s35, {sHG}, {tau}\ns_and_b32 s35, s35, 3\ns_mul_i32 s35, s35, {3*16384}\ns_add_u32 s35, s35, s30\ns_add_u32 s{4+tau}, s35, {(tau-1)*16384}")
    a(f"""
    s_mul_i32 s35, {sHG}, {3*16384}
    s_add_u32 s8, s30, s35
    s_add_u32 s9, s8, 16384
    s_add_u32 s10, s8, 32768
    v_and_b32 v7, 15, v0
    v_lshlrev_b32 v7, 12, v7
    v_lshrrev_b32 v9, 4, v0
    v_lshl_add_u32 v7, v9, 3, v7
    s_lshl_b32 s35, {sWI}, 5
    v_add_u32 v7, s35, v7
    s_lshl_b32 s35, s2, 7
    s_lshl_b32 s34, {sWI}, 2
    s_add_u32 s34, s34, {FLAGS + 16}
    s_add_u32 s35, s35, s34
    v_mov_b32 v5, s35
    v_min_u32 v6, 2, v0
    v_sub_u32 v6, {sHG}, v6
    v_add_u32 v6, -1, v6
    v_and_b32 v6, 3, v6
    s_andn2_b32 s35, s2, 3
    v_or_b32 v6, s35, v6
    v_lshlrev_b32 v6, 7, v6
    v_add_u32 v6, s34, v6
    v_lshlrev_b32 v15, 3, v0
    s_mov_b32 s12, 0x3f80
    s_mov_b32 s13, 0x3f800000
    """)
    gloop("L_o", 8, "s101", oreads, {2: " vmcnt(0)"})
    stamp(6)
    a(f"v_cmp_eq_u32 vcc, 0, {VTAG}\ns_cbranch_vccz L_pt2_out")
    poll("L_pt2", SDBG, "v4", VTAG, "eq", "0")
    RB = FB
    def box_loads(s_):
        return ([f"buffer_load_dwordx4 {vr(RB+16*s_+4*pr,4)}, v14, {S(SWS)}, s{8+s_} offen offset:{pr*1024} {SC}" for pr in range(3)]
                + [f"buffer_load_dwordx2 {vr(RB+16*s_+12,2)}, v15, {S(SWS)}, s{8+s_} offen offset:3072 {SC}"])
    for tau in range(1, 4):
        for pr in range(4):
            b = ACC + 4 * (tau * 7 + 2 * pr)
            for i in range(4 if pr < 3 else 2): a(f"v_cvt_pk_bf16_f32 v{b+i}, v{b+2*i}, v{b+2*i+1}")
            if pr < 3: a(f"buffer_store_dwordx4 {vr(b,4)}, v14, {S(SWS)}, s{4+tau} offen offset:{pr*1024} {SC}")
            else: a(f"buffer_store_dwordx2 {vr(b,2)}, v15, {S(SWS)}, s{4+tau} offen offset:3072 {SC}")
    a(f"""
    s_waitcnt lgkmcnt(0) vmcnt(0)
    buffer_load_dword v9, v6, {S(SWS)}, 0 offen {SC}
    s_mov_b64 exec, 1
    buffer_store_dword {VTAG}, v5, {S(SWS)}, 0 offen {SC}
    s_mov_b64 exec, -1
    """)
    stamp(1)
    a(f"""
    s_mov_b32 s30, 7
    s_mov_b32 {sU}, 0
    s_waitcnt vmcnt(1)
    L_rx:
    v_cmp_eq_u32 vcc, {VTAG}, v9
    s_add_u32 {sU}, {sU}, 1
    s_nop 0
    s_cmp_ge_u32 {sU}, {cfg.spin}
    s_cselect_b32 s31, 7, vcc_lo
    s_and_b32 s31, s31, s30
    s_andn2_b32 s30, s30, s31
    """)
    for s_ in range(3):
        a(f"s_bitcmp1_b32 s31, {s_}\ns_cbranch_scc0 L_rx_l{s_}")
        for x in box_loads(s_): a(x)
        a(f"L_rx_l{s_}:")
    a(f"""
    s_cmp_eq_u32 s30, 0
    s_cbranch_scc1 L_rx_done
    buffer_load_dword v9, v6, {S(SWS)}, 0 offen {SC}
    s_waitcnt vmcnt(0)
    s_branch L_rx
    L_rx_done:
    s_waitcnt vmcnt(0)
    """)
    for s_ in range(3):
        for qt in range(7):
            for i in range(4):
                a(f"v_dot2_f32_bf16 v{ACC+4*qt+i}, v{RB+16*s_+2*qt+(i>>1)}, s{12+(i&1)}, v{ACC+4*qt+i}")
    stamp(2)
    for qt in range(7):
        b = ACC + 4 * qt
        a(f"v_cvt_pk_bf16_f32 v{b}, v{b}, v{b+1}\nv_cvt_pk_bf16_f32 v{b+1}, v{b+2}, v{b+3}")
        a(f"s_mov_b32 s35, {qt*65536}\nbuffer_store_dwordx2 {vr(b,2)}, v7, {S(SOUT)}, s35 offen {cfg.outpol.replace('+', ' ')}")
    if cfg.stamps: a("s_waitcnt vmcnt(0)")
    stamp(7)
    stamp_store(4, 256)
    a("L_end:\ns_endpgm")
    for stub, back, par, NQ in stubs:
        a(f"{stub}:\ns_call_b64 s[98:99], L_rare{par}{NQ}\ns_branch {back}")
    for NQ in (2, 1):
        for par in range(2):
            a(f"L_rare{par}{NQ}:")
            for qi in range(NQ):
                sb = SS + 16 * par + 8 * qi
                for x in tree(MX, T0, sb, 8): a(x)
                across("v_max_f32", MX, T0)
                a(f"v_max_f32 v{MX}, 0, v{MX}\nv_exp_f32 v{T0}, -v{MX}")
                for i in range(8): a(f"v_sub_f32 v{sb+i}, v{sb+i}, v{MX}")
                for i in range(4): a(f"v_sub_f32 v{NM+4*qi+i}, v{NM+4*qi+i}, v{MX}")
                a(f"v_mul_f32 v{L_+qi}, v{L_+qi}, v{T0}")
                for i in range(32): a(f"v_mul_f32 v{OA+32*qi+i}, v{OA+32*qi+i}, v{T0}")
            a("s_setpc_b64 s[98:99]")
    return a.text().replace(" KVPOL", " " + cfg.kvpol if cfg.kvpol else "")

def build(cfg):
    K = NAME + "_kernel"
    body = kernel_head(K) + kernel(cfg) + kernel_desc(K, 240, 240)
    tgt = '.amdgcn_target "amdgcn-amd-amdhsa--gfx950"\n'
    if cfg.echo:
        from gen2 import echo_kernel
        hdr = f"; @launch kernel={K} grid=(256,1,1) block=(512,1,1) lds=163840\n; @launch kernel=echo_kernel grid=(1,1,1) block=(64,1,1) lds=0\n"
        return hdr + tgt + kernel_head("echo_kernel") + echo_kernel(cfg) + kernel_desc("echo_kernel", 8, 8) + body
    return "; @launch grid=(256,1,1) block=(512,1,1) lds=163840\n" + tgt + body

if __name__ == "__main__":
    cfg = Cfg()
    for kv in sys.argv[2:]:
        k, v = kv.split("=")
        assert hasattr(cfg, k), k
        setattr(cfg, k, {"True": True, "False": False}.get(v, v))
    open(sys.argv[1], "w").write(build(cfg))
```

```python
import sys, math, struct, re
from asmlib import *

class Cfg:
    stamps = False
    sgrp = "main"
    kvpol = "nt"
    qord = "rot"
    kv0 = 4
    kvper = 1
    await_ = 8
    early = False
    tsched = "113,113,114,114,115,115,115,12"
    fa = 2
    st0 = 1
    sper = 4
    mix = False
    uneven = False
    outpol = ""
    aeven = 4
    brlow = True
    tbit = 2
    tpol = 1
    tn = 5
    peelq = False
    twopass = False
    echo = ""
    abl = ""
    spin = 400000

WQ0 = 28672
KT, HSTEP, SLOTB = 8448, 17152, 34304
SA_, SB_, SC_, SD_ = 94208, 128512, 0, 34304
HO, WO0 = 36864, 94208
RED, FLAGS, TAG = 16 << 20, 48 << 20, (48 << 20) + 65536
SX, SW, SK, SV, SO, SWO, SWS = 36, 40, 44, 48, 52, 56, 60
SOUT, SDBG = SX, SW
sBR, sHG, sCQ, sB, sWI, sIT, sA, sBb, sT, sU, sH0, sROT = ("s%d" % i for i in range(80, 92))
SC = "sc1"
VTAG, VD = "v236", "v237"
ACC, FB = 16, 128
def S(d): return f"s[{d}:{d+3}]"

def srd_off(a, d, lo, hi, off_reg, nbytes):
    a(f"s_add_u32 s{d}, {lo}, {off_reg}\ns_addc_u32 s{d+1}, {hi}, 0\ns_and_b32 s{d+1}, s{d+1}, 0xffff")
    a(f"s_mov_b32 s{d+2}, {nbytes}\ns_mov_b32 s{d+3}, 0x00020000")

def weave(a, mf, fill):
    fill = list(fill)
    for m in mf:
        a(m)
        if fill: a(fill.pop(0))
    for f in fill: a(f)

def kernel(cfg):
    a = A()
    HD = 262144 if cfg.mix else 131072
    def stamp(i, grp="main"):
        if cfg.stamps and (grp == cfg.sgrp or i == 0): a(f"s_memrealtime s[{64+2*i}:{65+2*i}]")
    def stamp_store(wave, wgoff):
        if not cfg.stamps: return
        a(f"s_cmp_lg_u32 s3, {wave}\ns_cbranch_scc1 L_end")
        a(f"s_waitcnt lgkmcnt(0)\ns_add_u32 s3, s2, {wgoff}\ns_lshl_b32 s3, s3, 7\ns_add_u32 s3, s3, {STAMP_OFF}\nv_mov_b32 v1, s3")
        for q in range(4):
            for j in range(4): a(f"v_mov_b32 v{4+j}, s{64+4*q+j}")
            a(f"buffer_store_dwordx4 v[4:7], v1, {S(SWS)}, 0 offen offset:{16*q}\ns_nop 2")
        a("s_waitcnt vmcnt(0)")
    def poll(lab, srdn, vaddr, vtmp, cmp, want):
        a(f"""
        s_mov_b32 {sU}, 0
        {lab}:
        buffer_load_dword {vtmp}, {vaddr}, {S(srdn)}, 0 offen {SC}
        s_add_u32 {sU}, {sU}, 1
        s_waitcnt vmcnt(0)
        v_cmp_{cmp}_u32 vcc, {want}, {vtmp}
        s_cmp_ge_u32 {sU}, {cfg.spin}
        s_cbranch_scc1 {lab}_out
        s_cbranch_vccnz {lab}
        {lab}_out:
        """)
    def select(pairs):
        a("s_bitcmp0_b32 s2, 2")
        for p in pairs: a(f"s_cselect_b64 s[{p}:{p+1}], s[{p}:{p+1}], s[{p+10}:{p+11}]")
    def other_srds():
        select((6, 8, 12))
        a(f"s_lshl_b32 s35, {sB}, 22\ns_lshl_b32 s34, {sH0}, 17\ns_add_u32 s35, s35, s34")
        srd_off(a, SK, "s6", "s7", "s35", HD + 131072)
        srd_off(a, SV, "s8", "s9", "s35", HD + 131072)
        a(f"s_lshl_b32 s35, {sBR}, 3\ns_add_u32 s35, s35, {sB}\ns_lshl_b32 s35, s35, 2\ns_add_u32 s35, s35, {sHG}\ns_mul_i32 s35, s35, 229376")
        srd_off(a, SO, "s28", "s29", "s35", 2 * 229376)
        a(f"s_lshl_b32 s35, {sHG}, 21\ns_lshl_b32 s34, {sCQ}, 9\ns_add_u32 s35, s35, s34\ns_sub_u32 s34, 0x800000, s35")
        srd_off(a, SWO, "s12", "s13", "s35", "s34")
        srd(a, SWS, "s28", "s29", 0x10000000)
        a(f"s_lshr_b32 {sROT}, s2, 3\ns_lshr_b32 s35, s2, 7\ns_add_u32 {sROT}, {sROT}, s35\ns_lshl_b32 s35, s2, 1\n"
          f"s_add_u32 {sROT}, {sROT}, s35\ns_and_b32 {sROT}, {sROT}, 15\ns_lshl_b32 {sROT}, {sROT}, 13")

    a("s_cmp_ge_u32 s2, 256\ns_cbranch_scc1 L_end")
    stamp(0)
    if cfg.brlow: a("s_bfe_u32 s3, s2, 0x20001\ns_and_b32 s30, s2, 1\ns_lshl_b32 s30, s30, 2\ns_or_b32 s3, s3, s30\ns_andn2_b32 s2, s2, 7\ns_or_b32 s2, s2, s3")
    a(f"""
    s_load_dwordx16 s[4:19], s[0:1], 0
    s_load_dwordx8 s[20:27], s[0:1], 64
    s_load_dwordx2 s[28:29], s[0:1], 96
    v_lshrrev_b32 v1, 6, v0
    v_and_b32 v0, 63, v0
    v_readfirstlane_b32 s3, v1
    s_bfe_u32 {sBR}, s2, 0x10002
    s_and_b32 {sHG}, s2, 3
    s_bfe_u32 {sCQ}, s2, 0x20003
    s_lshr_b32 {sB}, s2, 5
    s_lshl_b32 {sH0}, {sHG}, 3
    """)
    if cfg.mix: a(f"s_lshl_b32 s35, {sCQ}, 1\ns_and_b32 s35, s35, 4\ns_add_u32 {sH0}, {sH0}, s35\ns_and_b32 s35, {sCQ}, 1\ns_add_u32 {sH0}, {sH0}, s35")
    else: a(f"s_lshl_b32 s35, {sCQ}, 1\ns_add_u32 {sH0}, {sH0}, s35")
    a(f"s_and_b32 {sWI}, s3, 3\ns_cmp_lt_u32 s3, 4\ns_cbranch_scc1 L_qmm")

    a(f"""
    v_lshrrev_b32 v4, 5, v0
    v_and_b32 v5, 31, v0
    s_and_b32 s35, {sWI}, 1
    s_lshr_b32 s34, {sWI}, 1
    s_lshl_b32 {sA}, s35, 1
    s_lshl_b32 {sBb}, s34, 2
    s_add_u32 {sT}, {sA}, {sBb}
    v_add_u32 v6, {sT}, v4
    v_lshlrev_b32 v6, 1, v6
    v_xor_b32 v5, v5, v6
    s_lshl_b32 {sBb}, s34, 3
    s_add_u32 {sA}, {sA}, {sBb}
    v_add_u32 v4, {sA}, v4
    v_lshlrev_b32 v4, 13, v4
    v_lshl_add_u32 v10, v5, 4, v4
    """)
    if cfg.mix: a("v_and_b32 v5, 16, v5\nv_lshl_add_u32 v10, v5, 4, v10")
    a(f"""
    s_lshl_b32 {sA}, {sA}, 9
    s_add_u32 {sA}, {sA}, {WQ0}
    v_lshrrev_b32 v4, 3, v0
    v_and_b32 v5, 7, v0
    v_lshrrev_b32 v6, 1, v4
    s_lshl_b32 {sBb}, s35, 2
    v_add_u32 v6, {sBb}, v6
    v_xor_b32 v5, v5, v6
    s_lshl_b32 {sBb}, {sWI}, 3
    v_add_u32 v4, {sBb}, v4
    v_lshlrev_b32 v4, 11, v4
    v_lshl_add_u32 v11, v5, 4, v4
    s_lshl_b32 {sBb}, {sWI}, 10
    s_xor_b32 s35, {sB}, {sCQ}
    s_and_b32 s35, s35, 1
    """)
    alt = cfg.qord == "alt2"
    if alt:
        for g in range(2):
            o = [g] + [(t + 1 + g if t & 1 else t - 1 - g) for t in range(1, 15)] + [15 - g]
            v = sum(st << (4 * t) for t, st in enumerate(o))
            a(f"s_cmp_eq_u32 s35, {g}\ns_cselect_b32 s98, {v & 0xffffffff:#x}, s98\ns_cselect_b32 s99, {v >> 32:#x}, s99")
        a("s_mov_b64 s[92:93], s[98:99]\ns_lshl_b32 s30, s35, 19\ns_lshl_b32 s31, s35, 7")
    elif cfg.qord == "rot": a("s_lshl_b32 s30, s35, 22\ns_lshl_b32 s31, s35, 10")
    else: a("s_mov_b32 s30, 0\ns_mov_b32 s31, 0")
    a(f"s_mul_i32 s33, {sB}, 229376\ns_lshl_b32 s32, {sH0}, 8\ns_sub_u32 s34, 0x800000, s32\ns_waitcnt lgkmcnt(0)")
    select((4, 10))
    srd_off(a, SX, "s4", "s5", "s33", 229376)
    srd_off(a, SW, "s10", "s11", "s32", "s34")
    def issue_wq(slot):
        for pc in (0, 2, 8, 10):
            a(f"s_add_u32 m0, {sA}, {slot*16384 + pc*1024}\ns_add_u32 s35, s30, {pc*16384}\nbuffer_load_dwordx4 v10, {S(SW)}, s35 offen lds")
        if alt and (slot & 1): a("s_lshr_b64 s[98:99], s[98:99], 4\ns_and_b32 s30, s98, 15\ns_lshl_b32 s30, s30, 19")
        else: a("s_add_u32 s30, s30, 0x40000\ns_and_b32 s30, s30, 0x7fffff")
    def issue_x(slot):
        lab = a.label("xs")
        for n in range(4):
            if n == 3: a(f"s_cmp_ge_u32 {sWI}, 2\ns_cbranch_scc1 {lab}")
            a(f"s_add_u32 m0, {sBb}, {slot*14336 + n*4096}\ns_add_u32 s35, s31, {n*65536}\nbuffer_load_dwordx4 v11, {S(SX)}, s35 offen lds")
        if alt: a(f"{lab}:\ns_lshr_b64 s[92:93], s[92:93], 4\ns_and_b32 s31, s92, 15\ns_lshl_b32 s31, s31, 7")
        else: a(f"{lab}:\ns_add_u32 s31, s31, 128\ns_and_b32 s31, s31, 2047")
    def kv_piece(tile, hd, n, isv, slot):
        a(f"s_add_u32 s35, {sROT}, {tile*8192}\ns_and_b32 s35, s35, 0x1ffff\ns_add_u32 s35, s35, s32")
        a(f"s_add_u32 m0, s96, {slot + hd*HSTEP + isv*KT + n*4224}\ns_add_u32 s35, s35, {hd*HD + n*1024}")
        a(f"buffer_load_dwordx4 v2, {S(SV if isv else SK)}, s35 offen KVPOL lds")
    kv_src = "v_lshrrev_b32 v4, 4, v0\nv_and_b32 v5, 15, v0\nv_lshlrev_b32 v4, 11, v4\nv_lshl_add_u32 v2, v5, 4, v4"
    stamp(1, "s")
    issue_x(0); issue_wq(0); issue_wq(1)
    stamp(2, "s")
    other_srds()
    a(kv_src)
    a(f"s_mul_i32 s96, {sWI}, 1056\ns_lshl_b32 s32, {sWI}, 8\ns_waitcnt vmcnt(4)\ns_barrier")
    issue_x(1); issue_wq(2)
    a("s_waitcnt vmcnt(7)\ns_barrier")
    issue_wq(3); issue_wq(0)
    kv0 = int(cfg.kv0)
    kvl = [(tile, hd, n, isv) for tile in range(2) for isv in range(2) for hd in range(2) for n in range(2)]
    a(f"s_mov_b32 {sIT}, 0\ns_branch L_qlmid\nL_qlloop:")
    for u in range(4):
        a(f"s_waitcnt vmcnt({8 if u & 1 else 11})\ns_barrier")
        if u & 1: issue_x((u >> 1) & 1)
        issue_wq(u)
        if u == 0: a("L_qlmid:")
    a(f"s_add_u32 {sIT}, {sIT}, 1\ns_cmp_lt_u32 {sIT}, {kv0}\ns_cbranch_scc1 L_qlloop")
    q = []
    for u in range(4 * kv0 - 4, 4 * kv0):
        if u & 1: q.append(("x", (u >> 1) + 2, 3))
        q.append(("w", u + 4, 4))
    for u in range(4 * kv0, 32):
        need = [i for i, e in enumerate(q) if (e[0] == "w" and e[1] <= u + 1) or (e[0] == "x" and e[1] <= (u + 1) >> 1)]
        if need:
            a(f"s_waitcnt vmcnt({sum(e[2] for e in q[max(need) + 1:])})")
            q = q[max(need) + 1:]
        a("s_barrier")
        if (u & 1) and (u >> 1) + 2 < 16: issue_x((u >> 1) & 1); q.append(("x", (u >> 1) + 2, 3))
        if u + 4 < 32: issue_wq(u % 4); q.append(("w", u + 4, 4))
        for _ in range(int(cfg.kvper)):
            if kvl:
                tile, hd, n, isv = kvl.pop(0)
                kv_piece(tile, hd, n, isv, (SA_, SB_)[tile]); q.append(("k", 0, 1))
    if not cfg.peelq: a("s_barrier")
    for tile, hd, n, isv in kvl: kv_piece(tile, hd, n, isv, (SA_, SB_)[tile])
    for isv in range(2):
        for hd in range(2):
            for n in range(2): kv_piece(2, hd, n, isv, SC_)
    a("s_waitcnt vmcnt(20)\ns_branch L_join")

    def gmf(u, zero=False):
        fb = FB + 44 * (u & 1)
        return [f"v_mfma_f32_16x16x32_bf16 {vr(ACC+4*(t*7+qt),4)}, {vr(fb+4*t,4)}, {vr(fb+16+4*qt,4)}, {'0' if zero else vr(ACC+4*(t*7+qt),4)}" for qt in range(7) for t in range(4)]
    def gloop(name, period, blocks, reads, pre, cut=None):
        a("s_waitcnt lgkmcnt(0)\ns_barrier")
        weave(a, gmf(0, True), reads(1))
        a(f"s_mov_b32 {sIT}, 0\ns_branch {name}_mid\n{name}:")
        for u in range(period):
            a(f"s_waitcnt lgkmcnt(0){pre.get(u, '')}\ns_barrier")
            ex = [f"s_cmp_eq_u32 {sIT}, {cut}"] if cut is not None and u == 2 else []
            weave(a, gmf(u), reads(u + 1) + ex)
            if ex: a(f"s_cbranch_scc1 {name}_out")
            if u == 0: a(f"{name}_mid:")
            if u % 4 == 3:
                if cfg.stamps and cfg.sgrp == name:
                    for i in range(u // 4, 7, period // 4):
                        lab = a.label("st")
                        a(f"s_cmp_lg_u32 {sIT}, {i}\ns_cbranch_scc1 {lab}")
                        stamp(1 + i, name)
                        a(f"{lab}:")
                a(f"s_add_u32 {sIT}, {sIT}, 1\ns_cmp_lt_u32 {sIT}, {blocks}")
                a(f"s_cbranch_scc1 {name}" if u == period - 1 else f"s_cbranch_scc0 {name}_out")
        a(f"{name}_out:")
    cbits = struct.unpack("<I", struct.pack("<f", (128 ** -0.5) * math.log2(math.e)))[0]
    a(f"""
    L_qmm:
    v_lshrrev_b32 v4, 4, v0         ; g4
    v_bfe_u32 v5, v0, 2, 2          ; r
    v_and_b32 v6, 3, v0             ; c
    v_lshl_add_u32 v7, v4, 3, v5
    v_lshlrev_b32 v7, 9, v7
    v_lshrrev_b32 v9, 1, v6
    v_lshl_add_u32 v7, v9, 4, v7
    v_and_b32 v9, 1, v6
    v_lshl_add_u32 v7, v9, 3, v7
    s_lshr_b32 s35, {sWI}, 1
    s_lshl_b32 s35, s35, 8
    s_add_u32 s35, s35, {WQ0}
    v_add_u32 v7, s35, v7
    v_and_b32 v9, 1, v4
    v_lshl_or_b32 v9, v9, 2, v5
    s_and_b32 s35, {sWI}, 1
    s_lshl_b32 s35, s35, 2
    v_xor_b32 v9, s35, v9
    """)
    for t in range(4): a(f"v_xor_b32 v1, {t}, v9\nv_lshl_add_u32 v{10+t}, v1, 5, v7")
    a(f"""
    v_and_b32 v5, 15, v0
    v_lshrrev_b32 v6, 1, v5
    v_xor_b32 v6, v6, v4
    v_lshlrev_b32 v7, 7, v5
    v_lshl_add_u32 v14, v6, 4, v7
    v_xor_b32 v15, 64, v14
    v_lshlrev_b32 v5, 4, v5
    v_lshrrev_b32 v6, 5, v0
    v_lshl_add_u32 v5, v6, 8, v5
    v_bfe_u32 v6, v0, 4, 1
    v_lshl_add_u32 v5, v6, 3, v5
    s_lshr_b32 s34, {sWI}, 1
    s_mul_i32 s34, s34, 28672
    s_and_b32 s35, {sWI}, 1
    s_lshl_b32 s35, s35, 11
    s_add_u32 s34, s34, s35
    s_add_u32 s34, s34, {HO}
    v_add_u32 v8, s34, v5
    s_mov_b32 s30, {cbits:#x}
    s_mov_b32 s31, {cbits:#x}
    """)
    a(kv_src)
    a("s_waitcnt lgkmcnt(0)")
    other_srds()
    a(f"""
    s_or_b32 s35, s2, s3
    s_cbranch_scc1 L_notag
    s_mov_b32 s{SX}, s26
    s_and_b32 s{SX+1}, s27, 0xffff
    s_mov_b32 s{SX+2}, 256
    s_mov_b32 s{SX+3}, 0x00020000
    v_mov_b32 v4, {TAG}
    v_mov_b32 v7, 0
    s_mov_b32 s34, 1664525
    s_mov_b32 s35, 1013904223
    buffer_load_dword v5, v4, {S(SWS)}, 0 offen {SC}
    s_waitcnt vmcnt(0)
    v_mul_lo_u32 v5, v5, s34
    v_add_u32 v5, s35, v5
    v_mov_b32 v6, s35
    v_cmp_eq_u32 vcc, 0, v5
    s_nop 1
    v_cndmask_b32 v5, v5, v6, vcc
    s_mov_b64 exec, 1
    buffer_store_dword v5, v7, {S(SX)}, 0 offen {SC}
    buffer_store_dword v5, v4, {S(SWS)}, 0 offen {SC}
    s_mov_b64 exec, -1
    L_notag:
    s_barrier
    """)
    def qreads(u):
        fb = FB + 44 * (u & 1)
        r = [f"ds_read_b64_tr_b16 {vr(fb+4*t+2*j,2)}, v{10+t} offset:{(u%4)*16384 + j*2048}" for t in range(4) for j in range(2)]
        xs = [f"ds_read_b128 {vr(fb+16+4*qt,4)}, v{14+(u&1)} offset:{((u>>1)&1)*14336 + qt*2048}" for qt in range(7)]
        return r[:2] + xs[:1] + r[2:] + xs[1:]
    stamp(1); stamp(1, "s")
    for r in qreads(0): a(r)
    def pack(qt, t):
        acc = ACC + 4 * (t * 7 + qt)
        return (f"v_pk_mul_f32 {vr(acc,2)}, {vr(acc,2)}, s[30:31]\nv_pk_mul_f32 {vr(acc+2,2)}, {vr(acc+2,2)}, s[30:31]\n"
                f"v_cvt_pk_bf16_f32 v{acc}, v{acc}, v{acc+1}\nv_cvt_pk_bf16_f32 v{acc+1}, v{acc+2}, v{acc+3}\n"
                f"ds_write_b64 v8, {vr(acc,2)} offset:{qt*4096 + t*512}")
    packs = [pack(qt, t) for qt in range(7) for t in range(4)]
    if cfg.peelq:
        gloop("L_q", 4, 8, qreads, {}, cut=7)
        a("s_waitcnt lgkmcnt(0)\ns_barrier")
        stamp(2)
        weave(a, gmf(3), [""] * 8 + packs[:19] + ["s_nop 1"] + packs[19:])
    else:
        gloop("L_q", 4, 8, qreads, {})
        stamp(2)
        a("s_waitcnt lgkmcnt(0)\ns_barrier")
        for x in packs: a(x)

    QF, OA, SS, NM, KF, VF, PP = 16, 48, 112, 144, 160, 192, 224
    L_, MX, T0 = 232, 234, 235
    a(f"""
    L_join:
    s_lshr_b32 s34, s3, 2
    s_mul_i32 s35, s34, {HD}
    s_add_u32 s{SK}, s{SK}, s35
    s_addc_u32 s{SK+1}, s{SK+1}, 0
    s_mov_b32 s{SK+2}, 131072
    s_add_u32 s{SV}, s{SV}, s35
    s_addc_u32 s{SV+1}, s{SV+1}, 0
    s_mov_b32 s{SV+2}, 131072
    s_mul_i32 s30, s34, {HSTEP}
    s_mul_i32 {sA}, {sWI}, 1056
    s_add_u32 {sA}, {sA}, s30
    s_add_u32 {sBb}, {sA}, {KT}
    v_lshlrev_b32 v5, 4, v0
    s_mul_i32 s35, s34, 28672
    s_lshl_b32 {sT}, {sWI}, 13
    s_add_u32 {sT}, {sT}, s35
    s_add_u32 {sT}, {sT}, {HO}
    v_add_u32 v9, {sT}, v5
    s_lshl_b32 {sT}, {sWI}, 11
    s_add_u32 s35, s35, {sT}
    v_add_u32 v14, s35, v5
    v_and_b32 v7, 7, v0
    v_mul_u32_u24 v7, 1056, v7
    v_bfe_u32 v1, v0, 3, 1
    v_lshl_add_u32 v7, v1, 8, v7
    v_lshrrev_b32 v1, 4, v0
    v_lshl_add_u32 v7, v1, 4, v7
    v_add_u32 v10, s30, v7
    v_bfe_u32 v7, v0, 2, 3
    v_mul_u32_u24 v7, 1056, v7
    v_lshrrev_b32 v1, 5, v0
    v_lshl_add_u32 v7, v1, 8, v7
    v_and_b32 v1, 3, v0
    v_lshl_add_u32 v7, v1, 3, v7
    s_add_u32 s35, s30, {KT}
    v_add_u32 v12, s35, v7
    v_add_u32 v11, {SA_}, v10
    s_lshl_b32 s35, {sWI}, 8
    s_add_u32 s31, {sROT}, s35
    s_add_u32 s31, s31, {3*8192}
    s_and_b32 s31, s31, 0x1ffff
    s_mov_b32 s96, {SA_}
    s_mov_b32 s97, {SD_}
    s_mov_b32 s100, 0x41000000
    v_lshrrev_b32 v4, 5, v0
    s_lshl_b32 s35, {sWI}, 1
    v_add_u32 v4, s35, v4
    v_and_b32 v5, 31, v0
    v_lshlrev_b32 v6, 1, v4
    v_xor_b32 v5, v5, v6
    v_lshlrev_b32 v4, 11, v4
    v_lshl_add_u32 v15, v5, 4, v4
    v_lshrrev_b32 v4, 4, v0
    v_lshlrev_b32 v4, 5, v4
    v_bfe_u32 v5, v0, 2, 2
    v_add_u32 v4, v4, v5
    s_lshl_b32 s35, {sB}, 2
    v_add_u32 v4, s35, v4
    v_lshlrev_b32 v4, 11, v4
    v_and_b32 v5, 3, v0
    v_lshl_add_u32 v3, v5, 7, v4
    v_mov_b32 v4, 0
    """)
    a(f"""
    v_lshrrev_b32 v7, 2, v0
    v_lshlrev_b32 v7, 9, v7
    v_and_b32 v6, 3, v0
    v_lshl_add_u32 v7, v6, 3, v7
    v_add_u32 v7, {WO0}, v7
    v_bfe_u32 v6, v0, 2, 3
    v_xor_b32 v6, {sWI}, v6
    """)
    for tau in range(4):
        a(f"""
        s_add_u32 s35, {sHG}, {tau}
        s_and_b32 s34, s35, 1
        s_lshl_b32 s34, s34, 2
        s_bfe_u32 s35, s35, 0x10001
        s_lshl_b32 s35, s35, 8
        v_xor_b32 v1, s34, v6
        v_lshl_add_u32 v1, v1, 5, v7
        v_add_u32 v{240+tau}, s35, v1
        """)
    srd(a, SDBG, "s26", "s27", 256)
    a(f"s_cmp_eq_u32 {sWI}, 3\ns_waitcnt lgkmcnt(0)\ns_cbranch_scc1 L_attn1")
    ts = [int(x) for x in cfg.tsched.split(",")]
    stubs = []
    def blk(b): return (0, b, 0) if b < 2 else ((b - 1, 0, 0) if b < 5 else ((b - 4, 1, 0) if b < 8 else (3, 1, 1)))
    def producer(b, reg): a(f"s_add_u32 {reg}, {sCQ}, {blk(b)[0]}\ns_and_b32 {reg}, {reg}, 3")
    def wo_rows(b, reg):
        d, h, g = blk(b)
        producer(b, reg)
        if cfg.mix: a(f"s_lshl_b32 s35, {reg}, 1\ns_and_b32 s35, s35, 4\ns_and_b32 {reg}, {reg}, 1\ns_add_u32 {reg}, {reg}, s35\ns_add_u32 {reg}, {reg}, {2*h + 8*g}")
        else: a(f"s_lshl_b32 {reg}, {reg}, 1\ns_add_u32 {reg}, {reg}, {h + 8*g}")
        a(f"s_lshl_b32 {reg}, {reg}, 18")
    def touch_block(b, wave):
        lab = a.label("wt"); t = A()
        keep, a.l = a.l, t.l
        a(f"s_cmp_lg_u32 s3, {wave}\ns_cbranch_scc1 {lab}")
        wo_rows(b, "s6")
        a(f"buffer_load_dword {VD}, v3, {S(SWO)}, s6 offen\n{lab}:")
        a.l = keep
        return t.text()
    def kpiece(n, slot, src): return f"s_add_u32 s34, {slot}, {sA}\ns_add_u32 m0, s34, {n*4224}\ns_add_u32 s35, {src}, {n*1024}\nbuffer_load_dwordx4 v2, {S(SK)}, s35 offen KVPOL lds"
    def vpiece(n, slot, src): return f"s_add_u32 s34, {slot}, {sBb}\ns_add_u32 m0, s34, {n*4224}\ns_add_u32 s35, {src}, {n*1024}\nbuffer_load_dwordx4 v2, {S(SV)}, s35 offen KVPOL lds"
    def wo_pieces(mbase, moff, soff, add=0):
        return [f"s_add_u32 m0, {mbase}, {moff + n*4096}\ns_add_u32 s35, {soff}, {add + n*16384}\nbuffer_load_dwordx4 v15, {S(SWO)}, s35 offen lds" for n in range(4)]
    def kreads(): return [f"ds_read_b128 {vr(KF+16*kt+4*s_,4)}, v11 offset:{kt*512 + 64*s_}" for s_ in range(4) for kt in range(2)]
    def tree(dst, tmp, b, n):
        if n == 8: return [f"v_max3_f32 v{dst}, v{b}, v{b+1}, v{b+2}", f"v_max3_f32 v{tmp}, v{b+3}, v{b+4}, v{b+5}",
                           f"v_max3_f32 v{dst}, v{dst}, v{b+6}, v{b+7}", f"v_max_f32 v{dst}, v{dst}, v{tmp}"]
        return ([f"v_max3_f32 v{dst}, v{b}, v{b+1}, v{b+2}", f"v_max3_f32 v{tmp}, v{b+3}, v{b+4}, v{b+5}"]
                + [f"v_max3_f32 v{(dst, tmp)[i&1]}, v{(dst, tmp)[i&1]}, v{b+6+2*i}, v{b+7+2*i}" for i in range(5)]
                + [f"v_max_f32 v{dst}, v{dst}, v{tmp}"])
    def across(op, r, tmp):
        for sw in ("16", "32"):
            a(f"s_nop 0\nv_mov_b32 v{tmp}, v{r}\ns_nop 1\nv_permlane{sw}_swap_b32 v{tmp}, v{r}\ns_nop 1\n{op} v{r}, v{r}, v{tmp}")
    def epi(store, NQ):
        for p in range(4):
            for qi in range(NQ):
                b = OA + 32*qi + 8*p
                for i in range(8): a(f"v_mul_f32 v{b+i}, v{b+i}, v{L_+qi}")
                for i in range(4): a(f"v_cvt_pk_bf16_f32 v{b+i}, v{b+2*i}, v{b+2*i+1}")
                a(f"ds_write_b128 v14, {vr(b,4)} offset:{p*7168 + qi*1024}")
                if store: a(f"buffer_store_dwordx4 {vr(b,4)}, v14, {S(SO)}, s34 offen offset:{qi*1024} {SC}")
            if store: a("s_add_u32 s34, s34, 7168")
        if store: a(f"s_waitcnt vmcnt({4 * NQ})")
    def attn(NQ):
        N = 8 * NQ
        def qk(sb, zero=False):
            out = []
            for s_ in range(4):
                for kt in range(2):
                    for qi in range(NQ):
                        d = vr(sb + 8*qi + 4*kt, 4)
                        out.append((f"s_waitcnt lgkmcnt(LG{2*s_+kt})\n" if qi == 0 else "") +
                                   f"v_mfma_f32_16x16x32_bf16 {d}, {vr(KF+16*kt+4*s_,4)}, {vr(QF+16*qi+4*s_,4)}, {('0' if zero else vr(NM+4*qi,4)) if s_ == 0 else d}")
            return out
        def emit_qk(ms, fill):
            nv = 0
            for n, m in enumerate(ms):
                i = n // NQ
                a(m.replace(f"LG{i}", str(min(15, 7 - i + nv))))
                for f in fill[n]:
                    a(f); nv += f.startswith("ds_")
        def spread(items, gaps, lo=0):
            out = [[] for _ in range(gaps)]
            for i, x in enumerate(items): out[lo + i * (gaps - lo) // len(items)].append(x)
            return out
        def merge(*ls): return [sum((l[i] for l in ls), []) for i in range(len(ls[0]))]
        a("s_barrier")
        for qi in range(NQ):
            for s_ in range(4): a(f"ds_read_b128 {vr(QF+16*qi+4*s_,4)}, v9 offset:{qi*4096 + s_*1024}")
        for x in kreads(): a(x)
        a("s_waitcnt lgkmcnt(8)\ns_barrier")
        stamp(3)
        emit_qk(qk(SS, True), [[kpiece(0, "s97", "s31")], [], [kpiece(1, "s97", "s31")]] + [[]] * 16)
        a("s_nop 7")
        for qi in range(NQ):
            for x in tree(MX, T0, SS + 8*qi, 8): a(x)
            across("v_max_f32", MX, T0)
            a(f"v_mov_b32 v{L_+qi}, 0")
            for i in range(8): a(f"v_sub_f32 v{SS+8*qi+i}, v{SS+8*qi+i}, v{MX}")
            for i in range(4): a(f"v_sub_f32 v{NM+4*qi+i}, 0, v{MX}")
        def step(par, wait, dma=None, first=False, last=False, tight=False):
            cur, nxt = SS + 16 * par, SS + 16 * (1 - par)
            if tight and int(cfg.aeven) >= 0:
                lab = a.label("tw")
                a(f"s_bitcmp{cfg.tpol}_b32 s2, {cfg.tbit}\ns_cbranch_scc1 {lab}\ns_cmp_ge_u32 {sIT}, {cfg.tn}\ns_cbranch_scc1 {lab}\ns_waitcnt vmcnt({cfg.aeven})\n{lab}:")
            a(f"""
            s_waitcnt vmcnt({wait})
            s_barrier
            s_add_u32 s98, s96, {SLOTB}
            s_cmp_eq_u32 s96, {SB_}
            s_cselect_b32 s98, 0, s98
            s_cmp_eq_u32 s96, {SD_}
            s_cselect_b32 s98, {SA_}, s98
            v_add_u32 v11, s98, v10
            v_add_u32 v13, s96, v12
            s_add_u32 s30, s31, 8192
            s_and_b32 s30, s30, 0x1ffff
            """)
            vrd = [f"ds_read_b64_tr_b16 {vr(VF+4*t+2*j,2)}, v13 offset:{j*512 + 32*t}" for t in range(8) for j in range(2)]
            ex = [f"v_exp_f32 v{cur+i}, v{cur+i}" for i in range(N)]
            cv = [f"v_cvt_pk_bf16_f32 v{PP+i}, v{cur+2*i}, v{cur+2*i+1}" for i in range(N // 2)]
            ad = [f"v_add_f32 v{L_+(i>>3)}, v{L_+(i>>3)}, v{cur+i}" for i in range(N)]
            if NQ == 2: ad = [ad[(i >> 1) + 8 * (i & 1)] for i in range(16)]
            if dma is None: dma = [kpiece(0, "s96", "s30"), vpiece(0, "s97", "s31"), kpiece(1, "s96", "s30"), vpiece(1, "s97", "s31")]
            dma = list(dma) + [""] * (4 - len(dma))
            pv = [(f"s_waitcnt lgkmcnt({14 - 2*t})\n" if qi == 0 else "") +
                  f"v_mfma_f32_16x16x32_bf16 {vr(OA+32*qi+4*t,4)}, {vr(VF+4*t,4)}, {vr(PP+4*qi,4)}, {'0' if first else vr(OA+32*qi+4*t,4)}" for t in range(8) for qi in range(NQ)]
            if not last:
                for x in kreads(): a(x)
                for x in ex[:8]: a(x)
                if NQ == 2: valu = [ex[8], cv[0], ex[9], cv[1], ex[10], cv[2], ex[11], cv[3], ex[12], ex[13], cv[4], ex[14], cv[5], ex[15], cv[6], cv[7]]
                else: valu = cv + ad[:4]
                fill = merge(spread(vrd, N), spread(valu, N))
                if cfg.early:
                    fill = merge(fill, spread(dma, N)); dma = [""] * 4
                emit_qk(qk(nxt), fill)
                a("s_nop 0")
                mt = tree(MX, T0, nxt, N)
                fill = merge(spread(ad if NQ == 2 else ad[4:], N - 1) + [[]], spread(dma, N - 1) + [[]], spread(mt, N - 1, N // 2 - 1) + [[]])
                for n, m in enumerate(pv):
                    a(m)
                    for f in fill[n]: a(f)
                stub, back = a.label("stub"), a.label("back")
                stubs.append((stub, back, 1 - par, NQ))
                a(f"v_cmp_lt_f32 vcc, s100, v{MX}\ns_mov_b32 s97, s96\ns_mov_b32 s96, s98\ns_mov_b32 s31, s30\ns_cbranch_vccnz {stub}\n{back}:")
            else:
                for x in vrd[:8]: a(x)
                for x in ex[:8] + cv[:4]: a(x)
                for x in vrd[8:]: a(x)
                for x in ex[8:] + cv[4:]: a(x)
                a("s_nop 0")
                fill = merge(spread(ad, N), spread(dma, N))
                for n, m in enumerate(pv):
                    a(m)
                    for f in fill[n]: a(f)
        def at(t): return "".join(touch_block(b, b) for b in range(1, 8) if ts[b - 1] == 100 + t)
        aw = int(cfg.await_)
        step(0, min(aw + 6, 14), first=True)
        step(1, min(aw + 2, 10))
        a(f"s_mov_b32 {sIT}, 0\nL_aloop{NQ}:")
        step(0, aw, tight=True); step(1, aw, tight=True)
        a(f"s_add_u32 {sIT}, {sIT}, 1\ns_cmp_lt_u32 {sIT}, 5\ns_cbranch_scc1 L_aloop{NQ}")
        step(0, 8, [vpiece(0, "s97", "s31"), vpiece(1, "s97", "s31"), f"buffer_load_dword {VTAG}, v4, {S(SDBG)}, 0 offen {SC}", at(12)])
        wo_rows(0, "s5")
        a(f"""
        s_lshr_b32 s34, s3, 2
        s_lshl_b32 s35, s34, 16
        s_add_u32 s5, s5, s35
        s_lshl_b32 {sA}, {sWI}, 10
        s_add_u32 {sA}, {sA}, {WO0}
        s_lshl_b32 s35, s34, 14
        s_add_u32 {sBb}, {sA}, s35
        """)
        w = wo_pieces(sBb, 0, "s5"); w[3] += "\n" + at(13)
        step(1, 6, w)
        w = wo_pieces(sBb, 32768, "s5", 0x20000); w[3] += "\n" + at(14)
        step(0, 6, w)
        step(1, 8, [at(15)], last=True)
        stamp(4)
        for qi in range(NQ):
            across("v_add_f32", L_ + qi, T0)
            a(f"v_rcp_f32 v{L_+qi}, v{L_+qi}")
        a(f"s_mul_i32 s34, {sCQ}, 57344\ns_barrier\ns_cmp_ge_u32 s3, 4\ns_cbranch_scc1 L_epx{NQ}")
        epi(True, NQ)
        a(f"s_branch L_oload\nL_epx{NQ}:")
        epi(False, NQ)
        a("s_branch L_omm")
    attn(2)
    a("L_attn1:")
    attn(1)

    TBL = sum((d | h << 2 | g << 3) << (4 * b) for b, (d, h, g) in enumerate(map(blk, range(9))))
    def nblocks():
        if cfg.uneven: a(f"s_bitcmp1_b32 {sHG}, 0\ns_cselect_b32 s101, 7, 9")
        else: a("s_mov_b32 s101, 8")
    def decode(first):
        if first is not None: a(f"s_mov_b32 s92, {(TBL >> (4*first)) & 0xffffffff:#x}\ns_mov_b32 s93, {TBL >> (4*first + 32):#x}")
        else: a("s_lshr_b64 s[92:93], s[92:93], 4")
        a(f"s_add_u32 s5, s92, {sCQ}\ns_and_b32 s5, s5, 3\ns_bfe_u32 s6, s92, 0x20002")
    fa, st0, sper = int(cfg.fa), int(cfg.st0), int(cfg.sper)
    a(f"""
    L_oload:
    v_lshlrev_b32 v14, 4, v0
    s_cmp_ge_u32 s3, 2
    s_cbranch_scc1 L_ol2
    v_lshrrev_b32 v4, 5, v0
    s_lshl_b32 s35, s3, 2
    v_add_u32 v4, s35, v4
    v_and_b32 v5, 31, v0
    v_lshlrev_b32 v6, 1, v4
    v_xor_b32 v5, v5, v6
    v_lshlrev_b32 v4, 11, v4
    v_lshl_add_u32 v15, v5, 4, v4
    v_xor_b32 v13, 64, v15
    v_add_u32 v13, 4096, v13
    s_lshl_b32 {sA}, s3, 11
    s_add_u32 {sA}, {sA}, {WO0}
    s_mov_b32 {sIT}, 1
    """)
    nblocks()
    decode(0)
    a("s_waitcnt lgkmcnt(0)\ns_barrier\nL_owl:")
    decode(None)
    if cfg.mix: a("s_lshl_b32 s35, s5, 1\ns_and_b32 s35, s35, 4\ns_and_b32 s30, s5, 1\ns_add_u32 s30, s30, s35\ns_and_b32 s35, s6, 1\ns_lshl_b32 s35, s35, 1")
    else: a("s_lshl_b32 s30, s5, 1\ns_and_b32 s35, s6, 1")
    a("s_add_u32 s30, s30, s35\ns_lshr_b32 s35, s6, 1\ns_lshl_b32 s35, s35, 3\ns_add_u32 s30, s30, s35\ns_lshl_b32 s30, s30, 18")
    for p in range(4):
        a("s_waitcnt vmcnt(16)\ns_barrier")
        for n in range(4):
            a(f"s_add_u32 m0, {sA}, {p*16384 + n*4096}\ns_add_u32 s35, s30, {p*65536 + n*16384}\nbuffer_load_dwordx4 v15, {S(SWO)}, s35 offen lds")
            a(f"s_add_u32 m0, {sA}, {p*16384 + n*4096 + 1024}\ns_nop 0\nbuffer_load_dwordx4 v13, {S(SWO)}, s35 offen lds")
    a(f"s_add_u32 {sIT}, {sIT}, 1\ns_cmp_lt_u32 {sIT}, s101\ns_cbranch_scc1 L_owl")
    a("s_waitcnt vmcnt(16)\ns_barrier\ns_waitcnt vmcnt(8)\ns_barrier\ns_waitcnt vmcnt(0)\ns_barrier\ns_barrier")
    stamp(5)
    if cfg.sgrp != "o2": stamp_store(0, 0)
    a("s_branch L_end")
    def sample():
        a(f"""
        s_andn2_b32 s35, s2, 0x18
        s_lshl_b32 s34, s5, 3
        s_or_b32 s35, s35, s34
        s_lshr_b32 s34, s6, 1
        s_add_u32 s35, s35, s34
        s_lshl_b32 s35, s35, 5
        s_and_b32 s34, s6, 1
        s_add_u32 s35, s35, s34
        s_lshl_b32 s35, s35, 2
        s_add_u32 s35, s35, {FLAGS}
        v_mov_b32 v5, s35
        s_mul_i32 s32, s5, 57344
        s_mul_i32 s34, s34, 28672
        s_add_u32 s32, s32, s34
        s_lshr_b32 s34, s6, 1
        s_mul_i32 s34, s34, 229376
        s_add_u32 s32, s32, s34
        buffer_load_dword v13, v5, {S(SWS)}, 0 offen {SC}
        """)
    a("L_ol2:\ns_cmp_eq_u32 s3, 3\ns_cbranch_scc1 L_ol3")
    nblocks()
    decode(2)
    a(f"s_mov_b32 {sIT}, 2\ns_mov_b32 s33, 0\ns_waitcnt lgkmcnt(0)\ns_barrier")
    a(f"v_mov_b32 v4, 0\nv_cmp_eq_u32 vcc, 0, {VTAG}\ns_cbranch_vccz L_pt_out")
    poll("L_pt", SDBG, "v4", VTAG, "eq", "0")
    for u in range(5):
        if u == fa: a("s_waitcnt vmcnt(0)")
        a("s_barrier")
        if u == 4: sample()
    a("s_waitcnt vmcnt(0)\nL_ool:")
    for p in range(4):
        a("s_waitcnt vmcnt(7)\ns_barrier")
        if p == 0:
            a(f"s_mov_b32 s31, s32\nv_cmp_ne_u32 vcc, {VTAG}, v13\ns_cbranch_vccz L_po_out")
            poll("L_po", SWS, "v5", "v12", "ne", VTAG)
        if p == 2:
            decode(None); sample()
        for n in range(7):
            if n % 4 == 0: a(f"s_add_u32 m0, s33, {p*7168 + n*1024}\ns_add_u32 s35, s31, {p*7168 + n*1024}")
            a(f"buffer_load_dwordx4 v14, {S(SO)}, s35 offen offset:{(n&3)*1024} {SC} lds")
    a(f"s_xor_b32 s33, s33, 28672\ns_add_u32 {sIT}, {sIT}, 1\ns_cmp_lt_u32 {sIT}, s101\ns_cbranch_scc1 L_ool")
    a("s_waitcnt vmcnt(7)\ns_barrier\ns_waitcnt vmcnt(0)\ns_barrier\ns_barrier\ns_branch L_end")
    a(f"""
    L_ol3:
    v_add_u32 v7, 28672, v14
    s_mul_i32 s33, {sCQ}, 57344
    s_lshl_b32 s35, s2, 7
    s_add_u32 s35, s35, {FLAGS}
    v_mov_b32 v6, s35
    v_mov_b32 v4, 0
    s_waitcnt lgkmcnt(0)
    s_barrier
    """)
    for i in range(28): a(f"ds_read_b128 {vr(16+4*i,4)}, v7 offset:{i*1024}")
    a(f"v_cmp_eq_u32 vcc, 0, {VTAG}\ns_cbranch_vccz L_pt3_out")
    poll("L_pt3", SDBG, "v4", VTAG, "eq", "0")
    def flag(word): a(f"s_mov_b64 exec, 1\nbuffer_store_dword {VTAG}, v6, {S(SWS)}, 0 offen offset:{4*word} {SC}\ns_mov_b64 exec, -1")
    nst, young = 0, 0
    fb = st0 + -(-28 // sper) + 3
    assert fa < 4 and fb < 14
    for u in range(28):
        if u == fa: a(f"s_waitcnt vmcnt({nst + young})")
        a("s_barrier")
        if 5 <= u <= 11: stamp(u - 4, "o2")
        if u == fa: flag(0); young += nst == 28
        if u == st0: a("s_waitcnt lgkmcnt(0)")
        while u >= st0 and nst < min(28, (u - st0 + 1) * sper):
            if nst % 4 == 0: a(f"s_add_u32 s34, s33, {nst*1024}")
            a(f"buffer_store_dwordx4 {vr(16+4*nst,4)}, v7, {S(SO)}, s34 offen offset:{(nst&3)*1024} {SC}")
            nst += 1; young = 0
        if u == fb: a(f"s_waitcnt vmcnt({young})"); flag(1)
        for b in range(1, 9):
            if ts[b - 1] == u and (b < 8 or cfg.uneven):
                lab = a.label("lt")
                if cfg.uneven and b >= 7: a(f"s_bitcmp1_b32 {sHG}, 0\ns_cbranch_scc1 {lab}")
                wo_rows(b, "s6")
                a(f"buffer_load_dword {VD}, v3, {S(SWO)}, s6 offen\n{lab}:")
                if not (cfg.uneven and b >= 7): young += 1
    if cfg.uneven: a(f"s_bitcmp1_b32 {sHG}, 0\ns_cbranch_scc1 L_ol3e\n" + "s_barrier\n" * 8 + "L_ol3e:")
    else: a("s_barrier\n" * 4)
    if cfg.sgrp == "o2": stamp_store(3, 0)
    a("s_branch L_end")

    a(f"""
    L_omm:
    v_lshlrev_b32 v14, 4, v0
    """)
    def oreads(u):
        fb = FB + 44 * (u & 1)
        r = [f"ds_read_b64_tr_b16 {vr(fb+4*t+2*j,2)}, v{240+t} offset:{(u%4)*16384 + j*8192}" for t in range(4) for j in range(2)]
        xs = [f"ds_read_b128 {vr(fb+16+4*qt,4)}, v14 offset:{(u%8)*7168 + qt*1024}" for qt in range(7)]
        return r[:2] + xs[:1] + r[2:] + xs[1:]
    nblocks()
    a("v_mov_b32 v4, 0\ns_waitcnt vmcnt(4) lgkmcnt(0)\ns_barrier")
    stamp(5)
    if cfg.sgrp == "L_o": stamp(0)
    for r in oreads(0): a(r)
    a(f"""
    s_lshl_b32 s30, {sBR}, 3
    s_add_u32 s30, s30, {sB}
    s_lshl_b32 s30, s30, 2
    s_add_u32 s30, s30, {sCQ}
    s_mul_i32 s30, s30, {12*16384}
    s_lshl_b32 s35, {sWI}, 12
    s_add_u32 s30, s30, s35
    s_add_u32 s30, s30, {RED}
    s_mul_i32 s35, {sB}, 458752
    s_lshl_b32 s34, {sBR}, 11
    s_add_u32 s35, s35, s34
    s_lshl_b32 s34, {sCQ}, 9
    s_add_u32 s35, s35, s34
    s_lshl_b32 s34, {sHG}, 7
    s_add_u32 s35, s35, s34
    s_sub_u32 s34, 3670016, s35
    """)
    srd_off(a, SOUT, "s24", "s25", "s35", "s34")
    for tau in range(1, 4):
        a(f"s_add_u32 s35, {sHG}, {tau}\ns_and_b32 s35, s35, 3\ns_mul_i32 s35, s35, {3*16384}\ns_add_u32 s35, s35, s30\ns_add_u32 s{4+tau}, s35, {(tau-1)*16384}")
    a(f"""
    s_mul_i32 s35, {sHG}, {3*16384}
    s_add_u32 s8, s30, s35
    s_add_u32 s9, s8, 16384
    s_add_u32 s10, s8, 32768
    v_and_b32 v7, 15, v0
    v_lshlrev_b32 v7, 12, v7
    v_lshrrev_b32 v9, 4, v0
    v_lshl_add_u32 v7, v9, 3, v7
    s_lshl_b32 s35, {sWI}, 5
    v_add_u32 v7, s35, v7
    s_lshl_b32 s35, s2, 7
    s_lshl_b32 s34, {sWI}, 2
    s_add_u32 s34, s34, {FLAGS + 16}
    s_add_u32 s35, s35, s34
    v_mov_b32 v5, s35
    v_min_u32 v6, 2, v0
    v_sub_u32 v6, {sHG}, v6
    v_add_u32 v6, -1, v6
    v_and_b32 v6, 3, v6
    s_andn2_b32 s35, s2, 3
    v_or_b32 v6, s35, v6
    v_lshlrev_b32 v6, 7, v6
    v_add_u32 v6, s34, v6
    v_lshlrev_b32 v15, 3, v0
    s_mov_b32 s12, 0x3f80
    s_mov_b32 s13, 0x3f800000
    """)
    RB = FB
    def box_loads(s_):
        return ([f"buffer_load_dwordx4 {vr(RB+16*s_+4*pr,4)}, v14, {S(SWS)}, s{8+s_} offen offset:{pr*1024} {SC}" for pr in range(3)]
                + [f"buffer_load_dwordx2 {vr(RB+16*s_+12,2)}, v15, {S(SWS)}, s{8+s_} offen offset:3072 {SC}"])
    sends = []
    for tau in range(1, 4):
        for pr in range(4):
            b = ACC + 4 * (tau * 7 + 2 * pr)
            sends += [f"v_cvt_pk_bf16_f32 v{b+i}, v{b+2*i}, v{b+2*i+1}\nv_cvt_pk_bf16_f32 v{b+i+1}, v{b+2*i+2}, v{b+2*i+3}" for i in range(0, 4 if pr < 3 else 2, 2)]
            sends[-1] += (f"\nbuffer_store_dwordx4 {vr(b,4)}, v14, {S(SWS)}, s{4+tau} offen offset:{pr*1024} {SC}" if pr < 3 else
                          f"\nbuffer_store_dwordx2 {vr(b,2)}, v15, {S(SWS)}, s{4+tau} offen offset:3072 {SC}")
    if cfg.twopass:
        assert not cfg.uneven
        gloop("L_o", 8, 7, oreads, {2: " vmcnt(0)"})
        W0 = 216
        def keep(u, r): return [x.replace(vr(FB+44*(u&1),2) + ",", vr(W0+4*(u&3),2) + ",").replace(vr(FB+44*(u&1)+2,2) + ",", vr(W0+4*(u&3)+2,2) + ",") for x in r]
        def oagain(p, buf): return [f"ds_read_b128 {vr(FB+44*buf+16+4*qt,4)}, v14 offset:{(4+p)*7168 + qt*1024}" for qt in range(7)]
        for p in range(4):
            a("s_waitcnt lgkmcnt(0)\ns_barrier")
            if p == 0:
                for i in range(4): a(f"v_mov_b32 v{W0+i}, v{FB+i}")
            rd = keep(5 + p, oreads(5 + p)) if p < 3 else oagain(0, 0)
            weave(a, [m for n, m in enumerate(gmf(p)) if n % 4], rd)
        stamp(6)
        for p in range(4):
            fb = FB + 44 * (p & 1)
            a("s_waitcnt lgkmcnt(0)")
            rd = oagain(p + 1, (p + 1) & 1) if p < 3 else [""] * 7
            mf = [f"v_mfma_f32_16x16x32_bf16 {vr(ACC+4*qt,4)}, {vr(W0+4*p,4)}, {vr(fb+16+4*qt,4)}, {vr(ACC+4*qt,4)}" for qt in range(7)]
            for n, m in enumerate(mf):
                a(m); a(rd[n])
                if sends and (p or n >= 2): a(sends.pop(0))
        for x in sends: a(x)
    else:
        gloop("L_o", 8, "s101", oreads, {2: " vmcnt(0)"})
        stamp(6)
        for x in sends: a(x)
    a(f"v_cmp_eq_u32 vcc, 0, {VTAG}\ns_cbranch_vccz L_pt2_out")
    poll("L_pt2", SDBG, "v4", VTAG, "eq", "0")
    a(f"""
    s_waitcnt lgkmcnt(0) vmcnt(0)
    buffer_load_dword v9, v6, {S(SWS)}, 0 offen {SC}
    s_mov_b64 exec, 1
    buffer_store_dword {VTAG}, v5, {S(SWS)}, 0 offen {SC}
    s_mov_b64 exec, -1
    """)
    stamp(1)
    a(f"""
    s_mov_b32 s30, 7
    s_mov_b32 {sU}, 0
    s_waitcnt vmcnt(1)
    L_rx:
    v_cmp_eq_u32 vcc, {VTAG}, v9
    s_add_u32 {sU}, {sU}, 1
    s_nop 0
    s_cmp_ge_u32 {sU}, {cfg.spin}
    s_cselect_b32 s31, 7, vcc_lo
    s_and_b32 s31, s31, s30
    s_andn2_b32 s30, s30, s31
    """)
    for s_ in range(3):
        a(f"s_bitcmp1_b32 s31, {s_}\ns_cbranch_scc0 L_rx_l{s_}")
        for x in box_loads(s_): a(x)
        a(f"L_rx_l{s_}:")
    a(f"""
    s_cmp_eq_u32 s30, 0
    s_cbranch_scc1 L_rx_done
    buffer_load_dword v9, v6, {S(SWS)}, 0 offen {SC}
    s_waitcnt vmcnt(0)
    s_branch L_rx
    L_rx_done:
    s_waitcnt vmcnt(0)
    """)
    for s_ in range(3):
        for qt in range(7):
            for i in range(4):
                a(f"v_dot2_f32_bf16 v{ACC+4*qt+i}, v{RB+16*s_+2*qt+(i>>1)}, s{12+(i&1)}, v{ACC+4*qt+i}")
    stamp(2)
    for qt in range(7):
        b = ACC + 4 * qt
        a(f"v_cvt_pk_bf16_f32 v{b}, v{b}, v{b+1}\nv_cvt_pk_bf16_f32 v{b+1}, v{b+2}, v{b+3}")
        a(f"s_mov_b32 s35, {qt*65536}\nbuffer_store_dwordx2 {vr(b,2)}, v7, {S(SOUT)}, s35 offen {cfg.outpol.replace('+', ' ')}")
    if cfg.stamps: a("s_waitcnt vmcnt(0)")
    stamp(7)
    stamp_store(4, 256)
    a("L_end:\ns_endpgm")
    for stub, back, par, NQ in stubs:
        a(f"{stub}:\ns_call_b64 s[98:99], L_rare{par}{NQ}\ns_branch {back}")
    for NQ in (2, 1):
        for par in range(2):
            a(f"L_rare{par}{NQ}:")
            for qi in range(NQ):
                sb = SS + 16 * par + 8 * qi
                for x in tree(MX, T0, sb, 8): a(x)
                across("v_max_f32", MX, T0)
                a(f"v_max_f32 v{MX}, 0, v{MX}\nv_exp_f32 v{T0}, -v{MX}")
                for i in range(8): a(f"v_sub_f32 v{sb+i}, v{sb+i}, v{MX}")
                for i in range(4): a(f"v_sub_f32 v{NM+4*qi+i}, v{NM+4*qi+i}, v{MX}")
                a(f"v_mul_f32 v{L_+qi}, v{L_+qi}, v{T0}")
                for i in range(32): a(f"v_mul_f32 v{OA+32*qi+i}, v{OA+32*qi+i}, v{T0}")
            a("s_setpc_b64 s[98:99]")
    return a.text().replace(" KVPOL", " " + cfg.kvpol if cfg.kvpol else "")

def build(cfg):
    K = NAME + "_kernel"
    body = kernel_head(K) + kernel(cfg) + kernel_desc(K, 248, 248)
    tgt = '.amdgcn_target "amdgcn-amd-amdhsa--gfx950"\n'
    if cfg.echo:
        from gen2 import echo_kernel
        hdr = f"; @launch kernel={K} grid=(256,1,1) block=(512,1,1) lds=163840\n; @launch kernel=echo_kernel grid=(1,1,1) block=(64,1,1) lds=0\n"
        return hdr + tgt + kernel_head("echo_kernel") + echo_kernel(cfg) + kernel_desc("echo_kernel", 8, 8) + body
    return "; @launch grid=(256,1,1) block=(512,1,1) lds=163840\n" + tgt + body

if __name__ == "__main__":
    cfg = Cfg()
    for kv in sys.argv[2:]:
        k, v = kv.split("=")
        assert hasattr(cfg, k), k
        setattr(cfg, k, {"True": True, "False": False}.get(v, v))
    open(sys.argv[1], "w").write(build(cfg))
```

```python
import sys, math, struct, re
from asmlib import *

class Cfg:
    stamps = False
    sgrp = "main"
    kvpol = "nt"
    qord = "rot"
    kv0 = 4
    kvper = 1
    await_ = 8
    early = False
    tsched = "113,113,114,114,115,115,115,12"
    fa = 2
    st0 = 5
    sper = 7
    mix = False
    uneven = False
    outpol = ""
    aeven = 4
    brlow = True
    tbit = 2
    tpol = 1
    tn = 5
    peelq = False
    twopass = False
    snake = True
    prio = 1
    lv = "4,4"
    echo = ""
    abl = ""
    spin = 400000

WQ0 = 28672
KT, HSTEP, SLOTB = 8448, 17152, 34304
SA_, SB_, SC_, SD_ = 94208, 128512, 0, 34304
HO, WO0 = 36864, 94208
RED, FLAGS, TAG = 16 << 20, 48 << 20, (48 << 20) + 65536
SX, SW, SK, SV, SO, SWO, SWS = 36, 40, 44, 48, 52, 56, 60
SOUT, SDBG = SX, SW
sBR, sHG, sCQ, sB, sWI, sIT, sA, sBb, sT, sU, sH0, sROT = ("s%d" % i for i in range(80, 92))
SC = "sc1"
VTAG, VD = "v236", "v237"
ACC, FB = 16, 128
def S(d): return f"s[{d}:{d+3}]"

def srd_off(a, d, lo, hi, off_reg, nbytes):
    a(f"s_add_u32 s{d}, {lo}, {off_reg}\ns_addc_u32 s{d+1}, {hi}, 0\ns_and_b32 s{d+1}, s{d+1}, 0xffff")
    a(f"s_mov_b32 s{d+2}, {nbytes}\ns_mov_b32 s{d+3}, 0x00020000")

def weave(a, mf, fill):
    fill = list(fill)
    for m in mf:
        a(m)
        if fill: a(fill.pop(0))
    for f in fill: a(f)

def kernel(cfg):
    a = A()
    HD = 262144 if cfg.mix else 131072
    def stamp(i, grp="main"):
        if cfg.stamps and (grp == cfg.sgrp or i == 0): a(f"s_memrealtime s[{64+2*i}:{65+2*i}]")
    def stamp_store(wave, wgoff):
        if not cfg.stamps: return
        a(f"s_cmp_lg_u32 s3, {wave}\ns_cbranch_scc1 L_end")
        a(f"s_waitcnt lgkmcnt(0)\ns_add_u32 s3, s2, {wgoff}\ns_lshl_b32 s3, s3, 7\ns_add_u32 s3, s3, {STAMP_OFF}\nv_mov_b32 v1, s3")
        for q in range(4):
            for j in range(4): a(f"v_mov_b32 v{4+j}, s{64+4*q+j}")
            a(f"buffer_store_dwordx4 v[4:7], v1, {S(SWS)}, 0 offen offset:{16*q}\ns_nop 2")
        a("s_waitcnt vmcnt(0)")
    def poll(lab, srdn, vaddr, vtmp, cmp, want):
        a(f"""
        s_mov_b32 {sU}, 0
        {lab}:
        buffer_load_dword {vtmp}, {vaddr}, {S(srdn)}, 0 offen {SC}
        s_add_u32 {sU}, {sU}, 1
        s_waitcnt vmcnt(0)
        v_cmp_{cmp}_u32 vcc, {want}, {vtmp}
        s_cmp_ge_u32 {sU}, {cfg.spin}
        s_cbranch_scc1 {lab}_out
        s_cbranch_vccnz {lab}
        {lab}_out:
        """)
    def select(pairs):
        a("s_bitcmp0_b32 s2, 2")
        for p in pairs: a(f"s_cselect_b64 s[{p}:{p+1}], s[{p}:{p+1}], s[{p+10}:{p+11}]")
    def other_srds():
        select((6, 8, 12))
        a(f"s_lshl_b32 s35, {sB}, 22\ns_lshl_b32 s34, {sH0}, 17\ns_add_u32 s35, s35, s34")
        srd_off(a, SK, "s6", "s7", "s35", HD + 131072)
        srd_off(a, SV, "s8", "s9", "s35", HD + 131072)
        a(f"s_lshl_b32 s35, {sBR}, 3\ns_add_u32 s35, s35, {sB}\ns_lshl_b32 s35, s35, 2\ns_add_u32 s35, s35, {sHG}\ns_mul_i32 s35, s35, 229376")
        srd_off(a, SO, "s28", "s29", "s35", 2 * 229376)
        a(f"s_lshl_b32 s35, {sHG}, 21\ns_lshl_b32 s34, {sCQ}, 9\ns_add_u32 s35, s35, s34\ns_sub_u32 s34, 0x800000, s35")
        srd_off(a, SWO, "s12", "s13", "s35", "s34")
        srd(a, SWS, "s28", "s29", 0x10000000)
        a(f"s_lshr_b32 {sROT}, s2, 3\ns_lshr_b32 s35, s2, 7\ns_add_u32 {sROT}, {sROT}, s35\ns_lshl_b32 s35, s2, 1\n"
          f"s_add_u32 {sROT}, {sROT}, s35\ns_and_b32 {sROT}, {sROT}, 15\ns_lshl_b32 {sROT}, {sROT}, 13")

    a("s_cmp_ge_u32 s2, 256\ns_cbranch_scc1 L_end")
    stamp(0)
    if cfg.brlow: a("s_bfe_u32 s3, s2, 0x20001\ns_and_b32 s30, s2, 1\ns_lshl_b32 s30, s30, 2\ns_or_b32 s3, s3, s30\ns_andn2_b32 s2, s2, 7\ns_or_b32 s2, s2, s3")
    a(f"""
    s_load_dwordx16 s[4:19], s[0:1], 0
    s_load_dwordx8 s[20:27], s[0:1], 64
    s_load_dwordx2 s[28:29], s[0:1], 96
    v_lshrrev_b32 v1, 6, v0
    v_and_b32 v0, 63, v0
    v_readfirstlane_b32 s3, v1
    s_bfe_u32 {sBR}, s2, 0x10002
    s_and_b32 {sHG}, s2, 3
    s_bfe_u32 {sCQ}, s2, 0x20003
    s_lshr_b32 {sB}, s2, 5
    s_lshl_b32 {sH0}, {sHG}, 3
    """)
    if cfg.mix: a(f"s_lshl_b32 s35, {sCQ}, 1\ns_and_b32 s35, s35, 4\ns_add_u32 {sH0}, {sH0}, s35\ns_and_b32 s35, {sCQ}, 1\ns_add_u32 {sH0}, {sH0}, s35")
    else: a(f"s_lshl_b32 s35, {sCQ}, 1\ns_add_u32 {sH0}, {sH0}, s35")
    a(f"s_and_b32 {sWI}, s3, 3\ns_cmp_lt_u32 s3, 4\ns_cbranch_scc1 L_qmm")

    a(f"""
    v_lshrrev_b32 v4, 5, v0
    v_and_b32 v5, 31, v0
    s_and_b32 s35, {sWI}, 1
    s_lshr_b32 s34, {sWI}, 1
    s_lshl_b32 {sA}, s35, 1
    s_lshl_b32 {sBb}, s34, 2
    s_add_u32 {sT}, {sA}, {sBb}
    v_add_u32 v6, {sT}, v4
    v_lshlrev_b32 v6, 1, v6
    v_xor_b32 v5, v5, v6
    s_lshl_b32 {sBb}, s34, 3
    s_add_u32 {sA}, {sA}, {sBb}
    v_add_u32 v4, {sA}, v4
    v_lshlrev_b32 v4, 13, v4
    v_lshl_add_u32 v10, v5, 4, v4
    """)
    if cfg.mix: a("v_and_b32 v5, 16, v5\nv_lshl_add_u32 v10, v5, 4, v10")
    a(f"""
    s_lshl_b32 {sA}, {sA}, 9
    s_add_u32 {sA}, {sA}, {WQ0}
    v_lshrrev_b32 v4, 3, v0
    v_and_b32 v5, 7, v0
    v_lshrrev_b32 v6, 1, v4
    s_lshl_b32 {sBb}, s35, 2
    v_add_u32 v6, {sBb}, v6
    v_xor_b32 v5, v5, v6
    s_lshl_b32 {sBb}, {sWI}, 3
    v_add_u32 v4, {sBb}, v4
    v_lshlrev_b32 v4, 11, v4
    v_lshl_add_u32 v11, v5, 4, v4
    s_lshl_b32 {sBb}, {sWI}, 10
    s_xor_b32 s35, {sB}, {sCQ}
    s_and_b32 s35, s35, 1
    """)
    alt = cfg.qord == "alt2"
    if alt:
        for g in range(2):
            o = [g] + [(t + 1 + g if t & 1 else t - 1 - g) for t in range(1, 15)] + [15 - g]
            v = sum(st << (4 * t) for t, st in enumerate(o))
            a(f"s_cmp_eq_u32 s35, {g}\ns_cselect_b32 s98, {v & 0xffffffff:#x}, s98\ns_cselect_b32 s99, {v >> 32:#x}, s99")
        a("s_mov_b64 s[92:93], s[98:99]\ns_lshl_b32 s30, s35, 19\ns_lshl_b32 s31, s35, 7")
    elif cfg.qord == "rot": a("s_lshl_b32 s30, s35, 22\ns_lshl_b32 s31, s35, 10")
    else: a("s_mov_b32 s30, 0\ns_mov_b32 s31, 0")
    a(f"s_mul_i32 s33, {sB}, 229376\ns_lshl_b32 s32, {sH0}, 8\ns_sub_u32 s34, 0x800000, s32\ns_waitcnt lgkmcnt(0)")
    select((4, 10))
    srd_off(a, SX, "s4", "s5", "s33", 229376)
    srd_off(a, SW, "s10", "s11", "s32", "s34")
    def issue_wq(slot):
        for pc in (0, 2, 8, 10):
            a(f"s_add_u32 m0, {sA}, {slot*16384 + pc*1024}\ns_add_u32 s35, s30, {pc*16384}\nbuffer_load_dwordx4 v10, {S(SW)}, s35 offen lds")
        if alt and (slot & 1): a("s_lshr_b64 s[98:99], s[98:99], 4\ns_and_b32 s30, s98, 15\ns_lshl_b32 s30, s30, 19")
        else: a("s_add_u32 s30, s30, 0x40000\ns_and_b32 s30, s30, 0x7fffff")
    def issue_x(slot):
        lab = a.label("xs")
        for n in range(4):
            if n == 3: a(f"s_cmp_ge_u32 {sWI}, 2\ns_cbranch_scc1 {lab}")
            a(f"s_add_u32 m0, {sBb}, {slot*14336 + n*4096}\ns_add_u32 s35, s31, {n*65536}\nbuffer_load_dwordx4 v11, {S(SX)}, s35 offen lds")
        if alt: a(f"{lab}:\ns_lshr_b64 s[92:93], s[92:93], 4\ns_and_b32 s31, s92, 15\ns_lshl_b32 s31, s31, 7")
        else: a(f"{lab}:\ns_add_u32 s31, s31, 128\ns_and_b32 s31, s31, 2047")
    def kv_piece(tile, hd, n, isv, slot):
        a(f"s_add_u32 s35, {sROT}, {tile*8192}\ns_and_b32 s35, s35, 0x1ffff\ns_add_u32 s35, s35, s32")
        a(f"s_add_u32 m0, s96, {slot + hd*HSTEP + isv*KT + n*4224}\ns_add_u32 s35, s35, {hd*HD + n*1024}")
        a(f"buffer_load_dwordx4 v2, {S(SV if isv else SK)}, s35 offen KVPOL lds")
    kv_src = "v_lshrrev_b32 v4, 4, v0\nv_and_b32 v5, 15, v0\nv_lshlrev_b32 v4, 11, v4\nv_lshl_add_u32 v2, v5, 4, v4"
    stamp(1, "s")
    issue_x(0); issue_wq(0); issue_wq(1)
    stamp(2, "s")
    other_srds()
    a(kv_src)
    a(f"s_mul_i32 s96, {sWI}, 1056\ns_lshl_b32 s32, {sWI}, 8\ns_waitcnt vmcnt(4)\ns_barrier")
    issue_x(1); issue_wq(2)
    a("s_waitcnt vmcnt(7)\ns_barrier")
    issue_wq(3); issue_wq(0)
    kv0 = int(cfg.kv0)
    kvl = [(tile, hd, n, isv) for tile in range(2) for isv in range(2) for hd in range(2) for n in range(2)]
    a(f"s_mov_b32 {sIT}, 0\ns_branch L_qlmid\nL_qlloop:")
    for u in range(4):
        a(f"s_waitcnt vmcnt({8 if u & 1 else 11})\ns_barrier")
        if u & 1: issue_x((u >> 1) & 1)
        issue_wq(u)
        if u == 0: a("L_qlmid:")
    a(f"s_add_u32 {sIT}, {sIT}, 1\ns_cmp_lt_u32 {sIT}, {kv0}\ns_cbranch_scc1 L_qlloop")
    q = []
    for u in range(4 * kv0 - 4, 4 * kv0):
        if u & 1: q.append(("x", (u >> 1) + 2, 3))
        q.append(("w", u + 4, 4))
    for u in range(4 * kv0, 32):
        need = [i for i, e in enumerate(q) if (e[0] == "w" and e[1] <= u + 1) or (e[0] == "x" and e[1] <= (u + 1) >> 1)]
        if need:
            a(f"s_waitcnt vmcnt({sum(e[2] for e in q[max(need) + 1:])})")
            q = q[max(need) + 1:]
        a("s_barrier")
        if (u & 1) and (u >> 1) + 2 < 16: issue_x((u >> 1) & 1); q.append(("x", (u >> 1) + 2, 3))
        if u + 4 < 32: issue_wq(u % 4); q.append(("w", u + 4, 4))
        for _ in range(int(cfg.kvper)):
            if kvl:
                tile, hd, n, isv = kvl.pop(0)
                kv_piece(tile, hd, n, isv, (SA_, SB_)[tile]); q.append(("k", 0, 1))
    if not cfg.peelq: a("s_barrier")
    for tile, hd, n, isv in kvl: kv_piece(tile, hd, n, isv, (SA_, SB_)[tile])
    for isv in range(2):
        for hd in range(2):
            for n in range(2): kv_piece(2, hd, n, isv, SC_)
    a("s_waitcnt vmcnt(20)\ns_branch L_join")

    def gmf(u, zero=False):
        fb = FB + 44 * (u & 1)
        return [f"v_mfma_f32_16x16x32_bf16 {vr(ACC+4*(t*7+qt),4)}, {vr(fb+4*t,4)}, {vr(fb+16+4*qt,4)}, {'0' if zero else vr(ACC+4*(t*7+qt),4)}"
                for qt in range(7) for t in (range(3, -1, -1) if cfg.snake and qt & 1 else range(4))]
    def gloop(name, period, blocks, reads, pre, cut=None):
        if int(cfg.prio): a(f"s_setprio {cfg.prio}")
        a("s_waitcnt lgkmcnt(0)\ns_barrier")
        weave(a, gmf(0, True), reads(1))
        a(f"s_mov_b32 {sIT}, 0\ns_branch {name}_mid\n{name}:")
        for u in range(period):
            a(f"s_waitcnt lgkmcnt(0){pre.get(u, '')}\ns_barrier")
            ex = [f"s_cmp_eq_u32 {sIT}, {cut}"] if cut is not None and u == 2 else []
            weave(a, gmf(u), reads(u + 1) + ex)
            if ex: a(f"s_cbranch_scc1 {name}_out")
            if u == 0: a(f"{name}_mid:")
            if u % 4 == 3:
                if cfg.stamps and cfg.sgrp == name:
                    for i in range(u // 4, 7, period // 4):
                        lab = a.label("st")
                        a(f"s_cmp_lg_u32 {sIT}, {i}\ns_cbranch_scc1 {lab}")
                        stamp(1 + i, name)
                        a(f"{lab}:")
                a(f"s_add_u32 {sIT}, {sIT}, 1\ns_cmp_lt_u32 {sIT}, {blocks}")
                a(f"s_cbranch_scc1 {name}" if u == period - 1 else f"s_cbranch_scc0 {name}_out")
        a(f"{name}_out:")
        if int(cfg.prio): a("s_setprio 0")
    cbits = struct.unpack("<I", struct.pack("<f", (128 ** -0.5) * math.log2(math.e)))[0]
    a(f"""
    L_qmm:
    v_lshrrev_b32 v4, 4, v0         ; g4
    v_bfe_u32 v5, v0, 2, 2          ; r
    v_and_b32 v6, 3, v0             ; c
    v_lshl_add_u32 v7, v4, 3, v5
    v_lshlrev_b32 v7, 9, v7
    v_lshrrev_b32 v9, 1, v6
    v_lshl_add_u32 v7, v9, 4, v7
    v_and_b32 v9, 1, v6
    v_lshl_add_u32 v7, v9, 3, v7
    s_lshr_b32 s35, {sWI}, 1
    s_lshl_b32 s35, s35, 8
    s_add_u32 s35, s35, {WQ0}
    v_add_u32 v7, s35, v7
    v_and_b32 v9, 1, v4
    v_lshl_or_b32 v9, v9, 2, v5
    s_and_b32 s35, {sWI}, 1
    s_lshl_b32 s35, s35, 2
    v_xor_b32 v9, s35, v9
    """)
    for t in range(4): a(f"v_xor_b32 v1, {t}, v9\nv_lshl_add_u32 v{10+t}, v1, 5, v7")
    a(f"""
    v_and_b32 v5, 15, v0
    v_lshrrev_b32 v6, 1, v5
    v_xor_b32 v6, v6, v4
    v_lshlrev_b32 v7, 7, v5
    v_lshl_add_u32 v14, v6, 4, v7
    v_xor_b32 v15, 64, v14
    v_lshlrev_b32 v5, 4, v5
    v_lshrrev_b32 v6, 5, v0
    v_lshl_add_u32 v5, v6, 8, v5
    v_bfe_u32 v6, v0, 4, 1
    v_lshl_add_u32 v5, v6, 3, v5
    s_lshr_b32 s34, {sWI}, 1
    s_mul_i32 s34, s34, 28672
    s_and_b32 s35, {sWI}, 1
    s_lshl_b32 s35, s35, 11
    s_add_u32 s34, s34, s35
    s_add_u32 s34, s34, {HO}
    v_add_u32 v8, s34, v5
    s_mov_b32 s30, {cbits:#x}
    s_mov_b32 s31, {cbits:#x}
    """)
    a(kv_src)
    a("s_waitcnt lgkmcnt(0)")
    other_srds()
    a(f"""
    s_or_b32 s35, s2, s3
    s_cbranch_scc1 L_notag
    s_mov_b32 s{SX}, s26
    s_and_b32 s{SX+1}, s27, 0xffff
    s_mov_b32 s{SX+2}, 256
    s_mov_b32 s{SX+3}, 0x00020000
    v_mov_b32 v4, {TAG}
    v_mov_b32 v7, 0
    s_mov_b32 s34, 1664525
    s_mov_b32 s35, 1013904223
    buffer_load_dword v5, v4, {S(SWS)}, 0 offen {SC}
    s_waitcnt vmcnt(0)
    v_mul_lo_u32 v5, v5, s34
    v_add_u32 v5, s35, v5
    v_mov_b32 v6, s35
    v_cmp_eq_u32 vcc, 0, v5
    s_nop 1
    v_cndmask_b32 v5, v5, v6, vcc
    s_mov_b64 exec, 1
    buffer_store_dword v5, v7, {S(SX)}, 0 offen {SC}
    buffer_store_dword v5, v4, {S(SWS)}, 0 offen {SC}
    s_mov_b64 exec, -1
    L_notag:
    s_barrier
    """)
    def qreads(u):
        fb = FB + 44 * (u & 1)
        r = [f"ds_read_b64_tr_b16 {vr(fb+4*t+2*j,2)}, v{10+t} offset:{(u%4)*16384 + j*2048}" for t in range(4) for j in range(2)]
        xs = [f"ds_read_b128 {vr(fb+16+4*qt,4)}, v{14+(u&1)} offset:{((u>>1)&1)*14336 + qt*2048}" for qt in range(7)]
        return r[:2] + xs[:1] + r[2:] + xs[1:]
    stamp(1); stamp(1, "s")
    for r in qreads(0): a(r)
    def pack(qt, t):
        acc = ACC + 4 * (t * 7 + qt)
        return (f"v_pk_mul_f32 {vr(acc,2)}, {vr(acc,2)}, s[30:31]\nv_pk_mul_f32 {vr(acc+2,2)}, {vr(acc+2,2)}, s[30:31]\n"
                f"v_cvt_pk_bf16_f32 v{acc}, v{acc}, v{acc+1}\nv_cvt_pk_bf16_f32 v{acc+1}, v{acc+2}, v{acc+3}\n"
                f"ds_write_b64 v8, {vr(acc,2)} offset:{qt*4096 + t*512}")
    packs = [pack(qt, t) for qt in range(7) for t in range(4)]
    if cfg.peelq:
        assert not cfg.snake
        gloop("L_q", 4, 8, qreads, {}, cut=7)
        a("s_waitcnt lgkmcnt(0)\ns_barrier")
        stamp(2)
        weave(a, gmf(3), [""] * 8 + packs[:19] + ["s_nop 1"] + packs[19:])
    else:
        gloop("L_q", 4, 8, qreads, {})
        stamp(2)
        a("s_waitcnt lgkmcnt(0)\ns_barrier")
        for x in packs: a(x)

    QF, OA, SS, NM, KF, VF, PP = 16, 48, 112, 144, 160, 192, 224
    L_, MX, T0 = 232, 234, 235
    a(f"""
    L_join:
    s_lshr_b32 s34, s3, 2
    s_mul_i32 s35, s34, {HD}
    s_add_u32 s{SK}, s{SK}, s35
    s_addc_u32 s{SK+1}, s{SK+1}, 0
    s_mov_b32 s{SK+2}, 131072
    s_add_u32 s{SV}, s{SV}, s35
    s_addc_u32 s{SV+1}, s{SV+1}, 0
    s_mov_b32 s{SV+2}, 131072
    s_mul_i32 s30, s34, {HSTEP}
    s_mul_i32 {sA}, {sWI}, 1056
    s_add_u32 {sA}, {sA}, s30
    s_add_u32 {sBb}, {sA}, {KT}
    v_lshlrev_b32 v5, 4, v0
    s_mul_i32 s35, s34, 28672
    s_lshl_b32 {sT}, {sWI}, 13
    s_add_u32 {sT}, {sT}, s35
    s_add_u32 {sT}, {sT}, {HO}
    v_add_u32 v9, {sT}, v5
    s_lshl_b32 {sT}, {sWI}, 11
    s_add_u32 s35, s35, {sT}
    v_add_u32 v14, s35, v5
    v_and_b32 v7, 7, v0
    v_mul_u32_u24 v7, 1056, v7
    v_bfe_u32 v1, v0, 3, 1
    v_lshl_add_u32 v7, v1, 8, v7
    v_lshrrev_b32 v1, 4, v0
    v_lshl_add_u32 v7, v1, 4, v7
    v_add_u32 v10, s30, v7
    v_bfe_u32 v7, v0, 2, 3
    v_mul_u32_u24 v7, 1056, v7
    v_lshrrev_b32 v1, 5, v0
    v_lshl_add_u32 v7, v1, 8, v7
    v_and_b32 v1, 3, v0
    v_lshl_add_u32 v7, v1, 3, v7
    s_add_u32 s35, s30, {KT}
    v_add_u32 v12, s35, v7
    v_add_u32 v11, {SA_}, v10
    s_lshl_b32 s35, {sWI}, 8
    s_add_u32 s31, {sROT}, s35
    s_add_u32 s31, s31, {3*8192}
    s_and_b32 s31, s31, 0x1ffff
    s_mov_b32 s96, {SA_}
    s_mov_b32 s97, {SD_}
    s_mov_b32 s100, 0x41000000
    s_and_b32 s94, {sCQ}, 1
    s_add_u32 s94, s94, 1
    s_sub_u32 s94, s94, {sBR}
    v_lshrrev_b32 v4, 5, v0
    s_lshl_b32 s35, {sWI}, 1
    v_add_u32 v4, s35, v4
    v_and_b32 v5, 31, v0
    v_lshlrev_b32 v6, 1, v4
    v_xor_b32 v5, v5, v6
    v_lshlrev_b32 v4, 11, v4
    v_lshl_add_u32 v15, v5, 4, v4
    v_lshrrev_b32 v4, 4, v0
    v_lshlrev_b32 v4, 5, v4
    v_bfe_u32 v5, v0, 2, 2
    v_add_u32 v4, v4, v5
    s_lshl_b32 s35, {sB}, 2
    v_add_u32 v4, s35, v4
    v_lshlrev_b32 v4, 11, v4
    v_and_b32 v5, 3, v0
    v_lshl_add_u32 v3, v5, 7, v4
    v_mov_b32 v4, 0
    """)
    a(f"""
    v_lshrrev_b32 v7, 2, v0
    v_lshlrev_b32 v7, 9, v7
    v_and_b32 v6, 3, v0
    v_lshl_add_u32 v7, v6, 3, v7
    v_add_u32 v7, {WO0}, v7
    v_bfe_u32 v6, v0, 2, 3
    v_xor_b32 v6, {sWI}, v6
    """)
    for tau in range(4):
        a(f"""
        s_add_u32 s35, {sHG}, {tau}
        s_and_b32 s34, s35, 1
        s_lshl_b32 s34, s34, 2
        s_bfe_u32 s35, s35, 0x10001
        s_lshl_b32 s35, s35, 8
        v_xor_b32 v1, s34, v6
        v_lshl_add_u32 v1, v1, 5, v7
        v_add_u32 v{240+tau}, s35, v1
        """)
    srd(a, SDBG, "s26", "s27", 256)
    a(f"s_cmp_eq_u32 {sWI}, 3\ns_waitcnt lgkmcnt(0)\ns_cbranch_scc1 L_attn1")
    ts = [int(x) for x in cfg.tsched.split(",")]
    stubs = []
    def blk(b): return (0, b, 0) if b < 2 else ((b - 1, 0, 0) if b < 5 else ((b - 4, 1, 0) if b < 8 else (3, 1, 1)))
    def producer(b, reg): a(f"s_add_u32 {reg}, {sCQ}, {blk(b)[0]}\ns_and_b32 {reg}, {reg}, 3")
    def wo_rows(b, reg):
        d, h, g = blk(b)
        producer(b, reg)
        if cfg.mix: a(f"s_lshl_b32 s35, {reg}, 1\ns_and_b32 s35, s35, 4\ns_and_b32 {reg}, {reg}, 1\ns_add_u32 {reg}, {reg}, s35\ns_add_u32 {reg}, {reg}, {2*h + 8*g}")
        else: a(f"s_lshl_b32 {reg}, {reg}, 1\ns_add_u32 {reg}, {reg}, {h + 8*g}")
        a(f"s_lshl_b32 {reg}, {reg}, 18")
    def touch_block(b, wave):
        lab = a.label("wt"); t = A()
        keep, a.l = a.l, t.l
        a(f"s_cmp_lg_u32 s3, {wave}\ns_cbranch_scc1 {lab}")
        wo_rows(b, "s6")
        a(f"buffer_load_dword {VD}, v3, {S(SWO)}, s6 offen\n{lab}:")
        a.l = keep
        return t.text()
    def kpiece(n, slot, src): return f"s_add_u32 s34, {slot}, {sA}\ns_add_u32 m0, s34, {n*4224}\ns_add_u32 s35, {src}, {n*1024}\nbuffer_load_dwordx4 v2, {S(SK)}, s35 offen KVPOL lds"
    def vpiece(n, slot, src): return f"s_add_u32 s34, {slot}, {sBb}\ns_add_u32 m0, s34, {n*4224}\ns_add_u32 s35, {src}, {n*1024}\nbuffer_load_dwordx4 v2, {S(SV)}, s35 offen KVPOL lds"
    def wo_pieces(mbase, moff, soff, add=0):
        return [f"s_add_u32 m0, {mbase}, {moff + n*4096}\ns_add_u32 s35, {soff}, {add + n*16384}\nbuffer_load_dwordx4 v15, {S(SWO)}, s35 offen lds" for n in range(4)]
    def kreads(): return [f"ds_read_b128 {vr(KF+16*kt+4*s_,4)}, v11 offset:{kt*512 + 64*s_}" for s_ in range(4) for kt in range(2)]
    def tree(dst, tmp, b, n):
        if n == 8: return [f"v_max3_f32 v{dst}, v{b}, v{b+1}, v{b+2}", f"v_max3_f32 v{tmp}, v{b+3}, v{b+4}, v{b+5}",
                           f"v_max3_f32 v{dst}, v{dst}, v{b+6}, v{b+7}", f"v_max_f32 v{dst}, v{dst}, v{tmp}"]
        return ([f"v_max3_f32 v{dst}, v{b}, v{b+1}, v{b+2}", f"v_max3_f32 v{tmp}, v{b+3}, v{b+4}, v{b+5}"]
                + [f"v_max3_f32 v{(dst, tmp)[i&1]}, v{(dst, tmp)[i&1]}, v{b+6+2*i}, v{b+7+2*i}" for i in range(5)]
                + [f"v_max_f32 v{dst}, v{dst}, v{tmp}"])
    def across(op, r, tmp):
        for sw in ("16", "32"):
            a(f"s_nop 0\nv_mov_b32 v{tmp}, v{r}\ns_nop 1\nv_permlane{sw}_swap_b32 v{tmp}, v{r}\ns_nop 1\n{op} v{r}, v{r}, v{tmp}")
    def epi(store, NQ):
        for p in range(4):
            for qi in range(NQ):
                b = OA + 32*qi + 8*p
                for i in range(8): a(f"v_mul_f32 v{b+i}, v{b+i}, v{L_+qi}")
                for i in range(4): a(f"v_cvt_pk_bf16_f32 v{b+i}, v{b+2*i}, v{b+2*i+1}")
                a(f"ds_write_b128 v14, {vr(b,4)} offset:{p*7168 + qi*1024}")
                if store: a(f"buffer_store_dwordx4 {vr(b,4)}, v14, {S(SO)}, s34 offen offset:{qi*1024} {SC}")
            if store: a("s_add_u32 s34, s34, 7168")
        if store: a(f"s_waitcnt vmcnt({4 * NQ})")
    def attn(NQ):
        N = 8 * NQ
        def qk(sb, zero=False):
            out = []
            for s_ in range(4):
                for kt in range(2):
                    for n_, qi in enumerate(range(NQ - 1, -1, -1) if cfg.snake and kt else range(NQ)):
                        d = vr(sb + 8*qi + 4*kt, 4)
                        out.append((f"s_waitcnt lgkmcnt(LG{2*s_+kt})\n" if n_ == 0 else "") +
                                   f"v_mfma_f32_16x16x32_bf16 {d}, {vr(KF+16*kt+4*s_,4)}, {vr(QF+16*qi+4*s_,4)}, {('0' if zero else vr(NM+4*qi,4)) if s_ == 0 else d}")
            return out
        def emit_qk(ms, fill):
            nv = 0
            for n, m in enumerate(ms):
                i = n // NQ
                a(m.replace(f"LG{i}", str(min(15, 7 - i + nv))))
                for f in fill[n]:
                    a(f); nv += f.startswith("ds_")
        def spread(items, gaps, lo=0):
            out = [[] for _ in range(gaps)]
            for i, x in enumerate(items): out[lo + i * (gaps - lo) // len(items)].append(x)
            return out
        def merge(*ls): return [sum((l[i] for l in ls), []) for i in range(len(ls[0]))]
        a("s_barrier")
        for qi in range(NQ):
            for s_ in range(4): a(f"ds_read_b128 {vr(QF+16*qi+4*s_,4)}, v9 offset:{qi*4096 + s_*1024}")
        for x in kreads(): a(x)
        a("s_waitcnt lgkmcnt(8)\ns_barrier")
        stamp(3)
        emit_qk(qk(SS, True), [[kpiece(0, "s97", "s31")], [], [kpiece(1, "s97", "s31")]] + [[]] * 16)
        a("s_nop 7")
        for qi in range(NQ):
            for x in tree(MX, T0, SS + 8*qi, 8): a(x)
            across("v_max_f32", MX, T0)
            a(f"v_mov_b32 v{L_+qi}, 0")
            for i in range(8): a(f"v_sub_f32 v{SS+8*qi+i}, v{SS+8*qi+i}, v{MX}")
            for i in range(4): a(f"v_sub_f32 v{NM+4*qi+i}, 0, v{MX}")
        def step(par, wait, dma=None, first=False, last=False, tight=False):
            cur, nxt = SS + 16 * par, SS + 16 * (1 - par)
            if tight and cfg.lv:
                lab = a.label("tw"); w1, w2 = cfg.lv.split(",")
                a(f"s_cmp_eq_u32 s94, 0\ns_cbranch_scc1 {lab}\ns_waitcnt vmcnt({w1})\ns_cmp_eq_u32 s94, 1\ns_cbranch_scc1 {lab}\ns_waitcnt vmcnt({w2})\n{lab}:")
            elif tight and int(cfg.aeven) >= 0:
                lab = a.label("tw")
                a(f"s_bitcmp{cfg.tpol}_b32 s2, {cfg.tbit}\ns_cbranch_scc1 {lab}\ns_cmp_ge_u32 {sIT}, {cfg.tn}\ns_cbranch_scc1 {lab}\ns_waitcnt vmcnt({cfg.aeven})\n{lab}:")
            a(f"""
            s_waitcnt vmcnt({wait})
            s_barrier
            s_add_u32 s98, s96, {SLOTB}
            s_cmp_eq_u32 s96, {SB_}
            s_cselect_b32 s98, 0, s98
            s_cmp_eq_u32 s96, {SD_}
            s_cselect_b32 s98, {SA_}, s98
            v_add_u32 v11, s98, v10
            v_add_u32 v13, s96, v12
            s_add_u32 s30, s31, 8192
            s_and_b32 s30, s30, 0x1ffff
            """)
            vrd = [f"ds_read_b64_tr_b16 {vr(VF+4*t+2*j,2)}, v13 offset:{j*512 + 32*t}" for t in range(8) for j in range(2)]
            ex = [f"v_exp_f32 v{cur+i}, v{cur+i}" for i in range(N)]
            cv = [f"v_cvt_pk_bf16_f32 v{PP+i}, v{cur+2*i}, v{cur+2*i+1}" for i in range(N // 2)]
            ad = [f"v_add_f32 v{L_+(i>>3)}, v{L_+(i>>3)}, v{cur+i}" for i in range(N)]
            if NQ == 2: ad = [ad[(i >> 1) + 8 * (i & 1)] for i in range(16)]
            if dma is None: dma = [kpiece(0, "s96", "s30"), vpiece(0, "s97", "s31"), kpiece(1, "s96", "s30"), vpiece(1, "s97", "s31")]
            dma = list(dma) + [""] * (4 - len(dma))
            pv = [(f"s_waitcnt lgkmcnt({14 - 2*t})\n" if n_ == 0 else "") +
                  f"v_mfma_f32_16x16x32_bf16 {vr(OA+32*qi+4*t,4)}, {vr(VF+4*t,4)}, {vr(PP+4*qi,4)}, {'0' if first else vr(OA+32*qi+4*t,4)}"
                  for t in range(8) for n_, qi in enumerate(range(NQ - 1, -1, -1) if cfg.snake and t & 1 else range(NQ))]
            if not last:
                for x in kreads(): a(x)
                for x in ex[:8]: a(x)
                if NQ == 2: valu = [ex[8], cv[0], ex[9], cv[1], ex[10], cv[2], ex[11], cv[3], ex[12], ex[13], cv[4], ex[14], cv[5], ex[15], cv[6], cv[7]]
                else: valu = cv + ad[:4]
                fill = merge(spread(vrd, N), spread(valu, N))
                if cfg.early:
                    fill = merge(fill, spread(dma, N)); dma = [""] * 4
                emit_qk(qk(nxt), fill)
                a("s_nop 0")
                mt = tree(MX, T0, nxt, N)
                fill = merge(spread(ad if NQ == 2 else ad[4:], N - 1) + [[]], spread(dma, N - 1) + [[]], spread(mt, N - 1, N // 2 - 1) + [[]])
                for n, m in enumerate(pv):
                    a(m)
                    for f in fill[n]: a(f)
                stub, back = a.label("stub"), a.label("back")
                stubs.append((stub, back, 1 - par, NQ))
                a(f"v_cmp_lt_f32 vcc, s100, v{MX}\ns_mov_b32 s97, s96\ns_mov_b32 s96, s98\ns_mov_b32 s31, s30\ns_cbranch_vccnz {stub}\n{back}:")
            else:
                for x in vrd[:8]: a(x)
                for x in ex[:8] + cv[:4]: a(x)
                for x in vrd[8:]: a(x)
                for x in ex[8:] + cv[4:]: a(x)
                a("s_nop 0")
                fill = merge(spread(ad, N), spread(dma, N))
                for n, m in enumerate(pv):
                    a(m)
                    for f in fill[n]: a(f)
        def at(t): return "".join(touch_block(b, b) for b in range(1, 8) if ts[b - 1] == 100 + t)
        aw = int(cfg.await_)
        step(0, min(aw + 6, 14), first=True)
        step(1, min(aw + 2, 10))
        a(f"s_mov_b32 {sIT}, 0\nL_aloop{NQ}:")
        step(0, aw, tight=True); step(1, aw, tight=True)
        a(f"s_add_u32 {sIT}, {sIT}, 1\ns_cmp_lt_u32 {sIT}, 5\ns_cbranch_scc1 L_aloop{NQ}")
        step(0, 8, [vpiece(0, "s97", "s31"), vpiece(1, "s97", "s31"), f"buffer_load_dword {VTAG}, v4, {S(SDBG)}, 0 offen {SC}", at(12)])
        wo_rows(0, "s5")
        a(f"""
        s_lshr_b32 s34, s3, 2
        s_lshl_b32 s35, s34, 16
        s_add_u32 s5, s5, s35
        s_lshl_b32 {sA}, {sWI}, 10
        s_add_u32 {sA}, {sA}, {WO0}
        s_lshl_b32 s35, s34, 14
        s_add_u32 {sBb}, {sA}, s35
        """)
        w = wo_pieces(sBb, 0, "s5"); w[3] += "\n" + at(13)
        step(1, 6, w)
        w = wo_pieces(sBb, 32768, "s5", 0x20000); w[3] += "\n" + at(14)
        step(0, 6, w)
        step(1, 8, [at(15)], last=True)
        stamp(4)
        for qi in range(NQ):
            across("v_add_f32", L_ + qi, T0)
            a(f"v_rcp_f32 v{L_+qi}, v{L_+qi}")
        a(f"s_mul_i32 s34, {sCQ}, 57344\ns_barrier\ns_cmp_ge_u32 s3, 4\ns_cbranch_scc1 L_epx{NQ}")
        epi(True, NQ)
        a(f"s_branch L_oload\nL_epx{NQ}:")
        epi(False, NQ)
        a("s_branch L_omm")
    attn(2)
    a("L_attn1:")
    attn(1)

    TBL = sum((d | h << 2 | g << 3) << (4 * b) for b, (d, h, g) in enumerate(map(blk, range(9))))
    def nblocks():
        if cfg.uneven: a(f"s_bitcmp1_b32 {sHG}, 0\ns_cselect_b32 s101, 7, 9")
        else: a("s_mov_b32 s101, 8")
    def decode(first):
        if first is not None: a(f"s_mov_b32 s92, {(TBL >> (4*first)) & 0xffffffff:#x}\ns_mov_b32 s93, {TBL >> (4*first + 32):#x}")
        else: a("s_lshr_b64 s[92:93], s[92:93], 4")
        a(f"s_add_u32 s5, s92, {sCQ}\ns_and_b32 s5, s5, 3\ns_bfe_u32 s6, s92, 0x20002")
    fa, st0, sper = int(cfg.fa), int(cfg.st0), int(cfg.sper)
    a(f"""
    L_oload:
    v_lshlrev_b32 v14, 4, v0
    s_cmp_ge_u32 s3, 2
    s_cbranch_scc1 L_ol2
    v_lshrrev_b32 v4, 5, v0
    s_lshl_b32 s35, s3, 2
    v_add_u32 v4, s35, v4
    v_and_b32 v5, 31, v0
    v_lshlrev_b32 v6, 1, v4
    v_xor_b32 v5, v5, v6
    v_lshlrev_b32 v4, 11, v4
    v_lshl_add_u32 v15, v5, 4, v4
    v_xor_b32 v13, 64, v15
    v_add_u32 v13, 4096, v13
    s_lshl_b32 {sA}, s3, 11
    s_add_u32 {sA}, {sA}, {WO0}
    s_mov_b32 {sIT}, 1
    """)
    nblocks()
    decode(0)
    a("s_waitcnt lgkmcnt(0)\ns_barrier\nL_owl:")
    decode(None)
    if cfg.mix: a("s_lshl_b32 s35, s5, 1\ns_and_b32 s35, s35, 4\ns_and_b32 s30, s5, 1\ns_add_u32 s30, s30, s35\ns_and_b32 s35, s6, 1\ns_lshl_b32 s35, s35, 1")
    else: a("s_lshl_b32 s30, s5, 1\ns_and_b32 s35, s6, 1")
    a("s_add_u32 s30, s30, s35\ns_lshr_b32 s35, s6, 1\ns_lshl_b32 s35, s35, 3\ns_add_u32 s30, s30, s35\ns_lshl_b32 s30, s30, 18")
    for p in range(4):
        a("s_waitcnt vmcnt(16)\ns_barrier")
        for n in range(4):
            a(f"s_add_u32 m0, {sA}, {p*16384 + n*4096}\ns_add_u32 s35, s30, {p*65536 + n*16384}\nbuffer_load_dwordx4 v15, {S(SWO)}, s35 offen lds")
            a(f"s_add_u32 m0, {sA}, {p*16384 + n*4096 + 1024}\ns_nop 0\nbuffer_load_dwordx4 v13, {S(SWO)}, s35 offen lds")
    a(f"s_add_u32 {sIT}, {sIT}, 1\ns_cmp_lt_u32 {sIT}, s101\ns_cbranch_scc1 L_owl")
    a("s_waitcnt vmcnt(16)\ns_barrier\ns_waitcnt vmcnt(8)\ns_barrier\ns_waitcnt vmcnt(0)\ns_barrier\ns_barrier")
    stamp(5)
    if cfg.sgrp != "o2": stamp_store(0, 0)
    a("s_branch L_end")
    def sample():
        a(f"""
        s_andn2_b32 s35, s2, 0x18
        s_lshl_b32 s34, s5, 3
        s_or_b32 s35, s35, s34
        s_lshr_b32 s34, s6, 1
        s_add_u32 s35, s35, s34
        s_lshl_b32 s35, s35, 5
        s_and_b32 s34, s6, 1
        s_add_u32 s35, s35, s34
        s_lshl_b32 s35, s35, 2
        s_add_u32 s35, s35, {FLAGS}
        v_mov_b32 v5, s35
        s_mul_i32 s32, s5, 57344
        s_mul_i32 s34, s34, 28672
        s_add_u32 s32, s32, s34
        s_lshr_b32 s34, s6, 1
        s_mul_i32 s34, s34, 229376
        s_add_u32 s32, s32, s34
        buffer_load_dword v13, v5, {S(SWS)}, 0 offen {SC}
        """)
    a("L_ol2:\ns_cmp_eq_u32 s3, 3\ns_cbranch_scc1 L_ol3")
    nblocks()
    decode(2)
    a(f"s_mov_b32 {sIT}, 2\ns_mov_b32 s33, 0\ns_waitcnt lgkmcnt(0)\ns_barrier")
    a(f"v_mov_b32 v4, 0\nv_cmp_eq_u32 vcc, 0, {VTAG}\ns_cbranch_vccz L_pt_out")
    poll("L_pt", SDBG, "v4", VTAG, "eq", "0")
    for u in range(5):
        if u == fa: a("s_waitcnt vmcnt(0)")
        a("s_barrier")
        if u == 4: sample()
    a("s_waitcnt vmcnt(0)\nL_ool:")
    for p in range(4):
        a("s_waitcnt vmcnt(7)\ns_barrier")
        if p == 0:
            a(f"s_mov_b32 s31, s32\nv_cmp_ne_u32 vcc, {VTAG}, v13\ns_cbranch_vccz L_po_out")
            poll("L_po", SWS, "v5", "v12", "ne", VTAG)
        if p == 2:
            decode(None); sample()
        for n in range(7):
            if n % 4 == 0: a(f"s_add_u32 m0, s33, {p*7168 + n*1024}\ns_add_u32 s35, s31, {p*7168 + n*1024}")
            a(f"buffer_load_dwordx4 v14, {S(SO)}, s35 offen offset:{(n&3)*1024} {SC} lds")
    a(f"s_xor_b32 s33, s33, 28672\ns_add_u32 {sIT}, {sIT}, 1\ns_cmp_lt_u32 {sIT}, s101\ns_cbranch_scc1 L_ool")
    a("s_waitcnt vmcnt(7)\ns_barrier\ns_waitcnt vmcnt(0)\ns_barrier\ns_barrier\ns_branch L_end")
    a(f"""
    L_ol3:
    v_add_u32 v7, 28672, v14
    s_mul_i32 s33, {sCQ}, 57344
    s_lshl_b32 s35, s2, 7
    s_add_u32 s35, s35, {FLAGS}
    v_mov_b32 v6, s35
    v_mov_b32 v4, 0
    s_waitcnt lgkmcnt(0)
    s_barrier
    """)
    for i in range(28): a(f"ds_read_b128 {vr(16+4*i,4)}, v7 offset:{i*1024}")
    a(f"v_cmp_eq_u32 vcc, 0, {VTAG}\ns_cbranch_vccz L_pt3_out")
    poll("L_pt3", SDBG, "v4", VTAG, "eq", "0")
    def flag(word): a(f"s_mov_b64 exec, 1\nbuffer_store_dword {VTAG}, v6, {S(SWS)}, 0 offen offset:{4*word} {SC}\ns_mov_b64 exec, -1")
    nst, young = 0, 0
    fb = st0 + -(-28 // sper) + 3
    assert fa < 4 and fb < 14
    for u in range(28):
        if u == fa: a(f"s_waitcnt vmcnt({nst + young})")
        a("s_barrier")
        if 5 <= u <= 11: stamp(u - 4, "o2")
        if u == fa: flag(0); young += nst == 28
        if u == st0: a("s_waitcnt lgkmcnt(0)")
        while u >= st0 and nst < min(28, (u - st0 + 1) * sper):
            if nst % 4 == 0: a(f"s_add_u32 s34, s33, {nst*1024}")
            a(f"buffer_store_dwordx4 {vr(16+4*nst,4)}, v7, {S(SO)}, s34 offen offset:{(nst&3)*1024} {SC}")
            nst += 1; young = 0
        if u == fb: a(f"s_waitcnt vmcnt({young})"); flag(1)
        for b in range(1, 9):
            if ts[b - 1] == u and (b < 8 or cfg.uneven):
                lab = a.label("lt")
                if cfg.uneven and b >= 7: a(f"s_bitcmp1_b32 {sHG}, 0\ns_cbranch_scc1 {lab}")
                wo_rows(b, "s6")
                a(f"buffer_load_dword {VD}, v3, {S(SWO)}, s6 offen\n{lab}:")
                if not (cfg.uneven and b >= 7): young += 1
    if cfg.uneven: a(f"s_bitcmp1_b32 {sHG}, 0\ns_cbranch_scc1 L_ol3e\n" + "s_barrier\n" * 8 + "L_ol3e:")
    else: a("s_barrier\n" * 4)
    if cfg.sgrp == "o2": stamp_store(3, 0)
    a("s_branch L_end")

    a(f"""
    L_omm:
    v_lshlrev_b32 v14, 4, v0
    """)
    def oreads(u):
        fb = FB + 44 * (u & 1)
        r = [f"ds_read_b64_tr_b16 {vr(fb+4*t+2*j,2)}, v{240+t} offset:{(u%4)*16384 + j*8192}" for t in range(4) for j in range(2)]
        xs = [f"ds_read_b128 {vr(fb+16+4*qt,4)}, v14 offset:{(u%8)*7168 + qt*1024}" for qt in range(7)]
        return r[:2] + xs[:1] + r[2:] + xs[1:]
    nblocks()
    a("v_mov_b32 v4, 0\ns_waitcnt vmcnt(4) lgkmcnt(0)\ns_barrier")
    stamp(5)
    if cfg.sgrp == "L_o": stamp(0)
    for r in oreads(0): a(r)
    a(f"""
    s_lshl_b32 s30, {sBR}, 3
    s_add_u32 s30, s30, {sB}
    s_lshl_b32 s30, s30, 2
    s_add_u32 s30, s30, {sCQ}
    s_mul_i32 s30, s30, {12*16384}
    s_lshl_b32 s35, {sWI}, 12
    s_add_u32 s30, s30, s35
    s_add_u32 s30, s30, {RED}
    s_mul_i32 s35, {sB}, 458752
    s_lshl_b32 s34, {sBR}, 11
    s_add_u32 s35, s35, s34
    s_lshl_b32 s34, {sCQ}, 9
    s_add_u32 s35, s35, s34
    s_lshl_b32 s34, {sHG}, 7
    s_add_u32 s35, s35, s34
    s_sub_u32 s34, 3670016, s35
    """)
    srd_off(a, SOUT, "s24", "s25", "s35", "s34")
    for tau in range(1, 4):
        a(f"s_add_u32 s35, {sHG}, {tau}\ns_and_b32 s35, s35, 3\ns_mul_i32 s35, s35, {3*16384}\ns_add_u32 s35, s35, s30\ns_add_u32 s{4+tau}, s35, {(tau-1)*16384}")
    a(f"""
    s_mul_i32 s35, {sHG}, {3*16384}
    s_add_u32 s8, s30, s35
    s_add_u32 s9, s8, 16384
    s_add_u32 s10, s8, 32768
    v_and_b32 v7, 15, v0
    v_lshlrev_b32 v7, 12, v7
    v_lshrrev_b32 v9, 4, v0
    v_lshl_add_u32 v7, v9, 3, v7
    s_lshl_b32 s35, {sWI}, 5
    v_add_u32 v7, s35, v7
    s_lshl_b32 s35, s2, 7
    s_lshl_b32 s34, {sWI}, 2
    s_add_u32 s34, s34, {FLAGS + 16}
    s_add_u32 s35, s35, s34
    v_mov_b32 v5, s35
    v_min_u32 v6, 2, v0
    v_sub_u32 v6, {sHG}, v6
    v_add_u32 v6, -1, v6
    v_and_b32 v6, 3, v6
    s_andn2_b32 s35, s2, 3
    v_or_b32 v6, s35, v6
    v_lshlrev_b32 v6, 7, v6
    v_add_u32 v6, s34, v6
    v_lshlrev_b32 v15, 3, v0
    s_mov_b32 s12, 0x3f80
    s_mov_b32 s13, 0x3f800000
    """)
    RB = FB
    def box_loads(s_):
        return ([f"buffer_load_dwordx4 {vr(RB+16*s_+4*pr,4)}, v14, {S(SWS)}, s{8+s_} offen offset:{pr*1024} {SC}" for pr in range(3)]
                + [f"buffer_load_dwordx2 {vr(RB+16*s_+12,2)}, v15, {S(SWS)}, s{8+s_} offen offset:3072 {SC}"])
    sends = []
    for tau in range(1, 4):
        for pr in range(4):
            b = ACC + 4 * (tau * 7 + 2 * pr)
            sends += [f"v_cvt_pk_bf16_f32 v{b+i}, v{b+2*i}, v{b+2*i+1}\nv_cvt_pk_bf16_f32 v{b+i+1}, v{b+2*i+2}, v{b+2*i+3}" for i in range(0, 4 if pr < 3 else 2, 2)]
            sends[-1] += (f"\nbuffer_store_dwordx4 {vr(b,4)}, v14, {S(SWS)}, s{4+tau} offen offset:{pr*1024} {SC}" if pr < 3 else
                          f"\nbuffer_store_dwordx2 {vr(b,2)}, v15, {S(SWS)}, s{4+tau} offen offset:3072 {SC}")
    if cfg.twopass:
        assert not cfg.uneven and not cfg.snake
        gloop("L_o", 8, 7, oreads, {2: " vmcnt(0)"})
        W0 = 216
        def keep(u, r): return [x.replace(vr(FB+44*(u&1),2) + ",", vr(W0+4*(u&3),2) + ",").replace(vr(FB+44*(u&1)+2,2) + ",", vr(W0+4*(u&3)+2,2) + ",") for x in r]
        def oagain(p, buf): return [f"ds_read_b128 {vr(FB+44*buf+16+4*qt,4)}, v14 offset:{(4+p)*7168 + qt*1024}" for qt in range(7)]
        for p in range(4):
            a("s_waitcnt lgkmcnt(0)\ns_barrier")
            if p == 0:
                for i in range(4): a(f"v_mov_b32 v{W0+i}, v{FB+i}")
            rd = keep(5 + p, oreads(5 + p)) if p < 3 else oagain(0, 0)
            weave(a, [m for n, m in enumerate(gmf(p)) if n % 4], rd)
        stamp(6)
        for p in range(4):
            fb = FB + 44 * (p & 1)
            a("s_waitcnt lgkmcnt(0)")
            rd = oagain(p + 1, (p + 1) & 1) if p < 3 else [""] * 7
            mf = [f"v_mfma_f32_16x16x32_bf16 {vr(ACC+4*qt,4)}, {vr(W0+4*p,4)}, {vr(fb+16+4*qt,4)}, {vr(ACC+4*qt,4)}" for qt in range(7)]
            for n, m in enumerate(mf):
                a(m); a(rd[n])
                if sends and (p or n >= 2): a(sends.pop(0))
        for x in sends: a(x)
    else:
        gloop("L_o", 8, "s101", oreads, {2: " vmcnt(0)"})
        stamp(6)
        for x in sends: a(x)
    a(f"v_cmp_eq_u32 vcc, 0, {VTAG}\ns_cbranch_vccz L_pt2_out")
    poll("L_pt2", SDBG, "v4", VTAG, "eq", "0")
    a(f"""
    s_waitcnt lgkmcnt(0) vmcnt(0)
    buffer_load_dword v9, v6, {S(SWS)}, 0 offen {SC}
    s_mov_b64 exec, 1
    buffer_store_dword {VTAG}, v5, {S(SWS)}, 0 offen {SC}
    s_mov_b64 exec, -1
    """)
    stamp(1)
    a(f"""
    s_mov_b32 s30, 7
    s_mov_b32 {sU}, 0
    s_waitcnt vmcnt(1)
    L_rx:
    v_cmp_eq_u32 vcc, {VTAG}, v9
    s_add_u32 {sU}, {sU}, 1
    s_nop 0
    s_cmp_ge_u32 {sU}, {cfg.spin}
    s_cselect_b32 s31, 7, vcc_lo
    s_and_b32 s31, s31, s30
    s_andn2_b32 s30, s30, s31
    """)
    for s_ in range(3):
        a(f"s_bitcmp1_b32 s31, {s_}\ns_cbranch_scc0 L_rx_l{s_}")
        for x in box_loads(s_): a(x)
        a(f"L_rx_l{s_}:")
    a(f"""
    s_cmp_eq_u32 s30, 0
    s_cbranch_scc1 L_rx_done
    buffer_load_dword v9, v6, {S(SWS)}, 0 offen {SC}
    s_waitcnt vmcnt(0)
    s_branch L_rx
    L_rx_done:
    s_waitcnt vmcnt(0)
    """)
    for s_ in range(3):
        for qt in range(7):
            for i in range(4):
                a(f"v_dot2_f32_bf16 v{ACC+4*qt+i}, v{RB+16*s_+2*qt+(i>>1)}, s{12+(i&1)}, v{ACC+4*qt+i}")
    stamp(2)
    for qt in range(7):
        b = ACC + 4 * qt
        a(f"v_cvt_pk_bf16_f32 v{b}, v{b}, v{b+1}\nv_cvt_pk_bf16_f32 v{b+1}, v{b+2}, v{b+3}")
        a(f"s_mov_b32 s35, {qt*65536}\nbuffer_store_dwordx2 {vr(b,2)}, v7, {S(SOUT)}, s35 offen {cfg.outpol.replace('+', ' ')}")
    if cfg.stamps: a("s_waitcnt vmcnt(0)")
    stamp(7)
    stamp_store(4, 256)
    a("L_end:\ns_endpgm")
    for stub, back, par, NQ in stubs:
        a(f"{stub}:\ns_call_b64 s[98:99], L_rare{par}{NQ}\ns_branch {back}")
    for NQ in (2, 1):
        for par in range(2):
            a(f"L_rare{par}{NQ}:")
            for qi in range(NQ):
                sb = SS + 16 * par + 8 * qi
                for x in tree(MX, T0, sb, 8): a(x)
                across("v_max_f32", MX, T0)
                a(f"v_max_f32 v{MX}, 0, v{MX}\nv_exp_f32 v{T0}, -v{MX}")
                for i in range(8): a(f"v_sub_f32 v{sb+i}, v{sb+i}, v{MX}")
                for i in range(4): a(f"v_sub_f32 v{NM+4*qi+i}, v{NM+4*qi+i}, v{MX}")
                a(f"v_mul_f32 v{L_+qi}, v{L_+qi}, v{T0}")
                for i in range(32): a(f"v_mul_f32 v{OA+32*qi+i}, v{OA+32*qi+i}, v{T0}")
            a("s_setpc_b64 s[98:99]")
    return a.text().replace(" KVPOL", " " + cfg.kvpol if cfg.kvpol else "")

def build(cfg):
    K = NAME + "_kernel"
    body = kernel_head(K) + kernel(cfg) + kernel_desc(K, 248, 248)
    tgt = '.amdgcn_target "amdgcn-amd-amdhsa--gfx950"\n'
    if cfg.echo:
        from gen2 import echo_kernel
        hdr = f"; @launch kernel={K} grid=(256,1,1) block=(512,1,1) lds=163840\n; @launch kernel=echo_kernel grid=(1,1,1) block=(64,1,1) lds=0\n"
        return hdr + tgt + kernel_head("echo_kernel") + echo_kernel(cfg) + kernel_desc("echo_kernel", 8, 8) + body
    return "; @launch grid=(256,1,1) block=(512,1,1) lds=163840\n" + tgt + body

if __name__ == "__main__":
    cfg = Cfg()
    for kv in sys.argv[2:]:
        k, v = kv.split("=")
        assert hasattr(cfg, k), k
        setattr(cfg, k, {"True": True, "False": False}.get(v, v))
    open(sys.argv[1], "w").write(build(cfg))
```

```python
import sys, math, struct, re
from asmlib import *

class Cfg:
    stamps = False
    sgrp = "main"
    kvpol = "nt"
    qord = "rot"
    kv0 = 4
    kvper = 1
    await_ = 8
    early = False
    tsched = "112,113,113,114,114,115,115,12"
    fa = 2
    st0 = 5
    sper = 7
    mix = False
    uneven = False
    outpol = ""
    aeven = 4
    brlow = True
    tbit = 2
    tpol = 1
    tn = 5
    peelq = False
    twopass = False
    snake = True
    prio = 1
    lv = "4,4"
    tw = "8,6,6,8"
    wqpol = ""
    wopol = ""
    qsplit = False
    kvs = 16
    kvn = 4
    echo = ""
    abl = ""
    spin = 400000

WQ0 = 28672
KT, HSTEP, SLOTB = 8448, 17152, 34304
SA_, SB_, SC_, SD_ = 94208, 128512, 0, 34304
HO, WO0 = 36864, 94208
RED, FLAGS = 16 << 20, 48 << 20
SX, SW, SK, SV, SO, SWO, SWS = 36, 40, 44, 48, 52, 56, 60
SOUT, SDBG = SX, SW
sBR, sHG, sCQ, sB, sWI, sIT, sA, sBb, sT, sU, sH0, sROT = ("s%d" % i for i in range(80, 92))
SC = "sc1"
VTAG, VD = "v236", "v237"
ACC, FB = 16, 128
def S(d): return f"s[{d}:{d+3}]"

def srd_off(a, d, lo, hi, off_reg, nbytes):
    a(f"s_add_u32 s{d}, {lo}, {off_reg}\ns_addc_u32 s{d+1}, {hi}, 0\ns_and_b32 s{d+1}, s{d+1}, 0xffff")
    a(f"s_mov_b32 s{d+2}, {nbytes}\ns_mov_b32 s{d+3}, 0x00020000")

def weave(a, mf, fill):
    fill = list(fill)
    for m in mf:
        a(m)
        if fill: a(fill.pop(0))
    for f in fill: a(f)

def kernel(cfg):
    a = A()
    HD = 262144 if cfg.mix else 131072
    def stamp(i, grp="main"):
        if cfg.stamps and (grp == cfg.sgrp or i == 0): a(f"s_memrealtime s[{64+2*i}:{65+2*i}]")
    def stamp_store(wave, wgoff):
        if not cfg.stamps: return
        a(f"s_cmp_lg_u32 s3, {wave}\ns_cbranch_scc1 L_end")
        a(f"s_waitcnt lgkmcnt(0)\ns_add_u32 s3, s2, {wgoff}\ns_lshl_b32 s3, s3, 7\ns_add_u32 s3, s3, {STAMP_OFF}\nv_mov_b32 v1, s3")
        for q in range(4):
            for j in range(4): a(f"v_mov_b32 v{4+j}, s{64+4*q+j}")
            a(f"buffer_store_dwordx4 v[4:7], v1, {S(SWS)}, 0 offen offset:{16*q}\ns_nop 2")
        a("s_waitcnt vmcnt(0)")
    def poll(lab, srdn, vaddr, vtmp, cmp, want):
        a(f"""
        s_mov_b32 {sU}, 0
        {lab}:
        buffer_load_dword {vtmp}, {vaddr}, {S(srdn)}, 0 offen {SC}
        s_add_u32 {sU}, {sU}, 1
        s_waitcnt vmcnt(0)
        v_cmp_{cmp}_u32 vcc, {want}, {vtmp}
        s_cmp_ge_u32 {sU}, {cfg.spin}
        s_cbranch_scc1 {lab}_out
        s_cbranch_vccnz {lab}
        {lab}_out:
        """)
    def select(pairs):
        a("s_bitcmp0_b32 s2, 2")
        for p in pairs: a(f"s_cselect_b64 s[{p}:{p+1}], s[{p}:{p+1}], s[{p+10}:{p+11}]")
    def other_srds():
        select((6, 8, 12))
        a(f"s_lshl_b32 s35, {sB}, 22\ns_lshl_b32 s34, {sH0}, 17\ns_add_u32 s35, s35, s34")
        srd_off(a, SK, "s6", "s7", "s35", HD + 131072)
        srd_off(a, SV, "s8", "s9", "s35", HD + 131072)
        a(f"s_lshl_b32 s35, {sBR}, 3\ns_add_u32 s35, s35, {sB}\ns_lshl_b32 s35, s35, 2\ns_add_u32 s35, s35, {sHG}\ns_mul_i32 s35, s35, 229376")
        srd_off(a, SO, "s28", "s29", "s35", 2 * 229376)
        a(f"s_lshl_b32 s35, {sHG}, 21\ns_lshl_b32 s34, {sCQ}, 9\ns_add_u32 s35, s35, s34\ns_sub_u32 s34, 0x800000, s35")
        srd_off(a, SWO, "s12", "s13", "s35", "s34")
        srd(a, SWS, "s28", "s29", 0x10000000)
        a(f"s_lshr_b32 {sROT}, s2, 3\ns_lshr_b32 s35, s2, 7\ns_add_u32 {sROT}, {sROT}, s35\ns_lshl_b32 s35, s2, 1\n"
          f"s_add_u32 {sROT}, {sROT}, s35\ns_and_b32 {sROT}, {sROT}, 15\ns_lshl_b32 {sROT}, {sROT}, 13")

    a("s_cmp_ge_u32 s2, 256\ns_cbranch_scc1 L_end")
    stamp(0)
    a("s_load_dwordx16 s[4:19], s[0:1], 0\ns_load_dwordx8 s[20:27], s[0:1], 64\ns_load_dwordx2 s[28:29], s[0:1], 96")
    if cfg.brlow: a("s_bfe_u32 s3, s2, 0x20001\ns_and_b32 s30, s2, 1\ns_lshl_b32 s30, s30, 2\ns_or_b32 s3, s3, s30\ns_andn2_b32 s2, s2, 7\ns_or_b32 s2, s2, s3")
    a(f"""
    v_lshrrev_b32 v1, 6, v0
    v_and_b32 v0, 63, v0
    v_readfirstlane_b32 s3, v1
    s_bfe_u32 {sBR}, s2, 0x10002
    s_and_b32 {sHG}, s2, 3
    s_bfe_u32 {sCQ}, s2, 0x20003
    s_lshr_b32 {sB}, s2, 5
    s_lshl_b32 {sH0}, {sHG}, 3
    """)
    if cfg.mix: a(f"s_lshl_b32 s35, {sCQ}, 1\ns_and_b32 s35, s35, 4\ns_add_u32 {sH0}, {sH0}, s35\ns_and_b32 s35, {sCQ}, 1\ns_add_u32 {sH0}, {sH0}, s35")
    else: a(f"s_lshl_b32 s35, {sCQ}, 1\ns_add_u32 {sH0}, {sH0}, s35")
    a(f"s_and_b32 {sWI}, s3, 3\ns_cmp_lt_u32 s3, 4\ns_cbranch_scc1 L_qmm")

    if cfg.qsplit:
        a("; ---- Q projection, loader waves: 4,5 wq; 6 x; 7 first K/V tiles")
        kv_src = "v_lshrrev_b32 v4, 4, v0\nv_and_b32 v5, 15, v0\nv_lshlrev_b32 v4, 11, v4\nv_lshl_add_u32 v2, v5, 4, v4"
        assert cfg.qord in ("rot", "none") and not cfg.mix and not cfg.peelq
        if cfg.qord == "rot": a(f"s_xor_b32 s35, {sB}, {sCQ}\ns_and_b32 s35, s35, 1\ns_lshl_b32 s30, s35, 22\ns_lshl_b32 s31, s35, 10")
        else: a("s_mov_b32 s30, 0\ns_mov_b32 s31, 0")
        a(f"""
        s_cmp_ge_u32 s3, 6
        s_cbranch_scc1 L_ql6
        v_lshrrev_b32 v4, 5, v0
        v_and_b32 v5, 31, v0
        s_lshl_b32 s35, {sWI}, 1
        v_add_u32 v4, s35, v4
        v_lshlrev_b32 v6, 1, v4
        v_xor_b32 v5, v5, v6
        v_lshlrev_b32 v4, 13, v4
        v_lshl_add_u32 v10, v5, 4, v4
        v_xor_b32 v12, 0x80, v10
        v_add_u32 v12, 0x10000, v12     ; rows 8-15
        s_lshl_b32 {sA}, {sWI}, 10
        s_add_u32 {sA}, {sA}, {WQ0}
        s_lshl_b32 s32, {sH0}, 8
        s_sub_u32 s34, 0x800000, s32
        s_waitcnt lgkmcnt(0)
        """)
        select((10,))
        srd_off(a, SW, "s10", "s11", "s32", "s34")
        def issue_wq(slot):
            for pc in (0, 2, 8, 10):
                a(f"s_add_u32 m0, {sA}, {slot*16384 + pc*1024}\ns_add_u32 s35, s30, {pc*16384}\nbuffer_load_dwordx4 v10, {S(SW)}, s35 offen lds")
                a(f"s_add_u32 m0, {sA}, {slot*16384 + (pc+4)*1024}\ns_nop 0\nbuffer_load_dwordx4 v12, {S(SW)}, s35 offen lds")
            a("s_add_u32 s30, s30, 0x40000\ns_and_b32 s30, s30, 0x7fffff")
        stamp(1, "s")
        issue_wq(0); issue_wq(1)
        other_srds()
        a(kv_src)
        a("s_waitcnt vmcnt(8)\ns_barrier")
        issue_wq(2)
        a("s_waitcnt vmcnt(8)\ns_barrier")
        issue_wq(3); issue_wq(0)
        a(f"s_mov_b32 {sIT}, 0\ns_branch L_qwmid\nL_qw:")
        for u in range(4):
            a("s_waitcnt vmcnt(16)\ns_barrier")
            issue_wq(u)
            if u == 0: a("L_qwmid:")
        a(f"s_add_u32 {sIT}, {sIT}, 1\ns_cmp_lt_u32 {sIT}, 7\ns_cbranch_scc1 L_qw")
        a("s_waitcnt vmcnt(16)\ns_barrier\ns_waitcnt vmcnt(8)\ns_barrier\ns_waitcnt vmcnt(0)\ns_barrier\ns_barrier\ns_branch L_qlend")
        a(f"""
        L_ql6:
        s_cmp_eq_u32 s3, 7
        s_cbranch_scc1 L_ql7
        v_lshrrev_b32 v4, 3, v0
        v_and_b32 v5, 7, v0
        v_lshrrev_b32 v6, 1, v4
        v_xor_b32 v5, v5, v6
        v_lshlrev_b32 v4, 11, v4
        v_lshl_add_u32 v10, v5, 4, v4
        v_xor_b32 v12, 64, v10
        v_add_u32 v12, 0x4000, v12
        s_mul_i32 s33, {sB}, 229376
        s_waitcnt lgkmcnt(0)
        """)
        select((4,))
        srd_off(a, SX, "s4", "s5", "s33", 229376)
        def issue_x(slot):
            for n in range(7):
                a(f"s_mov_b32 m0, {slot*14336 + n*2048}\ns_add_u32 s35, s31, {n*32768}\nbuffer_load_dwordx4 v10, {S(SX)}, s35 offen lds")
                a(f"s_mov_b32 m0, {slot*14336 + n*2048 + 1024}\ns_nop 0\nbuffer_load_dwordx4 v12, {S(SX)}, s35 offen lds")
            a("s_add_u32 s31, s31, 128\ns_and_b32 s31, s31, 2047")
        issue_x(0)
        other_srds()
        a(kv_src)
        a("s_waitcnt vmcnt(0)\ns_barrier")
        issue_x(1)
        a(f"s_mov_b32 {sIT}, 0\nL_qx:")
        for h in range(2):
            a("s_barrier\ns_waitcnt vmcnt(0)\ns_barrier")
            issue_x(h)
        a(f"s_add_u32 {sIT}, {sIT}, 1\ns_cmp_lt_u32 {sIT}, 7\ns_cbranch_scc1 L_qx")
        a("s_barrier\ns_waitcnt vmcnt(0)\ns_barrier\ns_barrier\ns_barrier\ns_branch L_qlend\nL_ql7:\ns_waitcnt lgkmcnt(0)")
        other_srds()
        a(kv_src)
        a(f"s_add_u32 s33, {sROT}, 8192\ns_and_b32 s33, s33, 0x1ffff\ns_barrier")
        kvl = [(tile, hd, i, isv) for tile in range(2) for isv in range(2) for hd in range(2) for i in range(8)]
        for u in range(32):
            a("s_barrier")
            for _ in range(int(cfg.kvn) if u >= int(cfg.kvs) else 0):
                if kvl:
                    tile, hd, i, isv = kvl.pop(0)
                    a(f"s_mov_b32 m0, {(SA_, SB_)[tile] + hd*HSTEP + isv*KT + i*1056}\ns_add_u32 s35, {(sROT, 's33')[tile]}, {hd*HD + i*256}")
                    a(f"buffer_load_dwordx4 v2, {S(SV if isv else SK)}, s35 offen KVPOL lds")
        assert not kvl
        a(f"""
        L_qlend:
        s_mul_i32 s96, {sWI}, 1056
        s_lshl_b32 s32, {sWI}, 8
        s_barrier
        """)
        def kv_piece(tile, hd, n, isv, slot):
            a(f"s_add_u32 s35, {sROT}, {tile*8192}\ns_and_b32 s35, s35, 0x1ffff\ns_add_u32 s35, s35, s32")
            a(f"s_add_u32 m0, s96, {slot + hd*HSTEP + isv*KT + n*4224}\ns_add_u32 s35, s35, {hd*HD + n*1024}")
            a(f"buffer_load_dwordx4 v2, {S(SV if isv else SK)}, s35 offen KVPOL lds")
        for isv in range(2):
            for hd in range(2):
                for n in range(2): kv_piece(2, hd, n, isv, SC_)
        a("s_waitcnt vmcnt(56)\ns_branch L_join")

    else:
        a("; ---- Q projection, loader waves 4-7")
        a(f"""
        v_lshrrev_b32 v4, 5, v0
        v_and_b32 v5, 31, v0
        s_and_b32 s35, {sWI}, 1
        s_lshr_b32 s34, {sWI}, 1
        s_lshl_b32 {sA}, s35, 1
        s_lshl_b32 {sBb}, s34, 2
        s_add_u32 {sT}, {sA}, {sBb}
        v_add_u32 v6, {sT}, v4
        v_lshlrev_b32 v6, 1, v6
        v_xor_b32 v5, v5, v6
        s_lshl_b32 {sBb}, s34, 3
        s_add_u32 {sA}, {sA}, {sBb}
        v_add_u32 v4, {sA}, v4
        v_lshlrev_b32 v4, 13, v4
        v_lshl_add_u32 v10, v5, 4, v4
        """)
        if cfg.mix: a("v_and_b32 v5, 16, v5\nv_lshl_add_u32 v10, v5, 4, v10")
        a(f"""
        s_lshl_b32 {sA}, {sA}, 9
        s_add_u32 {sA}, {sA}, {WQ0}
        v_lshrrev_b32 v4, 3, v0
        v_and_b32 v5, 7, v0
        v_lshrrev_b32 v6, 1, v4
        s_lshl_b32 {sBb}, s35, 2
        v_add_u32 v6, {sBb}, v6
        v_xor_b32 v5, v5, v6
        s_lshl_b32 {sBb}, {sWI}, 3
        v_add_u32 v4, {sBb}, v4
        v_lshlrev_b32 v4, 11, v4
        v_lshl_add_u32 v11, v5, 4, v4
        s_lshl_b32 {sBb}, {sWI}, 10
        s_xor_b32 s35, {sB}, {sCQ}
        s_and_b32 s35, s35, 1
        """)
        alt = cfg.qord not in ("rot", "none")
        if alt:
            for g in range(2):
                if cfg.qord == "alt2": o = [g] + [(t + 1 + g if t & 1 else t - 1 - g) for t in range(1, 15)] + [15 - g]
                elif cfg.qord[0] == "h":
                    n = int(cfg.qord[1:]); r = list(range(n, 16)); h = len(r) // 2
                    o = list(range(n)) + (r if g == 0 else r[h:] + r[:h])
                else:
                    n = int(cfg.qord[1:]); o = []
                    for j in range(0, 16, 2 * n): o += list(range(j + g * n, j + g * n + n)) + list(range(j + (1 - g) * n, j + (1 - g) * n + n))
                assert sorted(o) == list(range(16))
                v = sum(st << (4 * t) for t, st in enumerate(o))
                a(f"s_cmp_eq_u32 s35, {g}\ns_cselect_b32 s98, {v & 0xffffffff:#x}, s98\ns_cselect_b32 s99, {v >> 32:#x}, s99")
            a("s_mov_b64 s[92:93], s[98:99]\ns_and_b32 s35, s98, 15\ns_lshl_b32 s30, s35, 19\ns_lshl_b32 s31, s35, 7")
        elif cfg.qord == "rot": a("s_lshl_b32 s30, s35, 22\ns_lshl_b32 s31, s35, 10")
        else: a("s_mov_b32 s30, 0\ns_mov_b32 s31, 0")
        a(f"s_mul_i32 s33, {sB}, 229376\ns_lshl_b32 s32, {sH0}, 8\ns_sub_u32 s34, 0x800000, s32\ns_waitcnt lgkmcnt(0)")
        select((4, 10))
        srd_off(a, SX, "s4", "s5", "s33", 229376)
        srd_off(a, SW, "s10", "s11", "s32", "s34")
        def issue_wq(slot):
            for pc in (0, 2, 8, 10):
                a(f"s_add_u32 m0, {sA}, {slot*16384 + pc*1024}\ns_add_u32 s35, s30, {pc*16384}\nbuffer_load_dwordx4 v10, {S(SW)}, s35 offen {cfg.wqpol} lds")
            if alt and (slot & 1): a("s_lshr_b64 s[98:99], s[98:99], 4\ns_and_b32 s30, s98, 15\ns_lshl_b32 s30, s30, 19")
            else: a("s_add_u32 s30, s30, 0x40000\ns_and_b32 s30, s30, 0x7fffff")
        def issue_x(slot):
            lab = a.label("xs")
            for n in range(4):
                if n == 3: a(f"s_cmp_ge_u32 {sWI}, 2\ns_cbranch_scc1 {lab}")
                a(f"s_add_u32 m0, {sBb}, {slot*14336 + n*4096}\ns_add_u32 s35, s31, {n*65536}\nbuffer_load_dwordx4 v11, {S(SX)}, s35 offen lds")
            if alt: a(f"{lab}:\ns_lshr_b64 s[92:93], s[92:93], 4\ns_and_b32 s31, s92, 15\ns_lshl_b32 s31, s31, 7")
            else: a(f"{lab}:\ns_add_u32 s31, s31, 128\ns_and_b32 s31, s31, 2047")
        def kv_piece(tile, hd, n, isv, slot):
            a(f"s_add_u32 s35, {sROT}, {tile*8192}\ns_and_b32 s35, s35, 0x1ffff\ns_add_u32 s35, s35, s32")
            a(f"s_add_u32 m0, s96, {slot + hd*HSTEP + isv*KT + n*4224}\ns_add_u32 s35, s35, {hd*HD + n*1024}")
            a(f"buffer_load_dwordx4 v2, {S(SV if isv else SK)}, s35 offen KVPOL lds")
        kv_src = "v_lshrrev_b32 v4, 4, v0\nv_and_b32 v5, 15, v0\nv_lshlrev_b32 v4, 11, v4\nv_lshl_add_u32 v2, v5, 4, v4"
        stamp(1, "s")
        issue_x(0); issue_wq(0); issue_wq(1)
        stamp(2, "s")
        other_srds()
        a(kv_src)
        a(f"s_mul_i32 s96, {sWI}, 1056\ns_lshl_b32 s32, {sWI}, 8\ns_waitcnt vmcnt(4)\ns_barrier")
        issue_x(1); issue_wq(2)
        a("s_waitcnt vmcnt(7)\ns_barrier")
        issue_wq(3); issue_wq(0)
        kv0 = int(cfg.kv0)
        kvl = [(tile, hd, n, isv) for tile in range(2) for isv in range(2) for hd in range(2) for n in range(2)]
        a(f"s_mov_b32 {sIT}, 0\ns_branch L_qlmid\nL_qlloop:")
        for u in range(4):
            a(f"s_waitcnt vmcnt({8 if u & 1 else 11})\ns_barrier")
            if u & 1: issue_x((u >> 1) & 1)
            issue_wq(u)
            if u == 0: a("L_qlmid:")
        a(f"s_add_u32 {sIT}, {sIT}, 1\ns_cmp_lt_u32 {sIT}, {kv0}\ns_cbranch_scc1 L_qlloop")
        q = []
        for u in range(4 * kv0 - 4, 4 * kv0):
            if u & 1: q.append(("x", (u >> 1) + 2, 3))
            q.append(("w", u + 4, 4))
        for u in range(4 * kv0, 32):
            need = [i for i, e in enumerate(q) if (e[0] == "w" and e[1] <= u + 1) or (e[0] == "x" and e[1] <= (u + 1) >> 1)]
            if need:
                a(f"s_waitcnt vmcnt({sum(e[2] for e in q[max(need) + 1:])})")
                q = q[max(need) + 1:]
            a("s_barrier")
            if (u & 1) and (u >> 1) + 2 < 16: issue_x((u >> 1) & 1); q.append(("x", (u >> 1) + 2, 3))
            if u + 4 < 32: issue_wq(u % 4); q.append(("w", u + 4, 4))
            for _ in range(int(cfg.kvper)):
                if kvl:
                    tile, hd, n, isv = kvl.pop(0)
                    kv_piece(tile, hd, n, isv, (SA_, SB_)[tile]); q.append(("k", 0, 1))
        if not cfg.peelq: a("s_barrier")
        for tile, hd, n, isv in kvl: kv_piece(tile, hd, n, isv, (SA_, SB_)[tile])
        for isv in range(2):
            for hd in range(2):
                for n in range(2): kv_piece(2, hd, n, isv, SC_)
        a("s_waitcnt vmcnt(20)\ns_branch L_join")

    def gmf(u, zero=False):
        fb = FB + 44 * (u & 1)
        return [f"v_mfma_f32_16x16x32_bf16 {vr(ACC+4*(t*7+qt),4)}, {vr(fb+4*t,4)}, {vr(fb+16+4*qt,4)}, {'0' if zero else vr(ACC+4*(t*7+qt),4)}"
                for qt in range(7) for t in (range(3, -1, -1) if cfg.snake and qt & 1 else range(4))]
    def gloop(name, period, blocks, reads, pre, cut=None):
        if int(cfg.prio): a(f"s_setprio {cfg.prio}")
        a("s_waitcnt lgkmcnt(0)\ns_barrier")
        weave(a, gmf(0, True), reads(1))
        a(f"s_mov_b32 {sIT}, 0\ns_branch {name}_mid\n{name}:")
        for u in range(period):
            a(f"s_waitcnt lgkmcnt(0){pre.get(u, '')}\ns_barrier")
            ex = [f"s_cmp_eq_u32 {sIT}, {cut}"] if cut is not None and u == 2 else []
            weave(a, gmf(u), reads(u + 1) + ex)
            if ex: a(f"s_cbranch_scc1 {name}_out")
            if u == 0: a(f"{name}_mid:")
            if u % 4 == 3:
                if cfg.stamps and cfg.sgrp == name:
                    for i in range(u // 4, 7, period // 4):
                        lab = a.label("st")
                        a(f"s_cmp_lg_u32 {sIT}, {i}\ns_cbranch_scc1 {lab}")
                        stamp(1 + i, name)
                        a(f"{lab}:")
                a(f"s_add_u32 {sIT}, {sIT}, 1\ns_cmp_lt_u32 {sIT}, {blocks}")
                a(f"s_cbranch_scc1 {name}" if u == period - 1 else f"s_cbranch_scc0 {name}_out")
        a(f"{name}_out:")
        if int(cfg.prio): a("s_setprio 0")
    cbits = struct.unpack("<I", struct.pack("<f", (128 ** -0.5) * math.log2(math.e)))[0]
    a(f"""
    L_qmm:
    v_lshrrev_b32 v4, 4, v0         ; g4
    v_bfe_u32 v5, v0, 2, 2          ; r
    v_and_b32 v6, 3, v0             ; c
    v_lshl_add_u32 v7, v4, 3, v5
    v_lshlrev_b32 v7, 9, v7
    v_lshrrev_b32 v9, 1, v6
    v_lshl_add_u32 v7, v9, 4, v7
    v_and_b32 v9, 1, v6
    v_lshl_add_u32 v7, v9, 3, v7
    s_lshr_b32 s35, {sWI}, 1
    s_lshl_b32 s35, s35, 8
    s_add_u32 s35, s35, {WQ0}
    v_add_u32 v7, s35, v7
    v_and_b32 v9, 1, v4
    v_lshl_or_b32 v9, v9, 2, v5
    s_and_b32 s35, {sWI}, 1
    s_lshl_b32 s35, s35, 2
    v_xor_b32 v9, s35, v9
    """)
    for t in range(4): a(f"v_xor_b32 v1, {t}, v9\nv_lshl_add_u32 v{10+t}, v1, 5, v7")
    a(f"""
    v_and_b32 v5, 15, v0
    v_lshrrev_b32 v6, 1, v5
    v_xor_b32 v6, v6, v4
    v_lshlrev_b32 v7, 7, v5
    v_lshl_add_u32 v14, v6, 4, v7
    v_xor_b32 v15, 64, v14
    v_lshlrev_b32 v5, 4, v5
    v_lshrrev_b32 v6, 5, v0
    v_lshl_add_u32 v5, v6, 8, v5
    v_bfe_u32 v6, v0, 4, 1
    v_lshl_add_u32 v5, v6, 3, v5
    s_lshr_b32 s34, {sWI}, 1
    s_mul_i32 s34, s34, 28672
    s_and_b32 s35, {sWI}, 1
    s_lshl_b32 s35, s35, 11
    s_add_u32 s34, s34, s35
    s_add_u32 s34, s34, {HO}
    v_add_u32 v8, s34, v5
    s_mov_b32 s30, {cbits:#x}
    s_mov_b32 s31, {cbits:#x}
    """)
    a(kv_src)
    a("s_waitcnt lgkmcnt(0)")
    other_srds()
    a(f"""
    s_or_b32 s35, s2, s3
    s_cbranch_scc1 L_notag
    s_mov_b32 s{SX}, s26
    s_and_b32 s{SX+1}, s27, 0xffff
    s_mov_b32 s{SX+2}, 256
    s_mov_b32 s{SX+3}, 0x00020000
    v_mov_b32 v4, {FLAGS}
    v_mov_b32 v7, 0
    s_mov_b32 s34, 1664525
    s_mov_b32 s35, 1013904223
    buffer_load_dword v5, v4, {S(SWS)}, 0 offen {SC}
    s_waitcnt vmcnt(0)
    v_mul_lo_u32 v5, v5, s34
    v_add_u32 v5, s35, v5
    v_mov_b32 v6, s35
    v_cmp_eq_u32 vcc, 0, v5
    s_nop 1
    v_cndmask_b32 v5, v5, v6, vcc
    s_mov_b64 exec, 1
    buffer_store_dword v5, v7, {S(SX)}, 0 offen {SC}
    s_mov_b64 exec, -1
    L_notag:
    s_barrier
    """)
    def qreads(u):
        fb = FB + 44 * (u & 1)
        r = [f"ds_read_b64_tr_b16 {vr(fb+4*t+2*j,2)}, v{10+t} offset:{(u%4)*16384 + j*2048}" for t in range(4) for j in range(2)]
        xs = [f"ds_read_b128 {vr(fb+16+4*qt,4)}, v{14+(u&1)} offset:{((u>>1)&1)*14336 + qt*2048}" for qt in range(7)]
        return r[:2] + xs[:1] + r[2:] + xs[1:]
    stamp(1); stamp(1, "s")
    for r in qreads(0): a(r)
    def pack(qt, t):
        acc = ACC + 4 * (t * 7 + qt)
        return (f"v_pk_mul_f32 {vr(acc,2)}, {vr(acc,2)}, s[30:31]\nv_pk_mul_f32 {vr(acc+2,2)}, {vr(acc+2,2)}, s[30:31]\n"
                f"v_cvt_pk_bf16_f32 v{acc}, v{acc}, v{acc+1}\nv_cvt_pk_bf16_f32 v{acc+1}, v{acc+2}, v{acc+3}\n"
                f"ds_write_b64 v8, {vr(acc,2)} offset:{qt*4096 + t*512}")
    packs = [pack(qt, t) for qt in range(7) for t in range(4)]
    if cfg.peelq:
        assert not cfg.snake
        gloop("L_q", 4, 8, qreads, {}, cut=7)
        a("s_waitcnt lgkmcnt(0)\ns_barrier")
        stamp(2)
        weave(a, gmf(3), [""] * 8 + packs[:19] + ["s_nop 1"] + packs[19:])
    else:
        gloop("L_q", 4, 8, qreads, {})
        stamp(2)
        a("s_waitcnt lgkmcnt(0)\ns_barrier")
        for x in packs: a(x)

    QF, OA, SS, NM, KF, VF, PP = 16, 48, 112, 144, 160, 192, 224
    L_, MX, T0 = 232, 234, 235
    a(f"""
    L_join:
    s_lshr_b32 s34, s3, 2
    s_mul_i32 s35, s34, {HD}
    s_add_u32 s{SK}, s{SK}, s35
    s_addc_u32 s{SK+1}, s{SK+1}, 0
    s_mov_b32 s{SK+2}, 131072
    s_add_u32 s{SV}, s{SV}, s35
    s_addc_u32 s{SV+1}, s{SV+1}, 0
    s_mov_b32 s{SV+2}, 131072
    s_mul_i32 s30, s34, {HSTEP}
    s_mul_i32 {sA}, {sWI}, 1056
    s_add_u32 {sA}, {sA}, s30
    s_add_u32 {sBb}, {sA}, {KT}
    v_lshlrev_b32 v5, 4, v0
    s_mul_i32 s35, s34, 28672
    s_lshl_b32 {sT}, {sWI}, 13
    s_add_u32 {sT}, {sT}, s35
    s_add_u32 {sT}, {sT}, {HO}
    v_add_u32 v9, {sT}, v5
    s_lshl_b32 {sT}, {sWI}, 11
    s_add_u32 s35, s35, {sT}
    v_add_u32 v14, s35, v5
    v_and_b32 v7, 7, v0
    v_mul_u32_u24 v7, 1056, v7
    v_bfe_u32 v1, v0, 3, 1
    v_lshl_add_u32 v7, v1, 8, v7
    v_lshrrev_b32 v1, 4, v0
    v_lshl_add_u32 v7, v1, 4, v7
    v_add_u32 v10, s30, v7
    v_bfe_u32 v7, v0, 2, 3
    v_mul_u32_u24 v7, 1056, v7
    v_lshrrev_b32 v1, 5, v0
    v_lshl_add_u32 v7, v1, 8, v7
    v_and_b32 v1, 3, v0
    v_lshl_add_u32 v7, v1, 3, v7
    s_add_u32 s35, s30, {KT}
    v_add_u32 v12, s35, v7
    v_add_u32 v11, {SA_}, v10
    s_lshl_b32 s35, {sWI}, 8
    s_add_u32 s31, {sROT}, s35
    s_add_u32 s31, s31, {3*8192}
    s_and_b32 s31, s31, 0x1ffff
    s_mov_b32 s96, {SA_}
    s_mov_b32 s97, {SD_}
    s_mov_b32 s100, 0x41000000
    s_and_b32 s94, {sCQ}, 1
    s_add_u32 s94, s94, 1
    s_sub_u32 s94, s94, {sBR}
    v_lshrrev_b32 v4, 5, v0
    s_lshl_b32 s35, {sWI}, 1
    v_add_u32 v4, s35, v4
    v_and_b32 v5, 31, v0
    v_lshlrev_b32 v6, 1, v4
    v_xor_b32 v5, v5, v6
    v_lshlrev_b32 v4, 11, v4
    v_lshl_add_u32 v15, v5, 4, v4
    v_lshrrev_b32 v4, 4, v0
    v_lshlrev_b32 v4, 5, v4
    v_bfe_u32 v5, v0, 2, 2
    v_add_u32 v4, v4, v5
    s_lshl_b32 s35, {sB}, 2
    v_add_u32 v4, s35, v4
    v_lshlrev_b32 v4, 11, v4
    v_and_b32 v5, 3, v0
    v_lshl_add_u32 v3, v5, 7, v4
    v_mov_b32 v4, 0
    """)
    a(f"""
    v_lshrrev_b32 v7, 2, v0
    v_lshlrev_b32 v7, 9, v7
    v_and_b32 v6, 3, v0
    v_lshl_add_u32 v7, v6, 3, v7
    v_add_u32 v7, {WO0}, v7
    v_bfe_u32 v6, v0, 2, 3
    v_xor_b32 v6, {sWI}, v6
    """)
    for tau in range(4):
        a(f"""
        s_add_u32 s35, {sHG}, {tau}
        s_and_b32 s34, s35, 1
        s_lshl_b32 s34, s34, 2
        s_bfe_u32 s35, s35, 0x10001
        s_lshl_b32 s35, s35, 8
        v_xor_b32 v1, s34, v6
        v_lshl_add_u32 v1, v1, 5, v7
        v_add_u32 v{240+tau}, s35, v1
        """)
    srd(a, SDBG, "s26", "s27", 256)
    a(f"s_cmp_eq_u32 {sWI}, 3\ns_waitcnt lgkmcnt(0)\ns_cbranch_scc1 L_attn1")
    ts = [int(x) for x in cfg.tsched.split(",")]
    stubs = []
    def blk(b): return (0, b, 0) if b < 2 else ((b - 1, 0, 0) if b < 5 else ((b - 4, 1, 0) if b < 8 else (3, 1, 1)))
    def producer(b, reg): a(f"s_add_u32 {reg}, {sCQ}, {blk(b)[0]}\ns_and_b32 {reg}, {reg}, 3")
    def wo_rows(b, reg):
        d, h, g = blk(b)
        producer(b, reg)
        if cfg.mix: a(f"s_lshl_b32 s35, {reg}, 1\ns_and_b32 s35, s35, 4\ns_and_b32 {reg}, {reg}, 1\ns_add_u32 {reg}, {reg}, s35\ns_add_u32 {reg}, {reg}, {2*h + 8*g}")
        else: a(f"s_lshl_b32 {reg}, {reg}, 1\ns_add_u32 {reg}, {reg}, {h + 8*g}")
        a(f"s_lshl_b32 {reg}, {reg}, 18")
    def touch_block(b, wave):
        lab = a.label("wt"); t = A()
        keep, a.l = a.l, t.l
        a(f"s_cmp_lg_u32 s3, {wave}\ns_cbranch_scc1 {lab}")
        wo_rows(b, "s6")
        a(f"buffer_load_dword {VD}, v3, {S(SWO)}, s6 offen {cfg.wopol}\n{lab}:")
        a.l = keep
        return t.text()
    def kpiece(n, slot, src): return f"s_add_u32 s34, {slot}, {sA}\ns_add_u32 m0, s34, {n*4224}\ns_add_u32 s35, {src}, {n*1024}\nbuffer_load_dwordx4 v2, {S(SK)}, s35 offen KVPOL lds"
    def vpiece(n, slot, src): return f"s_add_u32 s34, {slot}, {sBb}\ns_add_u32 m0, s34, {n*4224}\ns_add_u32 s35, {src}, {n*1024}\nbuffer_load_dwordx4 v2, {S(SV)}, s35 offen KVPOL lds"
    def wo_pieces(mbase, moff, soff, add=0):
        return [f"s_add_u32 m0, {mbase}, {moff + n*4096}\ns_add_u32 s35, {soff}, {add + n*16384}\nbuffer_load_dwordx4 v15, {S(SWO)}, s35 offen lds" for n in range(4)]
    def kreads(): return [f"ds_read_b128 {vr(KF+16*kt+4*s_,4)}, v11 offset:{kt*512 + 64*s_}" for s_ in range(4) for kt in range(2)]
    def tree(dst, tmp, b, n):
        if n == 8: return [f"v_max3_f32 v{dst}, v{b}, v{b+1}, v{b+2}", f"v_max3_f32 v{tmp}, v{b+3}, v{b+4}, v{b+5}",
                           f"v_max3_f32 v{dst}, v{dst}, v{b+6}, v{b+7}", f"v_max_f32 v{dst}, v{dst}, v{tmp}"]
        return ([f"v_max3_f32 v{dst}, v{b}, v{b+1}, v{b+2}", f"v_max3_f32 v{tmp}, v{b+3}, v{b+4}, v{b+5}"]
                + [f"v_max3_f32 v{(dst, tmp)[i&1]}, v{(dst, tmp)[i&1]}, v{b+6+2*i}, v{b+7+2*i}" for i in range(5)]
                + [f"v_max_f32 v{dst}, v{dst}, v{tmp}"])
    def across(op, r, tmp):
        for sw in ("16", "32"):
            a(f"s_nop 0\nv_mov_b32 v{tmp}, v{r}\ns_nop 1\nv_permlane{sw}_swap_b32 v{tmp}, v{r}\ns_nop 1\n{op} v{r}, v{r}, v{tmp}")
    def epi(store, NQ):
        for p in range(4):
            for qi in range(NQ):
                b = OA + 32*qi + 8*p
                for i in range(8): a(f"v_mul_f32 v{b+i}, v{b+i}, v{L_+qi}")
                for i in range(4): a(f"v_cvt_pk_bf16_f32 v{b+i}, v{b+2*i}, v{b+2*i+1}")
                a(f"ds_write_b128 v14, {vr(b,4)} offset:{p*7168 + qi*1024}")
                if store: a(f"buffer_store_dwordx4 {vr(b,4)}, v14, {S(SO)}, s34 offen offset:{qi*1024} {SC}")
            if store: a("s_add_u32 s34, s34, 7168")
        if store: a(f"s_waitcnt vmcnt({4 * NQ})")
    def attn(NQ):
        N = 8 * NQ
        def qk(sb, zero=False):
            out = []
            for s_ in range(4):
                for kt in range(2):
                    for n_, qi in enumerate(range(NQ - 1, -1, -1) if cfg.snake and kt else range(NQ)):
                        d = vr(sb + 8*qi + 4*kt, 4)
                        out.append((f"s_waitcnt lgkmcnt(LG{2*s_+kt})\n" if n_ == 0 else "") +
                                   f"v_mfma_f32_16x16x32_bf16 {d}, {vr(KF+16*kt+4*s_,4)}, {vr(QF+16*qi+4*s_,4)}, {('0' if zero else vr(NM+4*qi,4)) if s_ == 0 else d}")
            return out
        def emit_qk(ms, fill):
            nv = 0
            for n, m in enumerate(ms):
                i = n // NQ
                a(m.replace(f"LG{i}", str(min(15, 7 - i + nv))))
                for f in fill[n]:
                    a(f); nv += f.startswith("ds_")
        def spread(items, gaps, lo=0):
            out = [[] for _ in range(gaps)]
            for i, x in enumerate(items): out[lo + i * (gaps - lo) // len(items)].append(x)
            return out
        def merge(*ls): return [sum((l[i] for l in ls), []) for i in range(len(ls[0]))]
        a("s_barrier")
        for qi in range(NQ):
            for s_ in range(4): a(f"ds_read_b128 {vr(QF+16*qi+4*s_,4)}, v9 offset:{qi*4096 + s_*1024}")
        for x in kreads(): a(x)
        a("s_waitcnt lgkmcnt(8)\ns_barrier")
        stamp(3)
        emit_qk(qk(SS, True), [[kpiece(0, "s97", "s31")], [], [kpiece(1, "s97", "s31")]] + [[]] * 16)
        a("s_nop 7")
        for qi in range(NQ):
            for x in tree(MX, T0, SS + 8*qi, 8): a(x)
            across("v_max_f32", MX, T0)
            a(f"v_mov_b32 v{L_+qi}, 0")
            for i in range(8): a(f"v_sub_f32 v{SS+8*qi+i}, v{SS+8*qi+i}, v{MX}")
            for i in range(4): a(f"v_sub_f32 v{NM+4*qi+i}, 0, v{MX}")
        def step(par, wait, dma=None, first=False, last=False, tight=False):
            cur, nxt = SS + 16 * par, SS + 16 * (1 - par)
            if tight and cfg.lv:
                lab = a.label("tw"); w1, w2 = cfg.lv.split(",")
                a(f"s_cmp_eq_u32 s94, 0\ns_cbranch_scc1 {lab}\ns_waitcnt vmcnt({w1})\ns_cmp_eq_u32 s94, 1\ns_cbranch_scc1 {lab}\ns_waitcnt vmcnt({w2})\n{lab}:")
            elif tight and int(cfg.aeven) >= 0:
                lab = a.label("tw")
                a(f"s_bitcmp{cfg.tpol}_b32 s2, {cfg.tbit}\ns_cbranch_scc1 {lab}\ns_cmp_ge_u32 {sIT}, {cfg.tn}\ns_cbranch_scc1 {lab}\ns_waitcnt vmcnt({cfg.aeven})\n{lab}:")
            a(f"""
            s_waitcnt vmcnt({wait})
            s_barrier
            s_add_u32 s98, s96, {SLOTB}
            s_cmp_eq_u32 s96, {SB_}
            s_cselect_b32 s98, 0, s98
            s_cmp_eq_u32 s96, {SD_}
            s_cselect_b32 s98, {SA_}, s98
            v_add_u32 v11, s98, v10
            v_add_u32 v13, s96, v12
            s_add_u32 s30, s31, 8192
            s_and_b32 s30, s30, 0x1ffff
            """)
            vrd = [f"ds_read_b64_tr_b16 {vr(VF+4*t+2*j,2)}, v13 offset:{j*512 + 32*t}" for t in range(8) for j in range(2)]
            ex = [f"v_exp_f32 v{cur+i}, v{cur+i}" for i in range(N)]
            cv = [f"v_cvt_pk_bf16_f32 v{PP+i}, v{cur+2*i}, v{cur+2*i+1}" for i in range(N // 2)]
            ad = [f"v_add_f32 v{L_+(i>>3)}, v{L_+(i>>3)}, v{cur+i}" for i in range(N)]
            if NQ == 2: ad = [ad[(i >> 1) + 8 * (i & 1)] for i in range(16)]
            if dma is None: dma = [kpiece(0, "s96", "s30"), vpiece(0, "s97", "s31"), kpiece(1, "s96", "s30"), vpiece(1, "s97", "s31")]
            dma = list(dma) + [""] * (4 - len(dma))
            pv = [(f"s_waitcnt lgkmcnt({14 - 2*t})\n" if n_ == 0 else "") +
                  f"v_mfma_f32_16x16x32_bf16 {vr(OA+32*qi+4*t,4)}, {vr(VF+4*t,4)}, {vr(PP+4*qi,4)}, {'0' if first else vr(OA+32*qi+4*t,4)}"
                  for t in range(8) for n_, qi in enumerate(range(NQ - 1, -1, -1) if cfg.snake and t & 1 else range(NQ))]
            if not last:
                for x in kreads(): a(x)
                for x in ex[:8]: a(x)
                if NQ == 2: valu = [ex[8], cv[0], ex[9], cv[1], ex[10], cv[2], ex[11], cv[3], ex[12], ex[13], cv[4], ex[14], cv[5], ex[15], cv[6], cv[7]]
                else: valu = cv + ad[:4]
                fill = merge(spread(vrd, N), spread(valu, N))
                if cfg.early:
                    fill = merge(fill, spread(dma, N)); dma = [""] * 4
                emit_qk(qk(nxt), fill)
                a("s_nop 0")
                mt = tree(MX, T0, nxt, N)
                fill = merge(spread(ad if NQ == 2 else ad[4:], N - 1) + [[]], spread(dma, N - 1) + [[]], spread(mt, N - 1, N // 2 - 1) + [[]])
                for n, m in enumerate(pv):
                    a(m)
                    for f in fill[n]: a(f)
                stub, back = a.label("stub"), a.label("back")
                stubs.append((stub, back, 1 - par, NQ))
                a(f"v_cmp_lt_f32 vcc, s100, v{MX}\ns_mov_b32 s97, s96\ns_mov_b32 s96, s98\ns_mov_b32 s31, s30\ns_cbranch_vccnz {stub}\n{back}:")
            else:
                for x in vrd[:8]: a(x)
                for x in ex[:8] + cv[:4]: a(x)
                for x in vrd[8:]: a(x)
                for x in ex[8:] + cv[4:]: a(x)
                a("s_nop 0")
                fill = merge(spread(ad, N), spread(dma, N))
                for n, m in enumerate(pv):
                    a(m)
                    for f in fill[n]: a(f)
        def at(t): return "".join(touch_block(b, b) for b in range(1, 8) if ts[b - 1] == 100 + t)
        aw = int(cfg.await_)
        step(0, min(aw + 6, 14) if not cfg.qsplit else 26, first=True)
        step(1, min(aw + 2, 10))
        a(f"s_mov_b32 {sIT}, 0\nL_aloop{NQ}:")
        def inloop(par):
            out = ""
            for b in range(1, 8):
                t = ts[b - 1] - 100
                if 2 <= t < 12 and t & 1 == par:
                    lab = a.label("il")
                    out += f"s_cmp_lg_u32 {sIT}, {(t - 2) // 2}\ns_cbranch_scc1 {lab}\n" + touch_block(b, b) + f"{lab}:\n"
            d = [kpiece(0, "s96", "s30"), vpiece(0, "s97", "s31"), kpiece(1, "s96", "s30"), vpiece(1, "s97", "s31")]
            d[3] += "\n" + out
            return d
        step(0, aw, inloop(0), tight=True); step(1, aw, inloop(1), tight=True)
        a(f"s_add_u32 {sIT}, {sIT}, 1\ns_cmp_lt_u32 {sIT}, 5\ns_cbranch_scc1 L_aloop{NQ}")
        tw = [min(int(x), y) for x, y in zip(cfg.tw.split(","), (8, 6, 6, 8))]
        step(0, tw[0], [vpiece(0, "s97", "s31"), vpiece(1, "s97", "s31"), f"buffer_load_dword {VTAG}, v4, {S(SDBG)}, 0 offen {SC}", at(12)])
        wo_rows(0, "s5")
        a(f"""
        s_lshr_b32 s34, s3, 2
        s_lshl_b32 s35, s34, 16
        s_add_u32 s5, s5, s35
        s_lshl_b32 {sA}, {sWI}, 10
        s_add_u32 {sA}, {sA}, {WO0}
        s_lshl_b32 s35, s34, 14
        s_add_u32 {sBb}, {sA}, s35
        """)
        w = wo_pieces(sBb, 0, "s5"); w[3] += "\n" + at(13)
        step(1, tw[1], w)
        w = wo_pieces(sBb, 32768, "s5", 0x20000); w[3] += "\n" + at(14)
        step(0, tw[2], w)
        step(1, tw[3], [at(15)], last=True)
        stamp(4)
        for qi in range(NQ):
            across("v_add_f32", L_ + qi, T0)
            a(f"v_rcp_f32 v{L_+qi}, v{L_+qi}")
        a(f"s_mul_i32 s34, {sCQ}, 57344\ns_barrier\ns_cmp_ge_u32 s3, 4\ns_cbranch_scc1 L_epx{NQ}")
        epi(True, NQ)
        a(f"s_branch L_oload\nL_epx{NQ}:")
        epi(False, NQ)
        a("s_branch L_omm")
    attn(2)
    a("L_attn1:")
    attn(1)

    TBL = sum((d | h << 2 | g << 3) << (4 * b) for b, (d, h, g) in enumerate(map(blk, range(9))))
    def nblocks():
        if cfg.uneven: a(f"s_bitcmp1_b32 {sHG}, 0\ns_cselect_b32 s101, 7, 9")
        else: a("s_mov_b32 s101, 8")
    def decode(first):
        if first is not None: a(f"s_mov_b32 s92, {(TBL >> (4*first)) & 0xffffffff:#x}\ns_mov_b32 s93, {TBL >> (4*first + 32):#x}")
        else: a("s_lshr_b64 s[92:93], s[92:93], 4")
        a(f"s_add_u32 s5, s92, {sCQ}\ns_and_b32 s5, s5, 3\ns_bfe_u32 s6, s92, 0x20002")
    fa, st0, sper = int(cfg.fa), int(cfg.st0), int(cfg.sper)
    a(f"""
    L_oload:
    v_lshlrev_b32 v14, 4, v0
    s_cmp_ge_u32 s3, 2
    s_cbranch_scc1 L_ol2
    v_lshrrev_b32 v4, 5, v0
    s_lshl_b32 s35, s3, 2
    v_add_u32 v4, s35, v4
    v_and_b32 v5, 31, v0
    v_lshlrev_b32 v6, 1, v4
    v_xor_b32 v5, v5, v6
    v_lshlrev_b32 v4, 11, v4
    v_lshl_add_u32 v15, v5, 4, v4
    v_xor_b32 v13, 64, v15
    v_add_u32 v13, 4096, v13
    s_lshl_b32 {sA}, s3, 11
    s_add_u32 {sA}, {sA}, {WO0}
    s_mov_b32 {sIT}, 1
    """)
    nblocks()
    decode(0)
    a("s_waitcnt lgkmcnt(0)\ns_barrier\nL_owl:")
    decode(None)
    if cfg.mix: a("s_lshl_b32 s35, s5, 1\ns_and_b32 s35, s35, 4\ns_and_b32 s30, s5, 1\ns_add_u32 s30, s30, s35\ns_and_b32 s35, s6, 1\ns_lshl_b32 s35, s35, 1")
    else: a("s_lshl_b32 s30, s5, 1\ns_and_b32 s35, s6, 1")
    a("s_add_u32 s30, s30, s35\ns_lshr_b32 s35, s6, 1\ns_lshl_b32 s35, s35, 3\ns_add_u32 s30, s30, s35\ns_lshl_b32 s30, s30, 18")
    for p in range(4):
        a("s_waitcnt vmcnt(16)\ns_barrier")
        for n in range(4):
            a(f"s_add_u32 m0, {sA}, {p*16384 + n*4096}\ns_add_u32 s35, s30, {p*65536 + n*16384}\nbuffer_load_dwordx4 v15, {S(SWO)}, s35 offen lds")
            a(f"s_add_u32 m0, {sA}, {p*16384 + n*4096 + 1024}\ns_nop 0\nbuffer_load_dwordx4 v13, {S(SWO)}, s35 offen lds")
    a(f"s_add_u32 {sIT}, {sIT}, 1\ns_cmp_lt_u32 {sIT}, s101\ns_cbranch_scc1 L_owl")
    a("s_waitcnt vmcnt(16)\ns_barrier\ns_waitcnt vmcnt(8)\ns_barrier\ns_waitcnt vmcnt(0)\ns_barrier\ns_barrier")
    stamp(5)
    if cfg.sgrp != "o2": stamp_store(0, 0)
    a("s_branch L_end")
    def sample():
        a(f"""
        s_andn2_b32 s35, s2, 0x18
        s_lshl_b32 s34, s5, 3
        s_or_b32 s35, s35, s34
        s_lshr_b32 s34, s6, 1
        s_add_u32 s35, s35, s34
        s_lshl_b32 s35, s35, 5
        s_and_b32 s34, s6, 1
        s_add_u32 s35, s35, s34
        s_lshl_b32 s35, s35, 2
        s_add_u32 s35, s35, {FLAGS}
        v_mov_b32 v5, s35
        s_mul_i32 s32, s5, 57344
        s_mul_i32 s34, s34, 28672
        s_add_u32 s32, s32, s34
        s_lshr_b32 s34, s6, 1
        s_mul_i32 s34, s34, 229376
        s_add_u32 s32, s32, s34
        buffer_load_dword v13, v5, {S(SWS)}, 0 offen {SC}
        """)
    a("L_ol2:\ns_cmp_eq_u32 s3, 3\ns_cbranch_scc1 L_ol3")
    nblocks()
    decode(2)
    a(f"s_mov_b32 {sIT}, 2\ns_mov_b32 s33, 0\ns_waitcnt lgkmcnt(0)\ns_barrier")
    a(f"v_mov_b32 v4, 0\nv_cmp_eq_u32 vcc, 0, {VTAG}\ns_cbranch_vccz L_pt_out")
    poll("L_pt", SDBG, "v4", VTAG, "eq", "0")
    for u in range(5):
        if u == fa: a("s_waitcnt vmcnt(0)")
        a("s_barrier")
        if u == 4: sample()
    a("s_waitcnt vmcnt(0)\nL_ool:")
    for p in range(4):
        a("s_waitcnt vmcnt(7)\ns_barrier")
        if p == 0:
            a(f"s_mov_b32 s31, s32\nv_cmp_ne_u32 vcc, {VTAG}, v13\ns_cbranch_vccz L_po_out")
            poll("L_po", SWS, "v5", "v12", "ne", VTAG)
        if p == 2:
            decode(None); sample()
        for n in range(7):
            if n % 4 == 0: a(f"s_add_u32 m0, s33, {p*7168 + n*1024}\ns_add_u32 s35, s31, {p*7168 + n*1024}")
            a(f"buffer_load_dwordx4 v14, {S(SO)}, s35 offen offset:{(n&3)*1024} {SC} lds")
    a(f"s_xor_b32 s33, s33, 28672\ns_add_u32 {sIT}, {sIT}, 1\ns_cmp_lt_u32 {sIT}, s101\ns_cbranch_scc1 L_ool")
    a("s_waitcnt vmcnt(7)\ns_barrier\ns_waitcnt vmcnt(0)\ns_barrier\ns_barrier\ns_branch L_end")
    a(f"""
    L_ol3:
    v_add_u32 v7, 28672, v14
    s_mul_i32 s33, {sCQ}, 57344
    s_lshl_b32 s35, s2, 7
    s_add_u32 s35, s35, {FLAGS}
    v_mov_b32 v6, s35
    v_mov_b32 v4, 0
    s_waitcnt lgkmcnt(0)
    s_barrier
    """)
    for i in range(28): a(f"ds_read_b128 {vr(16+4*i,4)}, v7 offset:{i*1024}")
    a(f"v_cmp_eq_u32 vcc, 0, {VTAG}\ns_cbranch_vccz L_pt3_out")
    poll("L_pt3", SDBG, "v4", VTAG, "eq", "0")
    def flag(word): a(f"s_mov_b64 exec, 1\nbuffer_store_dword {VTAG}, v6, {S(SWS)}, 0 offen offset:{4*word} {SC}\ns_mov_b64 exec, -1")
    nst, young = 0, 0
    fb = st0 + -(-28 // sper) + 3
    assert fa < 4 and fb < 14
    for u in range(28):
        if u == fa: a(f"s_waitcnt vmcnt({nst + young})")
        a("s_barrier")
        if 5 <= u <= 11: stamp(u - 4, "o2")
        if u == fa: flag(0); young += nst == 28
        if u == st0: a("s_waitcnt lgkmcnt(0)")
        while u >= st0 and nst < min(28, (u - st0 + 1) * sper):
            if nst % 4 == 0: a(f"s_add_u32 s34, s33, {nst*1024}")
            a(f"buffer_store_dwordx4 {vr(16+4*nst,4)}, v7, {S(SO)}, s34 offen offset:{(nst&3)*1024} {SC}")
            nst += 1; young = 0
        if u == fb: a(f"s_waitcnt vmcnt({young})"); flag(1)
        for b in range(1, 9):
            if ts[b - 1] == u and (b < 8 or cfg.uneven):
                lab = a.label("lt")
                if cfg.uneven and b >= 7: a(f"s_bitcmp1_b32 {sHG}, 0\ns_cbranch_scc1 {lab}")
                wo_rows(b, "s6")
                a(f"buffer_load_dword {VD}, v3, {S(SWO)}, s6 offen {cfg.wopol}\n{lab}:")
                if not (cfg.uneven and b >= 7): young += 1
    if cfg.uneven: a(f"s_bitcmp1_b32 {sHG}, 0\ns_cbranch_scc1 L_ol3e\n" + "s_barrier\n" * 8 + "L_ol3e:")
    else: a("s_barrier\n" * 4)
    if cfg.sgrp == "o2": stamp_store(3, 0)
    a("s_branch L_end")

    a(f"""
    L_omm:
    v_lshlrev_b32 v14, 4, v0
    """)
    def oreads(u):
        fb = FB + 44 * (u & 1)
        r = [f"ds_read_b64_tr_b16 {vr(fb+4*t+2*j,2)}, v{240+t} offset:{(u%4)*16384 + j*8192}" for t in range(4) for j in range(2)]
        xs = [f"ds_read_b128 {vr(fb+16+4*qt,4)}, v14 offset:{(u%8)*7168 + qt*1024}" for qt in range(7)]
        return r[:2] + xs[:1] + r[2:] + xs[1:]
    nblocks()
    a("v_mov_b32 v4, 0\ns_waitcnt vmcnt(4) lgkmcnt(0)\ns_barrier")
    stamp(5)
    if cfg.sgrp == "L_o": stamp(0)
    for r in oreads(0): a(r)
    a(f"""
    s_lshl_b32 s30, {sBR}, 3
    s_add_u32 s30, s30, {sB}
    s_lshl_b32 s30, s30, 2
    s_add_u32 s30, s30, {sCQ}
    s_mul_i32 s30, s30, {12*16384}
    s_lshl_b32 s35, {sWI}, 12
    s_add_u32 s30, s30, s35
    s_add_u32 s30, s30, {RED}
    s_mul_i32 s35, {sB}, 458752
    s_lshl_b32 s34, {sBR}, 11
    s_add_u32 s35, s35, s34
    s_lshl_b32 s34, {sCQ}, 9
    s_add_u32 s35, s35, s34
    s_lshl_b32 s34, {sHG}, 7
    s_add_u32 s35, s35, s34
    s_sub_u32 s34, 3670016, s35
    """)
    srd_off(a, SOUT, "s24", "s25", "s35", "s34")
    for tau in range(1, 4):
        a(f"s_add_u32 s35, {sHG}, {tau}\ns_and_b32 s35, s35, 3\ns_mul_i32 s35, s35, {3*16384}\ns_add_u32 s35, s35, s30\ns_add_u32 s{4+tau}, s35, {(tau-1)*16384}")
    a(f"""
    s_mul_i32 s35, {sHG}, {3*16384}
    s_add_u32 s8, s30, s35
    s_add_u32 s9, s8, 16384
    s_add_u32 s10, s8, 32768
    v_and_b32 v7, 15, v0
    v_lshlrev_b32 v7, 12, v7
    v_lshrrev_b32 v9, 4, v0
    v_lshl_add_u32 v7, v9, 3, v7
    s_lshl_b32 s35, {sWI}, 5
    v_add_u32 v7, s35, v7
    s_lshl_b32 s35, s2, 7
    s_lshl_b32 s34, {sWI}, 2
    s_add_u32 s34, s34, {FLAGS + 16}
    s_add_u32 s35, s35, s34
    v_mov_b32 v5, s35
    v_min_u32 v6, 2, v0
    v_sub_u32 v6, {sHG}, v6
    v_add_u32 v6, -1, v6
    v_and_b32 v6, 3, v6
    s_andn2_b32 s35, s2, 3
    v_or_b32 v6, s35, v6
    v_lshlrev_b32 v6, 7, v6
    v_add_u32 v6, s34, v6
    v_lshlrev_b32 v15, 3, v0
    s_mov_b32 s12, 0x3f80
    s_mov_b32 s13, 0x3f800000
    """)
    RB = FB
    def box_loads(s_):
        return ([f"buffer_load_dwordx4 {vr(RB+16*s_+4*pr,4)}, v14, {S(SWS)}, s{8+s_} offen offset:{pr*1024} {SC}" for pr in range(3)]
                + [f"buffer_load_dwordx2 {vr(RB+16*s_+12,2)}, v15, {S(SWS)}, s{8+s_} offen offset:3072 {SC}"])
    sends = []
    for tau in range(1, 4):
        for pr in range(4):
            b = ACC + 4 * (tau * 7 + 2 * pr)
            sends += [f"v_cvt_pk_bf16_f32 v{b+i}, v{b+2*i}, v{b+2*i+1}\nv_cvt_pk_bf16_f32 v{b+i+1}, v{b+2*i+2}, v{b+2*i+3}" for i in range(0, 4 if pr < 3 else 2, 2)]
            sends[-1] += (f"\nbuffer_store_dwordx4 {vr(b,4)}, v14, {S(SWS)}, s{4+tau} offen offset:{pr*1024} {SC}" if pr < 3 else
                          f"\nbuffer_store_dwordx2 {vr(b,2)}, v15, {S(SWS)}, s{4+tau} offen offset:3072 {SC}")
    if cfg.twopass:
        assert not cfg.uneven and not cfg.snake
        gloop("L_o", 8, 7, oreads, {2: " vmcnt(0)"})
        W0 = 216
        def keep(u, r): return [x.replace(vr(FB+44*(u&1),2) + ",", vr(W0+4*(u&3),2) + ",").replace(vr(FB+44*(u&1)+2,2) + ",", vr(W0+4*(u&3)+2,2) + ",") for x in r]
        def oagain(p, buf): return [f"ds_read_b128 {vr(FB+44*buf+16+4*qt,4)}, v14 offset:{(4+p)*7168 + qt*1024}" for qt in range(7)]
        for p in range(4):
            a("s_waitcnt lgkmcnt(0)\ns_barrier")
            if p == 0:
                for i in range(4): a(f"v_mov_b32 v{W0+i}, v{FB+i}")
            rd = keep(5 + p, oreads(5 + p)) if p < 3 else oagain(0, 0)
            weave(a, [m for n, m in enumerate(gmf(p)) if n % 4], rd)
        stamp(6)
        for p in range(4):
            fb = FB + 44 * (p & 1)
            a("s_waitcnt lgkmcnt(0)")
            rd = oagain(p + 1, (p + 1) & 1) if p < 3 else [""] * 7
            mf = [f"v_mfma_f32_16x16x32_bf16 {vr(ACC+4*qt,4)}, {vr(W0+4*p,4)}, {vr(fb+16+4*qt,4)}, {vr(ACC+4*qt,4)}" for qt in range(7)]
            for n, m in enumerate(mf):
                a(m); a(rd[n])
                if sends and (p or n >= 2): a(sends.pop(0))
        for x in sends: a(x)
    else:
        gloop("L_o", 8, "s101", oreads, {2: " vmcnt(0)"})
        stamp(6)
        for x in sends: a(x)
    a(f"v_cmp_eq_u32 vcc, 0, {VTAG}\ns_cbranch_vccz L_pt2_out")
    poll("L_pt2", SDBG, "v4", VTAG, "eq", "0")
    a(f"""
    s_waitcnt lgkmcnt(0) vmcnt(0)
    buffer_load_dword v9, v6, {S(SWS)}, 0 offen {SC}
    s_mov_b64 exec, 1
    buffer_store_dword {VTAG}, v5, {S(SWS)}, 0 offen {SC}
    s_mov_b64 exec, -1
    """)
    stamp(1)
    a(f"""
    s_mov_b32 s30, 7
    s_mov_b32 {sU}, 0
    s_waitcnt vmcnt(1)
    L_rx:
    v_cmp_eq_u32 vcc, {VTAG}, v9
    s_add_u32 {sU}, {sU}, 1
    s_nop 0
    s_cmp_ge_u32 {sU}, {cfg.spin}
    s_cselect_b32 s31, 7, vcc_lo
    s_and_b32 s31, s31, s30
    s_andn2_b32 s30, s30, s31
    """)
    for s_ in range(3):
        a(f"s_bitcmp1_b32 s31, {s_}\ns_cbranch_scc0 L_rx_l{s_}")
        for x in box_loads(s_): a(x)
        a(f"L_rx_l{s_}:")
    a(f"""
    s_cmp_eq_u32 s30, 0
    s_cbranch_scc1 L_rx_done
    buffer_load_dword v9, v6, {S(SWS)}, 0 offen {SC}
    s_waitcnt vmcnt(0)
    s_branch L_rx
    L_rx_done:
    s_waitcnt vmcnt(0)
    """)
    for s_ in range(3):
        for qt in range(7):
            for i in range(4):
                a(f"v_dot2_f32_bf16 v{ACC+4*qt+i}, v{RB+16*s_+2*qt+(i>>1)}, s{12+(i&1)}, v{ACC+4*qt+i}")
    stamp(2)
    for qt in range(7):
        b = ACC + 4 * qt
        a(f"v_cvt_pk_bf16_f32 v{b}, v{b}, v{b+1}\nv_cvt_pk_bf16_f32 v{b+1}, v{b+2}, v{b+3}")
        a(f"s_mov_b32 s35, {qt*65536}\nbuffer_store_dwordx2 {vr(b,2)}, v7, {S(SOUT)}, s35 offen {cfg.outpol.replace('+', ' ')}")
    if cfg.stamps: a("s_waitcnt vmcnt(0)")
    stamp(7)
    stamp_store(4, 256)
    a("L_end:\ns_endpgm")
    for stub, back, par, NQ in stubs:
        a(f"{stub}:\ns_call_b64 s[98:99], L_rare{par}{NQ}\ns_branch {back}")
    for NQ in (2, 1):
        for par in range(2):
            a(f"L_rare{par}{NQ}:")
            for qi in range(NQ):
                sb = SS + 16 * par + 8 * qi
                for x in tree(MX, T0, sb, 8): a(x)
                across("v_max_f32", MX, T0)
                a(f"v_max_f32 v{MX}, 0, v{MX}\nv_exp_f32 v{T0}, -v{MX}")
                for i in range(8): a(f"v_sub_f32 v{sb+i}, v{sb+i}, v{MX}")
                for i in range(4): a(f"v_sub_f32 v{NM+4*qi+i}, v{NM+4*qi+i}, v{MX}")
                a(f"v_mul_f32 v{L_+qi}, v{L_+qi}, v{T0}")
                for i in range(32): a(f"v_mul_f32 v{OA+32*qi+i}, v{OA+32*qi+i}, v{T0}")
            a("s_setpc_b64 s[98:99]")
    return re.sub(r" +\n", "\n", a.text().replace("offen  lds", "offen lds")).replace(" KVPOL", " " + cfg.kvpol.replace("+", " ") if cfg.kvpol else "")

HEADER = """; Kernarg layout (104 bytes, pointers only, base s[0:1]):
"""

def build(cfg):
    K = NAME + "_kernel"
    body = kernel_head(K) + kernel(cfg) + kernel_desc(K, 248, 248)
    tgt = '.amdgcn_target "amdgcn-amd-amdhsa--gfx950"\n'
    if cfg.echo:
        from gen2 import echo_kernel
        hdr = f"; @launch kernel={K} grid=(256,1,1) block=(512,1,1) lds=163840\n; @launch kernel=echo_kernel grid=(1,1,1) block=(64,1,1) lds=0\n"
        return hdr + tgt + kernel_head("echo_kernel") + echo_kernel(cfg) + kernel_desc("echo_kernel", 8, 8) + body
    return HEADER + "; @launch grid=(256,1,1) block=(512,1,1) lds=163840\n" + tgt + body

if __name__ == "__main__":
    cfg = Cfg()
    for kv in sys.argv[2:]:
        k, v = kv.split("=")
        assert hasattr(cfg, k), k
        setattr(cfg, k, {"True": True, "False": False}.get(v, v))
    open(sys.argv[1], "w").write(build(cfg))
```

```python
import sys, math, struct, re
from asmlib import *

class Cfg:
    stamps = False
    sgrp = "main"
    kvpol = "nt"
    qord = "rot"
    kv0 = 4
    kvper = 1
    await_ = 8
    early = False
    tsched = "112,113,113,114,114,115,115,12"
    fa = 2
    st0 = 5
    sper = 7
    mix = False
    uneven = False
    outpol = ""
    aeven = 4
    brlow = True
    tbit = 2
    tpol = 1
    tn = 5
    peelq = False
    twopass = False
    snake = True
    prio = 1
    lv = "4,4"
    tw = "8,6,6,8"
    wqpol = ""
    wopol = ""
    qsplit = False
    kvs = 16
    kvn = 4
    tlb = 0
    echo = ""
    abl = ""
    spin = 400000

WQ0 = 28672
KT, HSTEP, SLOTB = 8448, 17152, 34304
SA_, SB_, SC_, SD_ = 94208, 128512, 0, 34304
HO, WO0 = 36864, 94208
RED, FLAGS = 16 << 20, 48 << 20
SX, SW, SK, SV, SO, SWO, SWS = 36, 40, 44, 48, 52, 56, 60
SOUT, SDBG = SX, SW
sBR, sHG, sCQ, sB, sWI, sIT, sA, sBb, sT, sU, sH0, sROT = ("s%d" % i for i in range(80, 92))
SC = "sc1"
VTAG, VD = "v236", "v237"
ACC, FB = 16, 128
def S(d): return f"s[{d}:{d+3}]"

def srd_off(a, d, lo, hi, off_reg, nbytes):
    a(f"s_add_u32 s{d}, {lo}, {off_reg}\ns_addc_u32 s{d+1}, {hi}, 0\ns_and_b32 s{d+1}, s{d+1}, 0xffff")
    a(f"s_mov_b32 s{d+2}, {nbytes}\ns_mov_b32 s{d+3}, 0x00020000")

def weave(a, mf, fill):
    fill = list(fill)
    for m in mf:
        a(m)
        if fill: a(fill.pop(0))
    for f in fill: a(f)

def kernel(cfg):
    a = A()
    HD = 262144 if cfg.mix else 131072
    def stamp(i, grp="main"):
        if cfg.stamps and (grp == cfg.sgrp or i == 0): a(f"s_memrealtime s[{64+2*i}:{65+2*i}]")
    def stamp_store(wave, wgoff):
        if not cfg.stamps: return
        a(f"s_cmp_lg_u32 s3, {wave}\ns_cbranch_scc1 L_end")
        a(f"s_waitcnt lgkmcnt(0)\ns_add_u32 s3, s2, {wgoff}\ns_lshl_b32 s3, s3, 7\ns_add_u32 s3, s3, {STAMP_OFF}\nv_mov_b32 v1, s3")
        for q in range(4):
            for j in range(4): a(f"v_mov_b32 v{4+j}, s{64+4*q+j}")
            a(f"buffer_store_dwordx4 v[4:7], v1, {S(SWS)}, 0 offen offset:{16*q}\ns_nop 2")
        a("s_waitcnt vmcnt(0)")
    def poll(lab, srdn, vaddr, vtmp, cmp, want):
        a(f"""
        s_mov_b32 {sU}, 0
        {lab}:
        buffer_load_dword {vtmp}, {vaddr}, {S(srdn)}, 0 offen {SC}
        s_add_u32 {sU}, {sU}, 1
        s_waitcnt vmcnt(0)
        v_cmp_{cmp}_u32 vcc, {want}, {vtmp}
        s_cmp_ge_u32 {sU}, {cfg.spin}
        s_cbranch_scc1 {lab}_out
        s_cbranch_vccnz {lab}
        {lab}_out:
        """)
    def select(pairs):
        a("s_bitcmp0_b32 s2, 2")
        for p in pairs: a(f"s_cselect_b64 s[{p}:{p+1}], s[{p}:{p+1}], s[{p+10}:{p+11}]")
    def other_srds():
        select((6, 8, 12))
        a(f"s_lshl_b32 s35, {sB}, 22\ns_lshl_b32 s34, {sH0}, 17\ns_add_u32 s35, s35, s34")
        srd_off(a, SK, "s6", "s7", "s35", HD + 131072)
        srd_off(a, SV, "s8", "s9", "s35", HD + 131072)
        a(f"s_lshl_b32 s35, {sBR}, 3\ns_add_u32 s35, s35, {sB}\ns_lshl_b32 s35, s35, 2\ns_add_u32 s35, s35, {sHG}\ns_mul_i32 s35, s35, 229376")
        srd_off(a, SO, "s28", "s29", "s35", 2 * 229376)
        a(f"s_lshl_b32 s35, {sHG}, 21\ns_lshl_b32 s34, {sCQ}, 9\ns_add_u32 s35, s35, s34\ns_sub_u32 s34, 0x800000, s35")
        srd_off(a, SWO, "s12", "s13", "s35", "s34")
        srd(a, SWS, "s28", "s29", 0x10000000)
        a(f"s_lshr_b32 {sROT}, s2, 3\ns_lshr_b32 s35, s2, 7\ns_add_u32 {sROT}, {sROT}, s35\ns_lshl_b32 s35, s2, 1\n"
          f"s_add_u32 {sROT}, {sROT}, s35\ns_and_b32 {sROT}, {sROT}, 15\ns_lshl_b32 {sROT}, {sROT}, 13")

    a("s_cmp_ge_u32 s2, 256\ns_cbranch_scc1 L_end")
    stamp(0)
    a("s_load_dwordx16 s[4:19], s[0:1], 0\ns_load_dwordx8 s[20:27], s[0:1], 64\ns_load_dwordx2 s[28:29], s[0:1], 96")
    if cfg.brlow: a("s_bfe_u32 s3, s2, 0x20001\ns_and_b32 s30, s2, 1\ns_lshl_b32 s30, s30, 2\ns_or_b32 s3, s3, s30\ns_andn2_b32 s2, s2, 7\ns_or_b32 s2, s2, s3")
    a(f"""
    v_lshrrev_b32 v1, 6, v0
    v_and_b32 v0, 63, v0
    v_readfirstlane_b32 s3, v1
    s_bfe_u32 {sBR}, s2, 0x10002
    s_and_b32 {sHG}, s2, 3
    s_bfe_u32 {sCQ}, s2, 0x20003
    s_lshr_b32 {sB}, s2, 5
    s_lshl_b32 {sH0}, {sHG}, 3
    """)
    if cfg.mix: a(f"s_lshl_b32 s35, {sCQ}, 1\ns_and_b32 s35, s35, 4\ns_add_u32 {sH0}, {sH0}, s35\ns_and_b32 s35, {sCQ}, 1\ns_add_u32 {sH0}, {sH0}, s35")
    else: a(f"s_lshl_b32 s35, {sCQ}, 1\ns_add_u32 {sH0}, {sH0}, s35")
    a(f"s_and_b32 {sWI}, s3, 3\ns_cmp_lt_u32 s3, 4\ns_cbranch_scc1 L_qmm")

    if cfg.qsplit:
        a("; ---- Q projection, loader waves: 4,5 wq; 6 x; 7 first K/V tiles")
        kv_src = "v_lshrrev_b32 v4, 4, v0\nv_and_b32 v5, 15, v0\nv_lshlrev_b32 v4, 11, v4\nv_lshl_add_u32 v2, v5, 4, v4"
        assert cfg.qord in ("rot", "none") and not cfg.mix and not cfg.peelq
        if cfg.qord == "rot": a(f"s_xor_b32 s35, {sB}, {sCQ}\ns_and_b32 s35, s35, 1\ns_lshl_b32 s30, s35, 22\ns_lshl_b32 s31, s35, 10")
        else: a("s_mov_b32 s30, 0\ns_mov_b32 s31, 0")
        a(f"""
        s_cmp_ge_u32 s3, 6
        s_cbranch_scc1 L_ql6
        v_lshrrev_b32 v4, 5, v0
        v_and_b32 v5, 31, v0
        s_lshl_b32 s35, {sWI}, 1
        v_add_u32 v4, s35, v4
        v_lshlrev_b32 v6, 1, v4
        v_xor_b32 v5, v5, v6
        v_lshlrev_b32 v4, 13, v4
        v_lshl_add_u32 v10, v5, 4, v4
        v_xor_b32 v12, 0x80, v10
        v_add_u32 v12, 0x10000, v12     ; rows 8-15
        s_lshl_b32 {sA}, {sWI}, 10
        s_add_u32 {sA}, {sA}, {WQ0}
        s_lshl_b32 s32, {sH0}, 8
        s_sub_u32 s34, 0x800000, s32
        s_waitcnt lgkmcnt(0)
        """)
        select((10,))
        srd_off(a, SW, "s10", "s11", "s32", "s34")
        def issue_wq(slot):
            for pc in (0, 2, 8, 10):
                a(f"s_add_u32 m0, {sA}, {slot*16384 + pc*1024}\ns_add_u32 s35, s30, {pc*16384}\nbuffer_load_dwordx4 v10, {S(SW)}, s35 offen lds")
                a(f"s_add_u32 m0, {sA}, {slot*16384 + (pc+4)*1024}\ns_nop 0\nbuffer_load_dwordx4 v12, {S(SW)}, s35 offen lds")
            a("s_add_u32 s30, s30, 0x40000\ns_and_b32 s30, s30, 0x7fffff")
        stamp(1, "s")
        issue_wq(0); issue_wq(1)
        other_srds()
        a(kv_src)
        a("s_waitcnt vmcnt(8)\ns_barrier")
        issue_wq(2)
        a("s_waitcnt vmcnt(8)\ns_barrier")
        issue_wq(3); issue_wq(0)
        a(f"s_mov_b32 {sIT}, 0\ns_branch L_qwmid\nL_qw:")
        for u in range(4):
            a("s_waitcnt vmcnt(16)\ns_barrier")
            issue_wq(u)
            if u == 0: a("L_qwmid:")
        a(f"s_add_u32 {sIT}, {sIT}, 1\ns_cmp_lt_u32 {sIT}, 7\ns_cbranch_scc1 L_qw")
        a("s_waitcnt vmcnt(16)\ns_barrier\ns_waitcnt vmcnt(8)\ns_barrier\ns_waitcnt vmcnt(0)\ns_barrier\ns_barrier\ns_branch L_qlend")
        a(f"""
        L_ql6:
        s_cmp_eq_u32 s3, 7
        s_cbranch_scc1 L_ql7
        v_lshrrev_b32 v4, 3, v0
        v_and_b32 v5, 7, v0
        v_lshrrev_b32 v6, 1, v4
        v_xor_b32 v5, v5, v6
        v_lshlrev_b32 v4, 11, v4
        v_lshl_add_u32 v10, v5, 4, v4
        v_xor_b32 v12, 64, v10
        v_add_u32 v12, 0x4000, v12
        s_mul_i32 s33, {sB}, 229376
        s_waitcnt lgkmcnt(0)
        """)
        select((4,))
        srd_off(a, SX, "s4", "s5", "s33", 229376)
        def issue_x(slot):
            for n in range(7):
                a(f"s_mov_b32 m0, {slot*14336 + n*2048}\ns_add_u32 s35, s31, {n*32768}\nbuffer_load_dwordx4 v10, {S(SX)}, s35 offen lds")
                a(f"s_mov_b32 m0, {slot*14336 + n*2048 + 1024}\ns_nop 0\nbuffer_load_dwordx4 v12, {S(SX)}, s35 offen lds")
            a("s_add_u32 s31, s31, 128\ns_and_b32 s31, s31, 2047")
        issue_x(0)
        other_srds()
        a(kv_src)
        a("s_waitcnt vmcnt(0)\ns_barrier")
        issue_x(1)
        a(f"s_mov_b32 {sIT}, 0\nL_qx:")
        for h in range(2):
            a("s_barrier\ns_waitcnt vmcnt(0)\ns_barrier")
            issue_x(h)
        a(f"s_add_u32 {sIT}, {sIT}, 1\ns_cmp_lt_u32 {sIT}, 7\ns_cbranch_scc1 L_qx")
        a("s_barrier\ns_waitcnt vmcnt(0)\ns_barrier\ns_barrier\ns_barrier\ns_branch L_qlend\nL_ql7:\ns_waitcnt lgkmcnt(0)")
        other_srds()
        a(kv_src)
        a(f"s_add_u32 s33, {sROT}, 8192\ns_and_b32 s33, s33, 0x1ffff\ns_barrier")
        kvl = [(tile, hd, i, isv) for tile in range(2) for isv in range(2) for hd in range(2) for i in range(8)]
        for u in range(32):
            a("s_barrier")
            for _ in range(int(cfg.kvn) if u >= int(cfg.kvs) else 0):
                if kvl:
                    tile, hd, i, isv = kvl.pop(0)
                    a(f"s_mov_b32 m0, {(SA_, SB_)[tile] + hd*HSTEP + isv*KT + i*1056}\ns_add_u32 s35, {(sROT, 's33')[tile]}, {hd*HD + i*256}")
                    a(f"buffer_load_dwordx4 v2, {S(SV if isv else SK)}, s35 offen KVPOL lds")
        assert not kvl
        a(f"""
        L_qlend:
        s_mul_i32 s96, {sWI}, 1056
        s_lshl_b32 s32, {sWI}, 8
        s_barrier
        """)
        def kv_piece(tile, hd, n, isv, slot):
            a(f"s_add_u32 s35, {sROT}, {tile*8192}\ns_and_b32 s35, s35, 0x1ffff\ns_add_u32 s35, s35, s32")
            a(f"s_add_u32 m0, s96, {slot + hd*HSTEP + isv*KT + n*4224}\ns_add_u32 s35, s35, {hd*HD + n*1024}")
            a(f"buffer_load_dwordx4 v2, {S(SV if isv else SK)}, s35 offen KVPOL lds")
        for isv in range(2):
            for hd in range(2):
                for n in range(2): kv_piece(2, hd, n, isv, SC_)
        a("s_waitcnt vmcnt(56)\ns_branch L_join")

    else:
        a("; ---- Q projection, loader waves 4-7")
        a(f"""
        v_lshrrev_b32 v4, 5, v0
        v_and_b32 v5, 31, v0
        s_and_b32 s35, {sWI}, 1
        s_lshr_b32 s34, {sWI}, 1
        s_lshl_b32 {sA}, s35, 1
        s_lshl_b32 {sBb}, s34, 2
        s_add_u32 {sT}, {sA}, {sBb}
        v_add_u32 v6, {sT}, v4
        v_lshlrev_b32 v6, 1, v6
        v_xor_b32 v5, v5, v6
        s_lshl_b32 {sBb}, s34, 3
        s_add_u32 {sA}, {sA}, {sBb}
        v_add_u32 v4, {sA}, v4
        v_lshlrev_b32 v4, 13, v4
        v_lshl_add_u32 v10, v5, 4, v4
        """)
        if cfg.mix: a("v_and_b32 v5, 16, v5\nv_lshl_add_u32 v10, v5, 4, v10")
        a(f"""
        s_lshl_b32 {sA}, {sA}, 9
        s_add_u32 {sA}, {sA}, {WQ0}
        v_lshrrev_b32 v4, 3, v0
        v_and_b32 v5, 7, v0
        v_lshrrev_b32 v6, 1, v4
        s_lshl_b32 {sBb}, s35, 2
        v_add_u32 v6, {sBb}, v6
        v_xor_b32 v5, v5, v6
        s_lshl_b32 {sBb}, {sWI}, 3
        v_add_u32 v4, {sBb}, v4
        v_lshlrev_b32 v4, 11, v4
        v_lshl_add_u32 v11, v5, 4, v4
        s_lshl_b32 {sBb}, {sWI}, 10
        s_xor_b32 s35, {sB}, {sCQ}
        s_and_b32 s35, s35, 1
        """)
        alt = cfg.qord not in ("rot", "none")
        if alt:
            for g in range(2):
                if cfg.qord == "alt2": o = [g] + [(t + 1 + g if t & 1 else t - 1 - g) for t in range(1, 15)] + [15 - g]
                elif cfg.qord[0] == "h":
                    n = int(cfg.qord[1:]); r = list(range(n, 16)); h = len(r) // 2
                    o = list(range(n)) + (r if g == 0 else r[h:] + r[:h])
                else:
                    n = int(cfg.qord[1:]); o = []
                    for j in range(0, 16, 2 * n): o += list(range(j + g * n, j + g * n + n)) + list(range(j + (1 - g) * n, j + (1 - g) * n + n))
                assert sorted(o) == list(range(16))
                v = sum(st << (4 * t) for t, st in enumerate(o))
                a(f"s_cmp_eq_u32 s35, {g}\ns_cselect_b32 s98, {v & 0xffffffff:#x}, s98\ns_cselect_b32 s99, {v >> 32:#x}, s99")
            a("s_mov_b64 s[92:93], s[98:99]\ns_and_b32 s35, s98, 15\ns_lshl_b32 s30, s35, 19\ns_lshl_b32 s31, s35, 7")
        elif cfg.qord == "rot": a("s_lshl_b32 s30, s35, 22\ns_lshl_b32 s31, s35, 10")
        else: a("s_mov_b32 s30, 0\ns_mov_b32 s31, 0")
        a(f"s_mul_i32 s33, {sB}, 229376\ns_lshl_b32 s32, {sH0}, 8\ns_sub_u32 s34, 0x800000, s32\ns_waitcnt lgkmcnt(0)")
        select((4, 10))
        srd_off(a, SX, "s4", "s5", "s33", 229376)
        srd_off(a, SW, "s10", "s11", "s32", "s34")
        def issue_wq(slot):
            for pc in (0, 2, 8, 10):
                a(f"s_add_u32 m0, {sA}, {slot*16384 + pc*1024}\ns_add_u32 s35, s30, {pc*16384}\nbuffer_load_dwordx4 v10, {S(SW)}, s35 offen {cfg.wqpol} lds")
            if alt and (slot & 1): a("s_lshr_b64 s[98:99], s[98:99], 4\ns_and_b32 s30, s98, 15\ns_lshl_b32 s30, s30, 19")
            else: a("s_add_u32 s30, s30, 0x40000\ns_and_b32 s30, s30, 0x7fffff")
        def issue_x(slot):
            lab = a.label("xs")
            for n in range(4):
                if n == 3: a(f"s_cmp_ge_u32 {sWI}, 2\ns_cbranch_scc1 {lab}")
                a(f"s_add_u32 m0, {sBb}, {slot*14336 + n*4096}\ns_add_u32 s35, s31, {n*65536}\nbuffer_load_dwordx4 v11, {S(SX)}, s35 offen lds")
            if alt: a(f"{lab}:\ns_lshr_b64 s[92:93], s[92:93], 4\ns_and_b32 s31, s92, 15\ns_lshl_b32 s31, s31, 7")
            else: a(f"{lab}:\ns_add_u32 s31, s31, 128\ns_and_b32 s31, s31, 2047")
        def kv_piece(tile, hd, n, isv, slot):
            a(f"s_add_u32 s35, {sROT}, {tile*8192}\ns_and_b32 s35, s35, 0x1ffff\ns_add_u32 s35, s35, s32")
            a(f"s_add_u32 m0, s96, {slot + hd*HSTEP + isv*KT + n*4224}\ns_add_u32 s35, s35, {hd*HD + n*1024}")
            a(f"buffer_load_dwordx4 v2, {S(SV if isv else SK)}, s35 offen KVPOL lds")
        kv_src = "v_lshrrev_b32 v4, 4, v0\nv_and_b32 v5, 15, v0\nv_lshlrev_b32 v4, 11, v4\nv_lshl_add_u32 v2, v5, 4, v4"
        stamp(1, "s")
        issue_x(0); issue_wq(0); issue_wq(1)
        stamp(2, "s")
        other_srds()
        a(kv_src)
        a(f"s_mul_i32 s96, {sWI}, 1056\ns_lshl_b32 s32, {sWI}, 8\ns_waitcnt vmcnt(4)\ns_barrier")
        issue_x(1); issue_wq(2)
        a("s_waitcnt vmcnt(7)\ns_barrier")
        issue_wq(3); issue_wq(0)
        kv0 = int(cfg.kv0)
        kvl = [(tile, hd, n, isv) for tile in range(2) for isv in range(2) for hd in range(2) for n in range(2)]
        a(f"s_mov_b32 {sIT}, 0\ns_branch L_qlmid\nL_qlloop:")
        for u in range(4):
            a(f"s_waitcnt vmcnt({8 if u & 1 else 11})\ns_barrier")
            if u & 1: issue_x((u >> 1) & 1)
            issue_wq(u)
            if u == 0: a("L_qlmid:")
        a(f"s_add_u32 {sIT}, {sIT}, 1\ns_cmp_lt_u32 {sIT}, {kv0}\ns_cbranch_scc1 L_qlloop")
        q = []
        for u in range(4 * kv0 - 4, 4 * kv0):
            if u & 1: q.append(("x", (u >> 1) + 2, 3))
            q.append(("w", u + 4, 4))
        for u in range(4 * kv0, 32):
            need = [i for i, e in enumerate(q) if (e[0] == "w" and e[1] <= u + 1) or (e[0] == "x" and e[1] <= (u + 1) >> 1)]
            if need:
                a(f"s_waitcnt vmcnt({sum(e[2] for e in q[max(need) + 1:])})")
                q = q[max(need) + 1:]
            a("s_barrier")
            if (u & 1) and (u >> 1) + 2 < 16: issue_x((u >> 1) & 1); q.append(("x", (u >> 1) + 2, 3))
            if u + 4 < 32: issue_wq(u % 4); q.append(("w", u + 4, 4))
            for _ in range(int(cfg.kvper)):
                if kvl:
                    tile, hd, n, isv = kvl.pop(0)
                    kv_piece(tile, hd, n, isv, (SA_, SB_)[tile]); q.append(("k", 0, 1))
        if not cfg.peelq: a("s_barrier")
        for tile, hd, n, isv in kvl: kv_piece(tile, hd, n, isv, (SA_, SB_)[tile])
        for isv in range(2):
            for hd in range(2):
                for n in range(2): kv_piece(2, hd, n, isv, SC_)
        a("s_waitcnt vmcnt(20)\ns_branch L_join")

    def gmf(u, zero=False):
        fb = FB + 44 * (u & 1)
        return [f"v_mfma_f32_16x16x32_bf16 {vr(ACC+4*(t*7+qt),4)}, {vr(fb+4*t,4)}, {vr(fb+16+4*qt,4)}, {'0' if zero else vr(ACC+4*(t*7+qt),4)}"
                for qt in range(7) for t in (range(3, -1, -1) if cfg.snake and qt & 1 else range(4))]
    def gloop(name, period, blocks, reads, pre, cut=None):
        if int(cfg.prio): a(f"s_setprio {cfg.prio}")
        a("s_waitcnt lgkmcnt(0)\ns_barrier")
        weave(a, gmf(0, True), reads(1))
        a(f"s_mov_b32 {sIT}, 0\ns_branch {name}_mid\n{name}:")
        for u in range(period):
            a(f"s_waitcnt lgkmcnt(0){pre.get(u, '')}\ns_barrier")
            ex = [f"s_cmp_eq_u32 {sIT}, {cut}"] if cut is not None and u == 2 else []
            weave(a, gmf(u), reads(u + 1) + ex)
            if ex: a(f"s_cbranch_scc1 {name}_out")
            if u == 0: a(f"{name}_mid:")
            if u % 4 == 3:
                if cfg.stamps and cfg.sgrp == name:
                    for i in range(u // 4, 7, period // 4):
                        lab = a.label("st")
                        a(f"s_cmp_lg_u32 {sIT}, {i}\ns_cbranch_scc1 {lab}")
                        stamp(1 + i, name)
                        a(f"{lab}:")
                a(f"s_add_u32 {sIT}, {sIT}, 1\ns_cmp_lt_u32 {sIT}, {blocks}")
                a(f"s_cbranch_scc1 {name}" if u == period - 1 else f"s_cbranch_scc0 {name}_out")
        a(f"{name}_out:")
        if int(cfg.prio): a("s_setprio 0")
    cbits = struct.unpack("<I", struct.pack("<f", (128 ** -0.5) * math.log2(math.e)))[0]
    a(f"""
    L_qmm:
    v_lshrrev_b32 v4, 4, v0         ; g4
    v_bfe_u32 v5, v0, 2, 2          ; r
    v_and_b32 v6, 3, v0             ; c
    v_lshl_add_u32 v7, v4, 3, v5
    v_lshlrev_b32 v7, 9, v7
    v_lshrrev_b32 v9, 1, v6
    v_lshl_add_u32 v7, v9, 4, v7
    v_and_b32 v9, 1, v6
    v_lshl_add_u32 v7, v9, 3, v7
    s_lshr_b32 s35, {sWI}, 1
    s_lshl_b32 s35, s35, 8
    s_add_u32 s35, s35, {WQ0}
    v_add_u32 v7, s35, v7
    v_and_b32 v9, 1, v4
    v_lshl_or_b32 v9, v9, 2, v5
    s_and_b32 s35, {sWI}, 1
    s_lshl_b32 s35, s35, 2
    v_xor_b32 v9, s35, v9
    """)
    for t in range(4): a(f"v_xor_b32 v1, {t}, v9\nv_lshl_add_u32 v{10+t}, v1, 5, v7")
    a(f"""
    v_and_b32 v5, 15, v0
    v_lshrrev_b32 v6, 1, v5
    v_xor_b32 v6, v6, v4
    v_lshlrev_b32 v7, 7, v5
    v_lshl_add_u32 v14, v6, 4, v7
    v_xor_b32 v15, 64, v14
    v_lshlrev_b32 v5, 4, v5
    v_lshrrev_b32 v6, 5, v0
    v_lshl_add_u32 v5, v6, 8, v5
    v_bfe_u32 v6, v0, 4, 1
    v_lshl_add_u32 v5, v6, 3, v5
    s_lshr_b32 s34, {sWI}, 1
    s_mul_i32 s34, s34, 28672
    s_and_b32 s35, {sWI}, 1
    s_lshl_b32 s35, s35, 11
    s_add_u32 s34, s34, s35
    s_add_u32 s34, s34, {HO}
    v_add_u32 v8, s34, v5
    s_mov_b32 s30, {cbits:#x}
    s_mov_b32 s31, {cbits:#x}
    """)
    a(kv_src)
    a("s_waitcnt lgkmcnt(0)")
    other_srds()
    if int(cfg.tlb):
        a(f"s_cmp_lg_u32 s3, 1\ns_cbranch_scc1 L_tl2\ns_lshl_b32 s32, {sH0}, 8\ns_sub_u32 s34, 0x800000, s32")
        select((10,))
        srd_off(a, SW, "s10", "s11", "s32", "s34")
        a(f"""
        v_and_b32 v4, 3, v0
        v_lshlrev_b32 v4, 21, v4
        buffer_load_dword {VD}, v4, {S(SW)}, 0 offen
        L_tl2:
        """)
        if int(cfg.tlb) > 1:
            a(f"""
            s_cmp_lg_u32 s3, 2
            s_cbranch_scc1 L_tl3
            v_mov_b32 v4, 0
            v_and_b32 v5, 1, v0
            v_mul_u32_u24 v5, 0x1ff800, v5
            buffer_load_dword {VD}, v4, {S(SK)}, {sROT} offen nt
            buffer_load_dword {VD}, v4, {S(SV)}, {sROT} offen nt
            buffer_load_dword {VD}, v5, {S(SWO)}, 0 offen
            s_mul_i32 s35, {sCQ}, 57344
            buffer_load_dword {VD}, v4, {S(SO)}, s35 offen
            L_tl3:
            s_cmp_lg_u32 s3, 3
            s_cbranch_scc1 L_tl4
            s_lshl_b32 s35, {sBR}, 3
            s_add_u32 s35, s35, {sB}
            s_lshl_b32 s35, s35, 2
            s_add_u32 s35, s35, {sCQ}
            s_mul_i32 s35, s35, {12*16384}
            s_add_u32 s35, s35, {RED + 3840}
            v_and_b32 v4, 1, v0
            v_mul_u32_u24 v4, {11*16384}, v4
            buffer_load_dword {VD}, v4, {S(SWS)}, s35 offen
            v_mov_b32 v4, {FLAGS + 65536}
            buffer_load_dword {VD}, v4, {S(SWS)}, 0 offen
            s_mul_i32 s35, {sB}, 458752
            s_mov_b32 s34, 458752
            """)
            srd_off(a, SX, "s24", "s25", "s35", "s34")
            a(f"v_and_b32 v4, 1, v0\nv_mul_u32_u24 v4, 458624, v4\nbuffer_load_dword {VD}, v4, {S(SX)}, 0 offen\nL_tl4:")
    a(f"""
    s_or_b32 s35, s2, s3
    s_cbranch_scc1 L_notag
    s_mov_b32 s{SX}, s26
    s_and_b32 s{SX+1}, s27, 0xffff
    s_mov_b32 s{SX+2}, 256
    s_mov_b32 s{SX+3}, 0x00020000
    v_mov_b32 v4, {FLAGS}
    v_mov_b32 v7, 0
    s_mov_b32 s34, 1664525
    s_mov_b32 s35, 1013904223
    buffer_load_dword v5, v4, {S(SWS)}, 0 offen {SC}
    s_waitcnt vmcnt(0)
    v_mul_lo_u32 v5, v5, s34
    v_add_u32 v5, s35, v5
    v_mov_b32 v6, s35
    v_cmp_eq_u32 vcc, 0, v5
    s_nop 1
    v_cndmask_b32 v5, v5, v6, vcc
    s_mov_b64 exec, 1
    buffer_store_dword v5, v7, {S(SX)}, 0 offen {SC}
    s_mov_b64 exec, -1
    L_notag:
    s_barrier
    """)
    def qreads(u):
        fb = FB + 44 * (u & 1)
        r = [f"ds_read_b64_tr_b16 {vr(fb+4*t+2*j,2)}, v{10+t} offset:{(u%4)*16384 + j*2048}" for t in range(4) for j in range(2)]
        xs = [f"ds_read_b128 {vr(fb+16+4*qt,4)}, v{14+(u&1)} offset:{((u>>1)&1)*14336 + qt*2048}" for qt in range(7)]
        return r[:2] + xs[:1] + r[2:] + xs[1:]
    stamp(1); stamp(1, "s")
    for r in qreads(0): a(r)
    def pack(qt, t):
        acc = ACC + 4 * (t * 7 + qt)
        return (f"v_pk_mul_f32 {vr(acc,2)}, {vr(acc,2)}, s[30:31]\nv_pk_mul_f32 {vr(acc+2,2)}, {vr(acc+2,2)}, s[30:31]\n"
                f"v_cvt_pk_bf16_f32 v{acc}, v{acc}, v{acc+1}\nv_cvt_pk_bf16_f32 v{acc+1}, v{acc+2}, v{acc+3}\n"
                f"ds_write_b64 v8, {vr(acc,2)} offset:{qt*4096 + t*512}")
    packs = [pack(qt, t) for qt in range(7) for t in range(4)]
    if cfg.peelq:
        assert not cfg.snake
        gloop("L_q", 4, 8, qreads, {}, cut=7)
        a("s_waitcnt lgkmcnt(0)\ns_barrier")
        stamp(2)
        weave(a, gmf(3), [""] * 8 + packs[:19] + ["s_nop 1"] + packs[19:])
    else:
        gloop("L_q", 4, 8, qreads, {})
        stamp(2)
        a("s_waitcnt lgkmcnt(0)\ns_barrier")
        for x in packs: a(x)

    QF, OA, SS, NM, KF, VF, PP = 16, 48, 112, 144, 160, 192, 224
    L_, MX, T0 = 232, 234, 235
    a(f"""
    L_join:
    s_lshr_b32 s34, s3, 2
    s_mul_i32 s35, s34, {HD}
    s_add_u32 s{SK}, s{SK}, s35
    s_addc_u32 s{SK+1}, s{SK+1}, 0
    s_mov_b32 s{SK+2}, 131072
    s_add_u32 s{SV}, s{SV}, s35
    s_addc_u32 s{SV+1}, s{SV+1}, 0
    s_mov_b32 s{SV+2}, 131072
    s_mul_i32 s30, s34, {HSTEP}
    s_mul_i32 {sA}, {sWI}, 1056
    s_add_u32 {sA}, {sA}, s30
    s_add_u32 {sBb}, {sA}, {KT}
    v_lshlrev_b32 v5, 4, v0
    s_mul_i32 s35, s34, 28672
    s_lshl_b32 {sT}, {sWI}, 13
    s_add_u32 {sT}, {sT}, s35
    s_add_u32 {sT}, {sT}, {HO}
    v_add_u32 v9, {sT}, v5
    s_lshl_b32 {sT}, {sWI}, 11
    s_add_u32 s35, s35, {sT}
    v_add_u32 v14, s35, v5
    v_and_b32 v7, 7, v0
    v_mul_u32_u24 v7, 1056, v7
    v_bfe_u32 v1, v0, 3, 1
    v_lshl_add_u32 v7, v1, 8, v7
    v_lshrrev_b32 v1, 4, v0
    v_lshl_add_u32 v7, v1, 4, v7
    v_add_u32 v10, s30, v7
    v_bfe_u32 v7, v0, 2, 3
    v_mul_u32_u24 v7, 1056, v7
    v_lshrrev_b32 v1, 5, v0
    v_lshl_add_u32 v7, v1, 8, v7
    v_and_b32 v1, 3, v0
    v_lshl_add_u32 v7, v1, 3, v7
    s_add_u32 s35, s30, {KT}
    v_add_u32 v12, s35, v7
    v_add_u32 v11, {SA_}, v10
    s_lshl_b32 s35, {sWI}, 8
    s_add_u32 s31, {sROT}, s35
    s_add_u32 s31, s31, {3*8192}
    s_and_b32 s31, s31, 0x1ffff
    s_mov_b32 s96, {SA_}
    s_mov_b32 s97, {SD_}
    s_mov_b32 s100, 0x41000000
    s_and_b32 s94, {sCQ}, 1
    s_add_u32 s94, s94, 1
    s_sub_u32 s94, s94, {sBR}
    v_lshrrev_b32 v4, 5, v0
    s_lshl_b32 s35, {sWI}, 1
    v_add_u32 v4, s35, v4
    v_and_b32 v5, 31, v0
    v_lshlrev_b32 v6, 1, v4
    v_xor_b32 v5, v5, v6
    v_lshlrev_b32 v4, 11, v4
    v_lshl_add_u32 v15, v5, 4, v4
    v_lshrrev_b32 v4, 4, v0
    v_lshlrev_b32 v4, 5, v4
    v_bfe_u32 v5, v0, 2, 2
    v_add_u32 v4, v4, v5
    s_lshl_b32 s35, {sB}, 2
    v_add_u32 v4, s35, v4
    v_lshlrev_b32 v4, 11, v4
    v_and_b32 v5, 3, v0
    v_lshl_add_u32 v3, v5, 7, v4
    v_mov_b32 v4, 0
    """)
    a(f"""
    v_lshrrev_b32 v7, 2, v0
    v_lshlrev_b32 v7, 9, v7
    v_and_b32 v6, 3, v0
    v_lshl_add_u32 v7, v6, 3, v7
    v_add_u32 v7, {WO0}, v7
    v_bfe_u32 v6, v0, 2, 3
    v_xor_b32 v6, {sWI}, v6
    """)
    for tau in range(4):
        a(f"""
        s_add_u32 s35, {sHG}, {tau}
        s_and_b32 s34, s35, 1
        s_lshl_b32 s34, s34, 2
        s_bfe_u32 s35, s35, 0x10001
        s_lshl_b32 s35, s35, 8
        v_xor_b32 v1, s34, v6
        v_lshl_add_u32 v1, v1, 5, v7
        v_add_u32 v{240+tau}, s35, v1
        """)
    srd(a, SDBG, "s26", "s27", 256)
    a(f"s_cmp_eq_u32 {sWI}, 3\ns_waitcnt lgkmcnt(0)\ns_cbranch_scc1 L_attn1")
    ts = [int(x) for x in cfg.tsched.split(",")]
    stubs = []
    def blk(b): return (0, b, 0) if b < 2 else ((b - 1, 0, 0) if b < 5 else ((b - 4, 1, 0) if b < 8 else (3, 1, 1)))
    def producer(b, reg): a(f"s_add_u32 {reg}, {sCQ}, {blk(b)[0]}\ns_and_b32 {reg}, {reg}, 3")
    def wo_rows(b, reg):
        d, h, g = blk(b)
        producer(b, reg)
        if cfg.mix: a(f"s_lshl_b32 s35, {reg}, 1\ns_and_b32 s35, s35, 4\ns_and_b32 {reg}, {reg}, 1\ns_add_u32 {reg}, {reg}, s35\ns_add_u32 {reg}, {reg}, {2*h + 8*g}")
        else: a(f"s_lshl_b32 {reg}, {reg}, 1\ns_add_u32 {reg}, {reg}, {h + 8*g}")
        a(f"s_lshl_b32 {reg}, {reg}, 18")
    def touch_block(b, wave):
        lab = a.label("wt"); t = A()
        keep, a.l = a.l, t.l
        a(f"s_cmp_lg_u32 s3, {wave}\ns_cbranch_scc1 {lab}")
        wo_rows(b, "s6")
        a(f"buffer_load_dword {VD}, v3, {S(SWO)}, s6 offen {cfg.wopol}\n{lab}:")
        a.l = keep
        return t.text()
    def kpiece(n, slot, src): return f"s_add_u32 s34, {slot}, {sA}\ns_add_u32 m0, s34, {n*4224}\ns_add_u32 s35, {src}, {n*1024}\nbuffer_load_dwordx4 v2, {S(SK)}, s35 offen KVPOL lds"
    def vpiece(n, slot, src): return f"s_add_u32 s34, {slot}, {sBb}\ns_add_u32 m0, s34, {n*4224}\ns_add_u32 s35, {src}, {n*1024}\nbuffer_load_dwordx4 v2, {S(SV)}, s35 offen KVPOL lds"
    def wo_pieces(mbase, moff, soff, add=0):
        return [f"s_add_u32 m0, {mbase}, {moff + n*4096}\ns_add_u32 s35, {soff}, {add + n*16384}\nbuffer_load_dwordx4 v15, {S(SWO)}, s35 offen lds" for n in range(4)]
    def kreads(): return [f"ds_read_b128 {vr(KF+16*kt+4*s_,4)}, v11 offset:{kt*512 + 64*s_}" for s_ in range(4) for kt in range(2)]
    def tree(dst, tmp, b, n):
        if n == 8: return [f"v_max3_f32 v{dst}, v{b}, v{b+1}, v{b+2}", f"v_max3_f32 v{tmp}, v{b+3}, v{b+4}, v{b+5}",
                           f"v_max3_f32 v{dst}, v{dst}, v{b+6}, v{b+7}", f"v_max_f32 v{dst}, v{dst}, v{tmp}"]
        return ([f"v_max3_f32 v{dst}, v{b}, v{b+1}, v{b+2}", f"v_max3_f32 v{tmp}, v{b+3}, v{b+4}, v{b+5}"]
                + [f"v_max3_f32 v{(dst, tmp)[i&1]}, v{(dst, tmp)[i&1]}, v{b+6+2*i}, v{b+7+2*i}" for i in range(5)]
                + [f"v_max_f32 v{dst}, v{dst}, v{tmp}"])
    def across(op, r, tmp):
        for sw in ("16", "32"):
            a(f"s_nop 0\nv_mov_b32 v{tmp}, v{r}\ns_nop 1\nv_permlane{sw}_swap_b32 v{tmp}, v{r}\ns_nop 1\n{op} v{r}, v{r}, v{tmp}")
    def epi(store, NQ):
        for p in range(4):
            for qi in range(NQ):
                b = OA + 32*qi + 8*p
                for i in range(8): a(f"v_mul_f32 v{b+i}, v{b+i}, v{L_+qi}")
                for i in range(4): a(f"v_cvt_pk_bf16_f32 v{b+i}, v{b+2*i}, v{b+2*i+1}")
                a(f"ds_write_b128 v14, {vr(b,4)} offset:{p*7168 + qi*1024}")
                if store: a(f"buffer_store_dwordx4 {vr(b,4)}, v14, {S(SO)}, s34 offen offset:{qi*1024} {SC}")
            if store: a("s_add_u32 s34, s34, 7168")
        if store: a(f"s_waitcnt vmcnt({4 * NQ})")
    def attn(NQ):
        N = 8 * NQ
        def qk(sb, zero=False):
            out = []
            for s_ in range(4):
                for kt in range(2):
                    for n_, qi in enumerate(range(NQ - 1, -1, -1) if cfg.snake and kt else range(NQ)):
                        d = vr(sb + 8*qi + 4*kt, 4)
                        out.append((f"s_waitcnt lgkmcnt(LG{2*s_+kt})\n" if n_ == 0 else "") +
                                   f"v_mfma_f32_16x16x32_bf16 {d}, {vr(KF+16*kt+4*s_,4)}, {vr(QF+16*qi+4*s_,4)}, {('0' if zero else vr(NM+4*qi,4)) if s_ == 0 else d}")
            return out
        def emit_qk(ms, fill):
            nv = 0
            for n, m in enumerate(ms):
                i = n // NQ
                a(m.replace(f"LG{i}", str(min(15, 7 - i + nv))))
                for f in fill[n]:
                    a(f); nv += f.startswith("ds_")
        def spread(items, gaps, lo=0):
            out = [[] for _ in range(gaps)]
            for i, x in enumerate(items): out[lo + i * (gaps - lo) // len(items)].append(x)
            return out
        def merge(*ls): return [sum((l[i] for l in ls), []) for i in range(len(ls[0]))]
        a("s_barrier")
        for qi in range(NQ):
            for s_ in range(4): a(f"ds_read_b128 {vr(QF+16*qi+4*s_,4)}, v9 offset:{qi*4096 + s_*1024}")
        for x in kreads(): a(x)
        a("s_waitcnt lgkmcnt(8)\ns_barrier")
        stamp(3)
        emit_qk(qk(SS, True), [[kpiece(0, "s97", "s31")], [], [kpiece(1, "s97", "s31")]] + [[]] * 16)
        a("s_nop 7")
        for qi in range(NQ):
            for x in tree(MX, T0, SS + 8*qi, 8): a(x)
            across("v_max_f32", MX, T0)
            a(f"v_mov_b32 v{L_+qi}, 0")
            for i in range(8): a(f"v_sub_f32 v{SS+8*qi+i}, v{SS+8*qi+i}, v{MX}")
            for i in range(4): a(f"v_sub_f32 v{NM+4*qi+i}, 0, v{MX}")
        def step(par, wait, dma=None, first=False, last=False, tight=False):
            cur, nxt = SS + 16 * par, SS + 16 * (1 - par)
            if tight and cfg.lv:
                lab = a.label("tw"); w1, w2 = cfg.lv.split(",")
                a(f"s_cmp_eq_u32 s94, 0\ns_cbranch_scc1 {lab}\ns_waitcnt vmcnt({w1})\ns_cmp_eq_u32 s94, 1\ns_cbranch_scc1 {lab}\ns_waitcnt vmcnt({w2})\n{lab}:")
            elif tight and int(cfg.aeven) >= 0:
                lab = a.label("tw")
                a(f"s_bitcmp{cfg.tpol}_b32 s2, {cfg.tbit}\ns_cbranch_scc1 {lab}\ns_cmp_ge_u32 {sIT}, {cfg.tn}\ns_cbranch_scc1 {lab}\ns_waitcnt vmcnt({cfg.aeven})\n{lab}:")
            a(f"""
            s_waitcnt vmcnt({wait})
            s_barrier
            s_add_u32 s98, s96, {SLOTB}
            s_cmp_eq_u32 s96, {SB_}
            s_cselect_b32 s98, 0, s98
            s_cmp_eq_u32 s96, {SD_}
            s_cselect_b32 s98, {SA_}, s98
            v_add_u32 v11, s98, v10
            v_add_u32 v13, s96, v12
            s_add_u32 s30, s31, 8192
            s_and_b32 s30, s30, 0x1ffff
            """)
            vrd = [f"ds_read_b64_tr_b16 {vr(VF+4*t+2*j,2)}, v13 offset:{j*512 + 32*t}" for t in range(8) for j in range(2)]
            ex = [f"v_exp_f32 v{cur+i}, v{cur+i}" for i in range(N)]
            cv = [f"v_cvt_pk_bf16_f32 v{PP+i}, v{cur+2*i}, v{cur+2*i+1}" for i in range(N // 2)]
            ad = [f"v_add_f32 v{L_+(i>>3)}, v{L_+(i>>3)}, v{cur+i}" for i in range(N)]
            if NQ == 2: ad = [ad[(i >> 1) + 8 * (i & 1)] for i in range(16)]
            if dma is None: dma = [kpiece(0, "s96", "s30"), vpiece(0, "s97", "s31"), kpiece(1, "s96", "s30"), vpiece(1, "s97", "s31")]
            dma = list(dma) + [""] * (4 - len(dma))
            pv = [(f"s_waitcnt lgkmcnt({14 - 2*t})\n" if n_ == 0 else "") +
                  f"v_mfma_f32_16x16x32_bf16 {vr(OA+32*qi+4*t,4)}, {vr(VF+4*t,4)}, {vr(PP+4*qi,4)}, {'0' if first else vr(OA+32*qi+4*t,4)}"
                  for t in range(8) for n_, qi in enumerate(range(NQ - 1, -1, -1) if cfg.snake and t & 1 else range(NQ))]
            if not last:
                for x in kreads(): a(x)
                for x in ex[:8]: a(x)
                if NQ == 2: valu = [ex[8], cv[0], ex[9], cv[1], ex[10], cv[2], ex[11], cv[3], ex[12], ex[13], cv[4], ex[14], cv[5], ex[15], cv[6], cv[7]]
                else: valu = cv + ad[:4]
                fill = merge(spread(vrd, N), spread(valu, N))
                if cfg.early:
                    fill = merge(fill, spread(dma, N)); dma = [""] * 4
                emit_qk(qk(nxt), fill)
                a("s_nop 0")
                mt = tree(MX, T0, nxt, N)
                fill = merge(spread(ad if NQ == 2 else ad[4:], N - 1) + [[]], spread(dma, N - 1) + [[]], spread(mt, N - 1, N // 2 - 1) + [[]])
                for n, m in enumerate(pv):
                    a(m)
                    for f in fill[n]: a(f)
                stub, back = a.label("stub"), a.label("back")
                stubs.append((stub, back, 1 - par, NQ))
                a(f"v_cmp_lt_f32 vcc, s100, v{MX}\ns_mov_b32 s97, s96\ns_mov_b32 s96, s98\ns_mov_b32 s31, s30\ns_cbranch_vccnz {stub}\n{back}:")
            else:
                for x in vrd[:8]: a(x)
                for x in ex[:8] + cv[:4]: a(x)
                for x in vrd[8:]: a(x)
                for x in ex[8:] + cv[4:]: a(x)
                a("s_nop 0")
                fill = merge(spread(ad, N), spread(dma, N))
                for n, m in enumerate(pv):
                    a(m)
                    for f in fill[n]: a(f)
        def at(t): return "".join(touch_block(b, b) for b in range(1, 8) if ts[b - 1] == 100 + t)
        aw = int(cfg.await_)
        step(0, min(aw + 6, 14) if not cfg.qsplit else 26, first=True)
        step(1, min(aw + 2, 10))
        a(f"s_mov_b32 {sIT}, 0\nL_aloop{NQ}:")
        def inloop(par):
            out = ""
            for b in range(1, 8):
                t = ts[b - 1] - 100
                if 2 <= t < 12 and t & 1 == par:
                    lab = a.label("il")
                    out += f"s_cmp_lg_u32 {sIT}, {(t - 2) // 2}\ns_cbranch_scc1 {lab}\n" + touch_block(b, b) + f"{lab}:\n"
            d = [kpiece(0, "s96", "s30"), vpiece(0, "s97", "s31"), kpiece(1, "s96", "s30"), vpiece(1, "s97", "s31")]
            d[3] += "\n" + out
            return d
        step(0, aw, inloop(0), tight=True); step(1, aw, inloop(1), tight=True)
        a(f"s_add_u32 {sIT}, {sIT}, 1\ns_cmp_lt_u32 {sIT}, 5\ns_cbranch_scc1 L_aloop{NQ}")
        tw = [min(int(x), y) for x, y in zip(cfg.tw.split(","), (8, 6, 6, 8))]
        step(0, tw[0], [vpiece(0, "s97", "s31"), vpiece(1, "s97", "s31"), f"buffer_load_dword {VTAG}, v4, {S(SDBG)}, 0 offen {SC}", at(12)])
        wo_rows(0, "s5")
        a(f"""
        s_lshr_b32 s34, s3, 2
        s_lshl_b32 s35, s34, 16
        s_add_u32 s5, s5, s35
        s_lshl_b32 {sA}, {sWI}, 10
        s_add_u32 {sA}, {sA}, {WO0}
        s_lshl_b32 s35, s34, 14
        s_add_u32 {sBb}, {sA}, s35
        """)
        w = wo_pieces(sBb, 0, "s5"); w[3] += "\n" + at(13)
        step(1, tw[1], w)
        w = wo_pieces(sBb, 32768, "s5", 0x20000); w[3] += "\n" + at(14)
        step(0, tw[2], w)
        step(1, tw[3], [at(15)], last=True)
        stamp(4)
        for qi in range(NQ):
            across("v_add_f32", L_ + qi, T0)
            a(f"v_rcp_f32 v{L_+qi}, v{L_+qi}")
        a(f"s_mul_i32 s34, {sCQ}, 57344\ns_barrier\ns_cmp_ge_u32 s3, 4\ns_cbranch_scc1 L_epx{NQ}")
        epi(True, NQ)
        a(f"s_branch L_oload\nL_epx{NQ}:")
        epi(False, NQ)
        a("s_branch L_omm")
    attn(2)
    a("L_attn1:")
    attn(1)

    TBL = sum((d | h << 2 | g << 3) << (4 * b) for b, (d, h, g) in enumerate(map(blk, range(9))))
    def nblocks():
        if cfg.uneven: a(f"s_bitcmp1_b32 {sHG}, 0\ns_cselect_b32 s101, 7, 9")
        else: a("s_mov_b32 s101, 8")
    def decode(first):
        if first is not None: a(f"s_mov_b32 s92, {(TBL >> (4*first)) & 0xffffffff:#x}\ns_mov_b32 s93, {TBL >> (4*first + 32):#x}")
        else: a("s_lshr_b64 s[92:93], s[92:93], 4")
        a(f"s_add_u32 s5, s92, {sCQ}\ns_and_b32 s5, s5, 3\ns_bfe_u32 s6, s92, 0x20002")
    fa, st0, sper = int(cfg.fa), int(cfg.st0), int(cfg.sper)
    a(f"""
    L_oload:
    v_lshlrev_b32 v14, 4, v0
    s_cmp_ge_u32 s3, 2
    s_cbranch_scc1 L_ol2
    v_lshrrev_b32 v4, 5, v0
    s_lshl_b32 s35, s3, 2
    v_add_u32 v4, s35, v4
    v_and_b32 v5, 31, v0
    v_lshlrev_b32 v6, 1, v4
    v_xor_b32 v5, v5, v6
    v_lshlrev_b32 v4, 11, v4
    v_lshl_add_u32 v15, v5, 4, v4
    v_xor_b32 v13, 64, v15
    v_add_u32 v13, 4096, v13
    s_lshl_b32 {sA}, s3, 11
    s_add_u32 {sA}, {sA}, {WO0}
    s_mov_b32 {sIT}, 1
    """)
    nblocks()
    decode(0)
    a("s_waitcnt lgkmcnt(0)\ns_barrier\nL_owl:")
    decode(None)
    if cfg.mix: a("s_lshl_b32 s35, s5, 1\ns_and_b32 s35, s35, 4\ns_and_b32 s30, s5, 1\ns_add_u32 s30, s30, s35\ns_and_b32 s35, s6, 1\ns_lshl_b32 s35, s35, 1")
    else: a("s_lshl_b32 s30, s5, 1\ns_and_b32 s35, s6, 1")
    a("s_add_u32 s30, s30, s35\ns_lshr_b32 s35, s6, 1\ns_lshl_b32 s35, s35, 3\ns_add_u32 s30, s30, s35\ns_lshl_b32 s30, s30, 18")
    for p in range(4):
        a("s_waitcnt vmcnt(16)\ns_barrier")
        for n in range(4):
            a(f"s_add_u32 m0, {sA}, {p*16384 + n*4096}\ns_add_u32 s35, s30, {p*65536 + n*16384}\nbuffer_load_dwordx4 v15, {S(SWO)}, s35 offen lds")
            a(f"s_add_u32 m0, {sA}, {p*16384 + n*4096 + 1024}\ns_nop 0\nbuffer_load_dwordx4 v13, {S(SWO)}, s35 offen lds")
    a(f"s_add_u32 {sIT}, {sIT}, 1\ns_cmp_lt_u32 {sIT}, s101\ns_cbranch_scc1 L_owl")
    a("s_waitcnt vmcnt(16)\ns_barrier\ns_waitcnt vmcnt(8)\ns_barrier\ns_waitcnt vmcnt(0)\ns_barrier\ns_barrier")
    stamp(5)
    if cfg.sgrp != "o2": stamp_store(0, 0)
    a("s_branch L_end")
    def sample():
        a(f"""
        s_andn2_b32 s35, s2, 0x18
        s_lshl_b32 s34, s5, 3
        s_or_b32 s35, s35, s34
        s_lshr_b32 s34, s6, 1
        s_add_u32 s35, s35, s34
        s_lshl_b32 s35, s35, 5
        s_and_b32 s34, s6, 1
        s_add_u32 s35, s35, s34
        s_lshl_b32 s35, s35, 2
        s_add_u32 s35, s35, {FLAGS}
        v_mov_b32 v5, s35
        s_mul_i32 s32, s5, 57344
        s_mul_i32 s34, s34, 28672
        s_add_u32 s32, s32, s34
        s_lshr_b32 s34, s6, 1
        s_mul_i32 s34, s34, 229376
        s_add_u32 s32, s32, s34
        buffer_load_dword v13, v5, {S(SWS)}, 0 offen {SC}
        """)
    a("L_ol2:\ns_cmp_eq_u32 s3, 3\ns_cbranch_scc1 L_ol3")
    nblocks()
    decode(2)
    a(f"s_mov_b32 {sIT}, 2\ns_mov_b32 s33, 0\ns_waitcnt lgkmcnt(0)\ns_barrier")
    a(f"v_mov_b32 v4, 0\nv_cmp_eq_u32 vcc, 0, {VTAG}\ns_cbranch_vccz L_pt_out")
    poll("L_pt", SDBG, "v4", VTAG, "eq", "0")
    for u in range(5):
        if u == fa: a("s_waitcnt vmcnt(0)")
        a("s_barrier")
        if u == 4: sample()
    a("s_waitcnt vmcnt(0)\nL_ool:")
    for p in range(4):
        a("s_waitcnt vmcnt(7)\ns_barrier")
        if p == 0:
            a(f"s_mov_b32 s31, s32\nv_cmp_ne_u32 vcc, {VTAG}, v13\ns_cbranch_vccz L_po_out")
            poll("L_po", SWS, "v5", "v12", "ne", VTAG)
        if p == 2:
            decode(None); sample()
        for n in range(7):
            if n % 4 == 0: a(f"s_add_u32 m0, s33, {p*7168 + n*1024}\ns_add_u32 s35, s31, {p*7168 + n*1024}")
            a(f"buffer_load_dwordx4 v14, {S(SO)}, s35 offen offset:{(n&3)*1024} {SC} lds")
    a(f"s_xor_b32 s33, s33, 28672\ns_add_u32 {sIT}, {sIT}, 1\ns_cmp_lt_u32 {sIT}, s101\ns_cbranch_scc1 L_ool")
    a("s_waitcnt vmcnt(7)\ns_barrier\ns_waitcnt vmcnt(0)\ns_barrier\ns_barrier\ns_branch L_end")
    a(f"""
    L_ol3:
    v_add_u32 v7, 28672, v14
    s_mul_i32 s33, {sCQ}, 57344
    s_lshl_b32 s35, s2, 7
    s_add_u32 s35, s35, {FLAGS}
    v_mov_b32 v6, s35
    v_mov_b32 v4, 0
    s_waitcnt lgkmcnt(0)
    s_barrier
    """)
    for i in range(28): a(f"ds_read_b128 {vr(16+4*i,4)}, v7 offset:{i*1024}")
    a(f"v_cmp_eq_u32 vcc, 0, {VTAG}\ns_cbranch_vccz L_pt3_out")
    poll("L_pt3", SDBG, "v4", VTAG, "eq", "0")
    def flag(word): a(f"s_mov_b64 exec, 1\nbuffer_store_dword {VTAG}, v6, {S(SWS)}, 0 offen offset:{4*word} {SC}\ns_mov_b64 exec, -1")
    nst, young = 0, 0
    fb = st0 + -(-28 // sper) + 3
    assert fa < 4 and fb < 14
    for u in range(28):
        if u == fa: a(f"s_waitcnt vmcnt({nst + young})")
        a("s_barrier")
        if 5 <= u <= 11: stamp(u - 4, "o2")
        if u == fa: flag(0); young += nst == 28
        if u == st0: a("s_waitcnt lgkmcnt(0)")
        while u >= st0 and nst < min(28, (u - st0 + 1) * sper):
            if nst % 4 == 0: a(f"s_add_u32 s34, s33, {nst*1024}")
            a(f"buffer_store_dwordx4 {vr(16+4*nst,4)}, v7, {S(SO)}, s34 offen offset:{(nst&3)*1024} {SC}")
            nst += 1; young = 0
        if u == fb: a(f"s_waitcnt vmcnt({young})"); flag(1)
        for b in range(1, 9):
            if ts[b - 1] == u and (b < 8 or cfg.uneven):
                lab = a.label("lt")
                if cfg.uneven and b >= 7: a(f"s_bitcmp1_b32 {sHG}, 0\ns_cbranch_scc1 {lab}")
                wo_rows(b, "s6")
                a(f"buffer_load_dword {VD}, v3, {S(SWO)}, s6 offen {cfg.wopol}\n{lab}:")
                if not (cfg.uneven and b >= 7): young += 1
    if cfg.uneven: a(f"s_bitcmp1_b32 {sHG}, 0\ns_cbranch_scc1 L_ol3e\n" + "s_barrier\n" * 8 + "L_ol3e:")
    else: a("s_barrier\n" * 4)
    if cfg.sgrp == "o2": stamp_store(3, 0)
    a("s_branch L_end")

    a(f"""
    L_omm:
    v_lshlrev_b32 v14, 4, v0
    """)
    def oreads(u):
        fb = FB + 44 * (u & 1)
        r = [f"ds_read_b64_tr_b16 {vr(fb+4*t+2*j,2)}, v{240+t} offset:{(u%4)*16384 + j*8192}" for t in range(4) for j in range(2)]
        xs = [f"ds_read_b128 {vr(fb+16+4*qt,4)}, v14 offset:{(u%8)*7168 + qt*1024}" for qt in range(7)]
        return r[:2] + xs[:1] + r[2:] + xs[1:]
    nblocks()
    a("v_mov_b32 v4, 0\ns_waitcnt vmcnt(4) lgkmcnt(0)\ns_barrier")
    stamp(5)
    if cfg.sgrp == "L_o": stamp(0)
    for r in oreads(0): a(r)
    a(f"""
    s_lshl_b32 s30, {sBR}, 3
    s_add_u32 s30, s30, {sB}
    s_lshl_b32 s30, s30, 2
    s_add_u32 s30, s30, {sCQ}
    s_mul_i32 s30, s30, {12*16384}
    s_lshl_b32 s35, {sWI}, 12
    s_add_u32 s30, s30, s35
    s_add_u32 s30, s30, {RED}
    s_mul_i32 s35, {sB}, 458752
    s_lshl_b32 s34, {sBR}, 11
    s_add_u32 s35, s35, s34
    s_lshl_b32 s34, {sCQ}, 9
    s_add_u32 s35, s35, s34
    s_lshl_b32 s34, {sHG}, 7
    s_add_u32 s35, s35, s34
    s_sub_u32 s34, 3670016, s35
    """)
    srd_off(a, SOUT, "s24", "s25", "s35", "s34")
    for tau in range(1, 4):
        a(f"s_add_u32 s35, {sHG}, {tau}\ns_and_b32 s35, s35, 3\ns_mul_i32 s35, s35, {3*16384}\ns_add_u32 s35, s35, s30\ns_add_u32 s{4+tau}, s35, {(tau-1)*16384}")
    a(f"""
    s_mul_i32 s35, {sHG}, {3*16384}
    s_add_u32 s8, s30, s35
    s_add_u32 s9, s8, 16384
    s_add_u32 s10, s8, 32768
    v_and_b32 v7, 15, v0
    v_lshlrev_b32 v7, 12, v7
    v_lshrrev_b32 v9, 4, v0
    v_lshl_add_u32 v7, v9, 3, v7
    s_lshl_b32 s35, {sWI}, 5
    v_add_u32 v7, s35, v7
    s_lshl_b32 s35, s2, 7
    s_lshl_b32 s34, {sWI}, 2
    s_add_u32 s34, s34, {FLAGS + 16}
    s_add_u32 s35, s35, s34
    v_mov_b32 v5, s35
    v_min_u32 v6, 2, v0
    v_sub_u32 v6, {sHG}, v6
    v_add_u32 v6, -1, v6
    v_and_b32 v6, 3, v6
    s_andn2_b32 s35, s2, 3
    v_or_b32 v6, s35, v6
    v_lshlrev_b32 v6, 7, v6
    v_add_u32 v6, s34, v6
    v_lshlrev_b32 v15, 3, v0
    s_mov_b32 s12, 0x3f80
    s_mov_b32 s13, 0x3f800000
    """)
    RB = FB
    def box_loads(s_):
        return ([f"buffer_load_dwordx4 {vr(RB+16*s_+4*pr,4)}, v14, {S(SWS)}, s{8+s_} offen offset:{pr*1024} {SC}" for pr in range(3)]
                + [f"buffer_load_dwordx2 {vr(RB+16*s_+12,2)}, v15, {S(SWS)}, s{8+s_} offen offset:3072 {SC}"])
    sends = []
    for tau in range(1, 4):
        for pr in range(4):
            b = ACC + 4 * (tau * 7 + 2 * pr)
            sends += [f"v_cvt_pk_bf16_f32 v{b+i}, v{b+2*i}, v{b+2*i+1}\nv_cvt_pk_bf16_f32 v{b+i+1}, v{b+2*i+2}, v{b+2*i+3}" for i in range(0, 4 if pr < 3 else 2, 2)]
            sends[-1] += (f"\nbuffer_store_dwordx4 {vr(b,4)}, v14, {S(SWS)}, s{4+tau} offen offset:{pr*1024} {SC}" if pr < 3 else
                          f"\nbuffer_store_dwordx2 {vr(b,2)}, v15, {S(SWS)}, s{4+tau} offen offset:3072 {SC}")
    if cfg.twopass:
        assert not cfg.uneven and not cfg.snake
        gloop("L_o", 8, 7, oreads, {2: " vmcnt(0)"})
        W0 = 216
        def keep(u, r): return [x.replace(vr(FB+44*(u&1),2) + ",", vr(W0+4*(u&3),2) + ",").replace(vr(FB+44*(u&1)+2,2) + ",", vr(W0+4*(u&3)+2,2) + ",") for x in r]
        def oagain(p, buf): return [f"ds_read_b128 {vr(FB+44*buf+16+4*qt,4)}, v14 offset:{(4+p)*7168 + qt*1024}" for qt in range(7)]
        for p in range(4):
            a("s_waitcnt lgkmcnt(0)\ns_barrier")
            if p == 0:
                for i in range(4): a(f"v_mov_b32 v{W0+i}, v{FB+i}")
            rd = keep(5 + p, oreads(5 + p)) if p < 3 else oagain(0, 0)
            weave(a, [m for n, m in enumerate(gmf(p)) if n % 4], rd)
        stamp(6)
        for p in range(4):
            fb = FB + 44 * (p & 1)
            a("s_waitcnt lgkmcnt(0)")
            rd = oagain(p + 1, (p + 1) & 1) if p < 3 else [""] * 7
            mf = [f"v_mfma_f32_16x16x32_bf16 {vr(ACC+4*qt,4)}, {vr(W0+4*p,4)}, {vr(fb+16+4*qt,4)}, {vr(ACC+4*qt,4)}" for qt in range(7)]
            for n, m in enumerate(mf):
                a(m); a(rd[n])
                if sends and (p or n >= 2): a(sends.pop(0))
        for x in sends: a(x)
    else:
        gloop("L_o", 8, "s101", oreads, {2: " vmcnt(0)"})
        stamp(6)
        for x in sends: a(x)
    a(f"v_cmp_eq_u32 vcc, 0, {VTAG}\ns_cbranch_vccz L_pt2_out")
    poll("L_pt2", SDBG, "v4", VTAG, "eq", "0")
    a(f"""
    s_waitcnt lgkmcnt(0) vmcnt(0)
    buffer_load_dword v9, v6, {S(SWS)}, 0 offen {SC}
    s_mov_b64 exec, 1
    buffer_store_dword {VTAG}, v5, {S(SWS)}, 0 offen {SC}
    s_mov_b64 exec, -1
    """)
    stamp(1)
    a(f"""
    s_mov_b32 s30, 7
    s_mov_b32 {sU}, 0
    s_waitcnt vmcnt(1)
    L_rx:
    v_cmp_eq_u32 vcc, {VTAG}, v9
    s_add_u32 {sU}, {sU}, 1
    s_nop 0
    s_cmp_ge_u32 {sU}, {cfg.spin}
    s_cselect_b32 s31, 7, vcc_lo
    s_and_b32 s31, s31, s30
    s_andn2_b32 s30, s30, s31
    """)
    for s_ in range(3):
        a(f"s_bitcmp1_b32 s31, {s_}\ns_cbranch_scc0 L_rx_l{s_}")
        for x in box_loads(s_): a(x)
        a(f"L_rx_l{s_}:")
    a(f"""
    s_cmp_eq_u32 s30, 0
    s_cbranch_scc1 L_rx_done
    buffer_load_dword v9, v6, {S(SWS)}, 0 offen {SC}
    s_waitcnt vmcnt(0)
    s_branch L_rx
    L_rx_done:
    s_waitcnt vmcnt(0)
    """)
    for s_ in range(3):
        for qt in range(7):
            for i in range(4):
                a(f"v_dot2_f32_bf16 v{ACC+4*qt+i}, v{RB+16*s_+2*qt+(i>>1)}, s{12+(i&1)}, v{ACC+4*qt+i}")
    stamp(2)
    for qt in range(7):
        b = ACC + 4 * qt
        a(f"v_cvt_pk_bf16_f32 v{b}, v{b}, v{b+1}\nv_cvt_pk_bf16_f32 v{b+1}, v{b+2}, v{b+3}")
        a(f"s_mov_b32 s35, {qt*65536}\nbuffer_store_dwordx2 {vr(b,2)}, v7, {S(SOUT)}, s35 offen {cfg.outpol.replace('+', ' ')}")
    if cfg.stamps: a("s_waitcnt vmcnt(0)")
    stamp(7)
    stamp_store(4, 256)
    a("L_end:\ns_endpgm")
    for stub, back, par, NQ in stubs:
        a(f"{stub}:\ns_call_b64 s[98:99], L_rare{par}{NQ}\ns_branch {back}")
    for NQ in (2, 1):
        for par in range(2):
            a(f"L_rare{par}{NQ}:")
            for qi in range(NQ):
                sb = SS + 16 * par + 8 * qi
                for x in tree(MX, T0, sb, 8): a(x)
                across("v_max_f32", MX, T0)
                a(f"v_max_f32 v{MX}, 0, v{MX}\nv_exp_f32 v{T0}, -v{MX}")
                for i in range(8): a(f"v_sub_f32 v{sb+i}, v{sb+i}, v{MX}")
                for i in range(4): a(f"v_sub_f32 v{NM+4*qi+i}, v{NM+4*qi+i}, v{MX}")
                a(f"v_mul_f32 v{L_+qi}, v{L_+qi}, v{T0}")
                for i in range(32): a(f"v_mul_f32 v{OA+32*qi+i}, v{OA+32*qi+i}, v{T0}")
            a("s_setpc_b64 s[98:99]")
    return re.sub(r" +\n", "\n", a.text().replace("offen  lds", "offen lds")).replace(" KVPOL", " " + cfg.kvpol.replace("+", " ") if cfg.kvpol else "")

HEADER = """; Kernarg layout (104 bytes, pointers only, base s[0:1]):
"""

def build(cfg):
    K = NAME + "_kernel"
    body = kernel_head(K) + kernel(cfg) + kernel_desc(K, 248, 248)
    tgt = '.amdgcn_target "amdgcn-amd-amdhsa--gfx950"\n'
    if cfg.echo:
        from gen2 import echo_kernel
        hdr = f"; @launch kernel={K} grid=(256,1,1) block=(512,1,1) lds=163840\n; @launch kernel=echo_kernel grid=(1,1,1) block=(64,1,1) lds=0\n"
        return hdr + tgt + kernel_head("echo_kernel") + echo_kernel(cfg) + kernel_desc("echo_kernel", 8, 8) + body
    return HEADER + "; @launch grid=(256,1,1) block=(512,1,1) lds=163840\n" + tgt + body

if __name__ == "__main__":
    cfg = Cfg()
    for kv in sys.argv[2:]:
        k, v = kv.split("=")
        assert hasattr(cfg, k), k
        setattr(cfg, k, {"True": True, "False": False}.get(v, v))
    open(sys.argv[1], "w").write(build(cfg))
```

```python
import sys, math, struct, re
from asmlib import *

class Cfg:
    stamps = False
    sgrp = "main"
    kvpol = "nt"
    qord = "rot"
    kv0 = 4
    kvper = 1
    await_ = 8
    early = False
    tsched = "112,113,113,114,114,115,115,12"
    fa = 2
    st0 = 5
    sper = 7
    mix = False
    uneven = False
    outpol = ""
    aeven = 4
    brlow = True
    tbit = 2
    tpol = 1
    tn = 5
    peelq = False
    twopass = False
    snake = True
    prio = 1
    lv = "4,4"
    tw = "8,6,6,8"
    wqpol = ""
    wopol = ""
    qsplit = False
    kvs = 16
    kvn = 4
    tlb = 0
    fsep = False
    outw = 1
    pkn = True
    stlate = False
    echo = ""
    abl = ""
    spin = 400000

WQ0 = 28672
KT, HSTEP, SLOTB = 8448, 17152, 34304
SA_, SB_, SC_, SD_ = 94208, 128512, 0, 34304
HO, WO0 = 36864, 94208
RED, FLAGS = 16 << 20, 48 << 20
SX, SW, SK, SV, SO, SWO, SWS = 36, 40, 44, 48, 52, 56, 60
SOUT, SDBG = SX, SW
sBR, sHG, sCQ, sB, sWI, sIT, sA, sBb, sT, sU, sH0, sROT = ("s%d" % i for i in range(80, 92))
SC = "sc1"
VTAG, VD = "v236", "v237"
ACC, FB = 16, 128
def S(d): return f"s[{d}:{d+3}]"

def srd_off(a, d, lo, hi, off_reg, nbytes):
    a(f"s_add_u32 s{d}, {lo}, {off_reg}\ns_addc_u32 s{d+1}, {hi}, 0\ns_and_b32 s{d+1}, s{d+1}, 0xffff")
    a(f"s_mov_b32 s{d+2}, {nbytes}\ns_mov_b32 s{d+3}, 0x00020000")

def weave(a, mf, fill):
    fill = list(fill)
    for m in mf:
        a(m)
        if fill: a(fill.pop(0))
    for f in fill: a(f)

def kernel(cfg):
    a = A()
    HD = 262144 if cfg.mix else 131072
    def stamp(i, grp="main"):
        if cfg.stamps and (grp == cfg.sgrp or i == 0): a(f"s_memrealtime s[{64+2*i}:{65+2*i}]")
    def stamp_store(wave, wgoff):
        if not cfg.stamps: return
        a(f"s_cmp_lg_u32 s3, {wave}\ns_cbranch_scc1 L_end")
        a(f"s_waitcnt lgkmcnt(0)\ns_add_u32 s3, s2, {wgoff}\ns_lshl_b32 s3, s3, 7\ns_add_u32 s3, s3, {STAMP_OFF}\nv_mov_b32 v1, s3")
        for q in range(4):
            for j in range(4): a(f"v_mov_b32 v{4+j}, s{64+4*q+j}")
            a(f"buffer_store_dwordx4 v[4:7], v1, {S(SWS)}, 0 offen offset:{16*q}\ns_nop 2")
        a("s_waitcnt vmcnt(0)")
    def poll(lab, srdn, vaddr, vtmp, cmp, want):
        a(f"""
        s_mov_b32 {sU}, 0
        {lab}:
        buffer_load_dword {vtmp}, {vaddr}, {S(srdn)}, 0 offen {SC}
        s_add_u32 {sU}, {sU}, 1
        s_waitcnt vmcnt(0)
        v_cmp_{cmp}_u32 vcc, {want}, {vtmp}
        s_cmp_ge_u32 {sU}, {cfg.spin}
        s_cbranch_scc1 {lab}_out
        s_cbranch_vccnz {lab}
        {lab}_out:
        """)
    def select(pairs):
        a("s_bitcmp0_b32 s2, 2")
        for p in pairs: a(f"s_cselect_b64 s[{p}:{p+1}], s[{p}:{p+1}], s[{p+10}:{p+11}]")
    def other_srds():
        select((6, 8, 12))
        a(f"s_lshl_b32 s35, {sB}, 22\ns_lshl_b32 s34, {sH0}, 17\ns_add_u32 s35, s35, s34")
        srd_off(a, SK, "s6", "s7", "s35", HD + 131072)
        srd_off(a, SV, "s8", "s9", "s35", HD + 131072)
        a(f"s_lshl_b32 s35, {sBR}, 3\ns_add_u32 s35, s35, {sB}\ns_lshl_b32 s35, s35, 2\ns_add_u32 s35, s35, {sHG}\ns_mul_i32 s35, s35, 229376")
        srd_off(a, SO, "s28", "s29", "s35", 2 * 229376)
        a(f"s_lshl_b32 s35, {sHG}, 21\ns_lshl_b32 s34, {sCQ}, 9\ns_add_u32 s35, s35, s34\ns_sub_u32 s34, 0x800000, s35")
        srd_off(a, SWO, "s12", "s13", "s35", "s34")
        srd(a, SWS, "s28", "s29", 0x10000000)
        a(f"s_lshr_b32 {sROT}, s2, 3\ns_lshr_b32 s35, s2, 7\ns_add_u32 {sROT}, {sROT}, s35\ns_lshl_b32 s35, s2, 1\n"
          f"s_add_u32 {sROT}, {sROT}, s35\ns_and_b32 {sROT}, {sROT}, 15\ns_lshl_b32 {sROT}, {sROT}, 13")

    a("s_cmp_ge_u32 s2, 256\ns_cbranch_scc1 L_end")
    stamp(0)
    a("s_load_dwordx16 s[4:19], s[0:1], 0\ns_load_dwordx8 s[20:27], s[0:1], 64\ns_load_dwordx2 s[28:29], s[0:1], 96")
    if cfg.brlow: a("s_bfe_u32 s3, s2, 0x20001\ns_and_b32 s30, s2, 1\ns_lshl_b32 s30, s30, 2\ns_or_b32 s3, s3, s30\ns_andn2_b32 s2, s2, 7\ns_or_b32 s2, s2, s3")
    a(f"""
    v_lshrrev_b32 v1, 6, v0
    v_and_b32 v0, 63, v0
    v_readfirstlane_b32 s3, v1
    s_bfe_u32 {sBR}, s2, 0x10002
    s_and_b32 {sHG}, s2, 3
    s_bfe_u32 {sCQ}, s2, 0x20003
    s_lshr_b32 {sB}, s2, 5
    s_lshl_b32 {sH0}, {sHG}, 3
    """)
    if cfg.mix: a(f"s_lshl_b32 s35, {sCQ}, 1\ns_and_b32 s35, s35, 4\ns_add_u32 {sH0}, {sH0}, s35\ns_and_b32 s35, {sCQ}, 1\ns_add_u32 {sH0}, {sH0}, s35")
    else: a(f"s_lshl_b32 s35, {sCQ}, 1\ns_add_u32 {sH0}, {sH0}, s35")
    a(f"s_and_b32 {sWI}, s3, 3\ns_cmp_lt_u32 s3, 4\ns_cbranch_scc1 L_qmm")

    if cfg.qsplit:
        a("; ---- Q projection, loader waves: 4,5 wq; 6 x; 7 first K/V tiles")
        kv_src = "v_lshrrev_b32 v4, 4, v0\nv_and_b32 v5, 15, v0\nv_lshlrev_b32 v4, 11, v4\nv_lshl_add_u32 v2, v5, 4, v4"
        assert cfg.qord in ("rot", "none") and not cfg.mix and not cfg.peelq
        if cfg.qord == "rot": a(f"s_xor_b32 s35, {sB}, {sCQ}\ns_and_b32 s35, s35, 1\ns_lshl_b32 s30, s35, 22\ns_lshl_b32 s31, s35, 10")
        else: a("s_mov_b32 s30, 0\ns_mov_b32 s31, 0")
        a(f"""
        s_cmp_ge_u32 s3, 6
        s_cbranch_scc1 L_ql6
        v_lshrrev_b32 v4, 5, v0
        v_and_b32 v5, 31, v0
        s_lshl_b32 s35, {sWI}, 1
        v_add_u32 v4, s35, v4
        v_lshlrev_b32 v6, 1, v4
        v_xor_b32 v5, v5, v6
        v_lshlrev_b32 v4, 13, v4
        v_lshl_add_u32 v10, v5, 4, v4
        v_xor_b32 v12, 0x80, v10
        v_add_u32 v12, 0x10000, v12     ; rows 8-15
        s_lshl_b32 {sA}, {sWI}, 10
        s_add_u32 {sA}, {sA}, {WQ0}
        s_lshl_b32 s32, {sH0}, 8
        s_sub_u32 s34, 0x800000, s32
        s_waitcnt lgkmcnt(0)
        """)
        select((10,))
        srd_off(a, SW, "s10", "s11", "s32", "s34")
        def issue_wq(slot):
            for pc in (0, 2, 8, 10):
                a(f"s_add_u32 m0, {sA}, {slot*16384 + pc*1024}\ns_add_u32 s35, s30, {pc*16384}\nbuffer_load_dwordx4 v10, {S(SW)}, s35 offen lds")
                a(f"s_add_u32 m0, {sA}, {slot*16384 + (pc+4)*1024}\ns_nop 0\nbuffer_load_dwordx4 v12, {S(SW)}, s35 offen lds")
            a("s_add_u32 s30, s30, 0x40000\ns_and_b32 s30, s30, 0x7fffff")
        stamp(1, "s")
        issue_wq(0); issue_wq(1)
        other_srds()
        a(kv_src)
        a("s_waitcnt vmcnt(8)\ns_barrier")
        issue_wq(2)
        a("s_waitcnt vmcnt(8)\ns_barrier")
        issue_wq(3); issue_wq(0)
        a(f"s_mov_b32 {sIT}, 0\ns_branch L_qwmid\nL_qw:")
        for u in range(4):
            a("s_waitcnt vmcnt(16)\ns_barrier")
            issue_wq(u)
            if u == 0: a("L_qwmid:")
        a(f"s_add_u32 {sIT}, {sIT}, 1\ns_cmp_lt_u32 {sIT}, 7\ns_cbranch_scc1 L_qw")
        a("s_waitcnt vmcnt(16)\ns_barrier\ns_waitcnt vmcnt(8)\ns_barrier\ns_waitcnt vmcnt(0)\ns_barrier\ns_barrier\ns_branch L_qlend")
        a(f"""
        L_ql6:
        s_cmp_eq_u32 s3, 7
        s_cbranch_scc1 L_ql7
        v_lshrrev_b32 v4, 3, v0
        v_and_b32 v5, 7, v0
        v_lshrrev_b32 v6, 1, v4
        v_xor_b32 v5, v5, v6
        v_lshlrev_b32 v4, 11, v4
        v_lshl_add_u32 v10, v5, 4, v4
        v_xor_b32 v12, 64, v10
        v_add_u32 v12, 0x4000, v12
        s_mul_i32 s33, {sB}, 229376
        s_waitcnt lgkmcnt(0)
        """)
        select((4,))
        srd_off(a, SX, "s4", "s5", "s33", 229376)
        def issue_x(slot):
            for n in range(7):
                a(f"s_mov_b32 m0, {slot*14336 + n*2048}\ns_add_u32 s35, s31, {n*32768}\nbuffer_load_dwordx4 v10, {S(SX)}, s35 offen lds")
                a(f"s_mov_b32 m0, {slot*14336 + n*2048 + 1024}\ns_nop 0\nbuffer_load_dwordx4 v12, {S(SX)}, s35 offen lds")
            a("s_add_u32 s31, s31, 128\ns_and_b32 s31, s31, 2047")
        issue_x(0)
        other_srds()
        a(kv_src)
        a("s_waitcnt vmcnt(0)\ns_barrier")
        issue_x(1)
        a(f"s_mov_b32 {sIT}, 0\nL_qx:")
        for h in range(2):
            a("s_barrier\ns_waitcnt vmcnt(0)\ns_barrier")
            issue_x(h)
        a(f"s_add_u32 {sIT}, {sIT}, 1\ns_cmp_lt_u32 {sIT}, 7\ns_cbranch_scc1 L_qx")
        a("s_barrier\ns_waitcnt vmcnt(0)\ns_barrier\ns_barrier\ns_barrier\ns_branch L_qlend\nL_ql7:\ns_waitcnt lgkmcnt(0)")
        other_srds()
        a(kv_src)
        a(f"s_add_u32 s33, {sROT}, 8192\ns_and_b32 s33, s33, 0x1ffff\ns_barrier")
        kvl = [(tile, hd, i, isv) for tile in range(2) for isv in range(2) for hd in range(2) for i in range(8)]
        for u in range(32):
            a("s_barrier")
            for _ in range(int(cfg.kvn) if u >= int(cfg.kvs) else 0):
                if kvl:
                    tile, hd, i, isv = kvl.pop(0)
                    a(f"s_mov_b32 m0, {(SA_, SB_)[tile] + hd*HSTEP + isv*KT + i*1056}\ns_add_u32 s35, {(sROT, 's33')[tile]}, {hd*HD + i*256}")
                    a(f"buffer_load_dwordx4 v2, {S(SV if isv else SK)}, s35 offen KVPOL lds")
        assert not kvl
        a(f"""
        L_qlend:
        s_mul_i32 s96, {sWI}, 1056
        s_lshl_b32 s32, {sWI}, 8
        s_barrier
        """)
        def kv_piece(tile, hd, n, isv, slot):
            a(f"s_add_u32 s35, {sROT}, {tile*8192}\ns_and_b32 s35, s35, 0x1ffff\ns_add_u32 s35, s35, s32")
            a(f"s_add_u32 m0, s96, {slot + hd*HSTEP + isv*KT + n*4224}\ns_add_u32 s35, s35, {hd*HD + n*1024}")
            a(f"buffer_load_dwordx4 v2, {S(SV if isv else SK)}, s35 offen KVPOL lds")
        for isv in range(2):
            for hd in range(2):
                for n in range(2): kv_piece(2, hd, n, isv, SC_)
        a("s_waitcnt vmcnt(56)\ns_branch L_join")

    else:
        a("; ---- Q projection, loader waves 4-7")
        a(f"""
        v_lshrrev_b32 v4, 5, v0
        v_and_b32 v5, 31, v0
        s_and_b32 s35, {sWI}, 1
        s_lshr_b32 s34, {sWI}, 1
        s_lshl_b32 {sA}, s35, 1
        s_lshl_b32 {sBb}, s34, 2
        s_add_u32 {sT}, {sA}, {sBb}
        v_add_u32 v6, {sT}, v4
        v_lshlrev_b32 v6, 1, v6
        v_xor_b32 v5, v5, v6
        s_lshl_b32 {sBb}, s34, 3
        s_add_u32 {sA}, {sA}, {sBb}
        v_add_u32 v4, {sA}, v4
        v_lshlrev_b32 v4, 13, v4
        v_lshl_add_u32 v10, v5, 4, v4
        """)
        if cfg.mix: a("v_and_b32 v5, 16, v5\nv_lshl_add_u32 v10, v5, 4, v10")
        a(f"""
        s_lshl_b32 {sA}, {sA}, 9
        s_add_u32 {sA}, {sA}, {WQ0}
        v_lshrrev_b32 v4, 3, v0
        v_and_b32 v5, 7, v0
        v_lshrrev_b32 v6, 1, v4
        s_lshl_b32 {sBb}, s35, 2
        v_add_u32 v6, {sBb}, v6
        v_xor_b32 v5, v5, v6
        s_lshl_b32 {sBb}, {sWI}, 3
        v_add_u32 v4, {sBb}, v4
        v_lshlrev_b32 v4, 11, v4
        v_lshl_add_u32 v11, v5, 4, v4
        s_lshl_b32 {sBb}, {sWI}, 10
        s_xor_b32 s35, {sB}, {sCQ}
        s_and_b32 s35, s35, 1
        """)
        alt = cfg.qord not in ("rot", "none")
        if alt:
            for g in range(2):
                if cfg.qord == "alt2": o = [g] + [(t + 1 + g if t & 1 else t - 1 - g) for t in range(1, 15)] + [15 - g]
                elif cfg.qord[0] == "h":
                    n = int(cfg.qord[1:]); r = list(range(n, 16)); h = len(r) // 2
                    o = list(range(n)) + (r if g == 0 else r[h:] + r[:h])
                else:
                    n = int(cfg.qord[1:]); o = []
                    for j in range(0, 16, 2 * n): o += list(range(j + g * n, j + g * n + n)) + list(range(j + (1 - g) * n, j + (1 - g) * n + n))
                assert sorted(o) == list(range(16))
                v = sum(st << (4 * t) for t, st in enumerate(o))
                a(f"s_cmp_eq_u32 s35, {g}\ns_cselect_b32 s98, {v & 0xffffffff:#x}, s98\ns_cselect_b32 s99, {v >> 32:#x}, s99")
            a("s_mov_b64 s[92:93], s[98:99]\ns_and_b32 s35, s98, 15\ns_lshl_b32 s30, s35, 19\ns_lshl_b32 s31, s35, 7")
        elif cfg.qord == "rot": a("s_lshl_b32 s30, s35, 22\ns_lshl_b32 s31, s35, 10")
        else: a("s_mov_b32 s30, 0\ns_mov_b32 s31, 0")
        a(f"s_mul_i32 s33, {sB}, 229376\ns_lshl_b32 s32, {sH0}, 8\ns_sub_u32 s34, 0x800000, s32\ns_waitcnt lgkmcnt(0)")
        select((4, 10))
        srd_off(a, SX, "s4", "s5", "s33", 229376)
        srd_off(a, SW, "s10", "s11", "s32", "s34")
        def issue_wq(slot):
            for pc in (0, 2, 8, 10):
                a(f"s_add_u32 m0, {sA}, {slot*16384 + pc*1024}\ns_add_u32 s35, s30, {pc*16384}\nbuffer_load_dwordx4 v10, {S(SW)}, s35 offen {cfg.wqpol} lds")
            if alt and (slot & 1): a("s_lshr_b64 s[98:99], s[98:99], 4\ns_and_b32 s30, s98, 15\ns_lshl_b32 s30, s30, 19")
            else: a("s_add_u32 s30, s30, 0x40000\ns_and_b32 s30, s30, 0x7fffff")
        def issue_x(slot):
            lab = a.label("xs")
            for n in range(4):
                if n == 3: a(f"s_cmp_ge_u32 {sWI}, 2\ns_cbranch_scc1 {lab}")
                a(f"s_add_u32 m0, {sBb}, {slot*14336 + n*4096}\ns_add_u32 s35, s31, {n*65536}\nbuffer_load_dwordx4 v11, {S(SX)}, s35 offen lds")
            if alt: a(f"{lab}:\ns_lshr_b64 s[92:93], s[92:93], 4\ns_and_b32 s31, s92, 15\ns_lshl_b32 s31, s31, 7")
            else: a(f"{lab}:\ns_add_u32 s31, s31, 128\ns_and_b32 s31, s31, 2047")
        def kv_piece(tile, hd, n, isv, slot):
            a(f"s_add_u32 s35, {sROT}, {tile*8192}\ns_and_b32 s35, s35, 0x1ffff\ns_add_u32 s35, s35, s32")
            a(f"s_add_u32 m0, s96, {slot + hd*HSTEP + isv*KT + n*4224}\ns_add_u32 s35, s35, {hd*HD + n*1024}")
            a(f"buffer_load_dwordx4 v2, {S(SV if isv else SK)}, s35 offen KVPOL lds")
        kv_src = "v_lshrrev_b32 v4, 4, v0\nv_and_b32 v5, 15, v0\nv_lshlrev_b32 v4, 11, v4\nv_lshl_add_u32 v2, v5, 4, v4"
        stamp(1, "s")
        issue_x(0); issue_wq(0); issue_wq(1)
        stamp(2, "s")
        other_srds()
        a(kv_src)
        a(f"s_mul_i32 s96, {sWI}, 1056\ns_lshl_b32 s32, {sWI}, 8\ns_waitcnt vmcnt(4)\ns_barrier")
        issue_x(1); issue_wq(2)
        a("s_waitcnt vmcnt(7)\ns_barrier")
        issue_wq(3); issue_wq(0)
        kv0 = int(cfg.kv0)
        kvl = [(tile, hd, n, isv) for tile in range(2) for isv in range(2) for hd in range(2) for n in range(2)]
        a(f"s_mov_b32 {sIT}, 0\ns_branch L_qlmid\nL_qlloop:")
        for u in range(4):
            a(f"s_waitcnt vmcnt({8 if u & 1 else 11})\ns_barrier")
            if u & 1: issue_x((u >> 1) & 1)
            issue_wq(u)
            if u == 0: a("L_qlmid:")
        a(f"s_add_u32 {sIT}, {sIT}, 1\ns_cmp_lt_u32 {sIT}, {kv0}\ns_cbranch_scc1 L_qlloop")
        q = []
        for u in range(4 * kv0 - 4, 4 * kv0):
            if u & 1: q.append(("x", (u >> 1) + 2, 3))
            q.append(("w", u + 4, 4))
        for u in range(4 * kv0, 32):
            need = [i for i, e in enumerate(q) if (e[0] == "w" and e[1] <= u + 1) or (e[0] == "x" and e[1] <= (u + 1) >> 1)]
            if need:
                a(f"s_waitcnt vmcnt({sum(e[2] for e in q[max(need) + 1:])})")
                q = q[max(need) + 1:]
            a("s_barrier")
            if (u & 1) and (u >> 1) + 2 < 16: issue_x((u >> 1) & 1); q.append(("x", (u >> 1) + 2, 3))
            if u + 4 < 32: issue_wq(u % 4); q.append(("w", u + 4, 4))
            for _ in range(int(cfg.kvper)):
                if kvl:
                    tile, hd, n, isv = kvl.pop(0)
                    kv_piece(tile, hd, n, isv, (SA_, SB_)[tile]); q.append(("k", 0, 1))
        if not cfg.peelq: a("s_barrier")
        for tile, hd, n, isv in kvl: kv_piece(tile, hd, n, isv, (SA_, SB_)[tile])
        for isv in range(2):
            for hd in range(2):
                for n in range(2): kv_piece(2, hd, n, isv, SC_)
        a("s_waitcnt vmcnt(20)\ns_branch L_join")

    def gmf(u, zero=False):
        fb = FB + 44 * (u & 1)
        return [f"v_mfma_f32_16x16x32_bf16 {vr(ACC+4*(t*7+qt),4)}, {vr(fb+4*t,4)}, {vr(fb+16+4*qt,4)}, {'0' if zero else vr(ACC+4*(t*7+qt),4)}"
                for qt in range(7) for t in (range(3, -1, -1) if cfg.snake and qt & 1 else range(4))]
    def gloop(name, period, blocks, reads, pre, cut=None):
        if int(cfg.prio): a(f"s_setprio {cfg.prio}")
        a("s_waitcnt lgkmcnt(0)\ns_barrier")
        weave(a, gmf(0, True), reads(1))
        a(f"s_mov_b32 {sIT}, 0\ns_branch {name}_mid\n{name}:")
        for u in range(period):
            a(f"s_waitcnt lgkmcnt(0){pre.get(u, '')}\ns_barrier")
            ex = [f"s_cmp_eq_u32 {sIT}, {cut}"] if cut is not None and u == 2 else []
            weave(a, gmf(u), reads(u + 1) + ex)
            if ex: a(f"s_cbranch_scc1 {name}_out")
            if u == 0: a(f"{name}_mid:")
            if u % 4 == 3:
                if cfg.stamps and cfg.sgrp == name:
                    for i in range(u // 4, 7, period // 4):
                        lab = a.label("st")
                        a(f"s_cmp_lg_u32 {sIT}, {i}\ns_cbranch_scc1 {lab}")
                        stamp(1 + i, name)
                        a(f"{lab}:")
                a(f"s_add_u32 {sIT}, {sIT}, 1\ns_cmp_lt_u32 {sIT}, {blocks}")
                a(f"s_cbranch_scc1 {name}" if u == period - 1 else f"s_cbranch_scc0 {name}_out")
        a(f"{name}_out:")
        if int(cfg.prio): a("s_setprio 0")
    cbits = struct.unpack("<I", struct.pack("<f", (128 ** -0.5) * math.log2(math.e)))[0]
    a(f"""
    L_qmm:
    v_lshrrev_b32 v4, 4, v0         ; g4
    v_bfe_u32 v5, v0, 2, 2          ; r
    v_and_b32 v6, 3, v0             ; c
    v_lshl_add_u32 v7, v4, 3, v5
    v_lshlrev_b32 v7, 9, v7
    v_lshrrev_b32 v9, 1, v6
    v_lshl_add_u32 v7, v9, 4, v7
    v_and_b32 v9, 1, v6
    v_lshl_add_u32 v7, v9, 3, v7
    s_lshr_b32 s35, {sWI}, 1
    s_lshl_b32 s35, s35, 8
    s_add_u32 s35, s35, {WQ0}
    v_add_u32 v7, s35, v7
    v_and_b32 v9, 1, v4
    v_lshl_or_b32 v9, v9, 2, v5
    s_and_b32 s35, {sWI}, 1
    s_lshl_b32 s35, s35, 2
    v_xor_b32 v9, s35, v9
    """)
    for t in range(4): a(f"v_xor_b32 v1, {t}, v9\nv_lshl_add_u32 v{10+t}, v1, 5, v7")
    a(f"""
    v_and_b32 v5, 15, v0
    v_lshrrev_b32 v6, 1, v5
    v_xor_b32 v6, v6, v4
    v_lshlrev_b32 v7, 7, v5
    v_lshl_add_u32 v14, v6, 4, v7
    v_xor_b32 v15, 64, v14
    v_lshlrev_b32 v5, 4, v5
    v_lshrrev_b32 v6, 5, v0
    v_lshl_add_u32 v5, v6, 8, v5
    v_bfe_u32 v6, v0, 4, 1
    v_lshl_add_u32 v5, v6, 3, v5
    s_lshr_b32 s34, {sWI}, 1
    s_mul_i32 s34, s34, 28672
    s_and_b32 s35, {sWI}, 1
    s_lshl_b32 s35, s35, 11
    s_add_u32 s34, s34, s35
    s_add_u32 s34, s34, {HO}
    v_add_u32 v8, s34, v5
    s_mov_b32 s30, {cbits:#x}
    s_mov_b32 s31, {cbits:#x}
    """)
    a(kv_src)
    a("s_waitcnt lgkmcnt(0)")
    other_srds()
    if int(cfg.tlb):
        a(f"s_cmp_lg_u32 s3, 1\ns_cbranch_scc1 L_tl2\ns_lshl_b32 s32, {sH0}, 8\ns_sub_u32 s34, 0x800000, s32")
        select((10,))
        srd_off(a, SW, "s10", "s11", "s32", "s34")
        a(f"""
        v_and_b32 v4, 3, v0
        v_lshlrev_b32 v4, 21, v4
        buffer_load_dword {VD}, v4, {S(SW)}, 0 offen
        L_tl2:
        """)
        if int(cfg.tlb) > 1:
            a(f"""
            s_cmp_lg_u32 s3, 2
            s_cbranch_scc1 L_tl3
            v_mov_b32 v4, 0
            v_and_b32 v5, 1, v0
            v_mul_u32_u24 v5, 0x1ff800, v5
            buffer_load_dword {VD}, v4, {S(SK)}, {sROT} offen nt
            buffer_load_dword {VD}, v4, {S(SV)}, {sROT} offen nt
            buffer_load_dword {VD}, v5, {S(SWO)}, 0 offen
            s_mul_i32 s35, {sCQ}, 57344
            buffer_load_dword {VD}, v4, {S(SO)}, s35 offen
            L_tl3:
            s_cmp_lg_u32 s3, 3
            s_cbranch_scc1 L_tl4
            s_lshl_b32 s35, {sBR}, 3
            s_add_u32 s35, s35, {sB}
            s_lshl_b32 s35, s35, 2
            s_add_u32 s35, s35, {sCQ}
            s_mul_i32 s35, s35, {12*16384}
            s_add_u32 s35, s35, {RED + 3840}
            v_and_b32 v4, 1, v0
            v_mul_u32_u24 v4, {11*16384}, v4
            buffer_load_dword {VD}, v4, {S(SWS)}, s35 offen
            v_mov_b32 v4, {FLAGS + 65536}
            buffer_load_dword {VD}, v4, {S(SWS)}, 0 offen
            s_mul_i32 s35, {sB}, 458752
            s_mov_b32 s34, 458752
            """)
            srd_off(a, SX, "s24", "s25", "s35", "s34")
            a(f"v_and_b32 v4, 1, v0\nv_mul_u32_u24 v4, 458624, v4\nbuffer_load_dword {VD}, v4, {S(SX)}, 0 offen\nL_tl4:")
    a(f"""
    s_or_b32 s35, s2, s3
    s_cbranch_scc1 L_notag
    s_mov_b32 s{SX}, s26
    s_and_b32 s{SX+1}, s27, 0xffff
    s_mov_b32 s{SX+2}, 256
    s_mov_b32 s{SX+3}, 0x00020000
    v_mov_b32 v4, {FLAGS}
    v_mov_b32 v7, 0
    s_mov_b32 s34, 1664525
    s_mov_b32 s35, 1013904223
    buffer_load_dword v5, v4, {S(SWS)}, 0 offen {SC}
    s_waitcnt vmcnt(0)
    v_mul_lo_u32 v5, v5, s34
    v_add_u32 v5, s35, v5
    v_mov_b32 v6, s35
    v_cmp_eq_u32 vcc, 0, v5
    s_nop 1
    v_cndmask_b32 v5, v5, v6, vcc
    s_mov_b64 exec, 1
    buffer_store_dword v5, v7, {S(SX)}, 0 offen {SC}
    s_mov_b64 exec, -1
    L_notag:
    s_barrier
    """)
    def qreads(u):
        fb = FB + 44 * (u & 1)
        r = [f"ds_read_b64_tr_b16 {vr(fb+4*t+2*j,2)}, v{10+t} offset:{(u%4)*16384 + j*2048}" for t in range(4) for j in range(2)]
        xs = [f"ds_read_b128 {vr(fb+16+4*qt,4)}, v{14+(u&1)} offset:{((u>>1)&1)*14336 + qt*2048}" for qt in range(7)]
        return r[:2] + xs[:1] + r[2:] + xs[1:]
    stamp(1); stamp(1, "s")
    for r in qreads(0): a(r)
    def pack(qt, t):
        acc = ACC + 4 * (t * 7 + qt)
        return (f"v_pk_mul_f32 {vr(acc,2)}, {vr(acc,2)}, s[30:31]\nv_pk_mul_f32 {vr(acc+2,2)}, {vr(acc+2,2)}, s[30:31]\n"
                f"v_cvt_pk_bf16_f32 v{acc}, v{acc}, v{acc+1}\nv_cvt_pk_bf16_f32 v{acc+1}, v{acc+2}, v{acc+3}\n"
                f"ds_write_b64 v8, {vr(acc,2)} offset:{qt*4096 + t*512}")
    packs = [pack(qt, t) for qt in range(7) for t in range(4)]
    if cfg.peelq:
        assert not cfg.snake
        gloop("L_q", 4, 8, qreads, {}, cut=7)
        a("s_waitcnt lgkmcnt(0)\ns_barrier")
        stamp(2)
        weave(a, gmf(3), [""] * 8 + packs[:19] + ["s_nop 1"] + packs[19:])
    else:
        gloop("L_q", 4, 8, qreads, {})
        stamp(2)
        a("s_waitcnt lgkmcnt(0)\ns_barrier")
        for x in packs: a(x)

    QF, OA, SS, NM, KF, VF, PP = 16, 48, 112, 144, 160, 192, 224
    L_, MX, T0 = 232, 234, 235
    a(f"""
    L_join:
    s_lshr_b32 s34, s3, 2
    s_mul_i32 s35, s34, {HD}
    s_add_u32 s{SK}, s{SK}, s35
    s_addc_u32 s{SK+1}, s{SK+1}, 0
    s_mov_b32 s{SK+2}, 131072
    s_add_u32 s{SV}, s{SV}, s35
    s_addc_u32 s{SV+1}, s{SV+1}, 0
    s_mov_b32 s{SV+2}, 131072
    s_mul_i32 s30, s34, {HSTEP}
    s_mul_i32 {sA}, {sWI}, 1056
    s_add_u32 {sA}, {sA}, s30
    s_add_u32 {sBb}, {sA}, {KT}
    v_lshlrev_b32 v5, 4, v0
    s_mul_i32 s35, s34, 28672
    s_lshl_b32 {sT}, {sWI}, 13
    s_add_u32 {sT}, {sT}, s35
    s_add_u32 {sT}, {sT}, {HO}
    v_add_u32 v9, {sT}, v5
    s_lshl_b32 {sT}, {sWI}, 11
    s_add_u32 s35, s35, {sT}
    v_add_u32 v14, s35, v5
    v_and_b32 v7, 7, v0
    v_mul_u32_u24 v7, 1056, v7
    v_bfe_u32 v1, v0, 3, 1
    v_lshl_add_u32 v7, v1, 8, v7
    v_lshrrev_b32 v1, 4, v0
    v_lshl_add_u32 v7, v1, 4, v7
    v_add_u32 v10, s30, v7
    v_bfe_u32 v7, v0, 2, 3
    v_mul_u32_u24 v7, 1056, v7
    v_lshrrev_b32 v1, 5, v0
    v_lshl_add_u32 v7, v1, 8, v7
    v_and_b32 v1, 3, v0
    v_lshl_add_u32 v7, v1, 3, v7
    s_add_u32 s35, s30, {KT}
    v_add_u32 v12, s35, v7
    v_add_u32 v11, {SA_}, v10
    s_lshl_b32 s35, {sWI}, 8
    s_add_u32 s31, {sROT}, s35
    s_add_u32 s31, s31, {3*8192}
    s_and_b32 s31, s31, 0x1ffff
    s_mov_b32 s96, {SA_}
    s_mov_b32 s97, {SD_}
    s_mov_b32 s100, 0x41000000
    s_and_b32 s94, {sCQ}, 1
    s_add_u32 s94, s94, 1
    s_sub_u32 s94, s94, {sBR}
    v_lshrrev_b32 v4, 5, v0
    s_lshl_b32 s35, {sWI}, 1
    v_add_u32 v4, s35, v4
    v_and_b32 v5, 31, v0
    v_lshlrev_b32 v6, 1, v4
    v_xor_b32 v5, v5, v6
    v_lshlrev_b32 v4, 11, v4
    v_lshl_add_u32 v15, v5, 4, v4
    v_lshrrev_b32 v4, 4, v0
    v_lshlrev_b32 v4, 5, v4
    v_bfe_u32 v5, v0, 2, 2
    v_add_u32 v4, v4, v5
    s_lshl_b32 s35, {sB}, 2
    v_add_u32 v4, s35, v4
    v_lshlrev_b32 v4, 11, v4
    v_and_b32 v5, 3, v0
    v_lshl_add_u32 v3, v5, 7, v4
    v_mov_b32 v4, 0
    """)
    a(f"""
    v_lshrrev_b32 v7, 2, v0
    v_lshlrev_b32 v7, 9, v7
    v_and_b32 v6, 3, v0
    v_lshl_add_u32 v7, v6, 3, v7
    v_add_u32 v7, {WO0}, v7
    v_bfe_u32 v6, v0, 2, 3
    v_xor_b32 v6, {sWI}, v6
    """)
    for tau in range(4):
        a(f"""
        s_add_u32 s35, {sHG}, {tau}
        s_and_b32 s34, s35, 1
        s_lshl_b32 s34, s34, 2
        s_bfe_u32 s35, s35, 0x10001
        s_lshl_b32 s35, s35, 8
        v_xor_b32 v1, s34, v6
        v_lshl_add_u32 v1, v1, 5, v7
        v_add_u32 v{240+tau}, s35, v1
        """)
    srd(a, SDBG, "s26", "s27", 256)
    a(f"s_cmp_eq_u32 {sWI}, 3\ns_waitcnt lgkmcnt(0)\ns_cbranch_scc1 L_attn1")
    ts = [int(x) for x in cfg.tsched.split(",")]
    stubs = []
    def blk(b): return (0, b, 0) if b < 2 else ((b - 1, 0, 0) if b < 5 else ((b - 4, 1, 0) if b < 8 else (3, 1, 1)))
    def producer(b, reg): a(f"s_add_u32 {reg}, {sCQ}, {blk(b)[0]}\ns_and_b32 {reg}, {reg}, 3")
    def wo_rows(b, reg):
        d, h, g = blk(b)
        producer(b, reg)
        if cfg.mix: a(f"s_lshl_b32 s35, {reg}, 1\ns_and_b32 s35, s35, 4\ns_and_b32 {reg}, {reg}, 1\ns_add_u32 {reg}, {reg}, s35\ns_add_u32 {reg}, {reg}, {2*h + 8*g}")
        else: a(f"s_lshl_b32 {reg}, {reg}, 1\ns_add_u32 {reg}, {reg}, {h + 8*g}")
        a(f"s_lshl_b32 {reg}, {reg}, 18")
    def touch_block(b, wave):
        lab = a.label("wt"); t = A()
        keep, a.l = a.l, t.l
        a(f"s_cmp_lg_u32 s3, {wave}\ns_cbranch_scc1 {lab}")
        wo_rows(b, "s6")
        a(f"buffer_load_dword {VD}, v3, {S(SWO)}, s6 offen {cfg.wopol}\n{lab}:")
        a.l = keep
        return t.text()
    def kpiece(n, slot, src): return f"s_add_u32 s34, {slot}, {sA}\ns_add_u32 m0, s34, {n*4224}\ns_add_u32 s35, {src}, {n*1024}\nbuffer_load_dwordx4 v2, {S(SK)}, s35 offen KVPOL lds"
    def vpiece(n, slot, src): return f"s_add_u32 s34, {slot}, {sBb}\ns_add_u32 m0, s34, {n*4224}\ns_add_u32 s35, {src}, {n*1024}\nbuffer_load_dwordx4 v2, {S(SV)}, s35 offen KVPOL lds"
    def wo_pieces(mbase, moff, soff, add=0):
        return [f"s_add_u32 m0, {mbase}, {moff + n*4096}\ns_add_u32 s35, {soff}, {add + n*16384}\nbuffer_load_dwordx4 v15, {S(SWO)}, s35 offen lds" for n in range(4)]
    def kreads(): return [f"ds_read_b128 {vr(KF+16*kt+4*s_,4)}, v11 offset:{kt*512 + 64*s_}" for s_ in range(4) for kt in range(2)]
    def tree(dst, tmp, b, n):
        if n == 8: return [f"v_max3_f32 v{dst}, v{b}, v{b+1}, v{b+2}", f"v_max3_f32 v{tmp}, v{b+3}, v{b+4}, v{b+5}",
                           f"v_max3_f32 v{dst}, v{dst}, v{b+6}, v{b+7}", f"v_max_f32 v{dst}, v{dst}, v{tmp}"]
        return ([f"v_max3_f32 v{dst}, v{b}, v{b+1}, v{b+2}", f"v_max3_f32 v{tmp}, v{b+3}, v{b+4}, v{b+5}"]
                + [f"v_max3_f32 v{(dst, tmp)[i&1]}, v{(dst, tmp)[i&1]}, v{b+6+2*i}, v{b+7+2*i}" for i in range(5)]
                + [f"v_max_f32 v{dst}, v{dst}, v{tmp}"])
    def across(op, r, tmp):
        for sw in ("16", "32"):
            a(f"s_nop 0\nv_mov_b32 v{tmp}, v{r}\ns_nop 1\nv_permlane{sw}_swap_b32 v{tmp}, v{r}\ns_nop 1\n{op} v{r}, v{r}, v{tmp}")
    def epi(store, NQ):
        for p in range(4):
            for qi in range(NQ):
                b = OA + 32*qi + 8*p
                if cfg.pkn:
                    for i in range(0, 8, 2): a(f"v_pk_mul_f32 {vr(b+i,2)}, {vr(b+i,2)}, {vr(L_,2)} op_sel:[0,{qi}] op_sel_hi:[1,{qi}]")
                else:
                    for i in range(8): a(f"v_mul_f32 v{b+i}, v{b+i}, v{L_+qi}")
                for i in range(4): a(f"v_cvt_pk_bf16_f32 v{b+i}, v{b+2*i}, v{b+2*i+1}")
                a(f"ds_write_b128 v14, {vr(b,4)} offset:{p*7168 + qi*1024}")
                if store: a(f"buffer_store_dwordx4 {vr(b,4)}, v14, {S(SO)}, s34 offen offset:{qi*1024} {SC}")
            if store: a("s_add_u32 s34, s34, 7168")
        if store: a(f"s_waitcnt vmcnt({4 * NQ})")
    def attn(NQ):
        N = 8 * NQ
        def qk(sb, zero=False):
            out = []
            for s_ in range(4):
                for kt in range(2):
                    for n_, qi in enumerate(range(NQ - 1, -1, -1) if cfg.snake and kt else range(NQ)):
                        d = vr(sb + 8*qi + 4*kt, 4)
                        out.append((f"s_waitcnt lgkmcnt(LG{2*s_+kt})\n" if n_ == 0 else "") +
                                   f"v_mfma_f32_16x16x32_bf16 {d}, {vr(KF+16*kt+4*s_,4)}, {vr(QF+16*qi+4*s_,4)}, {('0' if zero else vr(NM+4*qi,4)) if s_ == 0 else d}")
            return out
        def emit_qk(ms, fill):
            nv = 0
            for n, m in enumerate(ms):
                i = n // NQ
                a(m.replace(f"LG{i}", str(min(15, 7 - i + nv))))
                for f in fill[n]:
                    a(f); nv += f.startswith("ds_")
        def spread(items, gaps, lo=0):
            out = [[] for _ in range(gaps)]
            for i, x in enumerate(items): out[lo + i * (gaps - lo) // len(items)].append(x)
            return out
        def merge(*ls): return [sum((l[i] for l in ls), []) for i in range(len(ls[0]))]
        a("s_barrier")
        for qi in range(NQ):
            for s_ in range(4): a(f"ds_read_b128 {vr(QF+16*qi+4*s_,4)}, v9 offset:{qi*4096 + s_*1024}")
        for x in kreads(): a(x)
        a("s_waitcnt lgkmcnt(8)\ns_barrier")
        stamp(3)
        emit_qk(qk(SS, True), [[kpiece(0, "s97", "s31")], [], [kpiece(1, "s97", "s31")]] + [[]] * 16)
        a("s_nop 7")
        for qi in range(NQ):
            for x in tree(MX, T0, SS + 8*qi, 8): a(x)
            across("v_max_f32", MX, T0)
            a(f"v_mov_b32 v{L_+qi}, 0")
            for i in range(8): a(f"v_sub_f32 v{SS+8*qi+i}, v{SS+8*qi+i}, v{MX}")
            for i in range(4): a(f"v_sub_f32 v{NM+4*qi+i}, 0, v{MX}")
        def step(par, wait, dma=None, first=False, last=False, tight=False):
            cur, nxt = SS + 16 * par, SS + 16 * (1 - par)
            if tight and cfg.lv:
                lab = a.label("tw"); w1, w2 = cfg.lv.split(",")
                a(f"s_cmp_eq_u32 s94, 0\ns_cbranch_scc1 {lab}\ns_waitcnt vmcnt({w1})\ns_cmp_eq_u32 s94, 1\ns_cbranch_scc1 {lab}\ns_waitcnt vmcnt({w2})\n{lab}:")
            elif tight and int(cfg.aeven) >= 0:
                lab = a.label("tw")
                a(f"s_bitcmp{cfg.tpol}_b32 s2, {cfg.tbit}\ns_cbranch_scc1 {lab}\ns_cmp_ge_u32 {sIT}, {cfg.tn}\ns_cbranch_scc1 {lab}\ns_waitcnt vmcnt({cfg.aeven})\n{lab}:")
            a(f"""
            s_waitcnt vmcnt({wait})
            s_barrier
            s_add_u32 s98, s96, {SLOTB}
            s_cmp_eq_u32 s96, {SB_}
            s_cselect_b32 s98, 0, s98
            s_cmp_eq_u32 s96, {SD_}
            s_cselect_b32 s98, {SA_}, s98
            v_add_u32 v11, s98, v10
            v_add_u32 v13, s96, v12
            s_add_u32 s30, s31, 8192
            s_and_b32 s30, s30, 0x1ffff
            """)
            vrd = [f"ds_read_b64_tr_b16 {vr(VF+4*t+2*j,2)}, v13 offset:{j*512 + 32*t}" for t in range(8) for j in range(2)]
            ex = [f"v_exp_f32 v{cur+i}, v{cur+i}" for i in range(N)]
            cv = [f"v_cvt_pk_bf16_f32 v{PP+i}, v{cur+2*i}, v{cur+2*i+1}" for i in range(N // 2)]
            ad = [f"v_add_f32 v{L_+(i>>3)}, v{L_+(i>>3)}, v{cur+i}" for i in range(N)]
            if NQ == 2: ad = [ad[(i >> 1) + 8 * (i & 1)] for i in range(16)]
            if dma is None: dma = [kpiece(0, "s96", "s30"), vpiece(0, "s97", "s31"), kpiece(1, "s96", "s30"), vpiece(1, "s97", "s31")]
            dma = list(dma) + [""] * (4 - len(dma))
            pv = [(f"s_waitcnt lgkmcnt({14 - 2*t})\n" if n_ == 0 else "") +
                  f"v_mfma_f32_16x16x32_bf16 {vr(OA+32*qi+4*t,4)}, {vr(VF+4*t,4)}, {vr(PP+4*qi,4)}, {'0' if first else vr(OA+32*qi+4*t,4)}"
                  for t in range(8) for n_, qi in enumerate(range(NQ - 1, -1, -1) if cfg.snake and t & 1 else range(NQ))]
            if not last:
                for x in kreads(): a(x)
                for x in ex[:8]: a(x)
                if NQ == 2: valu = [ex[8], cv[0], ex[9], cv[1], ex[10], cv[2], ex[11], cv[3], ex[12], ex[13], cv[4], ex[14], cv[5], ex[15], cv[6], cv[7]]
                else: valu = cv + ad[:4]
                fill = merge(spread(vrd, N), spread(valu, N))
                if cfg.early:
                    fill = merge(fill, spread(dma, N)); dma = [""] * 4
                emit_qk(qk(nxt), fill)
                a("s_nop 0")
                mt = tree(MX, T0, nxt, N)
                fill = merge(spread(ad if NQ == 2 else ad[4:], N - 1) + [[]], spread(dma, N - 1) + [[]], spread(mt, N - 1, N // 2 - 1) + [[]])
                for n, m in enumerate(pv):
                    a(m)
                    for f in fill[n]: a(f)
                stub, back = a.label("stub"), a.label("back")
                stubs.append((stub, back, 1 - par, NQ))
                a(f"v_cmp_lt_f32 vcc, s100, v{MX}\ns_mov_b32 s97, s96\ns_mov_b32 s96, s98\ns_mov_b32 s31, s30\ns_cbranch_vccnz {stub}\n{back}:")
            else:
                for x in vrd[:8]: a(x)
                for x in ex[:8] + cv[:4]: a(x)
                for x in vrd[8:]: a(x)
                for x in ex[8:] + cv[4:]: a(x)
                a("s_nop 0")
                fill = merge(spread(ad, N), spread(dma, N))
                for n, m in enumerate(pv):
                    a(m)
                    for f in fill[n]: a(f)
        def at(t): return "".join(touch_block(b, b) for b in range(1, 8) if ts[b - 1] == 100 + t)
        aw = int(cfg.await_)
        step(0, min(aw + 6, 14) if not cfg.qsplit else 26, first=True)
        step(1, min(aw + 2, 10))
        a(f"s_mov_b32 {sIT}, 0\nL_aloop{NQ}:")
        def inloop(par):
            out = ""
            for b in range(1, 8):
                t = ts[b - 1] - 100
                if 2 <= t < 12 and t & 1 == par:
                    lab = a.label("il")
                    out += f"s_cmp_lg_u32 {sIT}, {(t - 2) // 2}\ns_cbranch_scc1 {lab}\n" + touch_block(b, b) + f"{lab}:\n"
            d = [kpiece(0, "s96", "s30"), vpiece(0, "s97", "s31"), kpiece(1, "s96", "s30"), vpiece(1, "s97", "s31")]
            d[3] += "\n" + out
            return d
        step(0, aw, inloop(0), tight=True); step(1, aw, inloop(1), tight=True)
        a(f"s_add_u32 {sIT}, {sIT}, 1\ns_cmp_lt_u32 {sIT}, 5\ns_cbranch_scc1 L_aloop{NQ}")
        tw = [min(int(x), y) for x, y in zip(cfg.tw.split(","), (8, 6, 6, 8))]
        step(0, tw[0], [vpiece(0, "s97", "s31"), vpiece(1, "s97", "s31"), f"buffer_load_dword {VTAG}, v4, {S(SDBG)}, 0 offen {SC}", at(12)])
        wo_rows(0, "s5")
        a(f"""
        s_lshr_b32 s34, s3, 2
        s_lshl_b32 s35, s34, 16
        s_add_u32 s5, s5, s35
        s_lshl_b32 {sA}, {sWI}, 10
        s_add_u32 {sA}, {sA}, {WO0}
        s_lshl_b32 s35, s34, 14
        s_add_u32 {sBb}, {sA}, s35
        """)
        w = wo_pieces(sBb, 0, "s5"); w[3] += "\n" + at(13)
        step(1, tw[1], w)
        w = wo_pieces(sBb, 32768, "s5", 0x20000); w[3] += "\n" + at(14)
        step(0, tw[2], w)
        step(1, tw[3], [at(15)], last=True)
        stamp(4)
        for qi in range(NQ):
            across("v_add_f32", L_ + qi, T0)
            a(f"v_rcp_f32 v{L_+qi}, v{L_+qi}")
        a(f"s_mul_i32 s34, {sCQ}, 57344\ns_barrier\ns_cmp_ge_u32 s3, 4\ns_cbranch_scc1 L_epx{NQ}")
        epi(not cfg.stlate, NQ)
        if cfg.stlate: a("s_waitcnt vmcnt(0)")
        a(f"s_branch L_oload\nL_epx{NQ}:")
        epi(False, NQ)
        a("s_branch L_omm")
    attn(2)
    a("L_attn1:")
    attn(1)

    TBL = sum((d | h << 2 | g << 3) << (4 * b) for b, (d, h, g) in enumerate(map(blk, range(9))))
    def nblocks():
        if cfg.uneven: a(f"s_bitcmp1_b32 {sHG}, 0\ns_cselect_b32 s101, 7, 9")
        else: a("s_mov_b32 s101, 8")
    def decode(first):
        if first is not None: a(f"s_mov_b32 s92, {(TBL >> (4*first)) & 0xffffffff:#x}\ns_mov_b32 s93, {TBL >> (4*first + 32):#x}")
        else: a("s_lshr_b64 s[92:93], s[92:93], 4")
        a(f"s_add_u32 s5, s92, {sCQ}\ns_and_b32 s5, s5, 3\ns_bfe_u32 s6, s92, 0x20002")
    fa, st0, sper = int(cfg.fa), int(cfg.st0), int(cfg.sper)
    def late(ps, NQ):
        if not cfg.stlate: return
        for p in ps:
            a(f"s_mul_i32 s34, {sCQ}, 57344\ns_add_u32 s34, s34, {p*7168}")
            for qi in range(NQ): a(f"buffer_store_dwordx4 {vr(OA+32*qi+8*p,4)}, v9, {S(SO)}, s34 offen offset:{qi*1024} {SC}")
    a(f"""
    L_oload:
    v_mov_b32 v9, v14
    v_lshlrev_b32 v14, 4, v0
    s_cmp_ge_u32 s3, 2
    s_cbranch_scc1 L_ol2
    v_lshrrev_b32 v4, 5, v0
    s_lshl_b32 s35, s3, 2
    v_add_u32 v4, s35, v4
    v_and_b32 v5, 31, v0
    v_lshlrev_b32 v6, 1, v4
    v_xor_b32 v5, v5, v6
    v_lshlrev_b32 v4, 11, v4
    v_lshl_add_u32 v15, v5, 4, v4
    v_xor_b32 v13, 64, v15
    v_add_u32 v13, 4096, v13
    s_lshl_b32 {sA}, s3, 11
    s_add_u32 {sA}, {sA}, {WO0}
    s_mov_b32 {sIT}, 1
    """)
    nblocks()
    decode(0)
    a("s_waitcnt lgkmcnt(0)\ns_barrier")
    late((0, 1), 2)
    a("L_owl:")
    decode(None)
    if cfg.mix: a("s_lshl_b32 s35, s5, 1\ns_and_b32 s35, s35, 4\ns_and_b32 s30, s5, 1\ns_add_u32 s30, s30, s35\ns_and_b32 s35, s6, 1\ns_lshl_b32 s35, s35, 1")
    else: a("s_lshl_b32 s30, s5, 1\ns_and_b32 s35, s6, 1")
    a("s_add_u32 s30, s30, s35\ns_lshr_b32 s35, s6, 1\ns_lshl_b32 s35, s35, 3\ns_add_u32 s30, s30, s35\ns_lshl_b32 s30, s30, 18")
    for p in range(4):
        a("s_waitcnt vmcnt(16)\ns_barrier")
        if p == 0 and cfg.stlate:
            a(f"s_cmp_lg_u32 {sIT}, 1\ns_cbranch_scc1 L_owl2")
            late((2, 3), 2)
            a("L_owl2:")
        for n in range(4):
            a(f"s_add_u32 m0, {sA}, {p*16384 + n*4096}\ns_add_u32 s35, s30, {p*65536 + n*16384}\nbuffer_load_dwordx4 v15, {S(SWO)}, s35 offen lds")
            a(f"s_add_u32 m0, {sA}, {p*16384 + n*4096 + 1024}\ns_nop 0\nbuffer_load_dwordx4 v13, {S(SWO)}, s35 offen lds")
    a(f"s_add_u32 {sIT}, {sIT}, 1\ns_cmp_lt_u32 {sIT}, s101\ns_cbranch_scc1 L_owl")
    a("s_waitcnt vmcnt(16)\ns_barrier\ns_waitcnt vmcnt(8)\ns_barrier\ns_waitcnt vmcnt(0)\ns_barrier\ns_barrier")
    stamp(5)
    if cfg.sgrp != "o2": stamp_store(0, 0)
    a("s_branch L_end")
    def sample():
        a(f"""
        s_andn2_b32 s35, s2, 0x18
        s_lshl_b32 s34, s5, 3
        s_or_b32 s35, s35, s34
        s_lshr_b32 s34, s6, 1
        s_add_u32 s35, s35, s34
        s_lshl_b32 s35, s35, 5
        s_and_b32 s34, s6, 1
        s_add_u32 s35, s35, s34
        s_lshl_b32 s35, s35, 2
        s_add_u32 s35, s35, {FLAGS}
        v_mov_b32 v5, s35
        s_mul_i32 s32, s5, 57344
        s_mul_i32 s34, s34, 28672
        s_add_u32 s32, s32, s34
        s_lshr_b32 s34, s6, 1
        s_mul_i32 s34, s34, 229376
        s_add_u32 s32, s32, s34
        buffer_load_dword v13, v5, {S(SWS)}, 0 offen {SC}
        """)
    a("L_ol2:\ns_cmp_eq_u32 s3, 3\ns_cbranch_scc1 L_ol3")
    nblocks()
    decode(2)
    a(f"s_mov_b32 {sIT}, 2\ns_mov_b32 s33, 0\ns_waitcnt lgkmcnt(0)\ns_barrier")
    a(f"v_mov_b32 v4, 0\nv_cmp_eq_u32 vcc, 0, {VTAG}\ns_cbranch_vccz L_pt_out")
    poll("L_pt", SDBG, "v4", VTAG, "eq", "0")
    late((0, 1), 2)
    for u in range(5):
        if u == fa: a("s_waitcnt vmcnt(0)")
        a("s_barrier")
        if u == 0: late((2, 3), 2)
        if u == 4: sample()
    a("s_waitcnt vmcnt(0)\nL_ool:")
    for p in range(4):
        a("s_waitcnt vmcnt(7)\ns_barrier")
        if p == 0:
            a(f"s_mov_b32 s31, s32\nv_cmp_ne_u32 vcc, {VTAG}, v13\ns_cbranch_vccz L_po_out")
            poll("L_po", SWS, "v5", "v12", "ne", VTAG)
        if p == 2:
            decode(None); sample()
        for n in range(7):
            if n % 4 == 0: a(f"s_add_u32 m0, s33, {p*7168 + n*1024}\ns_add_u32 s35, s31, {p*7168 + n*1024}")
            a(f"buffer_load_dwordx4 v14, {S(SO)}, s35 offen offset:{(n&3)*1024} {SC} lds")
    a(f"s_xor_b32 s33, s33, 28672\ns_add_u32 {sIT}, {sIT}, 1\ns_cmp_lt_u32 {sIT}, s101\ns_cbranch_scc1 L_ool")
    a("s_waitcnt vmcnt(7)\ns_barrier\ns_waitcnt vmcnt(0)\ns_barrier\ns_barrier\ns_branch L_end")
    a(f"""
    L_ol3:
    v_add_u32 v7, 28672, v14
    s_mul_i32 s33, {sCQ}, 57344
    s_lshl_b32 s35, s2, 7
    s_add_u32 s35, s35, {FLAGS}
    v_mov_b32 v6, s35
    v_mov_b32 v4, 0
    s_waitcnt lgkmcnt(0)
    s_barrier
    """)
    late((0, 1, 2, 3), 1)
    if cfg.stlate: a("s_nop 1")
    for i in range(28): a(f"ds_read_b128 {vr(16+4*i,4)}, v7 offset:{i*1024}")
    a(f"v_cmp_eq_u32 vcc, 0, {VTAG}\ns_cbranch_vccz L_pt3_out")
    poll("L_pt3", SDBG, "v4", VTAG, "eq", "0")
    def flag(word): a(f"s_mov_b64 exec, 1\nbuffer_store_dword {VTAG}, v6, {S(SWS)}, 0 offen offset:{4*word} {SC}\ns_mov_b64 exec, -1")
    nst, young = 0, 0
    fb = st0 + -(-28 // sper) + 3
    assert fa < 4 and fb < 14
    for u in range(28):
        if u == fa: a(f"s_waitcnt vmcnt({nst + young})")
        a("s_barrier")
        if 5 <= u <= 11: stamp(u - 4, "o2")
        if u == fa: flag(0); young += nst == 28
        if u == st0: a("s_waitcnt lgkmcnt(0)")
        while u >= st0 and nst < min(28, (u - st0 + 1) * sper):
            if nst % 4 == 0: a(f"s_add_u32 s34, s33, {nst*1024}")
            a(f"buffer_store_dwordx4 {vr(16+4*nst,4)}, v7, {S(SO)}, s34 offen offset:{(nst&3)*1024} {SC}")
            nst += 1; young = 0
        if u == fb: a(f"s_waitcnt vmcnt({young})"); flag(1)
        for b in range(1, 9):
            if ts[b - 1] == u and (b < 8 or cfg.uneven):
                lab = a.label("lt")
                if cfg.uneven and b >= 7: a(f"s_bitcmp1_b32 {sHG}, 0\ns_cbranch_scc1 {lab}")
                wo_rows(b, "s6")
                a(f"buffer_load_dword {VD}, v3, {S(SWO)}, s6 offen {cfg.wopol}\n{lab}:")
                if not (cfg.uneven and b >= 7): young += 1
    if cfg.uneven: a(f"s_bitcmp1_b32 {sHG}, 0\ns_cbranch_scc1 L_ol3e\n" + "s_barrier\n" * 8 + "L_ol3e:")
    else: a("s_barrier\n" * 4)
    if cfg.sgrp == "o2": stamp_store(3, 0)
    a("s_branch L_end")

    a(f"""
    L_omm:
    v_lshlrev_b32 v14, 4, v0
    """)
    def oreads(u):
        fb = FB + 44 * (u & 1)
        r = [f"ds_read_b64_tr_b16 {vr(fb+4*t+2*j,2)}, v{240+t} offset:{(u%4)*16384 + j*8192}" for t in range(4) for j in range(2)]
        xs = [f"ds_read_b128 {vr(fb+16+4*qt,4)}, v14 offset:{(u%8)*7168 + qt*1024}" for qt in range(7)]
        return r[:2] + xs[:1] + r[2:] + xs[1:]
    nblocks()
    a("v_mov_b32 v4, 0\ns_waitcnt vmcnt(4) lgkmcnt(0)\ns_barrier")
    stamp(5)
    if cfg.sgrp == "L_o": stamp(0)
    for r in oreads(0): a(r)
    a(f"""
    s_lshl_b32 s30, {sBR}, 3
    s_add_u32 s30, s30, {sB}
    s_lshl_b32 s30, s30, 2
    s_add_u32 s30, s30, {sCQ}
    s_mul_i32 s30, s30, {12*16384}
    s_lshl_b32 s35, {sWI}, 12
    s_add_u32 s30, s30, s35
    s_add_u32 s30, s30, {RED}
    s_mul_i32 s35, {sB}, 458752
    s_lshl_b32 s34, {sBR}, 11
    s_add_u32 s35, s35, s34
    s_lshl_b32 s34, {sCQ}, 9
    s_add_u32 s35, s35, s34
    s_lshl_b32 s34, {sHG}, 7
    s_add_u32 s35, s35, s34
    s_sub_u32 s34, 3670016, s35
    """)
    srd_off(a, SOUT, "s24", "s25", "s35", "s34")
    for tau in range(1, 4):
        a(f"s_add_u32 s35, {sHG}, {tau}\ns_and_b32 s35, s35, 3\ns_mul_i32 s35, s35, {3*16384}\ns_add_u32 s35, s35, s30\ns_add_u32 s{4+tau}, s35, {(tau-1)*16384}")
    a(f"""
    s_mul_i32 s35, {sHG}, {3*16384}
    s_add_u32 s8, s30, s35
    s_add_u32 s9, s8, 16384
    s_add_u32 s10, s8, 32768
    v_and_b32 v7, 15, v0
    v_lshlrev_b32 v7, 12, v7
    v_lshrrev_b32 v9, 4, v0
    v_lshl_add_u32 v7, v9, 3, v7
    s_lshl_b32 s35, {sWI}, 5
    v_add_u32 v7, s35, v7
    s_lshl_b32 s35, s2, {9 if cfg.fsep else 7}
    s_lshl_b32 s34, {sWI}, {7 if cfg.fsep else 2}
    s_add_u32 s34, s34, {FLAGS + (65536 if cfg.fsep else 16)}
    s_add_u32 s35, s35, s34
    v_mov_b32 v5, s35
    v_min_u32 v6, 2, v0
    v_sub_u32 v6, {sHG}, v6
    v_add_u32 v6, -1, v6
    v_and_b32 v6, 3, v6
    s_andn2_b32 s35, s2, 3
    v_or_b32 v6, s35, v6
    v_lshlrev_b32 v6, {9 if cfg.fsep else 7}, v6
    v_add_u32 v6, s34, v6
    v_and_b32 v8, 15, v0
    v_bfe_u32 v9, v0, 4, 1
    v_lshl_add_u32 v8, v9, 4, v8
    v_lshlrev_b32 v8, 12, v8
    v_lshrrev_b32 v9, 5, v0
    v_lshl_add_u32 v8, v9, 4, v8
    s_lshl_b32 s35, {sWI}, 5
    v_add_u32 v8, s35, v8
    v_lshlrev_b32 v15, 3, v0
    s_mov_b32 s12, 0x3f80
    s_mov_b32 s13, 0x3f800000
    """)
    RB = FB
    def box_loads(s_):
        return ([f"buffer_load_dwordx4 {vr(RB+16*s_+4*pr,4)}, v14, {S(SWS)}, s{8+s_} offen offset:{pr*1024} {SC}" for pr in range(3)]
                + [f"buffer_load_dwordx2 {vr(RB+16*s_+12,2)}, v15, {S(SWS)}, s{8+s_} offen offset:3072 {SC}"])
    sends = []
    for tau in range(1, 4):
        for pr in range(4):
            b = ACC + 4 * (tau * 7 + 2 * pr)
            sends += [f"v_cvt_pk_bf16_f32 v{b+i}, v{b+2*i}, v{b+2*i+1}\nv_cvt_pk_bf16_f32 v{b+i+1}, v{b+2*i+2}, v{b+2*i+3}" for i in range(0, 4 if pr < 3 else 2, 2)]
            sends[-1] += (f"\nbuffer_store_dwordx4 {vr(b,4)}, v14, {S(SWS)}, s{4+tau} offen offset:{pr*1024} {SC}" if pr < 3 else
                          f"\nbuffer_store_dwordx2 {vr(b,2)}, v15, {S(SWS)}, s{4+tau} offen offset:3072 {SC}")
    if cfg.twopass:
        assert not cfg.uneven
        gloop("L_o", 8, 7, oreads, {2: " vmcnt(0)"})
        W0 = 216
        def keep(u, r): return [x.replace(vr(FB+44*(u&1),2) + ",", vr(W0+4*(u&3),2) + ",").replace(vr(FB+44*(u&1)+2,2) + ",", vr(W0+4*(u&3)+2,2) + ",") for x in r]
        def oagain(p, buf): return [f"ds_read_b128 {vr(FB+44*buf+16+4*qt,4)}, v14 offset:{(4+p)*7168 + qt*1024}" for qt in range(7)]
        for p in range(4):
            a("s_waitcnt lgkmcnt(0)\ns_barrier")
            if p == 0:
                for i in range(4): a(f"v_mov_b32 v{W0+i}, v{FB+i}")
            rd = keep(5 + p, oreads(5 + p)) if p < 3 else oagain(0, 0)
            weave(a, [m for m in gmf(p) if int(re.search(r'v\[(\d+)', m).group(1)) >= ACC + 28], rd)
        stamp(6)
        for p in range(4):
            fb = FB + 44 * (p & 1)
            a("s_waitcnt lgkmcnt(0)")
            rd = oagain(p + 1, (p + 1) & 1) if p < 3 else [""] * 7
            mf = [f"v_mfma_f32_16x16x32_bf16 {vr(ACC+4*qt,4)}, {vr(W0+4*p,4)}, {vr(fb+16+4*qt,4)}, {vr(ACC+4*qt,4)}" for qt in range(7)]
            for n, m in enumerate(mf):
                a(m); a(rd[n])
                if sends and (p or n >= 2): a(sends.pop(0))
        for x in sends: a(x)
    else:
        gloop("L_o", 8, "s101", oreads, {2: " vmcnt(0)"})
        stamp(6)
        for x in sends: a(x)
    a(f"v_cmp_eq_u32 vcc, 0, {VTAG}\ns_cbranch_vccz L_pt2_out")
    poll("L_pt2", SDBG, "v4", VTAG, "eq", "0")
    a(f"""
    s_waitcnt lgkmcnt(0) vmcnt(0)
    buffer_load_dword v9, v6, {S(SWS)}, 0 offen {SC}
    s_mov_b64 exec, 1
    buffer_store_dword {VTAG}, v5, {S(SWS)}, 0 offen {SC}
    s_mov_b64 exec, -1
    """)
    stamp(1)
    a(f"""
    s_mov_b32 s30, 7
    s_mov_b32 {sU}, 0
    s_waitcnt vmcnt(1)
    L_rx:
    v_cmp_eq_u32 vcc, {VTAG}, v9
    s_add_u32 {sU}, {sU}, 1
    s_nop 0
    s_cmp_ge_u32 {sU}, {cfg.spin}
    s_cselect_b32 s31, 7, vcc_lo
    s_and_b32 s31, s31, s30
    s_andn2_b32 s30, s30, s31
    """)
    for s_ in range(3):
        a(f"s_bitcmp1_b32 s31, {s_}\ns_cbranch_scc0 L_rx_l{s_}")
        for x in box_loads(s_): a(x)
        a(f"L_rx_l{s_}:")
    a(f"""
    s_cmp_eq_u32 s30, 0
    s_cbranch_scc1 L_rx_done
    buffer_load_dword v9, v6, {S(SWS)}, 0 offen {SC}
    s_waitcnt vmcnt(0)
    s_branch L_rx
    L_rx_done:
    s_waitcnt vmcnt(0)
    """)
    stamp(2)
    for pr in range(4):
        b = ACC + 8 * pr
        for s_ in range(3):
            for i in range(8 if pr < 3 else 4):
                a(f"v_dot2_f32_bf16 v{b+i}, v{RB+16*s_+4*pr+(i>>1)}, s{12+(i&1)}, v{b+i}")
        a(f"s_mov_b32 s35, {pr*131072}")
        if pr < 3:
            for i in range(4): a(f"v_cvt_pk_bf16_f32 v{b+i}, v{b+2*i}, v{b+2*i+1}")
            a(f"s_nop 1\nv_permlane16_swap_b32 v{b}, v{b+2}\nv_permlane16_swap_b32 v{b+1}, v{b+3}")
            a(f"buffer_store_dwordx4 {vr(b,4)}, v8, {S(SOUT)}, s35 offen")
        else:
            a(f"s_nop 1\nv_cvt_pk_bf16_f32 v{b}, v{b}, v{b+1}\nv_cvt_pk_bf16_f32 v{b+1}, v{b+2}, v{b+3}\nbuffer_store_dwordx2 {vr(b,2)}, v7, {S(SOUT)}, s35 offen")
    if cfg.stamps: a("s_waitcnt vmcnt(0)")
    stamp(7)
    stamp_store(4, 256)
    a("L_end:\ns_endpgm")
    for stub, back, par, NQ in stubs:
        a(f"{stub}:\ns_call_b64 s[98:99], L_rare{par}{NQ}\ns_branch {back}")
    for NQ in (2, 1):
        for par in range(2):
            a(f"L_rare{par}{NQ}:")
            for qi in range(NQ):
                sb = SS + 16 * par + 8 * qi
                for x in tree(MX, T0, sb, 8): a(x)
                across("v_max_f32", MX, T0)
                a(f"v_max_f32 v{MX}, 0, v{MX}\nv_exp_f32 v{T0}, -v{MX}")
                for i in range(8): a(f"v_sub_f32 v{sb+i}, v{sb+i}, v{MX}")
                for i in range(4): a(f"v_sub_f32 v{NM+4*qi+i}, v{NM+4*qi+i}, v{MX}")
                a(f"v_mul_f32 v{L_+qi}, v{L_+qi}, v{T0}")
                for i in range(32): a(f"v_mul_f32 v{OA+32*qi+i}, v{OA+32*qi+i}, v{T0}")
            a("s_setpc_b64 s[98:99]")
    return re.sub(r" +\n", "\n", a.text().replace("offen  lds", "offen lds")).replace(" KVPOL", " " + cfg.kvpol.replace("+", " ") if cfg.kvpol else "")

HEADER = """; Kernarg layout (104 bytes, pointers only, base s[0:1]):
"""

def build(cfg):
    K = NAME + "_kernel"
    body = kernel_head(K) + kernel(cfg) + kernel_desc(K, 248, 248)
    tgt = '.amdgcn_target "amdgcn-amd-amdhsa--gfx950"\n'
    if cfg.echo:
        from gen2 import echo_kernel
        hdr = f"; @launch kernel={K} grid=(256,1,1) block=(512,1,1) lds=163840\n; @launch kernel=echo_kernel grid=(1,1,1) block=(64,1,1) lds=0\n"
        return hdr + tgt + kernel_head("echo_kernel") + echo_kernel(cfg) + kernel_desc("echo_kernel", 8, 8) + body
    return HEADER + "; @launch grid=(256,1,1) block=(512,1,1) lds=163840\n" + tgt + body

if __name__ == "__main__":
    cfg = Cfg()
    for kv in sys.argv[2:]:
        k, v = kv.split("=")
        assert hasattr(cfg, k), k
        setattr(cfg, k, {"True": True, "False": False}.get(v, v))
    open(sys.argv[1], "w").write(build(cfg))
```

```python
import sys, math, struct, re
from asmlib import *

class Cfg:
    stamps = False
    sgrp = "main"
    kvpol = "nt"
    qord = "rot"
    kv0 = 4
    kvper = 1
    await_ = 8
    early = False
    tsched = "112,113,113,114,114,115,115,12"
    fa = 2
    st0 = 5
    sper = 7
    mix = False
    uneven = False
    outpol = ""
    aeven = 4
    brlow = True
    tbit = 2
    tpol = 1
    tn = 5
    peelq = False
    twopass = False
    snake = True
    prio = 1
    lv = "4,4"
    tw = "8,6,6,8"
    wqpol = ""
    wopol = ""
    qsplit = False
    kvs = 16
    kvn = 4
    tlb = 0
    fsep = False
    outw = 1
    pkn = True
    stlate = False
    hswap = -1
    xpol = "sc1"
    bpol = "sc1"
    jit = 0
    echo = ""
    abl = ""
    spin = 400000

WQ0 = 28672
KT, HSTEP, SLOTB = 8448, 17152, 34304
SA_, SB_, SC_, SD_ = 94208, 128512, 0, 34304
HO, WO0 = 36864, 94208
RED, FLAGS = 16 << 20, 48 << 20
SX, SW, SK, SV, SO, SWO, SWS = 36, 40, 44, 48, 52, 56, 60
SOUT, SDBG = SX, SW
sBR, sHG, sCQ, sB, sWI, sIT, sA, sBb, sT, sU, sH0, sROT = ("s%d" % i for i in range(80, 92))
SC = "sc1"
VTAG, VD = "v236", "v237"
ACC, FB = 16, 128
def S(d): return f"s[{d}:{d+3}]"

def srd_off(a, d, lo, hi, off_reg, nbytes):
    a(f"s_add_u32 s{d}, {lo}, {off_reg}\ns_addc_u32 s{d+1}, {hi}, 0\ns_and_b32 s{d+1}, s{d+1}, 0xffff")
    a(f"s_mov_b32 s{d+2}, {nbytes}\ns_mov_b32 s{d+3}, 0x00020000")

def weave(a, mf, fill):
    fill = list(fill)
    for m in mf:
        a(m)
        if fill: a(fill.pop(0))
    for f in fill: a(f)

def kernel(cfg):
    a = A()
    HD = 262144 if cfg.mix else 131072
    def stamp(i, grp="main"):
        if cfg.stamps and (grp == cfg.sgrp or i == 0): a(f"s_memrealtime s[{64+2*i}:{65+2*i}]")
    def stamp_store(wave, wgoff):
        if not cfg.stamps: return
        a(f"s_cmp_lg_u32 s3, {wave}\ns_cbranch_scc1 L_end")
        a(f"s_waitcnt lgkmcnt(0)\ns_add_u32 s3, s2, {wgoff}\ns_lshl_b32 s3, s3, 7\ns_add_u32 s3, s3, {STAMP_OFF}\nv_mov_b32 v1, s3")
        for q in range(4):
            for j in range(4): a(f"v_mov_b32 v{4+j}, s{64+4*q+j}")
            a(f"buffer_store_dwordx4 v[4:7], v1, {S(SWS)}, 0 offen offset:{16*q}\ns_nop 2")
        a("s_waitcnt vmcnt(0)")
    def jitter(k):
        if not int(cfg.jit): return
        lab = a.label("jit")
        a(f"s_mul_i32 s35, s2, {(0x9E37 * (k + 1) * int(cfg.jit)) & 0xffff | 1}\ns_mul_i32 s34, s3, {37 * (k + 3)}\ns_add_u32 s35, s35, s34\ns_lshr_b32 s35, s35, 3\ns_and_b32 s35, s35, 31\n{lab}:")
        a(f"s_sleep 16\ns_sub_u32 s35, s35, 8\ns_cbranch_scc0 {lab}")
        lab2 = a.label("jit")
        a(f"s_lshr_b32 s35, s2, {k % 6}\ns_and_b32 s35, s35, 7\ns_cmp_lg_u32 s35, {k % 8}\ns_cbranch_scc1 {lab2}\n" + "s_sleep 127\n" * 2 + f"{lab2}:")
    def poll(lab, srdn, vaddr, vtmp, cmp, want):
        a(f"""
        s_mov_b32 {sU}, 0
        {lab}:
        buffer_load_dword {vtmp}, {vaddr}, {S(srdn)}, 0 offen {SC}
        s_add_u32 {sU}, {sU}, 1
        s_waitcnt vmcnt(0)
        v_cmp_{cmp}_u32 vcc, {want}, {vtmp}
        s_cmp_ge_u32 {sU}, {cfg.spin}
        s_cbranch_scc1 {lab}_out
        s_cbranch_vccnz {lab}
        {lab}_out:
        """)
    def select(pairs):
        a("s_bitcmp0_b32 s2, 2")
        for p in pairs: a(f"s_cselect_b64 s[{p}:{p+1}], s[{p}:{p+1}], s[{p+10}:{p+11}]")
    def other_srds():
        select((6, 8, 12))
        a(f"s_lshl_b32 s35, {sB}, 22\ns_lshl_b32 s34, {sH0}, 17\ns_add_u32 s35, s35, s34")
        srd_off(a, SK, "s6", "s7", "s35", HD + 131072)
        srd_off(a, SV, "s8", "s9", "s35", HD + 131072)
        a(f"s_lshl_b32 s35, {sBR}, 3\ns_add_u32 s35, s35, {sB}\ns_lshl_b32 s35, s35, 2\ns_add_u32 s35, s35, {sHG}\ns_mul_i32 s35, s35, 229376")
        srd_off(a, SO, "s28", "s29", "s35", 2 * 229376)
        a(f"s_lshl_b32 s35, {sHG}, 21\ns_lshl_b32 s34, {sCQ}, 9\ns_add_u32 s35, s35, s34\ns_sub_u32 s34, 0x800000, s35")
        srd_off(a, SWO, "s12", "s13", "s35", "s34")
        srd(a, SWS, "s28", "s29", 0x10000000)
        a(f"s_lshr_b32 {sROT}, s2, 3\ns_lshr_b32 s35, s2, 7\ns_add_u32 {sROT}, {sROT}, s35\ns_lshl_b32 s35, s2, 1\n"
          f"s_add_u32 {sROT}, {sROT}, s35\ns_and_b32 {sROT}, {sROT}, 15\ns_lshl_b32 {sROT}, {sROT}, 13")

    a("s_cmp_ge_u32 s2, 256\ns_cbranch_scc1 L_end")
    stamp(0)
    a("s_load_dwordx16 s[4:19], s[0:1], 0\ns_load_dwordx8 s[20:27], s[0:1], 64\ns_load_dwordx2 s[28:29], s[0:1], 96")
    if cfg.brlow: a("s_bfe_u32 s3, s2, 0x20001\ns_and_b32 s30, s2, 1\ns_lshl_b32 s30, s30, 2\ns_or_b32 s3, s3, s30\ns_andn2_b32 s2, s2, 7\ns_or_b32 s2, s2, s3")
    a(f"""
    v_lshrrev_b32 v1, 6, v0
    v_and_b32 v0, 63, v0
    v_readfirstlane_b32 s3, v1
    s_bfe_u32 {sBR}, s2, 0x10002
    s_and_b32 {sHG}, s2, 3
    s_bfe_u32 {sCQ}, s2, 0x20003
    s_lshr_b32 {sB}, s2, 5
    s_lshl_b32 {sH0}, {sHG}, 3
    """)
    if cfg.mix: a(f"s_lshl_b32 s35, {sCQ}, 1\ns_and_b32 s35, s35, 4\ns_add_u32 {sH0}, {sH0}, s35\ns_and_b32 s35, {sCQ}, 1\ns_add_u32 {sH0}, {sH0}, s35")
    else: a(f"s_lshl_b32 s35, {sCQ}, 1\ns_add_u32 {sH0}, {sH0}, s35")
    jitter(0)
    a(f"s_and_b32 {sWI}, s3, 3\ns_cmp_lt_u32 s3, 4\ns_cbranch_scc1 L_qmm")

    if cfg.qsplit:
        a("; ---- Q projection, loader waves: 4,5 wq; 6 x; 7 first K/V tiles")
        kv_src = "v_lshrrev_b32 v4, 4, v0\nv_and_b32 v5, 15, v0\nv_lshlrev_b32 v4, 11, v4\nv_lshl_add_u32 v2, v5, 4, v4"
        assert cfg.qord in ("rot", "none") and not cfg.mix and not cfg.peelq
        if cfg.qord == "rot": a(f"s_xor_b32 s35, {sB}, {sCQ}\ns_and_b32 s35, s35, 1\ns_lshl_b32 s30, s35, 22\ns_lshl_b32 s31, s35, 10")
        else: a("s_mov_b32 s30, 0\ns_mov_b32 s31, 0")
        a(f"""
        s_cmp_ge_u32 s3, 6
        s_cbranch_scc1 L_ql6
        v_lshrrev_b32 v4, 5, v0
        v_and_b32 v5, 31, v0
        s_lshl_b32 s35, {sWI}, 1
        v_add_u32 v4, s35, v4
        v_lshlrev_b32 v6, 1, v4
        v_xor_b32 v5, v5, v6
        v_lshlrev_b32 v4, 13, v4
        v_lshl_add_u32 v10, v5, 4, v4
        v_xor_b32 v12, 0x80, v10
        v_add_u32 v12, 0x10000, v12     ; rows 8-15
        s_lshl_b32 {sA}, {sWI}, 10
        s_add_u32 {sA}, {sA}, {WQ0}
        s_lshl_b32 s32, {sH0}, 8
        s_sub_u32 s34, 0x800000, s32
        s_waitcnt lgkmcnt(0)
        """)
        select((10,))
        srd_off(a, SW, "s10", "s11", "s32", "s34")
        def issue_wq(slot):
            for pc in (0, 2, 8, 10):
                a(f"s_add_u32 m0, {sA}, {slot*16384 + pc*1024}\ns_add_u32 s35, s30, {pc*16384}\nbuffer_load_dwordx4 v10, {S(SW)}, s35 offen lds")
                a(f"s_add_u32 m0, {sA}, {slot*16384 + (pc+4)*1024}\ns_nop 0\nbuffer_load_dwordx4 v12, {S(SW)}, s35 offen lds")
            a("s_add_u32 s30, s30, 0x40000\ns_and_b32 s30, s30, 0x7fffff")
        stamp(1, "s")
        issue_wq(0); issue_wq(1)
        other_srds()
        a(kv_src)
        a("s_waitcnt vmcnt(8)\ns_barrier")
        issue_wq(2)
        a("s_waitcnt vmcnt(8)\ns_barrier")
        issue_wq(3); issue_wq(0)
        a(f"s_mov_b32 {sIT}, 0\ns_branch L_qwmid\nL_qw:")
        for u in range(4):
            a("s_waitcnt vmcnt(16)\ns_barrier")
            issue_wq(u)
            if u == 0: a("L_qwmid:")
        a(f"s_add_u32 {sIT}, {sIT}, 1\ns_cmp_lt_u32 {sIT}, 7\ns_cbranch_scc1 L_qw")
        a("s_waitcnt vmcnt(16)\ns_barrier\ns_waitcnt vmcnt(8)\ns_barrier\ns_waitcnt vmcnt(0)\ns_barrier\ns_barrier\ns_branch L_qlend")
        a(f"""
        L_ql6:
        s_cmp_eq_u32 s3, 7
        s_cbranch_scc1 L_ql7
        v_lshrrev_b32 v4, 3, v0
        v_and_b32 v5, 7, v0
        v_lshrrev_b32 v6, 1, v4
        v_xor_b32 v5, v5, v6
        v_lshlrev_b32 v4, 11, v4
        v_lshl_add_u32 v10, v5, 4, v4
        v_xor_b32 v12, 64, v10
        v_add_u32 v12, 0x4000, v12
        s_mul_i32 s33, {sB}, 229376
        s_waitcnt lgkmcnt(0)
        """)
        select((4,))
        srd_off(a, SX, "s4", "s5", "s33", 229376)
        def issue_x(slot):
            for n in range(7):
                a(f"s_mov_b32 m0, {slot*14336 + n*2048}\ns_add_u32 s35, s31, {n*32768}\nbuffer_load_dwordx4 v10, {S(SX)}, s35 offen lds")
                a(f"s_mov_b32 m0, {slot*14336 + n*2048 + 1024}\ns_nop 0\nbuffer_load_dwordx4 v12, {S(SX)}, s35 offen lds")
            a("s_add_u32 s31, s31, 128\ns_and_b32 s31, s31, 2047")
        issue_x(0)
        other_srds()
        a(kv_src)
        a("s_waitcnt vmcnt(0)\ns_barrier")
        issue_x(1)
        a(f"s_mov_b32 {sIT}, 0\nL_qx:")
        for h in range(2):
            a("s_barrier\ns_waitcnt vmcnt(0)\ns_barrier")
            issue_x(h)
        a(f"s_add_u32 {sIT}, {sIT}, 1\ns_cmp_lt_u32 {sIT}, 7\ns_cbranch_scc1 L_qx")
        a("s_barrier\ns_waitcnt vmcnt(0)\ns_barrier\ns_barrier\ns_barrier\ns_branch L_qlend\nL_ql7:\ns_waitcnt lgkmcnt(0)")
        other_srds()
        a(kv_src)
        a(f"s_add_u32 s33, {sROT}, 8192\ns_and_b32 s33, s33, 0x1ffff\ns_barrier")
        kvl = [(tile, hd, i, isv) for tile in range(2) for isv in range(2) for hd in range(2) for i in range(8)]
        for u in range(32):
            a("s_barrier")
            for _ in range(int(cfg.kvn) if u >= int(cfg.kvs) else 0):
                if kvl:
                    tile, hd, i, isv = kvl.pop(0)
                    a(f"s_mov_b32 m0, {(SA_, SB_)[tile] + hd*HSTEP + isv*KT + i*1056}\ns_add_u32 s35, {(sROT, 's33')[tile]}, {hd*HD + i*256}")
                    a(f"buffer_load_dwordx4 v2, {S(SV if isv else SK)}, s35 offen KVPOL lds")
        assert not kvl
        a(f"""
        L_qlend:
        s_mul_i32 s96, {sWI}, 1056
        s_lshl_b32 s32, {sWI}, 8
        s_barrier
        """)
        def kv_piece(tile, hd, n, isv, slot):
            a(f"s_add_u32 s35, {sROT}, {tile*8192}\ns_and_b32 s35, s35, 0x1ffff\ns_add_u32 s35, s35, s32")
            a(f"s_add_u32 m0, s96, {slot + hd*HSTEP + isv*KT + n*4224}\ns_add_u32 s35, s35, {hd*HD + n*1024}")
            a(f"buffer_load_dwordx4 v2, {S(SV if isv else SK)}, s35 offen KVPOL lds")
        for isv in range(2):
            for hd in range(2):
                for n in range(2): kv_piece(2, hd, n, isv, SC_)
        a("s_waitcnt vmcnt(56)\ns_branch L_join")

    else:
        a("; ---- Q projection, loader waves 4-7")
        a(f"""
        v_lshrrev_b32 v4, 5, v0
        v_and_b32 v5, 31, v0
        s_and_b32 s35, {sWI}, 1
        s_lshr_b32 s34, {sWI}, 1
        s_lshl_b32 {sA}, s35, 1
        s_lshl_b32 {sBb}, s34, 2
        s_add_u32 {sT}, {sA}, {sBb}
        v_add_u32 v6, {sT}, v4
        v_lshlrev_b32 v6, 1, v6
        v_xor_b32 v5, v5, v6
        s_lshl_b32 {sBb}, s34, 3
        s_add_u32 {sA}, {sA}, {sBb}
        v_add_u32 v4, {sA}, v4
        v_lshlrev_b32 v4, 13, v4
        v_lshl_add_u32 v10, v5, 4, v4
        """)
        if cfg.mix: a("v_and_b32 v5, 16, v5\nv_lshl_add_u32 v10, v5, 4, v10")
        a(f"""
        s_lshl_b32 {sA}, {sA}, 9
        s_add_u32 {sA}, {sA}, {WQ0}
        v_lshrrev_b32 v4, 3, v0
        v_and_b32 v5, 7, v0
        v_lshrrev_b32 v6, 1, v4
        s_lshl_b32 {sBb}, s35, 2
        v_add_u32 v6, {sBb}, v6
        v_xor_b32 v5, v5, v6
        s_lshl_b32 {sBb}, {sWI}, 3
        v_add_u32 v4, {sBb}, v4
        v_lshlrev_b32 v4, 11, v4
        v_lshl_add_u32 v11, v5, 4, v4
        s_lshl_b32 {sBb}, {sWI}, 10
        s_xor_b32 s35, {sB}, {sCQ}
        s_and_b32 s35, s35, 1
        """)
        alt = cfg.qord not in ("rot", "none")
        if alt:
            for g in range(2):
                if cfg.qord == "alt2": o = [g] + [(t + 1 + g if t & 1 else t - 1 - g) for t in range(1, 15)] + [15 - g]
                elif cfg.qord[0] == "h":
                    n = int(cfg.qord[1:]); r = list(range(n, 16)); h = len(r) // 2
                    o = list(range(n)) + (r if g == 0 else r[h:] + r[:h])
                else:
                    n = int(cfg.qord[1:]); o = []
                    for j in range(0, 16, 2 * n): o += list(range(j + g * n, j + g * n + n)) + list(range(j + (1 - g) * n, j + (1 - g) * n + n))
                assert sorted(o) == list(range(16))
                v = sum(st << (4 * t) for t, st in enumerate(o))
                a(f"s_cmp_eq_u32 s35, {g}\ns_cselect_b32 s98, {v & 0xffffffff:#x}, s98\ns_cselect_b32 s99, {v >> 32:#x}, s99")
            a("s_mov_b64 s[92:93], s[98:99]\ns_and_b32 s35, s98, 15\ns_lshl_b32 s30, s35, 19\ns_lshl_b32 s31, s35, 7")
        elif cfg.qord == "rot": a("s_lshl_b32 s30, s35, 22\ns_lshl_b32 s31, s35, 10")
        else: a("s_mov_b32 s30, 0\ns_mov_b32 s31, 0")
        a(f"s_mul_i32 s33, {sB}, 229376\ns_lshl_b32 s32, {sH0}, 8\ns_sub_u32 s34, 0x800000, s32\ns_waitcnt lgkmcnt(0)")
        select((4, 10))
        srd_off(a, SX, "s4", "s5", "s33", 229376)
        srd_off(a, SW, "s10", "s11", "s32", "s34")
        hs = int(cfg.hswap) >= 0
        if hs: a(f"s_bfe_u32 s95, {sB}, {0x10000 + int(cfg.hswap)}\ns_lshl_b32 s95, s95, 18")
        def issue_wq(slot):
            if hs: a("s_xor_b32 s94, s30, s95")
            for pc in (0, 2, 8, 10):
                a(f"s_add_u32 m0, {sA}, {slot*16384 + pc*1024}\ns_add_u32 s35, {'s94' if hs else 's30'}, {pc*16384}\nbuffer_load_dwordx4 v10, {S(SW)}, s35 offen {cfg.wqpol} lds")
            if alt and (slot & 1): a("s_lshr_b64 s[98:99], s[98:99], 4\ns_and_b32 s30, s98, 15\ns_lshl_b32 s30, s30, 19")
            else: a("s_add_u32 s30, s30, 0x40000\ns_and_b32 s30, s30, 0x7fffff")
        def issue_x(slot):
            lab = a.label("xs")
            for n in range(4):
                if n == 3: a(f"s_cmp_ge_u32 {sWI}, 2\ns_cbranch_scc1 {lab}")
                a(f"s_add_u32 m0, {sBb}, {slot*14336 + n*4096}\ns_add_u32 s35, s31, {n*65536}\nbuffer_load_dwordx4 v11, {S(SX)}, s35 offen lds")
            if alt: a(f"{lab}:\ns_lshr_b64 s[92:93], s[92:93], 4\ns_and_b32 s31, s92, 15\ns_lshl_b32 s31, s31, 7")
            else: a(f"{lab}:\ns_add_u32 s31, s31, 128\ns_and_b32 s31, s31, 2047")
        def kv_piece(tile, hd, n, isv, slot):
            a(f"s_add_u32 s35, {sROT}, {tile*8192}\ns_and_b32 s35, s35, 0x1ffff\ns_add_u32 s35, s35, s32")
            a(f"s_add_u32 m0, s96, {slot + hd*HSTEP + isv*KT + n*4224}\ns_add_u32 s35, s35, {hd*HD + n*1024}")
            a(f"buffer_load_dwordx4 v2, {S(SV if isv else SK)}, s35 offen KVPOL lds")
        kv_src = "v_lshrrev_b32 v4, 4, v0\nv_and_b32 v5, 15, v0\nv_lshlrev_b32 v4, 11, v4\nv_lshl_add_u32 v2, v5, 4, v4"
        stamp(1, "s")
        issue_x(0); issue_wq(0); issue_wq(1)
        stamp(2, "s")
        other_srds()
        a(kv_src)
        a(f"s_mul_i32 s96, {sWI}, 1056\ns_lshl_b32 s32, {sWI}, 8\ns_waitcnt vmcnt(4)\ns_barrier")
        issue_x(1); issue_wq(2)
        a("s_waitcnt vmcnt(7)\ns_barrier")
        issue_wq(3); issue_wq(0)
        kv0 = int(cfg.kv0)
        kvl = [(tile, hd, n, isv) for tile in range(2) for isv in range(2) for hd in range(2) for n in range(2)]
        a(f"s_mov_b32 {sIT}, 0\ns_branch L_qlmid\nL_qlloop:")
        for u in range(4):
            a(f"s_waitcnt vmcnt({8 if u & 1 else 11})\ns_barrier")
            if u & 1: issue_x((u >> 1) & 1)
            issue_wq(u)
            if u == 0: a("L_qlmid:")
        a(f"s_add_u32 {sIT}, {sIT}, 1\ns_cmp_lt_u32 {sIT}, {kv0}\ns_cbranch_scc1 L_qlloop")
        q = []
        for u in range(4 * kv0 - 4, 4 * kv0):
            if u & 1: q.append(("x", (u >> 1) + 2, 3))
            q.append(("w", u + 4, 4))
        for u in range(4 * kv0, 32):
            need = [i for i, e in enumerate(q) if (e[0] == "w" and e[1] <= u + 1) or (e[0] == "x" and e[1] <= (u + 1) >> 1)]
            if need:
                a(f"s_waitcnt vmcnt({sum(e[2] for e in q[max(need) + 1:])})")
                q = q[max(need) + 1:]
            a("s_barrier")
            if (u & 1) and (u >> 1) + 2 < 16: issue_x((u >> 1) & 1); q.append(("x", (u >> 1) + 2, 3))
            if u + 4 < 32: issue_wq(u % 4); q.append(("w", u + 4, 4))
            for _ in range(int(cfg.kvper)):
                if kvl:
                    tile, hd, n, isv = kvl.pop(0)
                    kv_piece(tile, hd, n, isv, (SA_, SB_)[tile]); q.append(("k", 0, 1))
        if not cfg.peelq: a("s_barrier")
        for tile, hd, n, isv in kvl: kv_piece(tile, hd, n, isv, (SA_, SB_)[tile])
        for isv in range(2):
            for hd in range(2):
                for n in range(2): kv_piece(2, hd, n, isv, SC_)
        a("s_waitcnt vmcnt(20)\ns_branch L_join")

    def gmf(u, zero=False):
        fb = FB + 44 * (u & 1)
        return [f"v_mfma_f32_16x16x32_bf16 {vr(ACC+4*(t*7+qt),4)}, {vr(fb+4*t,4)}, {vr(fb+16+4*qt,4)}, {'0' if zero else vr(ACC+4*(t*7+qt),4)}"
                for qt in range(7) for t in (range(3, -1, -1) if cfg.snake and qt & 1 else range(4))]
    def gloop(name, period, blocks, reads, pre, cut=None):
        if int(cfg.prio): a(f"s_setprio {cfg.prio}")
        a("s_waitcnt lgkmcnt(0)\ns_barrier")
        weave(a, gmf(0, True), reads(1))
        a(f"s_mov_b32 {sIT}, 0\ns_branch {name}_mid\n{name}:")
        for u in range(period):
            a(f"s_waitcnt lgkmcnt(0){pre.get(u, '')}\ns_barrier")
            ex = [f"s_cmp_eq_u32 {sIT}, {cut}"] if cut is not None and u == 2 else []
            weave(a, gmf(u), reads(u + 1) + ex)
            if ex: a(f"s_cbranch_scc1 {name}_out")
            if u == 0: a(f"{name}_mid:")
            if u % 4 == 3:
                if cfg.stamps and cfg.sgrp == name:
                    for i in range(u // 4, 7, period // 4):
                        lab = a.label("st")
                        a(f"s_cmp_lg_u32 {sIT}, {i}\ns_cbranch_scc1 {lab}")
                        stamp(1 + i, name)
                        a(f"{lab}:")
                a(f"s_add_u32 {sIT}, {sIT}, 1\ns_cmp_lt_u32 {sIT}, {blocks}")
                a(f"s_cbranch_scc1 {name}" if u == period - 1 else f"s_cbranch_scc0 {name}_out")
        a(f"{name}_out:")
        if int(cfg.prio): a("s_setprio 0")
    cbits = struct.unpack("<I", struct.pack("<f", (128 ** -0.5) * math.log2(math.e)))[0]
    a(f"""
    L_qmm:
    v_lshrrev_b32 v4, 4, v0         ; g4
    v_bfe_u32 v5, v0, 2, 2          ; r
    v_and_b32 v6, 3, v0             ; c
    v_lshl_add_u32 v7, v4, 3, v5
    v_lshlrev_b32 v7, 9, v7
    v_lshrrev_b32 v9, 1, v6
    v_lshl_add_u32 v7, v9, 4, v7
    v_and_b32 v9, 1, v6
    v_lshl_add_u32 v7, v9, 3, v7
    s_lshr_b32 s35, {sWI}, 1
    s_lshl_b32 s35, s35, 8
    s_add_u32 s35, s35, {WQ0}
    v_add_u32 v7, s35, v7
    v_and_b32 v9, 1, v4
    v_lshl_or_b32 v9, v9, 2, v5
    s_and_b32 s35, {sWI}, 1
    s_lshl_b32 s35, s35, 2
    v_xor_b32 v9, s35, v9
    """)
    for t in range(4): a(f"v_xor_b32 v1, {t}, v9\nv_lshl_add_u32 v{10+t}, v1, 5, v7")
    a(f"""
    v_and_b32 v5, 15, v0
    v_lshrrev_b32 v6, 1, v5
    v_xor_b32 v6, v6, v4
    v_lshlrev_b32 v7, 7, v5
    v_lshl_add_u32 v14, v6, 4, v7
    s_bfe_u32 s35, {sB}, {0x10000 + max(int(cfg.hswap), 0)}
    s_lshl_b32 s35, s35, {6 if int(cfg.hswap) >= 0 else 31}
    s_and_b32 s35, s35, 64
    v_xor_b32 v14, s35, v14
    v_xor_b32 v15, 64, v14
    v_lshlrev_b32 v5, 4, v5
    v_lshrrev_b32 v6, 5, v0
    v_lshl_add_u32 v5, v6, 8, v5
    v_bfe_u32 v6, v0, 4, 1
    v_lshl_add_u32 v5, v6, 3, v5
    s_lshr_b32 s34, {sWI}, 1
    s_mul_i32 s34, s34, 28672
    s_and_b32 s35, {sWI}, 1
    s_lshl_b32 s35, s35, 11
    s_add_u32 s34, s34, s35
    s_add_u32 s34, s34, {HO}
    v_add_u32 v8, s34, v5
    s_mov_b32 s30, {cbits:#x}
    s_mov_b32 s31, {cbits:#x}
    """)
    a(kv_src)
    a("s_waitcnt lgkmcnt(0)")
    other_srds()
    if int(cfg.tlb):
        a(f"s_cmp_lg_u32 s3, 1\ns_cbranch_scc1 L_tl2\ns_lshl_b32 s32, {sH0}, 8\ns_sub_u32 s34, 0x800000, s32")
        select((10,))
        srd_off(a, SW, "s10", "s11", "s32", "s34")
        a(f"""
        v_and_b32 v4, 3, v0
        v_lshlrev_b32 v4, 21, v4
        buffer_load_dword {VD}, v4, {S(SW)}, 0 offen
        L_tl2:
        """)
        if int(cfg.tlb) > 1:
            a(f"""
            s_cmp_lg_u32 s3, 2
            s_cbranch_scc1 L_tl3
            v_mov_b32 v4, 0
            v_and_b32 v5, 1, v0
            v_mul_u32_u24 v5, 0x1ff800, v5
            buffer_load_dword {VD}, v4, {S(SK)}, {sROT} offen nt
            buffer_load_dword {VD}, v4, {S(SV)}, {sROT} offen nt
            buffer_load_dword {VD}, v5, {S(SWO)}, 0 offen
            s_mul_i32 s35, {sCQ}, 57344
            buffer_load_dword {VD}, v4, {S(SO)}, s35 offen
            L_tl3:
            s_cmp_lg_u32 s3, 3
            s_cbranch_scc1 L_tl4
            s_lshl_b32 s35, {sBR}, 3
            s_add_u32 s35, s35, {sB}
            s_lshl_b32 s35, s35, 2
            s_add_u32 s35, s35, {sCQ}
            s_mul_i32 s35, s35, {12*16384}
            s_add_u32 s35, s35, {RED + 3840}
            v_and_b32 v4, 1, v0
            v_mul_u32_u24 v4, {11*16384}, v4
            buffer_load_dword {VD}, v4, {S(SWS)}, s35 offen
            v_mov_b32 v4, {FLAGS + 65536}
            buffer_load_dword {VD}, v4, {S(SWS)}, 0 offen
            s_mul_i32 s35, {sB}, 458752
            s_mov_b32 s34, 458752
            """)
            srd_off(a, SX, "s24", "s25", "s35", "s34")
            a(f"v_and_b32 v4, 1, v0\nv_mul_u32_u24 v4, 458624, v4\nbuffer_load_dword {VD}, v4, {S(SX)}, 0 offen\nL_tl4:")
    a(f"""
    s_or_b32 s35, s2, s3
    s_cbranch_scc1 L_notag
    s_mov_b32 s{SX}, s26
    s_and_b32 s{SX+1}, s27, 0xffff
    s_mov_b32 s{SX+2}, 256
    s_mov_b32 s{SX+3}, 0x00020000
    v_mov_b32 v4, {FLAGS}
    v_mov_b32 v7, 0
    s_mov_b32 s34, 1664525
    s_mov_b32 s35, 1013904223
    buffer_load_dword v5, v4, {S(SWS)}, 0 offen {SC}
    s_waitcnt vmcnt(0)
    v_mul_lo_u32 v5, v5, s34
    v_add_u32 v5, s35, v5
    v_mov_b32 v6, s35
    v_cmp_eq_u32 vcc, 0, v5
    s_nop 1
    v_cndmask_b32 v5, v5, v6, vcc
    s_mov_b64 exec, 1
    buffer_store_dword v5, v7, {S(SX)}, 0 offen {SC}
    s_mov_b64 exec, -1
    L_notag:
    s_barrier
    """)
    def qreads(u):
        fb = FB + 44 * (u & 1)
        r = [f"ds_read_b64_tr_b16 {vr(fb+4*t+2*j,2)}, v{10+t} offset:{(u%4)*16384 + j*2048}" for t in range(4) for j in range(2)]
        xs = [f"ds_read_b128 {vr(fb+16+4*qt,4)}, v{14+(u&1)} offset:{((u>>1)&1)*14336 + qt*2048}" for qt in range(7)]
        return r[:2] + xs[:1] + r[2:] + xs[1:]
    stamp(1); stamp(1, "s")
    for r in qreads(0): a(r)
    def pack(qt, t):
        acc = ACC + 4 * (t * 7 + qt)
        return (f"v_pk_mul_f32 {vr(acc,2)}, {vr(acc,2)}, s[30:31]\nv_pk_mul_f32 {vr(acc+2,2)}, {vr(acc+2,2)}, s[30:31]\n"
                f"v_cvt_pk_bf16_f32 v{acc}, v{acc}, v{acc+1}\nv_cvt_pk_bf16_f32 v{acc+1}, v{acc+2}, v{acc+3}\n"
                f"ds_write_b64 v8, {vr(acc,2)} offset:{qt*4096 + t*512}")
    packs = [pack(qt, t) for qt in range(7) for t in range(4)]
    if cfg.peelq:
        assert not cfg.snake
        gloop("L_q", 4, 8, qreads, {}, cut=7)
        a("s_waitcnt lgkmcnt(0)\ns_barrier")
        stamp(2)
        weave(a, gmf(3), [""] * 8 + packs[:19] + ["s_nop 1"] + packs[19:])
    else:
        gloop("L_q", 4, 8, qreads, {})
        stamp(2)
        a("s_waitcnt lgkmcnt(0)\ns_barrier")
        for x in packs: a(x)

    QF, OA, SS, NM, KF, VF, PP = 16, 48, 112, 144, 160, 192, 224
    L_, MX, T0 = 232, 234, 235
    a(f"""
    L_join:
    s_lshr_b32 s34, s3, 2
    s_mul_i32 s35, s34, {HD}
    s_add_u32 s{SK}, s{SK}, s35
    s_addc_u32 s{SK+1}, s{SK+1}, 0
    s_mov_b32 s{SK+2}, 131072
    s_add_u32 s{SV}, s{SV}, s35
    s_addc_u32 s{SV+1}, s{SV+1}, 0
    s_mov_b32 s{SV+2}, 131072
    s_mul_i32 s30, s34, {HSTEP}
    s_mul_i32 {sA}, {sWI}, 1056
    s_add_u32 {sA}, {sA}, s30
    s_add_u32 {sBb}, {sA}, {KT}
    v_lshlrev_b32 v5, 4, v0
    s_mul_i32 s35, s34, 28672
    s_lshl_b32 {sT}, {sWI}, 13
    s_add_u32 {sT}, {sT}, s35
    s_add_u32 {sT}, {sT}, {HO}
    v_add_u32 v9, {sT}, v5
    s_lshl_b32 {sT}, {sWI}, 11
    s_add_u32 s35, s35, {sT}
    v_add_u32 v14, s35, v5
    v_and_b32 v7, 7, v0
    v_mul_u32_u24 v7, 1056, v7
    v_bfe_u32 v1, v0, 3, 1
    v_lshl_add_u32 v7, v1, 8, v7
    v_lshrrev_b32 v1, 4, v0
    v_lshl_add_u32 v7, v1, 4, v7
    v_add_u32 v10, s30, v7
    v_bfe_u32 v7, v0, 2, 3
    v_mul_u32_u24 v7, 1056, v7
    v_lshrrev_b32 v1, 5, v0
    v_lshl_add_u32 v7, v1, 8, v7
    v_and_b32 v1, 3, v0
    v_lshl_add_u32 v7, v1, 3, v7
    s_add_u32 s35, s30, {KT}
    v_add_u32 v12, s35, v7
    v_add_u32 v11, {SA_}, v10
    s_lshl_b32 s35, {sWI}, 8
    s_add_u32 s31, {sROT}, s35
    s_add_u32 s31, s31, {3*8192}
    s_and_b32 s31, s31, 0x1ffff
    s_mov_b32 s96, {SA_}
    s_mov_b32 s97, {SD_}
    s_mov_b32 s100, 0x41000000
    s_and_b32 s94, {sCQ}, 1
    s_add_u32 s94, s94, 1
    s_sub_u32 s94, s94, {sBR}
    v_lshrrev_b32 v4, 5, v0
    s_lshl_b32 s35, {sWI}, 1
    v_add_u32 v4, s35, v4
    v_and_b32 v5, 31, v0
    v_lshlrev_b32 v6, 1, v4
    v_xor_b32 v5, v5, v6
    v_lshlrev_b32 v4, 11, v4
    v_lshl_add_u32 v15, v5, 4, v4
    v_lshrrev_b32 v4, 4, v0
    v_lshlrev_b32 v4, 5, v4
    v_bfe_u32 v5, v0, 2, 2
    v_add_u32 v4, v4, v5
    s_lshl_b32 s35, {sB}, 2
    v_add_u32 v4, s35, v4
    v_lshlrev_b32 v4, 11, v4
    v_and_b32 v5, 3, v0
    v_lshl_add_u32 v3, v5, 7, v4
    v_mov_b32 v4, 0
    """)
    a(f"""
    v_lshrrev_b32 v7, 2, v0
    v_lshlrev_b32 v7, 9, v7
    v_and_b32 v6, 3, v0
    v_lshl_add_u32 v7, v6, 3, v7
    v_add_u32 v7, {WO0}, v7
    v_bfe_u32 v6, v0, 2, 3
    v_xor_b32 v6, {sWI}, v6
    """)
    for tau in range(4):
        a(f"""
        s_add_u32 s35, {sHG}, {tau}
        s_and_b32 s34, s35, 1
        s_lshl_b32 s34, s34, 2
        s_bfe_u32 s35, s35, 0x10001
        s_lshl_b32 s35, s35, 8
        v_xor_b32 v1, s34, v6
        v_lshl_add_u32 v1, v1, 5, v7
        v_add_u32 v{240+tau}, s35, v1
        """)
    srd(a, SDBG, "s26", "s27", 256)
    a(f"s_cmp_eq_u32 {sWI}, 3\ns_waitcnt lgkmcnt(0)\ns_cbranch_scc1 L_attn1")
    ts = [int(x) for x in cfg.tsched.split(",")]
    stubs = []
    def blk(b): return (0, b, 0) if b < 2 else ((b - 1, 0, 0) if b < 5 else ((b - 4, 1, 0) if b < 8 else (3, 1, 1)))
    def producer(b, reg): a(f"s_add_u32 {reg}, {sCQ}, {blk(b)[0]}\ns_and_b32 {reg}, {reg}, 3")
    def wo_rows(b, reg):
        d, h, g = blk(b)
        producer(b, reg)
        if cfg.mix: a(f"s_lshl_b32 s35, {reg}, 1\ns_and_b32 s35, s35, 4\ns_and_b32 {reg}, {reg}, 1\ns_add_u32 {reg}, {reg}, s35\ns_add_u32 {reg}, {reg}, {2*h + 8*g}")
        else: a(f"s_lshl_b32 {reg}, {reg}, 1\ns_add_u32 {reg}, {reg}, {h + 8*g}")
        a(f"s_lshl_b32 {reg}, {reg}, 18")
    def touch_block(b, wave):
        lab = a.label("wt"); t = A()
        keep, a.l = a.l, t.l
        a(f"s_cmp_lg_u32 s3, {wave}\ns_cbranch_scc1 {lab}")
        wo_rows(b, "s6")
        a(f"buffer_load_dword {VD}, v3, {S(SWO)}, s6 offen {cfg.wopol}\n{lab}:")
        a.l = keep
        return t.text()
    def kpiece(n, slot, src): return f"s_add_u32 s34, {slot}, {sA}\ns_add_u32 m0, s34, {n*4224}\ns_add_u32 s35, {src}, {n*1024}\nbuffer_load_dwordx4 v2, {S(SK)}, s35 offen KVPOL lds"
    def vpiece(n, slot, src): return f"s_add_u32 s34, {slot}, {sBb}\ns_add_u32 m0, s34, {n*4224}\ns_add_u32 s35, {src}, {n*1024}\nbuffer_load_dwordx4 v2, {S(SV)}, s35 offen KVPOL lds"
    def wo_pieces(mbase, moff, soff, add=0):
        return [f"s_add_u32 m0, {mbase}, {moff + n*4096}\ns_add_u32 s35, {soff}, {add + n*16384}\nbuffer_load_dwordx4 v15, {S(SWO)}, s35 offen lds" for n in range(4)]
    def kreads(): return [f"ds_read_b128 {vr(KF+16*kt+4*s_,4)}, v11 offset:{kt*512 + 64*s_}" for s_ in range(4) for kt in range(2)]
    def tree(dst, tmp, b, n):
        if n == 8: return [f"v_max3_f32 v{dst}, v{b}, v{b+1}, v{b+2}", f"v_max3_f32 v{tmp}, v{b+3}, v{b+4}, v{b+5}",
                           f"v_max3_f32 v{dst}, v{dst}, v{b+6}, v{b+7}", f"v_max_f32 v{dst}, v{dst}, v{tmp}"]
        return ([f"v_max3_f32 v{dst}, v{b}, v{b+1}, v{b+2}", f"v_max3_f32 v{tmp}, v{b+3}, v{b+4}, v{b+5}"]
                + [f"v_max3_f32 v{(dst, tmp)[i&1]}, v{(dst, tmp)[i&1]}, v{b+6+2*i}, v{b+7+2*i}" for i in range(5)]
                + [f"v_max_f32 v{dst}, v{dst}, v{tmp}"])
    def across(op, r, tmp):
        for sw in ("16", "32"):
            a(f"s_nop 0\nv_mov_b32 v{tmp}, v{r}\ns_nop 1\nv_permlane{sw}_swap_b32 v{tmp}, v{r}\ns_nop 1\n{op} v{r}, v{r}, v{tmp}")
    def epi(store, NQ):
        for p in range(4):
            for qi in range(NQ):
                b = OA + 32*qi + 8*p
                if cfg.pkn:
                    for i in range(0, 8, 2): a(f"v_pk_mul_f32 {vr(b+i,2)}, {vr(b+i,2)}, {vr(L_,2)} op_sel:[0,{qi}] op_sel_hi:[1,{qi}]")
                else:
                    for i in range(8): a(f"v_mul_f32 v{b+i}, v{b+i}, v{L_+qi}")
                for i in range(4): a(f"v_cvt_pk_bf16_f32 v{b+i}, v{b+2*i}, v{b+2*i+1}")
                a(f"ds_write_b128 v14, {vr(b,4)} offset:{p*7168 + qi*1024}")
                if store: a(f"buffer_store_dwordx4 {vr(b,4)}, v14, {S(SO)}, s34 offen offset:{qi*1024} {SC}")
            if store: a("s_add_u32 s34, s34, 7168")
        if store: a(f"s_waitcnt vmcnt({4 * NQ})")
    def attn(NQ):
        N = 8 * NQ
        def qk(sb, zero=False):
            out = []
            for s_ in range(4):
                for kt in range(2):
                    for n_, qi in enumerate(range(NQ - 1, -1, -1) if cfg.snake and kt else range(NQ)):
                        d = vr(sb + 8*qi + 4*kt, 4)
                        out.append((f"s_waitcnt lgkmcnt(LG{2*s_+kt})\n" if n_ == 0 else "") +
                                   f"v_mfma_f32_16x16x32_bf16 {d}, {vr(KF+16*kt+4*s_,4)}, {vr(QF+16*qi+4*s_,4)}, {('0' if zero else vr(NM+4*qi,4)) if s_ == 0 else d}")
            return out
        def emit_qk(ms, fill):
            nv = 0
            for n, m in enumerate(ms):
                i = n // NQ
                a(m.replace(f"LG{i}", str(min(15, 7 - i + nv))))
                for f in fill[n]:
                    a(f); nv += f.startswith("ds_")
        def spread(items, gaps, lo=0):
            out = [[] for _ in range(gaps)]
            for i, x in enumerate(items): out[lo + i * (gaps - lo) // len(items)].append(x)
            return out
        def merge(*ls): return [sum((l[i] for l in ls), []) for i in range(len(ls[0]))]
        a("s_barrier")
        for qi in range(NQ):
            for s_ in range(4): a(f"ds_read_b128 {vr(QF+16*qi+4*s_,4)}, v9 offset:{qi*4096 + s_*1024}")
        for x in kreads(): a(x)
        a("s_waitcnt lgkmcnt(8)\ns_barrier")
        stamp(3)
        jitter(1)
        emit_qk(qk(SS, True), [[kpiece(0, "s97", "s31")], [], [kpiece(1, "s97", "s31")]] + [[]] * 16)
        a("s_nop 7")
        for qi in range(NQ):
            for x in tree(MX, T0, SS + 8*qi, 8): a(x)
            across("v_max_f32", MX, T0)
            a(f"v_mov_b32 v{L_+qi}, 0")
            for i in range(8): a(f"v_sub_f32 v{SS+8*qi+i}, v{SS+8*qi+i}, v{MX}")
            for i in range(4): a(f"v_sub_f32 v{NM+4*qi+i}, 0, v{MX}")
        def step(par, wait, dma=None, first=False, last=False, tight=False):
            cur, nxt = SS + 16 * par, SS + 16 * (1 - par)
            if tight and cfg.lv:
                lab = a.label("tw"); w1, w2 = cfg.lv.split(",")
                a(f"s_cmp_eq_u32 s94, 0\ns_cbranch_scc1 {lab}\ns_waitcnt vmcnt({w1})\ns_cmp_eq_u32 s94, 1\ns_cbranch_scc1 {lab}\ns_waitcnt vmcnt({w2})\n{lab}:")
            elif tight and int(cfg.aeven) >= 0:
                lab = a.label("tw")
                a(f"s_bitcmp{cfg.tpol}_b32 s2, {cfg.tbit}\ns_cbranch_scc1 {lab}\ns_cmp_ge_u32 {sIT}, {cfg.tn}\ns_cbranch_scc1 {lab}\ns_waitcnt vmcnt({cfg.aeven})\n{lab}:")
            a(f"""
            s_waitcnt vmcnt({wait})
            s_barrier
            s_add_u32 s98, s96, {SLOTB}
            s_cmp_eq_u32 s96, {SB_}
            s_cselect_b32 s98, 0, s98
            s_cmp_eq_u32 s96, {SD_}
            s_cselect_b32 s98, {SA_}, s98
            v_add_u32 v11, s98, v10
            v_add_u32 v13, s96, v12
            s_add_u32 s30, s31, 8192
            s_and_b32 s30, s30, 0x1ffff
            """)
            vrd = [f"ds_read_b64_tr_b16 {vr(VF+4*t+2*j,2)}, v13 offset:{j*512 + 32*t}" for t in range(8) for j in range(2)]
            ex = [f"v_exp_f32 v{cur+i}, v{cur+i}" for i in range(N)]
            cv = [f"v_cvt_pk_bf16_f32 v{PP+i}, v{cur+2*i}, v{cur+2*i+1}" for i in range(N // 2)]
            ad = [f"v_add_f32 v{L_+(i>>3)}, v{L_+(i>>3)}, v{cur+i}" for i in range(N)]
            if NQ == 2: ad = [ad[(i >> 1) + 8 * (i & 1)] for i in range(16)]
            if dma is None: dma = [kpiece(0, "s96", "s30"), vpiece(0, "s97", "s31"), kpiece(1, "s96", "s30"), vpiece(1, "s97", "s31")]
            dma = list(dma) + [""] * (4 - len(dma))
            pv = [(f"s_waitcnt lgkmcnt({14 - 2*t})\n" if n_ == 0 else "") +
                  f"v_mfma_f32_16x16x32_bf16 {vr(OA+32*qi+4*t,4)}, {vr(VF+4*t,4)}, {vr(PP+4*qi,4)}, {'0' if first else vr(OA+32*qi+4*t,4)}"
                  for t in range(8) for n_, qi in enumerate(range(NQ - 1, -1, -1) if cfg.snake and t & 1 else range(NQ))]
            if not last:
                for x in kreads(): a(x)
                for x in ex[:8]: a(x)
                if NQ == 2: valu = [ex[8], cv[0], ex[9], cv[1], ex[10], cv[2], ex[11], cv[3], ex[12], ex[13], cv[4], ex[14], cv[5], ex[15], cv[6], cv[7]]
                else: valu = cv + ad[:4]
                fill = merge(spread(vrd, N), spread(valu, N))
                if cfg.early:
                    fill = merge(fill, spread(dma, N)); dma = [""] * 4
                emit_qk(qk(nxt), fill)
                a("s_nop 0")
                mt = tree(MX, T0, nxt, N)
                fill = merge(spread(ad if NQ == 2 else ad[4:], N - 1) + [[]], spread(dma, N - 1) + [[]], spread(mt, N - 1, N // 2 - 1) + [[]])
                for n, m in enumerate(pv):
                    a(m)
                    for f in fill[n]: a(f)
                stub, back = a.label("stub"), a.label("back")
                stubs.append((stub, back, 1 - par, NQ))
                a(f"v_cmp_lt_f32 vcc, s100, v{MX}\ns_mov_b32 s97, s96\ns_mov_b32 s96, s98\ns_mov_b32 s31, s30\ns_cbranch_vccnz {stub}\n{back}:")
            else:
                for x in vrd[:8]: a(x)
                for x in ex[:8] + cv[:4]: a(x)
                for x in vrd[8:]: a(x)
                for x in ex[8:] + cv[4:]: a(x)
                a("s_nop 0")
                fill = merge(spread(ad, N), spread(dma, N))
                for n, m in enumerate(pv):
                    a(m)
                    for f in fill[n]: a(f)
        def at(t): return "".join(touch_block(b, b) for b in range(1, 8) if ts[b - 1] == 100 + t)
        aw = int(cfg.await_)
        step(0, min(aw + 6, 14) if not cfg.qsplit else 26, first=True)
        step(1, min(aw + 2, 10))
        a(f"s_mov_b32 {sIT}, 0\nL_aloop{NQ}:")
        def inloop(par):
            out = ""
            for b in range(1, 8):
                t = ts[b - 1] - 100
                if 2 <= t < 12 and t & 1 == par:
                    lab = a.label("il")
                    out += f"s_cmp_lg_u32 {sIT}, {(t - 2) // 2}\ns_cbranch_scc1 {lab}\n" + touch_block(b, b) + f"{lab}:\n"
            d = [kpiece(0, "s96", "s30"), vpiece(0, "s97", "s31"), kpiece(1, "s96", "s30"), vpiece(1, "s97", "s31")]
            d[3] += "\n" + out
            return d
        step(0, aw, inloop(0), tight=True); step(1, aw, inloop(1), tight=True)
        a(f"s_add_u32 {sIT}, {sIT}, 1\ns_cmp_lt_u32 {sIT}, 5\ns_cbranch_scc1 L_aloop{NQ}")
        tw = [min(int(x), y) for x, y in zip(cfg.tw.split(","), (8, 6, 6, 8))]
        step(0, tw[0], [vpiece(0, "s97", "s31"), vpiece(1, "s97", "s31"), f"buffer_load_dword {VTAG}, v4, {S(SDBG)}, 0 offen {SC}", at(12)])
        wo_rows(0, "s5")
        a(f"""
        s_lshr_b32 s34, s3, 2
        s_lshl_b32 s35, s34, 16
        s_add_u32 s5, s5, s35
        s_lshl_b32 {sA}, {sWI}, 10
        s_add_u32 {sA}, {sA}, {WO0}
        s_lshl_b32 s35, s34, 14
        s_add_u32 {sBb}, {sA}, s35
        """)
        w = wo_pieces(sBb, 0, "s5"); w[3] += "\n" + at(13)
        step(1, tw[1], w)
        w = wo_pieces(sBb, 32768, "s5", 0x20000); w[3] += "\n" + at(14)
        step(0, tw[2], w)
        step(1, tw[3], [at(15)], last=True)
        stamp(4)
        jitter(2)
        for qi in range(NQ):
            across("v_add_f32", L_ + qi, T0)
            a(f"v_rcp_f32 v{L_+qi}, v{L_+qi}")
        a(f"s_mul_i32 s34, {sCQ}, 57344\ns_barrier\ns_cmp_ge_u32 s3, 4\ns_cbranch_scc1 L_epx{NQ}")
        epi(not cfg.stlate, NQ)
        if cfg.stlate: a("s_waitcnt vmcnt(0)")
        a(f"s_branch L_oload\nL_epx{NQ}:")
        epi(False, NQ)
        a("s_branch L_omm")
    attn(2)
    a("L_attn1:")
    attn(1)

    TBL = sum((d | h << 2 | g << 3) << (4 * b) for b, (d, h, g) in enumerate(map(blk, range(9))))
    def nblocks():
        if cfg.uneven: a(f"s_bitcmp1_b32 {sHG}, 0\ns_cselect_b32 s101, 7, 9")
        else: a("s_mov_b32 s101, 8")
    def decode(first):
        if first is not None: a(f"s_mov_b32 s92, {(TBL >> (4*first)) & 0xffffffff:#x}\ns_mov_b32 s93, {TBL >> (4*first + 32):#x}")
        else: a("s_lshr_b64 s[92:93], s[92:93], 4")
        a(f"s_add_u32 s5, s92, {sCQ}\ns_and_b32 s5, s5, 3\ns_bfe_u32 s6, s92, 0x20002")
    fa, st0, sper = int(cfg.fa), int(cfg.st0), int(cfg.sper)
    def late(ps, NQ):
        if not cfg.stlate: return
        for p in ps:
            a(f"s_mul_i32 s34, {sCQ}, 57344\ns_add_u32 s34, s34, {p*7168}")
            for qi in range(NQ): a(f"buffer_store_dwordx4 {vr(OA+32*qi+8*p,4)}, v9, {S(SO)}, s34 offen offset:{qi*1024} {SC}")
    a(f"""
    L_oload:
    v_mov_b32 v9, v14
    v_lshlrev_b32 v14, 4, v0
    s_cmp_ge_u32 s3, 2
    s_cbranch_scc1 L_ol2
    v_lshrrev_b32 v4, 5, v0
    s_lshl_b32 s35, s3, 2
    v_add_u32 v4, s35, v4
    v_and_b32 v5, 31, v0
    v_lshlrev_b32 v6, 1, v4
    v_xor_b32 v5, v5, v6
    v_lshlrev_b32 v4, 11, v4
    v_lshl_add_u32 v15, v5, 4, v4
    v_xor_b32 v13, 64, v15
    v_add_u32 v13, 4096, v13
    s_lshl_b32 {sA}, s3, 11
    s_add_u32 {sA}, {sA}, {WO0}
    s_mov_b32 {sIT}, 1
    """)
    nblocks()
    decode(0)
    a("s_waitcnt lgkmcnt(0)\ns_barrier")
    late((0, 1), 2)
    a("L_owl:")
    decode(None)
    if cfg.mix: a("s_lshl_b32 s35, s5, 1\ns_and_b32 s35, s35, 4\ns_and_b32 s30, s5, 1\ns_add_u32 s30, s30, s35\ns_and_b32 s35, s6, 1\ns_lshl_b32 s35, s35, 1")
    else: a("s_lshl_b32 s30, s5, 1\ns_and_b32 s35, s6, 1")
    a("s_add_u32 s30, s30, s35\ns_lshr_b32 s35, s6, 1\ns_lshl_b32 s35, s35, 3\ns_add_u32 s30, s30, s35\ns_lshl_b32 s30, s30, 18")
    for p in range(4):
        a("s_waitcnt vmcnt(16)\ns_barrier")
        if p == 0 and cfg.stlate:
            a(f"s_cmp_lg_u32 {sIT}, 1\ns_cbranch_scc1 L_owl2")
            late((2, 3), 2)
            a("L_owl2:")
        for n in range(4):
            a(f"s_add_u32 m0, {sA}, {p*16384 + n*4096}\ns_add_u32 s35, s30, {p*65536 + n*16384}\nbuffer_load_dwordx4 v15, {S(SWO)}, s35 offen lds")
            a(f"s_add_u32 m0, {sA}, {p*16384 + n*4096 + 1024}\ns_nop 0\nbuffer_load_dwordx4 v13, {S(SWO)}, s35 offen lds")
    a(f"s_add_u32 {sIT}, {sIT}, 1\ns_cmp_lt_u32 {sIT}, s101\ns_cbranch_scc1 L_owl")
    a("s_waitcnt vmcnt(16)\ns_barrier\ns_waitcnt vmcnt(8)\ns_barrier\ns_waitcnt vmcnt(0)\ns_barrier\ns_barrier")
    stamp(5)
    if cfg.sgrp != "o2": stamp_store(0, 0)
    a("s_branch L_end")
    def sample():
        a(f"""
        s_andn2_b32 s35, s2, 0x18
        s_lshl_b32 s34, s5, 3
        s_or_b32 s35, s35, s34
        s_lshr_b32 s34, s6, 1
        s_add_u32 s35, s35, s34
        s_lshl_b32 s35, s35, 5
        s_and_b32 s34, s6, 1
        s_add_u32 s35, s35, s34
        s_lshl_b32 s35, s35, 2
        s_add_u32 s35, s35, {FLAGS}
        v_mov_b32 v5, s35
        s_mul_i32 s32, s5, 57344
        s_mul_i32 s34, s34, 28672
        s_add_u32 s32, s32, s34
        s_lshr_b32 s34, s6, 1
        s_mul_i32 s34, s34, 229376
        s_add_u32 s32, s32, s34
        buffer_load_dword v13, v5, {S(SWS)}, 0 offen {SC}
        """)
    a("L_ol2:\ns_cmp_eq_u32 s3, 3\ns_cbranch_scc1 L_ol3")
    nblocks()
    decode(2)
    a(f"s_mov_b32 {sIT}, 2\ns_mov_b32 s33, 0\ns_waitcnt lgkmcnt(0)\ns_barrier")
    a(f"v_mov_b32 v4, 0\nv_cmp_eq_u32 vcc, 0, {VTAG}\ns_cbranch_vccz L_pt_out")
    poll("L_pt", SDBG, "v4", VTAG, "eq", "0")
    late((0, 1), 2)
    for u in range(5):
        if u == fa: a("s_waitcnt vmcnt(0)")
        a("s_barrier")
        if u == 0: late((2, 3), 2)
        if u == 4: sample()
    a("s_waitcnt vmcnt(0)\nL_ool:")
    for p in range(4):
        a("s_waitcnt vmcnt(7)\ns_barrier")
        if p == 0:
            a(f"s_mov_b32 s31, s32\nv_cmp_ne_u32 vcc, {VTAG}, v13\ns_cbranch_vccz L_po_out")
            poll("L_po", SWS, "v5", "v12", "ne", VTAG)
        if p == 2:
            decode(None); sample()
        for n in range(7):
            if n % 4 == 0: a(f"s_add_u32 m0, s33, {p*7168 + n*1024}\ns_add_u32 s35, s31, {p*7168 + n*1024}")
            a(f"buffer_load_dwordx4 v14, {S(SO)}, s35 offen offset:{(n&3)*1024} {SC} lds")
    a(f"s_xor_b32 s33, s33, 28672\ns_add_u32 {sIT}, {sIT}, 1\ns_cmp_lt_u32 {sIT}, s101\ns_cbranch_scc1 L_ool")
    a("s_waitcnt vmcnt(7)\ns_barrier\ns_waitcnt vmcnt(0)\ns_barrier\ns_barrier\ns_branch L_end")
    a(f"""
    L_ol3:
    v_add_u32 v7, 28672, v14
    s_mul_i32 s33, {sCQ}, 57344
    s_lshl_b32 s35, s2, 7
    s_add_u32 s35, s35, {FLAGS}
    v_mov_b32 v6, s35
    v_mov_b32 v4, 0
    s_waitcnt lgkmcnt(0)
    s_barrier
    """)
    late((0, 1, 2, 3), 1)
    if cfg.stlate: a("s_nop 1")
    for i in range(28): a(f"ds_read_b128 {vr(16+4*i,4)}, v7 offset:{i*1024}")
    a(f"v_cmp_eq_u32 vcc, 0, {VTAG}\ns_cbranch_vccz L_pt3_out")
    poll("L_pt3", SDBG, "v4", VTAG, "eq", "0")
    def flag(word):
        jitter(4 + word)
        a(f"s_mov_b64 exec, 1\nbuffer_store_dword {VTAG}, v6, {S(SWS)}, 0 offen offset:{4*word} {SC}\ns_mov_b64 exec, -1")
    nst, young = 0, 0
    fb = st0 + -(-28 // sper) + 3
    assert fa < 4 and fb < 14
    for u in range(28):
        if u == fa: a(f"s_waitcnt vmcnt({nst + young})")
        a("s_barrier")
        if 5 <= u <= 11: stamp(u - 4, "o2")
        if u == fa: flag(0); young += nst == 28
        if u == st0: a("s_waitcnt lgkmcnt(0)")
        while u >= st0 and nst < min(28, (u - st0 + 1) * sper):
            if nst % 4 == 0: a(f"s_add_u32 s34, s33, {nst*1024}")
            a(f"buffer_store_dwordx4 {vr(16+4*nst,4)}, v7, {S(SO)}, s34 offen offset:{(nst&3)*1024} {SC}")
            nst += 1; young = 0
        if u == fb: a(f"s_waitcnt vmcnt({young})"); flag(1)
        for b in range(1, 9):
            if ts[b - 1] == u and (b < 8 or cfg.uneven):
                lab = a.label("lt")
                if cfg.uneven and b >= 7: a(f"s_bitcmp1_b32 {sHG}, 0\ns_cbranch_scc1 {lab}")
                wo_rows(b, "s6")
                a(f"buffer_load_dword {VD}, v3, {S(SWO)}, s6 offen {cfg.wopol}\n{lab}:")
                if not (cfg.uneven and b >= 7): young += 1
    if cfg.uneven: a(f"s_bitcmp1_b32 {sHG}, 0\ns_cbranch_scc1 L_ol3e\n" + "s_barrier\n" * 8 + "L_ol3e:")
    else: a("s_barrier\n" * 4)
    if cfg.sgrp == "o2": stamp_store(3, 0)
    a("s_branch L_end")

    a(f"""
    L_omm:
    v_lshlrev_b32 v14, 4, v0
    """)
    def oreads(u):
        fb = FB + 44 * (u & 1)
        r = [f"ds_read_b64_tr_b16 {vr(fb+4*t+2*j,2)}, v{240+t} offset:{(u%4)*16384 + j*8192}" for t in range(4) for j in range(2)]
        xs = [f"ds_read_b128 {vr(fb+16+4*qt,4)}, v14 offset:{(u%8)*7168 + qt*1024}" for qt in range(7)]
        return r[:2] + xs[:1] + r[2:] + xs[1:]
    nblocks()
    a("v_mov_b32 v4, 0\ns_waitcnt vmcnt(4) lgkmcnt(0)\ns_barrier")
    stamp(5)
    if cfg.sgrp == "L_o": stamp(0)
    for r in oreads(0): a(r)
    a(f"""
    s_lshl_b32 s30, {sBR}, 3
    s_add_u32 s30, s30, {sB}
    s_lshl_b32 s30, s30, 2
    s_add_u32 s30, s30, {sCQ}
    s_mul_i32 s30, s30, {12*16384}
    s_lshl_b32 s35, {sWI}, 12
    s_add_u32 s30, s30, s35
    s_add_u32 s30, s30, {RED}
    s_mul_i32 s35, {sB}, 458752
    s_lshl_b32 s34, {sBR}, 11
    s_add_u32 s35, s35, s34
    s_lshl_b32 s34, {sCQ}, 9
    s_add_u32 s35, s35, s34
    s_lshl_b32 s34, {sHG}, 7
    s_add_u32 s35, s35, s34
    s_sub_u32 s34, 3670016, s35
    """)
    srd_off(a, SOUT, "s24", "s25", "s35", "s34")
    for tau in range(1, 4):
        a(f"s_add_u32 s35, {sHG}, {tau}\ns_and_b32 s35, s35, 3\ns_mul_i32 s35, s35, {3*16384}\ns_add_u32 s35, s35, s30\ns_add_u32 s{4+tau}, s35, {(tau-1)*16384}")
    a(f"""
    s_mul_i32 s35, {sHG}, {3*16384}
    s_add_u32 s8, s30, s35
    s_add_u32 s9, s8, 16384
    s_add_u32 s10, s8, 32768
    v_and_b32 v7, 15, v0
    v_lshlrev_b32 v7, 12, v7
    v_lshrrev_b32 v9, 4, v0
    v_lshl_add_u32 v7, v9, 3, v7
    s_lshl_b32 s35, {sWI}, 5
    v_add_u32 v7, s35, v7
    s_lshl_b32 s35, s2, {9 if cfg.fsep else 7}
    s_lshl_b32 s34, {sWI}, {7 if cfg.fsep else 2}
    s_add_u32 s34, s34, {FLAGS + (65536 if cfg.fsep else 16)}
    s_add_u32 s35, s35, s34
    v_mov_b32 v5, s35
    v_min_u32 v6, 2, v0
    v_sub_u32 v6, {sHG}, v6
    v_add_u32 v6, -1, v6
    v_and_b32 v6, 3, v6
    s_andn2_b32 s35, s2, 3
    v_or_b32 v6, s35, v6
    v_lshlrev_b32 v6, {9 if cfg.fsep else 7}, v6
    v_add_u32 v6, s34, v6
    v_and_b32 v8, 15, v0
    v_bfe_u32 v9, v0, 4, 1
    v_lshl_add_u32 v8, v9, 4, v8
    v_lshlrev_b32 v8, 12, v8
    v_lshrrev_b32 v9, 5, v0
    v_lshl_add_u32 v8, v9, 4, v8
    s_lshl_b32 s35, {sWI}, 5
    v_add_u32 v8, s35, v8
    v_lshlrev_b32 v15, 3, v0
    s_mov_b32 s12, 0x3f80
    s_mov_b32 s13, 0x3f800000
    """)
    RB = FB
    def box_loads(s_):
        return ([f"buffer_load_dwordx4 {vr(RB+16*s_+4*pr,4)}, v14, {S(SWS)}, s{8+s_} offen offset:{pr*1024} {cfg.bpol.replace('+', ' ')}" for pr in range(3)]
                + [f"buffer_load_dwordx2 {vr(RB+16*s_+12,2)}, v15, {S(SWS)}, s{8+s_} offen offset:3072 {cfg.bpol.replace('+', ' ')}"])
    sends = []
    for tau in range(1, 4):
        for pr in range(4):
            b = ACC + 4 * (tau * 7 + 2 * pr)
            sends += [f"v_cvt_pk_bf16_f32 v{b+i}, v{b+2*i}, v{b+2*i+1}\nv_cvt_pk_bf16_f32 v{b+i+1}, v{b+2*i+2}, v{b+2*i+3}" for i in range(0, 4 if pr < 3 else 2, 2)]
            sends[-1] += (f"\nbuffer_store_dwordx4 {vr(b,4)}, v14, {S(SWS)}, s{4+tau} offen offset:{pr*1024} {cfg.bpol.replace('+', ' ')}" if pr < 3 else
                          f"\nbuffer_store_dwordx2 {vr(b,2)}, v15, {S(SWS)}, s{4+tau} offen offset:3072 {cfg.bpol.replace('+', ' ')}")
    if cfg.twopass:
        assert not cfg.uneven
        gloop("L_o", 8, 7, oreads, {2: " vmcnt(0)"})
        W0 = 216
        def keep(u, r): return [x.replace(vr(FB+44*(u&1),2) + ",", vr(W0+4*(u&3),2) + ",").replace(vr(FB+44*(u&1)+2,2) + ",", vr(W0+4*(u&3)+2,2) + ",") for x in r]
        def oagain(p, buf): return [f"ds_read_b128 {vr(FB+44*buf+16+4*qt,4)}, v14 offset:{(4+p)*7168 + qt*1024}" for qt in range(7)]
        for p in range(4):
            a("s_waitcnt lgkmcnt(0)\ns_barrier")
            if p == 0:
                for i in range(4): a(f"v_mov_b32 v{W0+i}, v{FB+i}")
            rd = keep(5 + p, oreads(5 + p)) if p < 3 else oagain(0, 0)
            weave(a, [m for m in gmf(p) if int(re.search(r'v\[(\d+)', m).group(1)) >= ACC + 28], rd)
        stamp(6)
        for p in range(4):
            fb = FB + 44 * (p & 1)
            a("s_waitcnt lgkmcnt(0)")
            rd = oagain(p + 1, (p + 1) & 1) if p < 3 else [""] * 7
            mf = [f"v_mfma_f32_16x16x32_bf16 {vr(ACC+4*qt,4)}, {vr(W0+4*p,4)}, {vr(fb+16+4*qt,4)}, {vr(ACC+4*qt,4)}" for qt in range(7)]
            for n, m in enumerate(mf):
                a(m); a(rd[n])
                if sends and (p or n >= 2): a(sends.pop(0))
        for x in sends: a(x)
    else:
        gloop("L_o", 8, "s101", oreads, {2: " vmcnt(0)"})
        stamp(6)
        jitter(3)
        for x in sends: a(x)
    a(f"v_cmp_eq_u32 vcc, 0, {VTAG}\ns_cbranch_vccz L_pt2_out")
    poll("L_pt2", SDBG, "v4", VTAG, "eq", "0")
    a(f"""
    s_waitcnt lgkmcnt(0) vmcnt(0)
    buffer_load_dword v9, v6, {S(SWS)}, 0 offen {cfg.xpol.replace('+', ' ')}
    s_mov_b64 exec, 1
    buffer_store_dword {VTAG}, v5, {S(SWS)}, 0 offen {cfg.xpol.replace('+', ' ')}
    s_mov_b64 exec, -1
    """)
    stamp(1)
    jitter(6)
    a(f"""
    s_mov_b32 s30, 7
    s_mov_b32 {sU}, 0
    s_waitcnt vmcnt(1)
    L_rx:
    v_cmp_eq_u32 vcc, {VTAG}, v9
    s_add_u32 {sU}, {sU}, 1
    s_nop 0
    s_cmp_ge_u32 {sU}, {cfg.spin}
    s_cselect_b32 s31, 7, vcc_lo
    s_and_b32 s31, s31, s30
    s_andn2_b32 s30, s30, s31
    """)
    for s_ in range(3):
        a(f"s_bitcmp1_b32 s31, {s_}\ns_cbranch_scc0 L_rx_l{s_}")
        for x in box_loads(s_): a(x)
        a(f"L_rx_l{s_}:")
    a(f"""
    s_cmp_eq_u32 s30, 0
    s_cbranch_scc1 L_rx_done
    buffer_load_dword v9, v6, {S(SWS)}, 0 offen {cfg.xpol.replace('+', ' ')}
    s_waitcnt vmcnt(0)
    s_branch L_rx
    L_rx_done:
    s_waitcnt vmcnt(0)
    """)
    stamp(2)
    for pr in range(4):
        b = ACC + 8 * pr
        for s_ in range(3):
            for i in range(8 if pr < 3 else 4):
                a(f"v_dot2_f32_bf16 v{b+i}, v{RB+16*s_+4*pr+(i>>1)}, s{12+(i&1)}, v{b+i}")
        a(f"s_mov_b32 s35, {pr*131072}")
        if pr < 3:
            for i in range(4): a(f"v_cvt_pk_bf16_f32 v{b+i}, v{b+2*i}, v{b+2*i+1}")
            a(f"s_nop 1\nv_permlane16_swap_b32 v{b}, v{b+2}\nv_permlane16_swap_b32 v{b+1}, v{b+3}")
            a(f"buffer_store_dwordx4 {vr(b,4)}, v8, {S(SOUT)}, s35 offen")
        else:
            a(f"s_nop 1\nv_cvt_pk_bf16_f32 v{b}, v{b}, v{b+1}\nv_cvt_pk_bf16_f32 v{b+1}, v{b+2}, v{b+3}\nbuffer_store_dwordx2 {vr(b,2)}, v7, {S(SOUT)}, s35 offen")
    if cfg.stamps: a("s_waitcnt vmcnt(0)")
    stamp(7)
    stamp_store(4, 256)
    a("L_end:\ns_endpgm")
    for stub, back, par, NQ in stubs:
        a(f"{stub}:\ns_call_b64 s[98:99], L_rare{par}{NQ}\ns_branch {back}")
    for NQ in (2, 1):
        for par in range(2):
            a(f"L_rare{par}{NQ}:")
            for qi in range(NQ):
                sb = SS + 16 * par + 8 * qi
                for x in tree(MX, T0, sb, 8): a(x)
                across("v_max_f32", MX, T0)
                a(f"v_max_f32 v{MX}, 0, v{MX}\nv_exp_f32 v{T0}, -v{MX}")
                for i in range(8): a(f"v_sub_f32 v{sb+i}, v{sb+i}, v{MX}")
                for i in range(4): a(f"v_sub_f32 v{NM+4*qi+i}, v{NM+4*qi+i}, v{MX}")
                a(f"v_mul_f32 v{L_+qi}, v{L_+qi}, v{T0}")
                for i in range(32): a(f"v_mul_f32 v{OA+32*qi+i}, v{OA+32*qi+i}, v{T0}")
            a("s_setpc_b64 s[98:99]")
    return re.sub(r" +\n", "\n", a.text().replace("offen  lds", "offen lds")).replace(" KVPOL", " " + cfg.kvpol.replace("+", " ") if cfg.kvpol else "")

HEADER = """; Kernarg layout (104 bytes, pointers only, base s[0:1]):
"""

def build(cfg):
    K = NAME + "_kernel"
    body = kernel_head(K) + kernel(cfg) + kernel_desc(K, 248, 248)
    tgt = '.amdgcn_target "amdgcn-amd-amdhsa--gfx950"\n'
    if cfg.echo:
        from gen2 import echo_kernel
        hdr = f"; @launch kernel={K} grid=(256,1,1) block=(512,1,1) lds=163840\n; @launch kernel=echo_kernel grid=(1,1,1) block=(64,1,1) lds=0\n"
        return hdr + tgt + kernel_head("echo_kernel") + echo_kernel(cfg) + kernel_desc("echo_kernel", 8, 8) + body
    return HEADER + "; @launch grid=(256,1,1) block=(512,1,1) lds=163840\n" + tgt + body

if __name__ == "__main__":
    cfg = Cfg()
    for kv in sys.argv[2:]:
        k, v = kv.split("=")
        assert hasattr(cfg, k), k
        setattr(cfg, k, {"True": True, "False": False}.get(v, v))
    open(sys.argv[1], "w").write(build(cfg))
```
